```python
import torch

def _softmax(x, axis=-1):
    return torch.softmax(x, dim=axis)
def _gelu(x):
    return torch.nn.functional.gelu(x, approximate="tanh")
def _silu(x):
    return torch.nn.functional.silu(x)
def _sigmoid(x):
    return torch.sigmoid(x)
def _layernorm(x, axis=-1, eps=1e-5):
    m = x.mean(dim=axis, keepdim=True)
    v = x.var(dim=axis, keepdim=True, unbiased=False)
    return (x - m) / torch.sqrt(v + eps)
def _scatter_add(tgt, idx, src, axis=0):
    return tgt.clone().index_add_(axis, idx, src)
def _segment_sum(src, seg, n):
    out = torch.zeros((n,) + src.shape[1:], dtype=src.dtype)
    return out.index_add_(0, seg, src)
def _pad(x, pw):
    flat = tuple(v for pair in reversed(pw) for v in pair)
    return torch.nn.functional.pad(x, flat)

kernel_name = 'gated_mix__ssm_conv_s4__geglu_ffn__prompt'

def setup_inputs():

    _w = (lambda a: (lambda t: t.to(torch.bfloat16) if t.is_floating_point() else t)(torch.as_tensor(a)))
    def _A_setup():
        B, L, D, N = 1, 2048, 448, 256
        A_re = -(lambda _x: torch.exp(torch.as_tensor(_x)))((lambda *s: torch.randn(*s, dtype=torch.bfloat16) * 3.2)(D, N))
        A_im = torch.pi * (lambda *s: torch.randn(*s, dtype=torch.bfloat16) * 0.05)(D, N)
        B_re = (lambda *s: torch.randn(*s, dtype=torch.bfloat16) * 0.05)(D, N)
        B_im = (lambda *s: torch.randn(*s, dtype=torch.bfloat16) * 0.05)(D, N)
        C_re = (lambda *s: torch.randn(*s, dtype=torch.bfloat16) * 0.1)(D, N)
        C_im = (lambda *s: torch.randn(*s, dtype=torch.bfloat16) * 0.1)(D, N)
        log_dt = (lambda *s: torch.randn(*s, dtype=torch.bfloat16) * 0.05)(D) * 0.5 - 4.0
        Dskip = (lambda *s: torch.randn(*s, dtype=torch.bfloat16) * 0.05)(D)
        return {
            "u": _w((lambda *s: torch.randn(*s, dtype=torch.bfloat16) * 0.05)(B, L, D)),
            "A_re": _w(A_re),
            "A_im": _w(A_im),
            "B_re": _w(B_re),
            "B_im": _w(B_im),
            "C_re": _w(C_re),
            "C_im": _w(C_im),
            "log_dt": _w(log_dt),
            "Dskip": _w(Dskip),
        }
    _A_in = _A_setup()

    def _B_setup():
        B, S, D, F = 1, 2048, 448, 1792
        return {
            "x": _w((lambda *s: torch.randn(*s, dtype=torch.bfloat16) * 0.05)(B, S, D)),
            "w_gate": _w((lambda *s: torch.randn(*s, dtype=torch.bfloat16) * 0.05)(D, F)),
            "w_up": _w((lambda *s: torch.randn(*s, dtype=torch.bfloat16) * 0.05)(D, F)),
            "w_down": _w((lambda *s: torch.randn(*s, dtype=torch.bfloat16) * 0.05)(F, D)),
        }
    _B_in = _B_setup()

    return {
        "A_u": _A_in["u"],
        "A_A_re": _A_in["A_re"],
        "A_A_im": _A_in["A_im"],
        "A_B_re": _A_in["B_re"],
        "A_B_im": _A_in["B_im"],
        "A_C_re": _A_in["C_re"],
        "A_C_im": _A_in["C_im"],
        "A_log_dt": _A_in["log_dt"],
        "A_Dskip": _A_in["Dskip"],
        "B_x": _B_in["x"],
        "B_w_gate": _B_in["w_gate"],
        "B_w_up": _B_in["w_up"],
        "B_w_down": _B_in["w_down"],
        "gate_w": _w((lambda *s: torch.randn(*s, dtype=torch.bfloat16) * 0.05)(448) * 16.0),
    }

def reference(A_u, A_A_re, A_A_im, A_B_re, A_B_im, A_C_re, A_C_im, A_log_dt, A_Dskip, B_x, B_w_gate, B_w_up, B_w_down, gate_w):
    def _A_ref(u, A_re, A_im, B_re, B_im, C_re, C_im, log_dt, Dskip):
        Bsz, L, D = u.shape
        dt = torch.exp(log_dt)[:, None]
        A = A_re + 1j * A_im
        Bc = B_re + 1j * B_im
        Cc = C_re + 1j * C_im
        logdA = dt * A
        dB = dt * Bc
        l = (lambda x, dt: x.to(dt))(torch.arange(L), A_re.dtype)
        P = torch.exp(logdA[:, :, None] * l[None, None, :])
        K = torch.einsum("dn,dnl,dn->dl", Cc, P, dB).real
        L2 = 2 * L
        Kp = _pad(K, ((0, 0), (0, L)))
        up = (lambda x, *d: x.permute(*d))(u, 0, 2, 1)
        up = _pad(up, ((0, 0), (0, 0), (0, L)))
        Kf = (lambda x, axes=(-2,-1): torch.fft.rfft2(x.float(), dim=axes))(Kp[:, None, :], axes=(-2, -1))
        Uf = (lambda x, axes=(-2,-1): torch.fft.rfft2(x.float(), dim=axes))(up[:, :, None, :], axes=(-2, -1))
        Yf = Uf * Kf[None, :, :, :]
        y = (lambda x, s, axes=(-2,-1): torch.fft.irfft2(x, s=s, dim=axes).to(torch.bfloat16))(Yf, (1, L2), axes=(-2, -1))[:, :, 0, :L]
        y = (lambda x, *d: x.permute(*d))(y, 0, 2, 1) + u * Dskip[None, None, :]
        return y

    def _B_ref(x, w_gate, w_up, w_down):
        return (_gelu(x @ w_gate) * (x @ w_up)) @ w_down

    x = A_u
    g = _sigmoid((x * gate_w).sum(-1, keepdims=True))
    a = _A_ref(x, A_A_re, A_A_im, A_B_re, A_B_im, A_C_re, A_C_im, A_log_dt, A_Dskip)
    b = _B_ref(x, B_w_gate, B_w_up, B_w_down)
    return g * a + (1 - g) * b
```

```python
import re

REG_RE = re.compile(r'^(-|\|)?(abs\()?([vas])(\d+|\[(\d+):(\d+)\])\)?\|?$')

def parse_reg(op):
    op = op.strip()
    if op == 'vcc': return [('s', 106), ('s', 107)]
    if op == 'vcc_lo': return [('s', 106)]
    if op == 'vcc_hi': return [('s', 107)]
    if op == 'exec': return [('s', 126), ('s', 127)]
    if op == 'm0': return [('s', 124)]
    m = REG_RE.match(op)
    if not m: return []
    t = m.group(3)
    if m.group(5) is not None:
        return [(t, i) for i in range(int(m.group(5)), int(m.group(6)) + 1)]
    return [(t, int(m.group(4)))]

TRANS = ('v_exp_f32', 'v_log_f32', 'v_rcp_f32', 'v_rsq_f32', 'v_sqrt_f32', 'v_sin_f32', 'v_cos_f32')
EXEC = [('s', 126), ('s', 127)]
VCC = [('s', 106), ('s', 107)]
M0 = [('s', 124)]

class I:
    __slots__ = ('text', 'op', 'kind', 'rd', 'wr', 'passes', 'srcA', 'srcB', 'srcC', 'tok', 'wide', 'data', 'dpp', 'note')
    def __init__(self, text, tok=None):
        self.text = text; self.tok = tok; self.note = None
        self.passes = 0; self.srcA = self.srcB = self.srcC = (); self.wide = False; self.data = (); self.dpp = False
        t = text.split(';')[0].strip()
        if t.endswith(':') or t.startswith('.') or not t:
            self.op = ''; self.kind = 'label' if t.endswith(':') else 'dir'; self.rd = set(); self.wr = set(); return
        parts = t.split(None, 1)
        op = parts[0]
        for suf in ('_e32', '_e64', '_dpp', '_sdwa'):
            if op.endswith(suf):
                if suf == '_dpp': self.dpp = True
                op = op[:-len(suf)]
        self.op = op
        rest = parts[1] if len(parts) > 1 else ''
        ops = []; depth = 0; cur = ''
        for ch in rest:
            if ch == '[': depth += 1
            if ch == ']': depth -= 1
            if ch == ',' and depth == 0: ops.append(cur.strip()); cur = ''
            else: cur += ch
        if cur.strip(): ops.append(cur.strip())
        mods = ''
        if ops:
            last = ops[-1].split(None, 1)
            ops[-1] = last[0]
            mods = last[1] if len(last) > 1 else ''
        R = [parse_reg(o) for o in ops]
        allr = lambda lst: set(x for l in lst for x in l)
        rd = set(); wr = set()
        if op.startswith('v_mfma'):
            self.kind = 'mfma'
            self.passes = 8 if '32x32x16' in op else 4 if '16x16x32' in op else None
            assert self.passes, op
            wr = set(R[0]); self.srcA = set(R[1]); self.srcB = set(R[2]); self.srcC = set(R[3]); rd = allr(R[1:])
        elif op.startswith('ds_'):
            self.kind = 'ds'
            if op.startswith('ds_read') or op.startswith('ds_bpermute') or op.startswith('ds_swizzle'):
                wr = set(R[0]); rd = allr(R[1:])
                if 'd16' in op: rd |= wr
            else:
                rd = allr(R)
        elif op.startswith('buffer_load') or op.startswith('global_load'):
            if ' lds' in (' ' + mods) or '_lds_' in op:
                self.kind = 'dma'; rd = allr(R) | set(M0)
            else:
                self.kind = 'vload'; wr = set(R[0]); rd = allr(R[1:])
                if 'd16' in op: rd |= wr
        elif op.startswith('buffer_store') or op.startswith('global_store'):
            self.kind = 'vstore'; rd = allr(R)
            self.data = set(R[0] if op.startswith('buffer') else R[1])
            self.wide = 'x4' in op or 'x3' in op
        elif op.startswith('buffer_') or op.startswith('global_'):
            self.kind = 'vstore'; rd = allr(R)
        elif op.startswith('s_load') or op in ('s_memtime', 's_memrealtime'):
            self.kind = 'smem'; wr = set(R[0]); rd = allr(R[1:])
        elif op == 's_waitcnt': self.kind = 'wait'
        elif op == 's_barrier': self.kind = 'barrier'
        elif op == 's_nop': self.kind = 'nop'
        elif op in ('s_branch', 's_endpgm', 's_setprio', 's_sleep') or op.startswith('s_cbranch'):
            self.kind = 'branch'
            if 'vcc' in op: rd = set(VCC)
            if 'exec' in op: rd = set(EXEC)
        elif op.startswith('s_cmp') or op.startswith('s_bitcmp'):
            self.kind = 'salu'; rd = allr(R)
        elif op.startswith('s_'):
            self.kind = 'salu'; wr = set(R[0]); rd = allr(R[1:])
            if 'saveexec' in op: wr |= set(EXEC); rd |= set(EXEC)
            if op in ('s_addk_i32', 's_mulk_i32'): rd |= wr
        elif op.startswith('v_'):
            self.kind = 'trans' if op in TRANS else 'valu'
            if op.startswith('v_permlane'):
                wr = allr(R); rd = allr(R)
            else:
                wr = set(R[0]); rd = allr(R[1:])
                if op.startswith('v_fmac') or op.startswith('v_dot2c') or op.startswith('v_pk_fmac') or op.startswith('v_writelane') or 'mixlo' in op or 'mixhi' in op or self.dpp:
                    rd |= wr
                if op.startswith('v_add_co') or op.startswith('v_sub_co') or op.startswith('v_addc_co'):
                    wr |= set(R[1]); rd = allr(R[2:])
                if op.startswith('v_cmpx'): wr |= set(EXEC)
                if op.startswith('v_cndmask') and len(R) == 3: rd |= set(VCC)
        else:
            raise ValueError('unknown op: ' + text)
        self.rd = rd; self.wr = wr

    def cost(self):
        k = self.kind
        if k in ('label', 'dir', 'mark'): return 0
        if k == 'trans': return 8
        if k == 'mfma': return 8
        if k == 'nop': return 4 * (int(self.text.split()[1]) + 1)
        return 4

class Mark(I):
    __slots__ = ('vm', 'lg')
    def __init__(self, vm=None, lg=None):
        self.text = ''; self.op = ''; self.kind = 'mark'; self.rd = set(); self.wr = set(); self.tok = None
        self.vm = vm; self.lg = lg; self.note = None
        self.passes = 0; self.srcA = self.srcB = self.srcC = (); self.wide = False; self.data = (); self.dpp = False

class S(list):
    cycles = 0
    def __call__(self, text, tok=None):
        for line in text.split('\n'):
            line = line.strip()
            if line and not line.startswith(';'):
                self.append(I(line, tok))
        return self
    def wait_vm(self, tok):
        self.append(Mark(vm=tok)); return self
    def wait_lg(self, tok='*'):
        self.append(Mark(lg=tok)); return self
    def add(self, other):
        self.extend(other); return self

VM_KINDS = ('vload', 'vstore', 'dma')

def insert_waits(ins):
    out = []; vq = []; lq = []
    for x in ins:
        nv = None; nl = None
        if x.kind == 'wait':
            m = re.search(r'vmcnt\((\d+)\)', x.text)
            if m: vq = vq[len(vq) - min(len(vq), int(m.group(1))):]
            m = re.search(r'lgkmcnt\((\d+)\)', x.text)
            if m:
                n = int(m.group(1)); assert n == 0 or not any(e.kind == 'smem' for e in lq)
                lq = lq[len(lq) - min(len(lq), n):]
            out.append(x); continue
        touched = x.rd | x.wr
        vm_t = x.vm if x.kind == 'mark' else None
        lg_t = x.lg if x.kind == 'mark' else None
        def match(e, t):
            if t is None: return False
            if t == '*': return True
            return e.tok in t if isinstance(t, (tuple, list, set)) else e.tok == t
        for idx in range(len(vq) - 1, -1, -1):
            e = vq[idx]
            if (e.wr & touched) or match(e, vm_t):
                nv = len(vq) - 1 - idx; break
        for idx in range(len(lq) - 1, -1, -1):
            e = lq[idx]
            same_q = x.kind == 'ds' and e.kind == 'ds' and not (e.wr & x.rd)
            if ((e.wr & touched) and not same_q) or match(e, lg_t):
                nl = len(lq) - 1 - idx; break
        if nl is not None and any(e.kind == 'smem' for e in lq): nl = 0
        if nv is not None or nl is not None:
            t = 's_waitcnt'
            if nv is not None:
                nv = min(nv, 62); t += f' vmcnt({nv})'; vq = vq[len(vq) - nv:] if nv else []
            if nl is not None:
                nl = min(nl, 14); t += f' lgkmcnt({nl})'; lq = lq[len(lq) - nl:] if nl else []
            if out and out[-1].kind == 'wait' and out[-1].note == 'auto':
                p = out.pop().text
                mv = re.search(r'vmcnt\((\d+)\)', p); ml = re.search(r'lgkmcnt\((\d+)\)', p)
                if mv: nv = int(mv.group(1)) if nv is None else min(nv, int(mv.group(1)))
                if ml: nl = int(ml.group(1)) if nl is None else min(nl, int(ml.group(1)))
                t = 's_waitcnt' + (f' vmcnt({nv})' if nv is not None else '') + (f' lgkmcnt({nl})' if nl is not None else '')
            w = I(t); w.note = 'auto'; out.append(w)
        if x.kind == 'mark': continue
        if x.kind in VM_KINDS: vq.append(x)
        if x.kind in ('ds', 'smem'): lq.append(x)
        out.append(x)
    return out

def need_states(p, c):
    n = 0
    pk, ck = p.kind, c.kind
    vwr = {r for r in p.wr if r[0] in 'va'}
    swr = {r for r in p.wr if r[0] == 's'}
    isvalu = lambda k: k in ('valu', 'trans')
    if pk == 'mfma':
        big = 12 if p.passes == 8 else 8
        if ck == 'mfma':
            if p.wr & (c.srcA | c.srcB): n = max(n, big)
            if p.wr & c.srcC and not (p.wr == c.srcC and p.passes == c.passes): n = max(n, 10 if p.passes == 8 else 6)
            if p.wr & c.wr and not (p.wr == c.wr and p.wr == c.srcC and p.passes == c.passes) and not (p.wr & c.srcC):
                n = max(n, big)
        elif isvalu(ck) or ck in ('ds', 'vload', 'vstore', 'dma'):
            if p.wr & (c.rd | c.wr): n = max(n, big)
            if p.srcC & c.wr: n = max(n, 7 if p.passes == 8 else 3)
    if isvalu(pk):
        if ck == 'mfma' and vwr & c.rd: n = max(n, 2)
        if ck == 'mfma' and swr & set(EXEC): n = max(n, 4)
        if ck in VM_KINDS and swr & c.rd: n = max(n, 5)
        if isvalu(ck):
            if c.dpp and vwr & c.rd: n = max(n, 2)
            if c.dpp and swr & set(EXEC): n = max(n, 5)
            if c.op.startswith('v_permlane') and vwr & c.rd: n = max(n, 2)
            if c.op in ('v_readfirstlane_b32', 'v_readlane_b32') and vwr & c.rd: n = max(n, 1)
            if c.op in ('v_readlane_b32', 'v_writelane_b32') and swr & c.rd: n = max(n, 4)
            if swr & c.rd: n = max(n, 2)
            if pk == 'trans' and vwr & c.rd: n = max(n, 1)
            if p.op.startswith('v_dot2') and vwr & (c.rd | c.wr) and c.op != p.op: n = max(n, 3)
            if p.op.startswith('v_dot2') and vwr & c.rd and c.op == p.op: n = max(n, 3)
            if ('sdwa' in p.text or 'op_sel' in p.text and not p.op.startswith('v_pk')) and vwr & (c.rd | c.wr): n = max(n, 1)
        if p.op.startswith('v_dot2') and ck in ('ds', 'vstore', 'vload', 'mfma') and vwr & c.rd: n = max(n, 3)
        if pk == 'trans' and ck in ('ds', 'vstore', 'vload') and vwr & c.rd: n = max(n, 1)
        if ck in ('salu', 'branch', 'smem') and swr & c.rd: n = max(n, 1)
    if pk == 'vstore' and p.wide and p.data & c.wr: n = max(n, 2)
    if pk == 'salu' and set(M0) & p.wr and ck == 'dma': n = max(n, 1)
    return n

def states_of(x):
    if x.kind in ('label', 'dir', 'mark'): return 0
    if x.kind == 'nop': return int(x.text.split()[1]) + 1
    return 1

def insert_nops(ins, verbose=False):
    out = []; added = 0
    for c in ins:
        if c.kind not in ('label', 'dir', 'nop', 'wait', 'barrier'):
            dist = 0; need = 0
            for p in reversed(out):
                if dist >= 12: break
                r = need_states(p, c) - dist
                if r > need: need = r
                dist += states_of(p)
            if need > 0:
                added += need
                if verbose: print('nop', need, 'before', c.text)
                x = I(f's_nop {need-1}'); x.note = 'auto'; out.append(x)
        out.append(c)
    return out, added

def estimate(ins):
    t = 0; mf = 0
    for x in ins:
        if x.kind == 'mfma':
            t = max(t, mf); mf = t + 4 * x.passes; t += 8
        else:
            t += x.cost()
    return max(t, mf)

def glued(x):
    return x.kind == 'label' or x.op.startswith('s_cselect') or x.op.startswith('s_cbranch') or x.op in ('s_addc_u32', 's_subb_u32')

def weave(main, side, budget=None, start=0, end=None):
    mf = [i for i, x in enumerate(main) if x.kind == 'mfma']
    end = len(mf) if end is None else end
    slots = mf[start:end]
    total = sum(x.cost() for x in side)
    out = S(); si = 0; acc = 0.0; done = 0
    per = total / max(1, len(slots))
    slotset = {p: k for k, p in enumerate(slots)}
    for i, x in enumerate(main):
        out.append(x)
        if i in slotset:
            acc += per
            last = slotset[i] == len(slots) - 1
            while si < len(side) and (last or glued(side[si]) or done + side[si].cost() / 2 <= acc):
                out.append(side[si]); done += side[si].cost(); si += 1
    assert si == len(side)
    return out

def finalize(ins, verbose=False):
    a = insert_waits(ins)
    b, n = insert_nops(a, verbose)
    return b, n

def text(ins):
    return '\n'.join(('' if x.kind == 'label' else '    ') + x.text for x in ins if x.kind != 'mark')


def lat(p, c):
    k = p.kind
    if k == 'valu': return 10
    if k == 'trans': return 14
    if k == 'salu': return 4
    if k == 'ds': return 110
    if k == 'vload': return 400
    if k == 'smem': return 200
    if k == 'mfma':
        if c.kind == 'mfma' and p.wr == c.srcC and not (p.wr & (c.srcA | c.srcB)): return 0
        return 4 * p.passes + 20
    return 4

LIM = {'mark': 1, 'barrier': 1, 'wait': 1, 'dma': 4, 'vload': 4, 'vstore': 8}
def schedule(ins, window=32):
    n = len(ins)
    cls = []
    for x in ins:
        k = x.kind
        if k in ('branch', 'label', 'dir', 'nop'): c = ('fence',)
        elif k in ('mark', 'barrier', 'wait'): c = ('ds', 'vm', 'smem')
        elif k in VM_KINDS: c = ('vm',)
        elif k == 'smem': c = ('smem', 'salu') if x.op.startswith('s_load') else ('fence',)
        elif k in ('ds', 'salu', 'mfma'): c = (k,)
        else: c = ()
        if set(EXEC) & x.wr: c = ('fence',)
        cls.append(c)
    preds = [[] for _ in range(n)]
    lastw = {}; readers = {}; lastc = {}; fence = -1; since = []
    for i, x in enumerate(ins):
        P = {}
        def add(j, l):
            if j is not None and j >= 0: P[j] = max(P.get(j, 0), l)
        for r in x.rd:
            j = lastw.get(r)
            if j is not None: add(j, lat(ins[j], x))
        for r in x.wr:
            j = lastw.get(r)
            if j is not None: add(j, lat(ins[j], x) if ins[j].kind in ('mfma',) and x.kind != 'mfma' else 0)
            for j in readers.get(r, ()): add(j, 0)
        if 'fence' in cls[i]:
            for j in since: add(j, 0)
            add(fence, 0); fence = i; since = []
        else:
            add(fence, 0); since.append(i)
            for c in cls[i]:
                j = lastc.get(c)
                add(j, 100 if (x.kind == 'mark' and x.lg == '*' and j is not None and ins[j].kind == 'ds') else 0); lastc[c] = i
        for r in x.rd: readers.setdefault(r, []).append(i)
        for r in x.wr: lastw[r] = i; readers[r] = []
        P.pop(i, None)
        preds[i] = list(P.items())
    issued = [None] * n
    out = S(); t = 0; mf = 0; head = 0
    while head < n:
        best = None; bestkey = None; seen = 0; i = head
        while i < n and seen < window:
            if issued[i] is None:
                seen += 1
                ok = True; rdy = 0
                for j, l in preds[i]:
                    if issued[j] is None: ok = False; break
                    rdy = max(rdy, issued[j] + l)
                if ok and seen > LIM.get(ins[i].kind, window): ok = False
                if ok:
                    x = ins[i]
                    if x.kind == 'mfma': rdy = max(rdy, mf - 3)
                    if x.op.startswith('v_pk_') and x.op.endswith('f32'): rdy = max(rdy, mf)
                    if rdy <= t: key = (0, 0 if x.kind == 'mfma' else 1, i)
                    else: key = (1, rdy, i)
                    if bestkey is None or key < bestkey: best, bestkey = i, key
            i += 1
        x = ins[best]
        if bestkey[0] == 1: t = bestkey[1]
        if x.kind == 'mfma':
            t = max(t, mf); mf = t + 4 * x.passes
        issued[best] = t
        t += x.cost()
        out.append(x)
        while head < n and issued[head] is not None: head += 1
    out.cycles = max(t, mf)
    return out
```

```python
import sys, math, struct
from asmlib import *

NAME = "gated_mix__ssm_conv_s4__geglu_ffn__prompt"
OPT = dict(stamp=0, kb_mi=2, rotD=1, cl1=1, cl2=0, nst=5, sched=1)
for a in sys.argv[2:]:
    k, v = a.split('='); OPT[k] = int(v)

def fbits(x): return struct.unpack('<I', struct.pack('<f', x))[0]
def hx(x): return hex(x & 0xffffffff)
vr = lambda a, n: f"v[{a}:{a+n-1}]" if n > 1 else f"v{a}"
ar = lambda a, n: f"a[{a}:{a+n-1}]" if n > 1 else f"a{a}"
sr = lambda a, n: f"s[{a}:{a+n-1}]" if n > 1 else f"s{a}"

NHELP = 8; NMAIN = 224
WS_F1 = 0; WS_F2 = 28*128; WS_F3 = 60*128
WS_G = 0x4000; WS_ST = 0x18000; WS_UT = 0x40000; WS_AT = 0x200000; WS_H = 0x400000; WS_END = 0xB00000
SLOT = 16384; NSLOT = 7
KF = NSLOT*SLOT; KFS = 4224
SCR = KF + 2*KFS; SCRW = 8704
UTS = SCR; UTSW = 2304
UA = SCR + 4*UTSW; UAS = 4288
YA = UA + 2*UAS; YAS = 8704
LDS_SIZE = 163840
assert YA + 2*YAS <= LDS_SIZE

sU, sAre, sAim, sBre, sBim, sCre, sCim, sLdt = 16, 18, 20, 22, 24, 26, 28, 30
sDsk, sBx, sWg, sWu, sWdn, sGw, sOut, sDbg, sWs = 32, 34, 36, 38, 40, 42, 44, 46, 48
rX, rW, rD, rWS, rO = 52, 56, 60, 64, 68
sW = 3
sC = 4
sXo = 5
sWo = 6
sKb = 7
sKw = 8
sM0x = 9
sM0w = 10
sDo = 11
sDq = 12
sT0, sT1, sT2 = 13, 14, 15
sTmp = 50
sHst = 72
sHld = 73
sHq = 74
sF1w, sF2w, sF3w = 75, 76, 77
sF1r, sF2r, sF3r, sF1g = 78, 79, 80, 81
sUTst, sGst, sUTld = 82, 83, 84
sATld, sGld, sOst = 85, 86, 87
sLDv, sDSv = 88, 89
sK0, sK1 = 16, 18
sSpin = 96
sHf = 97
sGC0 = 98
sXs, sXe, sWs_, sWe, sDs, sDe, sHs, sHe = 22, 23, 24, 25, 26, 27, 28, 29
STAMP0 = 16

vTid = 0; vL16 = 1; vFl = 2; vOne = 3
vXd = 4
vWd = 8
vDd = 12
vXr = 16
vWr = 24
vDr = 28
vLane = 32
vPoll = 33; vPollA = 34
vC1 = vT_C1 = 88
vFr = 36; vGr = 37; vYw = 38; vYr = 39; vYc = 40
vUo = 42
vUw = 43
vH2 = 44
vH1 = 45
vTwo = 46
vYk = 35
vWf = 48
vU = 72
vT = 80
ACC1 = 128; ACC2 = 192

stamps = []
def stamp(s, name):
    if OPT['stamp']:
        k = len(stamps); stamps.append(name)
        s(f"s_memtime {sr(100,2)}\ns_waitcnt lgkmcnt(0)\nv_writelane_b32 v47, s100, {k}")

slow = []
def poll(s, thr, voff, soff, srd=None, vdst=vPoll):
    srd = sr(rWS, 4) if srd is None else srd
    ld = f"buffer_load_dword v{vdst}, v{voff}, {srd}, {soff} offen sc1"
    k = len(slow)
    chk = S()
    chk(f"v_cmp_gt_u32 vcc, {thr}, v{vdst}\ns_cbranch_vccnz L_slow{k}\nL_back{k}:")
    slow.append(f"""L_slow{k}:
    s_mov_b32 s{sSpin}, 0
L_spin{k}:
    {ld}
    s_add_u32 s{sSpin}, s{sSpin}, 1
    s_cmp_gt_u32 s{sSpin}, 0x40000
    s_cbranch_scc1 L_back{k}
    s_waitcnt vmcnt(0)
    v_cmp_gt_u32 vcc, {thr}, v{vdst}
    s_nop 1
    s_cbranch_vccnz L_spin{k}
    s_branch L_back{k}""")
    return ld, chk

def prologue():
    s = S()
    s(f"""
    s_load_dwordx16 s[16:31], s[0:1], 0
    s_load_dwordx16 s[32:47], s[0:1], 64
    s_load_dwordx2 s[48:49], s[0:1], 128
    s_cmp_ge_u32 s2, {NHELP+NMAIN}
    s_cbranch_scc1 L_end
    s_cmp_lt_u32 s2, {NHELP}
    s_cbranch_scc1 L_helper
    v_lshrrev_b32 v{vT}, 6, v0
    v_and_b32 v{vLane}, 63, v0
    v_readfirstlane_b32 s{sW}, v{vT}
    s_sub_u32 s{sC}, s2, {NHELP}
    v_lshlrev_b32 v{vL16}, 4, v{vLane}
    """)
    s(f"""
    s_lshl_b32 s{sT0}, s{sC}, 10
    v_lshl_add_u32 v{vT+1}, v0, 2, s{sT0}
    """)
    x, j, mi, i, mb, fc, rb = 72, 73, 74, 75, 76, 77, 78
    X, J, MI, II, MB, FC, RB = 90, 91, 92, 93, 94, 95, 99
    s(f"""
    s_and_b32 s{X}, s{sC}, 7
    s_lshr_b32 s{J}, s{sC}, 3
    s_and_b32 s{MI}, s{J}, 3
    s_lshr_b32 s{II}, s{J}, 2
    s_lshr_b32 s{MB}, s{X}, 1
    s_lshl_b32 s{MB}, s{MB}, 2
    s_add_u32 s{MB}, s{MB}, s{MI}
    s_and_b32 s{sHf}, s{X}, 1
    s_mul_i32 s{FC}, s{sHf}, 7
    s_add_u32 s{FC}, s{FC}, s{II}
    s_lshl_b32 s{RB}, s{X}, 2
    s_add_u32 s{RB}, s{RB}, s{MI}
    s_mul_i32 s{sKb}, s{MI}, {OPT['kb_mi']}
    s_add_u32 s{sKb}, s{sKb}, s{II}
    s_sub_u32 s{sT0}, s{sKb}, 7
    s_cmp_ge_u32 s{sKb}, 7
    s_cselect_b32 s{sKb}, s{sT0}, s{sKb}
    s_lshl_b32 s{sM0x}, s{sW}, 12
    s_lshl_b32 s{sT0}, s{MB}, 2
    s_add_u32 s{sT0}, s{sT0}, s{sW}
    s_mul_i32 s{sXo}, s{sT0}, {32*896}
    s_lshl_b32 s{sT1}, s{sKb}, 7
    s_add_u32 s{sXo}, s{sXo}, s{sT1}
    s_lshr_b32 s{sT0}, s{sW}, 1
    s_lshl_b32 s{sT1}, s{sKb}, 1
    s_add_u32 s{sT1}, s{sT1}, s{sT0}
    s_mul_i32 s{sWo}, s{sT1}, {32*3584}
    s_lshl_b32 s{sT1}, s{FC}, 7
    s_add_u32 s{sWo}, s{sWo}, s{sT1}
    s_and_b32 s{sT1}, s{sW}, 1
    s_lshl_b32 s{sM0w}, s{sT1}, 13
    s_lshl_b32 s{sT0}, s{sT0}, 12
    s_add_u32 s{sM0w}, s{sM0w}, s{sT0}
    """)
    a, b, c_, d = vT+2, vT+3, vT+4, vT+5
    s(f"""
    v_lshrrev_b32 v{a}, 3, v{vLane}
    v_and_b32 v{b}, 7, v{vLane}
    v_lshrrev_b32 v{c_}, 4, v{vLane}
    v_xor_b32 v{d}, v{b}, v{c_}
    v_lshlrev_b32 v{d}, 4, v{d}
    v_mov_b32 v{vT+6}, 896
    v_mad_u32_u24 v{vXd}, v{a}, v{vT+6}, v{d}
    v_xor_b32 v{d}, 64, v{d}
    v_mad_u32_u24 v{vXd+1}, v{a}, v{vT+6}, v{d}
    v_add_u32 v{vXd+2}, {2*(8*896-1024)}, v{vXd}
    v_add_u32 v{vXd+3}, {3*(8*896-1024)}, v{vXd+1}
    v_add_u32 v{vXd+1}, {8*896-1024}, v{vXd+1}
    v_and_b32 v{c_}, 1, v{c_}
    s_lshl_b32 s{sT1}, s{sT1}, 2
    v_lshl_or_b32 v{d}, v{c_}, 1, s{sT1}
    v_xor_b32 v{d}, v{b}, v{d}
    v_lshlrev_b32 v{d}, 4, v{d}
    v_mov_b32 v{vT+7}, 3584
    v_mad_u32_u24 v{vWd}, v{a}, v{vT+7}, v{d}
    v_add_u32 v{vWd+1}, {1*(8*3584-1024)}, v{vWd}
    v_add_u32 v{vWd+2}, {2*(8*3584-1024)}, v{vWd}
    v_add_u32 v{vWd+3}, {3*(8*3584-1024)}, v{vWd}
    v_lshlrev_b32 v{d}, 2, v{c_}
    v_xor_b32 v{d}, v{b}, v{d}
    v_lshlrev_b32 v{d}, 4, v{d}
    v_mad_u32_u24 v{vDd}, v{a}, v{vT+6}, v{d}
    v_add_u32 v{vDd+1}, {1*(8*896-1024)}, v{vDd}
    v_add_u32 v{vDd+2}, {2*(8*896-1024)}, v{vDd}
    v_add_u32 v{vDd+3}, {3*(8*896-1024)}, v{vDd}
    """)
    P = ACC2
    s(f"""
    s_lshl_b32 s{sT0}, s{sC}, 2
    global_load_dword v{P+0}, v{vT+1}, {sr(sAre,2)}
    s_load_dword s{sLDv}, {sr(sLdt,2)}, s{sT0}
    global_load_dword v{P+1}, v{vT+1}, {sr(sAim,2)}
    s_load_dword s{sDSv}, {sr(sDsk,2)}, s{sT0}
    global_load_dword v{P+2}, v{vT+1}, {sr(sBre,2)}
    global_load_dword v{P+3}, v{vT+1}, {sr(sBim,2)}
    global_load_dword v{P+4}, v{vT+1}, {sr(sCre,2)}
    global_load_dword v{P+5}, v{vT+1}, {sr(sCim,2)}
    s_mov_b32 s{rX}, s{sU}
    s_mov_b32 s{rX+1}, s{sU+1}
    s_mov_b32 s{rX+2}, {2048*896}
    s_mov_b32 s{rX+3}, 0x20000
    s_bitcmp1_b32 s{sW}, 0
    s_cselect_b32 s{rW}, s{sWu}, s{sWg}
    s_cselect_b32 s{rW+1}, s{sWu+1}, s{sWg+1}
    s_mov_b32 s{rW+2}, {448*3584}
    s_mov_b32 s{rW+3}, 0x20000
    s_lshl_b32 s{sT0}, s{sKb}, 7
    s_sub_u32 s{sXs}, s{sXo}, s{sT0}
    s_add_u32 s{sXe}, s{sXs}, 896
    s_mul_i32 s{sT0}, s{sKb}, {64*3584}
    s_sub_u32 s{sWs_}, s{sWo}, s{sT0}
    s_add_u32 s{sWe}, s{sWs_}, {448*3584}
    """)
    a, b, c_, d, e = vT+2, vT+3, vT+4, vT+5, vT+6
    t = S()
    t(f"""
    s_mov_b32 s{rWS}, s{sWs}
    s_mov_b32 s{rWS+1}, s{sWs+1}
    s_mov_b32 s{rWS+2}, {WS_END}
    s_mov_b32 s{rWS+3}, 0x20000
    s_and_b32 s{sT1}, s{sW}, 1
    s_lshr_b32 s{sT2}, s{sW}, 1
    s_lshl_b32 s{sT0}, s{MB}, 1
    s_add_u32 s{sT0}, s{sT0}, s{sHf}
    s_lshl_b32 s{sTmp}, s{sGC0}, 2
    s_add_u32 s{sTmp}, s{sTmp}, s{sW}
    s_lshl_b32 s{sF1w}, s{sTmp}, 7
    s_lshl_b32 s{sTmp+1}, s{sT0}, 2
    s_add_u32 s{sF1w}, s{sF1w}, s{sTmp+1}
    s_lshl_b32 s{sUTst}, s{sTmp}, 11
    s_mul_i32 s{sTmp}, s{sT0}, 57344
    s_add_u32 s{sUTst}, s{sUTst}, s{sTmp}
    s_add_u32 s{sUTst}, s{sUTst}, {WS_UT}
    s_lshl_b32 s{sGst}, s{sT0}, 11
    s_lshl_b32 s{sTmp}, s{sGC0}, 8
    s_add_u32 s{sGst}, s{sGst}, s{sTmp}
    s_lshl_b32 s{sTmp}, s{sW}, 6
    s_add_u32 s{sGst}, s{sGst}, s{sTmp}
    s_add_u32 s{sGst}, s{sGst}, {WS_G}
    v_and_b32 v{a}, 31, v{vLane}
    v_lshlrev_b32 v{a}, 7, v{a}
    s_lshl_b32 s{sTmp}, s{sT2}, 13
    v_add_u32 v{a}, s{sTmp}, v{a}
    v_bfe_u32 v{b}, v{vLane}, 1, 3
    v_lshrrev_b32 v{c_}, 5, v{vLane}
    v_xor_b32 v{b}, v{b}, v{c_}
    v_lshl_add_u32 v{vXr}, v{b}, 4, v{a}
    v_xor_b32 v{vXr+1}, 32, v{vXr}
    v_xor_b32 v{vXr+2}, 64, v{vXr}
    v_xor_b32 v{vXr+3}, 96, v{vXr}
    v_add_u32 v{vXr+4}, 0x10000, v{vXr}
    v_add_u32 v{vXr+5}, 0x10000, v{vXr+1}
    v_add_u32 v{vXr+6}, 0x10000, v{vXr+2}
    v_add_u32 v{vXr+7}, 0x10000, v{vXr+3}
    v_bfe_u32 v{a}, v{vLane}, 2, 2
    v_and_b32 v{b}, 3, v{vLane}
    v_bfe_u32 v{d}, v{vLane}, 4, 1
    v_lshrrev_b32 v{e}, 1, v{a}
    v_lshl_or_b32 v{e}, v{d}, 1, v{e}
    s_lshl_b32 s{sTmp}, s{sT1}, 1
    v_xor_b32 v{e}, s{sTmp}, v{e}
    v_lshlrev_b32 v{e}, 5, v{e}
    v_lshl_add_u32 v{e}, v{b}, 3, v{e}
    v_lshl_add_u32 v{e}, v{a}, 7, v{e}
    v_lshl_add_u32 v{e}, v{c_}, 10, v{e}
    v_lshl_add_u32 v{vWr}, v{d}, 13, v{e}
    v_xor_b32 v{vWr+1}, 32, v{vWr}
    v_add_u32 v{vWr+2}, 0x10000, v{vWr}
    v_add_u32 v{vWr+3}, 0x10000, v{vWr+1}
    """)
    u = S()
    u(f"""
    v_mov_b32 v{vOne}, 1
    v_mov_b32 v{vTwo}, 2
    v_mov_b32 v{vC1}, {hx(fbits(-2*math.sqrt(2/math.pi)*math.log2(math.e)*0.044715))}
    v_cmp_eq_u32 vcc, 0, v{vLane}
    v_mov_b32 v{a}, 0x80000000
    v_cndmask_b32 v{vFl}, v{a}, 0, vcc
    s_mov_b32 s{rD}, s{sWdn}
    s_mov_b32 s{rD+1}, s{sWdn+1}
    s_mov_b32 s{rD+2}, {1792*896}
    s_mov_b32 s{rD+3}, 0x20000
    s_mov_b32 s{rO}, s{sOut}
    s_mov_b32 s{rO+1}, s{sOut+1}
    s_mov_b32 s{rO+2}, {2048*896}
    s_mov_b32 s{rO+3}, 0x20000
    s_and_b32 s{sT1}, s{sW}, 1
    s_lshr_b32 s{sT2}, s{sW}, 1
    s_lshl_b32 s{sT0}, s{MB}, 1
    s_add_u32 s{sT0}, s{sT0}, s{sT2}
    s_lshl_b32 s{sF2w}, s{sT0}, 7
    s_mul_i32 s{sHst}, s{sT0}, {2*112*1024}
    s_lshl_b32 s{sT0}, s{FC}, 1
    s_add_u32 s{sT0}, s{sT0}, s{sT1}
    s_lshl_b32 s{sTmp}, s{sT0}, 11
    s_add_u32 s{sHst}, s{sHst}, s{sTmp}
    s_add_u32 s{sHst}, s{sHst}, {WS_H}
    s_lshl_b32 s{sT0}, s{sT0}, 2
    s_add_u32 s{sF2w}, s{sF2w}, s{sT0}
    s_add_u32 s{sF2w}, s{sF2w}, {WS_F2}
    s_mul_i32 s{sHq}, s{II}, {OPT['rotD']}
    s_mul_i32 s{sT0}, s{sW}, 7
    s_lshl_b32 s{sF2r}, s{sT0}, 2
    s_add_u32 s{sT0}, s{sT0}, s{sHq}
    s_mul_i32 s{sDo}, s{sT0}, {32*896}
    s_lshl_b32 s{sTmp}, s{II}, 7
    s_add_u32 s{sDo}, s{sDo}, s{sTmp}
    s_lshl_b32 s{sHld}, s{sT0}, 11
    s_mul_i32 s{sTmp}, s{RB}, {2*112*1024}
    s_add_u32 s{sHld}, s{sHld}, s{sTmp}
    s_add_u32 s{sHld}, s{sHld}, {WS_H}
    s_lshl_b32 s{sTmp}, s{sHq}, 11
    s_sub_u32 s{sHs}, s{sHld}, s{sTmp}
    s_add_u32 s{sHe}, s{sHs}, {14*1024}
    s_mul_i32 s{sTmp}, s{sHq}, {32*896}
    s_sub_u32 s{sDs}, s{sDo}, s{sTmp}
    s_add_u32 s{sDe}, s{sDs}, {224*896}
    s_lshl_b32 s{sTmp}, s{RB}, 7
    s_add_u32 s{sF2r}, s{sF2r}, s{sTmp}
    s_add_u32 s{sF2r}, s{sF2r}, {WS_F2}
    s_lshr_b32 s{sTmp}, s{sC}, 3
    s_lshl_b32 s{sF1r}, s{sTmp}, 7
    s_lshl_b32 s{sTmp}, s{sW}, 5
    s_add_u32 s{sF1r}, s{sF1r}, s{sTmp}
    s_mul_i32 s{sUTld}, s{sW}, {8*57344}
    s_lshl_b32 s{sTmp}, s{sC}, 8
    s_add_u32 s{sUTld}, s{sUTld}, s{sTmp}
    s_add_u32 s{sUTld}, s{sUTld}, {WS_UT}
    s_lshr_b32 s{sTmp}, s{sC}, 5
    s_lshl_b32 s{sTmp}, s{sTmp}, 2
    s_add_u32 s{sTmp}, s{sTmp}, s{sW}
    s_lshl_b32 s{sF3w}, s{sTmp}, 7
    s_and_b32 s{sTmp}, s{sC}, 31
    s_lshl_b32 s{sTmp}, s{sTmp}, 2
    s_add_u32 s{sF3w}, s{sF3w}, s{sTmp}
    s_add_u32 s{sF3w}, s{sF3w}, {WS_F3}
    s_lshl_b32 s{sTmp}, s{II}, 2
    s_lshr_b32 s{sTmp+1}, s{RB}, 3
    s_add_u32 s{sTmp}, s{sTmp}, s{sTmp+1}
    s_lshl_b32 s{sF3r}, s{sTmp}, 7
    s_lshl_b32 s{sTmp}, s{sT1}, 6
    s_add_u32 s{sF3r}, s{sF3r}, s{sTmp}
    s_add_u32 s{sF3r}, s{sF3r}, {WS_F3}
    s_lshl_b32 s{sF1g}, s{RB}, 2
    s_lshl_b32 s{sTmp}, s{II}, 1
    s_add_u32 s{sTmp}, s{sTmp}, s{sT1}
    s_lshl_b32 s{sATld}, s{sTmp}, 12
    s_lshl_b32 s{sOst}, s{sTmp}, 6
    s_mul_i32 s{sTmp}, s{RB}, 57344
    s_add_u32 s{sATld}, s{sATld}, s{sTmp}
    s_add_u32 s{sOst}, s{sOst}, s{sTmp}
    s_lshl_b32 s{sTmp}, s{sT2}, 6
    s_add_u32 s{sATld}, s{sATld}, s{sTmp}
    s_add_u32 s{sATld}, s{sATld}, {WS_AT}
    s_mul_i32 s{sTmp}, s{sT2}, {32*896}
    s_add_u32 s{sOst}, s{sOst}, s{sTmp}
    s_lshl_b32 s{sGld}, s{RB}, 11
    s_lshl_b32 s{sTmp}, s{sT2}, 7
    s_add_u32 s{sGld}, s{sGld}, s{sTmp}
    s_add_u32 s{sGld}, s{sGld}, {WS_G}
    v_bfe_u32 v{a}, v{vLane}, 2, 2
    v_and_b32 v{b}, 3, v{vLane}
    v_bfe_u32 v{d}, v{vLane}, 4, 1
    v_lshrrev_b32 v{c_}, 5, v{vLane}
    s_lshl_b32 s{sTmp}, s{sT1}, 1
    v_and_b32 v{e}, 2, v{a}
    v_or_b32 v{e}, v{e}, v{d}
    v_xor_b32 v{e}, s{sTmp}, v{e}
    v_lshlrev_b32 v{e}, 5, v{e}
    v_lshl_add_u32 v{e}, v{b}, 3, v{e}
    v_lshl_add_u32 v{e}, v{a}, 7, v{e}
    v_lshl_add_u32 v{e}, v{c_}, 9, v{e}
    v_add_u32 v{vDr}, s{sM0x}, v{e}
    v_xor_b32 v{vDr+1}, 64, v{vDr}
    v_add_u32 v{vDr+2}, 0x10000, v{vDr}
    v_add_u32 v{vDr+3}, 0x10000, v{vDr+1}
    v_lshrrev_b32 v{c_}, 4, v{vLane}
    v_lshlrev_b32 v{e}, 3, v{a}
    v_lshl_add_u32 v{e}, v{c_}, 6, v{e}
    s_mul_i32 s{sTmp}, s{sT2}, {KFS}
    s_add_u32 s{sTmp}, s{sTmp}, {KF}
    v_lshl_add_u32 v{vFr}, v{b}, 5, v{e}
    v_add_u32 v{vFr}, s{sTmp}, v{vFr}
    s_mul_i32 s{sTmp}, s{sT2}, {UAS}
    s_lshl_b32 s{sTmp+1}, s{sT1}, 7
    s_add_u32 s{sTmp}, s{sTmp}, s{sTmp+1}
    s_add_u32 s{sTmp}, s{sTmp}, {UA+160+96-32}
    v_lshl_add_u32 v{vGr}, v{b}, 3, s{sTmp}
    v_sub_u32 v{vGr}, v{vGr}, v{e}
    s_mul_i32 s{sTmp}, s{sT2}, {YAS}
    s_mul_i32 s{sTmp+1}, s{sT1}, 272
    s_add_u32 s{sTmp}, s{sTmp}, s{sTmp+1}
    s_add_u32 s{sTmp}, s{sTmp}, {YA}
    v_lshl_add_u32 v{vYw}, v{vLane}, 2, s{sTmp}
    v_lshrrev_b32 v{a}, 3, v0
    v_and_b32 v{b}, 7, v0
    v_mul_u32_u24 v{e}, 272, v{a}
    v_add_u32 v{e}, {YA}, v{e}
    v_lshl_add_u32 v{vYr}, v{b}, 5, v{e}
    v_cmp_eq_u32 vcc, 0, v{b}
    v_cmp_ne_u32 {sr(sTmp,2)}, 0, v{a}
    s_and_b64 vcc, vcc, {sr(sTmp,2)}
    v_mov_b32 v{d}, {KF}
    v_subrev_u32 v{e}, 16, v{e}
    v_cndmask_b32 v{vYc}, v{d}, v{e}, vcc
    v_add_u32 v{e}, {YAS}, v{e}
    v_cndmask_b32 v{vYc+1}, v{d}, v{e}, vcc
    v_lshlrev_b32 v{vUw}, 4, v0
    v_add_u32 v{vUw}, {UA+160}, v{vUw}
    v_lshrrev_b32 v{a}, 3, v{vLane}
    v_mul_u32_u24 v{a}, 57344, v{a}
    v_lshl_add_u32 v{vUo}, v{b}, 4, v{a}
    s_mul_i32 s{sTmp}, s{sT2}, {112*1024}
    v_add_u32 v{vH1}, s{sTmp}, v{vL16}
    s_sub_u32 s{sTmp}, {112*1024}, s{sTmp}
    v_add_u32 v{vH2}, s{sTmp}, v{vL16}
    v_add_u32 v{a}, 4, v{vYw}
    v_add_u32 v{b}, {UTS}, v{vL16}
    v_cmp_eq_u32 vcc, 63, v{vLane}
    v_cndmask_b32 v{vYk}, v{b}, v{a}, vcc
    """)
    return s, t, u

def adv(s, o, step, st, en, extra):
    s(f"""s_add_u32 s{o}, s{o}, {step}
    s_cmp_eq_u32 s{o}, s{en}
    s_cselect_b32 s{o}, s{st}, s{o}""")
    if extra:
        s(f"s_add_u32 s{o}, s{o}, {extra}\ns_add_u32 s{st}, s{st}, {extra}\ns_add_u32 s{en}, s{en}, {extra}")

def dma_x(slot, tok):
    s = S()
    s(f"s_add_u32 m0, s{sM0x}, {slot*SLOT}")
    for q in range(4):
        s(f"buffer_load_dwordx4 v{vXd+q}, {sr(rX,4)}, s{sXo} offen offset:{1024*q} lds", tok)
    adv(s, sXo, 128, sXs, sXe, 0)
    return s

def dma_w(slot, tok, extra=0):
    s = S()
    s(f"s_add_u32 m0, s{sM0w}, {slot*SLOT}")
    for q in range(4):
        s(f"buffer_load_dwordx4 v{vWd+q}, {sr(rW,4)}, s{sWo} offen offset:{1024*q} lds", tok)
    adv(s, sWo, 64*3584, sWs_, sWe, extra)
    return s

def dma_d(slot, tok, extra=0):
    s = S()
    s(f"s_add_u32 m0, s{sM0x}, {slot*SLOT}")
    for q in range(4):
        s(f"buffer_load_dwordx4 v{vDd+q}, {sr(rD,4)}, s{sDo} offen offset:{1024*q} lds", tok)
    adv(s, sDo, 32*896, sDs, sDe, extra)
    return s

def item(n):
    if n < 14:
        return dma_x(n % NSLOT, f"it{n}") if n % 2 == 0 else dma_w(n % NSLOT, f"it{n}", 896*2 if n == 13 else 0)
    if n < 21: return dma_w(n % NSLOT, f"it{n}")
    return dma_d(n % NSLOT, f"it{n}", 896*896 if n == 27 else 0)

def sprinkle(main, groups, lo=0.0, hi=1.0):
    out = S(); n = len(main); g = 0
    pos = [int(n*(lo + (hi-lo)*k/max(1, len(groups)))) for k in range(len(groups))]
    for i, x in enumerate(main):
        while g < len(groups) and pos[g] <= i and not glued(x):
            out.add(groups[g]); g += 1
        out.append(x)
    while g < len(groups): out.add(groups[g]); g += 1
    return out

def stageA_setup():
    s = S()
    vTw, vTr, vK, vK1, vKw, vI = 48, 49, 50, 54, 55, 56
    a, b, c_, d, e = vT+2, vT+3, vT+4, vT+5, vT+6
    s(f"""
    s_mul_i32 s{sTmp}, s{sW}, {SCRW}
    s_add_u32 s{sTmp}, s{sTmp}, {SCR}
    v_lshl_add_u32 v{vTw}, v{vLane}, 3, s{sTmp}
    v_and_b32 v{a}, 15, v{vLane}
    v_lshrrev_b32 v{b}, 4, v{vLane}
    v_mul_u32_u24 v{c_}, 544, v{a}
    v_lshl_add_u32 v{c_}, v{b}, 4, v{c_}
    v_add_u32 v{vTr}, s{sTmp}, v{c_}
    v_lshl_add_u32 v{c_}, v{b}, 7, v{a}
    v_lshl_add_u32 v{vK1}, v{c_}, 2, s{sTmp}
    v_max_u32 v{c_}, 1, v{b}
    v_sub_u32 v{c_}, 6, v{c_}
    v_lshlrev_b32 v{d}, v{c_}, v{a}
    v_cmp_gt_u32 vcc, 2, v{b}
    v_lshlrev_b32 v{e}, 4, v{b}
    v_lshlrev_b32 v{a}, 9, v{b}
    v_cndmask_b32 v{a}, v{a}, v{e}, vcc
    v_add3_u32 v{vK}, v{a}, v{d}, s{sTmp}
    v_cmp_eq_u32 vcc, 3, v{b}
    v_mov_b32 v{e}, 256
    v_cndmask_b32 v{a}, 8, v{e}, vcc
    v_add_u32 v{vK+1}, v{vK}, v{a}
    v_lshlrev_b32 v{d}, v{c_}, 16
    v_add_u32 v{vK+2}, v{vK}, v{d}
    v_add_u32 v{vK+3}, v{vK+1}, v{d}
    v_lshlrev_b32 v{vKw}, 2, v0
    v_add_u32 v{vKw}, {KF+96}, v{vKw}
    """)
    s(f"v_lshlrev_b32 v{a}, 1, v0")
    for e_ in range(4):
        s(f"""
        v_add_u32 v{b}, {512*e_}, v{a}
        v_add_u32 v{c_}, {512*e_+1}, v{a}
        v_cvt_f32_u32 v{d}, v{b}
        v_cvt_f32_u32 v{e}, v{c_}
        v_cvt_pk_bf16_f32 v{d}, v{d}, v{e}
        v_lshrrev_b32 v{e}, 16, v{d}
        v_and_b32 v{d}, 0xffff, v{d}
        """)
        if e_ == 0:
            s(f"""
            v_add_u32 v{b}, 17024, v{b}
            v_add_u32 v{c_}, 17024, v{c_}
            v_cmp_gt_u32 vcc, 64, v0
            v_cndmask_b32 v{d}, v{d}, v{b}, vcc
            v_cndmask_b32 v{e}, v{e}, v{c_}, vcc
            """)
        s(f"""
        s_mov_b32 s{sTmp}, {hx(SCR - 4*17024)}
        v_lshl_add_u32 v{vI+2*e_}, v{d}, 2, s{sTmp}
        v_lshl_add_u32 v{vI+2*e_+1}, v{e}, 2, s{sTmp}
        """)
    s(f"""
    v_mov_b32 v{a}, 0
    v_min_u32 v{b}, 23, v{vLane}
    v_lshlrev_b32 v{b}, 2, v{b}
    v_add_u32 v{b}, {KF}, v{b}
    ds_write_b32 v{b}, v{a}
    ds_write_b32 v{b}, v{a} offset:{KFS}
    """)
    return s

def stageA():
    s = S()
    vTw, vTr, vK, vK1, vKw, vI = 48, 49, 50, 54, 55, 56
    P = ACC2
    R = ACC1
    def pr(k): return vr(R+2*k, 2)
    Ar, Ai, Br, Bi, Cr, Ci, Dt = range(7)
    T1, T2 = 7, 8
    Z1r, Z1i, Z8r, Z8i, Z256r, Z256i = range(9, 15)
    Wr, Wi = 15, 16
    for k in range(6):
        s(f"v_lshlrev_b32 v{R+2*k}, 16, v{P+k}\nv_and_b32 v{R+2*k+1}, 0xffff0000, v{P+k}")
    s(f"""
    s_lshr_b32 s{sT1}, s{sW}, 1
    s_lshl_b32 s{sT1}, s{sT1}, 4
    s_lshr_b32 s{sT1}, s{sLDv}, s{sT1}
    s_lshl_b32 s{sT1}, s{sT1}, 16
    v_mov_b32 v{R+2*Dt}, {hx(fbits(math.log2(math.e)))}
    v_mul_f32 v{R+2*Dt}, s{sT1}, v{R+2*Dt}
    v_exp_f32 v{R+2*Dt}, v{R+2*Dt}
    v_cvt_pk_bf16_f32 v{R+2*Dt}, v{R+2*Dt}, v{R+2*Dt}
    v_lshlrev_b32 v{R+2*Dt}, 16, v{R+2*Dt}
    v_mov_b32 v{R+2*Dt+1}, v{R+2*Dt}
    """)
    for k in (Ar, Ai, Br, Bi):
        s(f"v_pk_mul_f32 {pr(k)}, {pr(k)}, {pr(Dt)}")
    NEG = "neg_lo:[1,0,0] neg_hi:[1,0,0]"
    tc = [0]
    def cmul(dr, di, xr, xi, zr, zi):
        T1, T2 = ((7, 8), (27, 28))[tc[0] % 2]; tc[0] += 1
        s(f"""v_pk_mul_f32 {pr(T1)}, {pr(xr)}, {pr(zr)}
        v_pk_mul_f32 {pr(T2)}, {pr(xr)}, {pr(zi)}
        v_pk_fma_f32 {pr(dr)}, {pr(xi)}, {pr(zi)}, {pr(T1)} {NEG}
        v_pk_fma_f32 {pr(di)}, {pr(xi)}, {pr(zr)}, {pr(T2)}""")
    def prim(p, zr, zi):
        T1, T2 = ((7, 8), (27, 28))[tc[0] % 2]; tc[0] += 1
        c1 = hx(fbits(p*math.log2(math.e))); c2 = hx(fbits(p/(2*math.pi)))
        s(f"""s_mov_b32 s{sK0}, {c1}
        s_mov_b32 s{sK0+1}, {c1}
        s_mov_b32 s{sK1}, {c2}
        s_mov_b32 s{sK1+1}, {c2}
        v_pk_mul_f32 {pr(T1)}, {pr(Ar)}, {sr(sK0,2)}
        v_pk_mul_f32 {pr(T2)}, {pr(Ai)}, {sr(sK1,2)}
        v_exp_f32 v{R+2*T1}, v{R+2*T1}
        v_exp_f32 v{R+2*T1+1}, v{R+2*T1+1}
        v_fract_f32 v{R+2*T2}, v{R+2*T2}
        v_fract_f32 v{R+2*T2+1}, v{R+2*T2+1}
        v_cos_f32 v{R+2*zr}, v{R+2*T2}
        v_cos_f32 v{R+2*zr+1}, v{R+2*T2+1}
        v_sin_f32 v{R+2*zi}, v{R+2*T2}
        v_sin_f32 v{R+2*zi+1}, v{R+2*T2+1}
        v_pk_mul_f32 {pr(zr)}, {pr(zr)}, {pr(T1)}
        v_pk_mul_f32 {pr(zi)}, {pr(zi)}, {pr(T1)}""")
    cnt = [0]
    def row(r, xr, xi, neg):
        o = vT + 8 + 2*(cnt[0] % 4); cnt[0] += 1
        n = '-' if neg else ''
        s(f"""v_cvt_pk_bf16_f32 v{o}, v{R+2*xr}, v{R+2*xr+1}
        v_cvt_pk_bf16_f32 v{o+1}, {n}v{R+2*xi}, {n}v{R+2*xi+1}
        ds_write_b64 v{vTw}, {vr(o,2)} offset:{544*r}""")
    def frags(base):
        for ks in range(8):
            s(f"ds_read_b128 {ar(base+4*ks,4)}, v{vTr} offset:{64*ks}")
    prim(8, Z8r, Z8i)
    prim(1, Z1r, Z1i)
    prim(256, Z256r, Z256i)
    cmul(Wr, Wi, Cr, Ci, Br, Bi)
    s(f"v_mov_b32 v{vT+16}, 0x3f803f80\nv_mov_b32 v{vT+17}, 0\nds_write_b64 v{vTw}, {vr(vT+16,2)}")
    row(1, Z8r, Z8i, 0)
    Z16 = (0, 1)
    cmul(Z16[0], Z16[1], Z8r, Z8i, Z8r, Z8i)
    row(2, Z16[0], Z16[1], 0)
    E = [(17, 18), (19, 20), (2, 3), (4, 5)]
    cur = {0: Z16, 1: (Z8r, Z8i)}
    for i in range(3, 32):
        nx = E[i % 4]; x = cur[i % 2]
        cmul(nx[0], nx[1], x[0], x[1], Z16[0], Z16[1])
        if i == 16: frags(0)
        row(i % 16, nx[0], nx[1], 0)
        cur[i % 2] = nx
    Z2 = (Z8r, Z8i)
    cmul(E[0][0], E[0][1], Wr, Wi, Z1r, Z1i)
    cmul(Z2[0], Z2[1], Z1r, Z1i, Z1r, Z1i)
    frags(32)
    keep = {0: (Wr, Wi), 1: E[0], 2: (21, 22), 3: E[1], 4: (23, 24), 5: E[2], 6: (25, 26), 7: E[3]}
    row(0, Wr, Wi, 1); row(1, E[0][0], E[0][1], 1)
    for t in range(2, 8):
        nx = keep[t]; x = keep[t-2]
        cmul(nx[0], nx[1], x[0], x[1], Z2[0], Z2[1])
        row(t, nx[0], nx[1], 1)
    Z512 = (Z1r, Z1i)
    cmul(Z512[0], Z512[1], Z256r, Z256i, Z256r, Z256i)
    n256 = {0: E[0], 2: E[1], 4: E[2], 6: E[3]}
    for k, t in enumerate((0, 2, 4, 6)):
        x = keep[t]; y = n256[t]; cmul(y[0], y[1], x[0], x[1], Z256r, Z256i); row(8+k, y[0], y[1], 1)
    for k, x in enumerate((keep[0], keep[4], n256[0], n256[4])):
        cmul(x[0], x[1], x[0], x[1], Z512[0], Z512[1]); row(12+k, x[0], x[1], 1)
    for k in range(5):
        x = (keep[0], n256[0])[k % 2]
        cmul(x[0], x[1], x[0], x[1], Z512[0], Z512[1])
        if k == 0: frags(64)
        row(k, x[0], x[1], 1)
    frags(96)
    D = vT + 16
    for at in range(2):
        for ks in range(8):
            for bt in range(2):
                d = vr(D + 8*at + 4*bt, 4)
                s(f"v_mfma_f32_16x16x32_bf16 {d}, {ar(64+32*at+4*ks,4)}, {ar(32*bt+4*ks,4)}, {d if ks else 0}")
    for bt in range(2):
        s(f"ds_write_b64 v{vK+2*bt}, {vr(D+4*bt,2)}\nds_write_b64 v{vK+2*bt+1}, {vr(D+4*bt+2,2)}")
    for bt in range(2):
        for jj in range(4):
            s(f"ds_write_b32 v{vK1}, v{D+8+4*bt+jj} offset:{2048+64*bt+128*jj}")
    s.wait_lg()
    s("s_barrier")
    for k in range(8):
        s(f"ds_read2st64_b32 {vr(R+4*k,2)}, v{vI+k} offset0:0 offset1:68\nds_read2st64_b32 {vr(R+4*k+2,2)}, v{vI+k} offset0:34 offset1:102")
    for e_ in range(4):
        k0, k1 = R+8*e_, R+8*e_+4
        s(f"""v_pk_add_f32 {vr(k0,2)}, {vr(k0,2)}, {vr(k0+2,2)}
        v_pk_add_f32 {vr(k1,2)}, {vr(k1,2)}, {vr(k1+2,2)}
        v_cvt_pk_bf16_f32 v{k0+2}, v{k0}, v{k1}
        v_cvt_pk_bf16_f32 v{k0+3}, v{k0+1}, v{k1+1}
        ds_write_b32 v{vKw}, v{k0+2} offset:{1024*e_}
        ds_write_b32 v{vKw}, v{k0+3} offset:{KFS+1024*e_}""")
    return s

def lds_addr(base_lo, nset, k, slot, off):
    hi = slot >= 4
    return f"v{base_lo + k + (nset if hi else 0)}", (slot - (4 if hi else 0))*SLOT + off

def b_reads(i):
    s_, ks = divmod(i, 4)
    r = []
    wslot = (2*s_+1) % NSLOT if s_ < 7 else (7+s_) % NSLOT
    buf = vWf + 8*(i % 3)
    wr = []
    for T in range(2):
        for h in range(2):
            a, o = lds_addr(vWr, 2, T, wslot, ks*2048 + h*512)
            wr.append(f"ds_read_b64_tr_b16 {vr(buf+4*T+2*h,2)}, {a} offset:{o}")
    if s_ < 7:
        xslot = (2*s_) % NSLOT
        xr = []
        for mt in range(2):
            a, o = lds_addr(vXr, 4, ks, xslot, mt*4096)
            xr.append(f"ds_read_b128 {ar(8*i+4*mt,4)}, {a} offset:{o}")
        return [wr[0], wr[1], xr[0], xr[1], wr[2], wr[3]]
    return wr

def b_mfmas(i):
    acc = ACC1 if i < 28 else ACC2
    first = i % 28 == 0
    buf = vWf + 8*(i % 3)
    r = []
    for T in range(2):
        for mt in range(2):
            d = vr(acc + 32*T + 16*mt, 16)
            r.append(f"v_mfma_f32_32x32x16_bf16 {d}, {vr(buf+4*T,4)}, {ar(8*(i%28)+4*mt,4)}, {0 if first else d}")
    return r

def gelu(acc, half, pk, cluster=0):
    s = S(); st = S()
    for T in range(2):
        for mt in range(2):
            b = acc + 32*T + 16*mt
            o = vT + 24 + 4*(2*T+mt)
            for jp in range(0, 8, 2):
                t = vT + 2*(jp//2)
                g0, u0 = b+jp, b+8+jp
                if pk:
                    s(f"""v_pk_mul_f32 {vr(t,2)}, {vr(g0,2)}, {vr(g0,2)}
                    v_pk_mul_f32 {vr(u0,2)}, {vr(u0,2)}, {vr(g0,2)}
                    v_pk_fma_f32 {vr(t,2)}, {vr(t,2)}, {vr(vT+8,2)}, {sr(sK0,2)}
                    v_pk_mul_f32 {vr(t,2)}, {vr(t,2)}, {vr(g0,2)}
                    v_exp_f32 v{t}, v{t}
                    v_exp_f32 v{t+1}, v{t+1}
                    v_pk_add_f32 {vr(t,2)}, {vr(t,2)}, {sr(sK1,2)}
                    v_rcp_f32 v{t}, v{t}
                    v_rcp_f32 v{t+1}, v{t+1}
                    v_pk_mul_f32 {vr(t,2)}, {vr(t,2)}, {vr(u0,2)}
                    v_cvt_pk_bf16_f32 v{o+jp//2}, v{t}, v{t+1}""")
                else:
                    s(f"""v_mul_f32 v{t}, v{g0}, v{g0}
                    v_mul_f32 v{t+1}, v{g0+1}, v{g0+1}
                    v_fma_f32 v{t}, v{t}, v{vC1}, s{sK0}
                    v_fma_f32 v{t+1}, v{t+1}, v{vC1}, s{sK0}
                    v_mul_f32 v{t}, v{t}, v{g0}
                    v_mul_f32 v{t+1}, v{t+1}, v{g0+1}
                    v_exp_f32 v{t}, v{t}
                    v_mul_f32 v{u0}, v{u0}, v{g0}
                    v_exp_f32 v{t+1}, v{t+1}
                    v_mul_f32 v{u0+1}, v{u0+1}, v{g0+1}
                    v_add_f32 v{t}, 1.0, v{t}
                    v_add_f32 v{t+1}, 1.0, v{t+1}
                    v_rcp_f32 v{t}, v{t}
                    v_rcp_f32 v{t+1}, v{t+1}
                    v_mul_f32 v{t}, v{t}, v{u0}
                    v_mul_f32 v{t+1}, v{t+1}, v{u0+1}
                    v_cvt_pk_bf16_f32 v{o+jp//2}, v{t}, v{t+1}""")
            vo = vL16 if mt == 0 else vT+10
            (st if cluster else s)(f"buffer_store_dwordx4 {vr(o,4)}, v{vo}, {sr(rWS,4)}, s{sHst} offen offset:{1024*T} sc1", f"h{half}")
    return s.add(st)

def flag(soff, vval):
    return f"buffer_store_dword v{vval}, v{vFl}, {sr(rWS,4)}, s{soff} offen sc1"

def ut_setup():
    s = S()
    a, b, c_, d = vT+2, vT+3, vT+4, vT+5
    A0, A1, AW, AR, AG, GW = vT+32, vT+33, vT+34, vT+35, vT+36, vT+40
    s(f"""
    v_lshrrev_b32 v{a}, 4, v{vLane}
    s_lshl_b32 s{sTmp}, s{sGC0}, 7
    v_lshl_add_u32 v{b}, v{a}, 4, s{sTmp}
    global_load_dwordx4 {vr(GW,4)}, v{b}, {sr(sGw,2)}
    global_load_dwordx4 {vr(GW+4,4)}, v{b}, {sr(sGw,2)} offset:64
    v_bfe_u32 v{b}, v{vLane}, 2, 2
    v_lshl_add_u32 v{b}, v{a}, 3, v{b}
    v_bfe_u32 v{c_}, v{b}, 1, 3
    v_bfe_u32 v{d}, v{vLane}, 1, 1
    s_lshl_b32 s{sTmp}, s{sW}, 1
    v_or_b32 v{d}, s{sTmp}, v{d}
    v_xor_b32 v{c_}, v{c_}, v{d}
    v_lshlrev_b32 v{c_}, 4, v{c_}
    v_lshl_add_u32 v{c_}, v{b}, 7, v{c_}
    v_and_b32 v{d}, 1, v{vLane}
    v_lshl_add_u32 v{c_}, v{d}, 3, v{c_}
    s_lshl_b32 s{sTmp}, s{sHf}, 13
    v_add_u32 v{A0}, s{sTmp}, v{c_}
    v_xor_b32 v{A1}, 32, v{A0}
    s_mul_i32 s{sTmp+1}, s{sW}, {UTSW}
    s_add_u32 s{sTmp+1}, s{sTmp+1}, {UTS}
    v_and_b32 v{b}, 15, v{vLane}
    v_mul_u32_u24 v{c_}, 144, v{b}
    v_lshl_add_u32 v{c_}, v{a}, 4, v{c_}
    v_add_u32 v{AW}, s{sTmp+1}, v{c_}
    v_lshrrev_b32 v{c_}, 3, v{vLane}
    v_lshl_add_u32 v{c_}, v{c_}, 4, v{vL16}
    v_add_u32 v{AR}, s{sTmp+1}, v{c_}
    v_lshrrev_b32 v{c_}, 1, v{b}
    v_xor_b32 v{c_}, v{c_}, v{a}
    v_lshlrev_b32 v{c_}, 4, v{c_}
    v_lshl_add_u32 v{c_}, v{b}, 7, v{c_}
    s_lshl_b32 s{sTmp+1}, s{sW}, 11
    s_add_u32 s{sTmp}, s{sTmp}, s{sTmp+1}
    v_add_u32 v{AG}, s{sTmp}, v{c_}
    v_xor_b32 v{AG+1}, 64, v{AG}
    v_cmp_gt_u32 vcc, 16, v{vLane}
    v_lshlrev_b32 v{b}, 2, v{vLane}
    v_mov_b32 v{c_}, 0x80000000
    v_cndmask_b32 v{AG+2}, v{c_}, v{b}, vcc
    """)
    return s

def ut_produce():
    s = S()
    A0, A1, AW, AR, AG, GW = vT+32, vT+33, vT+34, vT+35, vT+36, vT+40
    t0 = vT; x0 = vT+8; d0 = vT+16
    for t in range(2):
        s(f"ds_read_b64_tr_b16 {vr(t0+4*t,2)}, v{A0} offset:{4096*t}\nds_read_b64_tr_b16 {vr(t0+4*t+2,2)}, v{A1} offset:{4096*t+512}")
    s(f"ds_read_b128 {vr(x0,4)}, v{AG}\nds_read_b128 {vr(x0+4,4)}, v{AG+1}")
    for t in range(2):
        s(f"ds_write_b128 v{AW}, {vr(t0+4*t,4)} offset:{64*t}")
    for t in range(2):
        s(f"ds_read_b128 {vr(vT+20+4*t,4)}, v{AR} offset:{8*144*t}")
    s(f"v_mfma_f32_16x16x32_bf16 {vr(d0,4)}, {vr(GW,4)}, {vr(x0,4)}, 0")
    s(f"v_mfma_f32_16x16x32_bf16 {vr(d0,4)}, {vr(GW+4,4)}, {vr(x0+4,4)}, {vr(d0,4)}")
    for t in range(2):
        s(f"buffer_store_dwordx4 {vr(vT+20+4*t,4)}, v{vL16}, {sr(rWS,4)}, s{sUTst} offen offset:{1024*t} sc1", "ut")
    s(f"buffer_store_dword v{d0}, v{AG+2}, {sr(rWS,4)}, s{sGst} offen sc1", "ut")
    return s

def stageB(pC):
    side = {k: S() for k in range(14)}
    side[0].add(ut_produce())
    dsched = {1: (7, 8), 2: (9, 10), 3: (11, 12), 4: (13, 14), 5: (15,), 6: (16, 17), 7: (18,), 8: (19, 21), 9: (20, 22),
              10: (23,), 11: (24,), 12: (25,), 13: (26,)}
    dm = {k: S() for k in range(14)}
    for k, v in dsched.items():
        for n in v: dm[k].add(item(n))
    n = len(pC); cc = [n*k//4 for k in range(5)]
    for k in range(4): side[1+k].add(pC[cc[k]:cc[k+1]])
    side[2](f"v_mov_b32 v{vPollA}, 0\nglobal_load_dword v{vPoll}, v{vPollA}, {sr(sDbg,2)} sc1")
    k = len(slow)
    slow.append(f"""L_slow{k}:
    s_mov_b32 s{sSpin}, 0
L_spin{k}:
    global_load_dword v{vPoll}, v{vPollA}, {sr(sDbg,2)} sc1
    s_add_u32 s{sSpin}, s{sSpin}, 1
    s_cmp_gt_u32 s{sSpin}, 0x40000
    s_cbranch_scc1 L_back{k}
    s_waitcnt vmcnt(0)
    v_cmp_gt_u32 vcc, 1, v{vPoll}
    s_nop 1
    s_cbranch_vccnz L_spin{k}
    s_branch L_back{k}""")
    pre = S()
    pre(f"v_cmp_gt_u32 vcc, 1, v{vPoll}\ns_cbranch_vccnz L_slow{k}\nL_back{k}:")
    pre.wait_vm("ut")
    pre(flag(sF1w, vOne))
    side[5] = pre.add(side[5])
    c0 = hx(fbits(-2*math.sqrt(2/math.pi)*math.log2(math.e)))
    side[6](f"""s_mov_b32 s{sK0}, {c0}
    s_mov_b32 s{sK0+1}, {c0}
    s_mov_b32 s{sK1}, 1.0
    s_mov_b32 s{sK1+1}, 1.0
    v_mov_b32 v{vT+9}, v{vC1}
    v_add_u32 v{vT+10}, {112*1024}, v{vL16}
    v_mov_b32 v{vT+12}, 0
    v_min_u32 v{vT+11}, 39, v{vLane}
    v_lshlrev_b32 v{vT+11}, 2, v{vT+11}
    v_add_u32 v{vT+11}, {UA}, v{vT+11}
    ds_write_b32 v{vT+11}, v{vT+12}
    ds_write_b32 v{vT+11}, v{vT+12} offset:{UAS}
    v_min_u32 v{vPollA}, 7, v{vLane}
    v_lshlrev_b32 v{vPollA}, 2, v{vPollA}""")
    ld, chk = poll(None, 1, vPollA, f"s{sF1r}")
    side[9](ld)
    pre = S().add(chk)
    pre(f"buffer_load_dwordx4 {vr(vU,4)}, v{vUo}, {sr(rWS,4)}, s{sUTld} offen sc1")
    pre(f"buffer_load_dwordx4 {vr(vU+4,4)}, v{vUo}, {sr(rWS,4)}, s{sUTld} offen offset:128 sc1")
    side[11] = pre.add(side[11])
    side[13](f"ds_write_b128 v{vUw}, {vr(vU,4)}\nds_write_b128 v{vUw}, {vr(vU+4,4)} offset:{UAS}")
    g1 = gelu(ACC1, 1, False, OPT['cl1'])
    n = len(g1); nst = OPT['nst']
    cuts = [n*k//nst for k in range(nst+1)]
    out = S()
    out.wait_vm(("it0", "it1")); out.wait_lg(); out("s_barrier")
    stamp(out, "B0")
    for r in b_reads(0): out(r)
    for s_ in range(14):
        st = S()
        for ks in range(4):
            i = 4*s_ + ks
            m = b_mfmas(i)
            rd = b_reads(i+1) if i < 55 else []
            if ks == 3:
                st(m[0])
                nxt = s_ + 1
                toks = (f"it{2*nxt}", f"it{2*nxt+1}") if nxt < 7 else (f"it{7+nxt}",) if nxt < 14 else None
                if toks: st.wait_vm(toks)
                st.wait_lg(); st("s_barrier")
                h = (len(rd)+2)//3
                for q in range(3):
                    for r in rd[q*h:(q+1)*h]: st(r)
                    st(m[1+q])
            else:
                h = (len(rd)+2)//3
                for q in range(4):
                    st(m[q])
                    for r in rd[q*h:(q+1)*h]: st(r)
        sd = side[s_]
        if 7 <= s_ < 7+nst:
            gs = S(g1[cuts[s_-7]:cuts[s_-6]])
            st = weave(st, gs, start=(2 if s_ == 7 else 0))
        st = weave(st, sd, start=0, end=12) if len(sd) else st
        st = weave(st, dm[s_]) if len(dm[s_]) else st
        out.add(st)
        if s_ == 6: stamp(out, "B1")
    return out

def wd_reads(q, slot):
    s = S()
    for T in range(2):
        for dt in range(2):
            for h in range(2):
                a, o = lds_addr(vDr, 2, dt, slot, T*2048 + h*1024)
                s(f"ds_read_b64_tr_b16 {ar(16*q+8*T+4*dt+2*h,2)}, {a} offset:{o}", f"wdr{q}")
    return s

def h_loads(q, base, isa, extra=0):
    s = S()
    for T in range(2):
        for mt in range(2):
            d = (ar if isa else vr)(base+16*q+8*T+4*mt, 4)
            s(f"buffer_load_dwordx4 {d}, v{vH1 if mt == 0 else vH2}, {sr(rWS,4)}, s{sHld} offen offset:{1024*T} sc1")
    adv(s, sHld, 2048, sHs, sHe, extra)
    return s

def f_read(t):
    return f"ds_read_b64_tr_b16 {vr(ACC1+4*t,2)}, v{vFr} offset:{256*t}\nds_read_b64_tr_b16 {vr(ACC1+4*t+2,2)}, v{vFr} offset:{256*t+32}"
def g_read(e):
    return f"ds_read_b64_tr_b16 {vr(ACC2+4*e,2)}, v{vGr} offset:{256*e+32}\nds_read_b64_tr_b16 {vr(ACC2+4*e+2,2)}, v{vGr} offset:{256*e}"

def stageTail():
    s = S()
    s.add(item(27))
    s.wait_vm("h1")
    s(flag(sF2w, vOne))
    s(f"s_add_u32 s{sHst}, s{sHst}, {56*1024}")
    g2 = gelu(ACC2, 2, True, OPT['cl2'])
    groups = []
    for q in range(4):
        g = S(); g.wait_vm(f"it{21+q}"); g.add(wd_reads(q, q)); groups.append(g)
        g = S()
        for t in range(4*q, 4*q+4): g(f_read(t))
        groups.append(g)
    s.add(sprinkle(g2, groups, 0.02, 1.0))
    return s

def stageC():
    main = S()
    CA = vT + 12
    for e in range(3): main(g_read(e))
    pend = None
    def flush(c):
        d = CA + 4*(c % 3)
        t = S()
        for j in (2, 1, 0):
            t(f"v_add_f32_dpp v{d+j}, v{d+j+1}, v{d+j} wave_shr:1 row_mask:0xf bank_mask:0xf")
        t(f"ds_write_b32 v{vYw}, v{d} offset:{544*c}")
        t(f"ds_write_b128 v{vYk}, {vr(d,4)} offset:{544*c}")
        return t
    for c in range(16):
        d = vr(CA + 4*(c % 3), 4)
        ex = S()
        if c + 3 < 16: ex(g_read(c+3))
        if c >= 2: ex.add(flush(c-2))
        blk = S()
        for t in range(c+1):
            blk(f"v_mfma_f32_16x16x32_bf16 {d}, {vr(ACC1+4*t,4)}, {vr(ACC2+4*(c-t),4)}, {d if t else 0}")
        main.add(weave(blk, ex))
    main.add(flush(14)).add(flush(15))
    side = S()
    side(f"v_min_u32 v{vPollA}, 6, v{vLane}\nv_lshlrev_b32 v{vPollA}, 2, v{vPollA}")
    ld, chk = poll(None, 1, vPollA, f"s{sF2r}")
    side(ld)
    for q in range(4):
        side.wait_lg(f"wdr{q}"); side.add(item(28+q))
    for q in range(4, 7):
        side.wait_vm(f"it{21+q}"); side.add(wd_reads(q, q))
    side.add(chk)
    side.wait_vm("h2")
    side(flag(sF2w, vTwo))
    for q in range(7):
        side.add(h_loads(q, 112, True, 56*1024 if q == 6 else 0))
        if 2 <= q < 5:
            side.wait_lg(f"wdr{q+2}"); side.add(item(28+q+2))
    out = weave(main, side, start=15, end=130)
    f = S()
    ld2, chk2 = poll(None, 2, vPollA, f"s{sF2r}")
    stageC.chk2 = chk2
    f(ld2)
    f.wait_lg(); f("s_barrier")
    Y = ACC1
    for ch in range(2):
        f(f"""ds_read_b128 {vr(Y+12*ch,4)}, v{vYr} offset:{YAS*ch}
        ds_read_b128 {vr(Y+12*ch+8,4)}, v{vYc+ch}
        ds_read_b128 {vr(Y+12*ch+4,4)}, v{vYr} offset:{YAS*ch+16}""")
    f(f"""s_and_b32 s{sK0}, s{sDSv}, 0xffff
    s_lshl_b32 s{sK0+1}, s{sDSv}, 16
    s_lshr_b32 s{sK1}, s{sDSv}, 16
    s_and_b32 s{sK1+1}, s{sDSv}, 0xffff0000
    s_sub_u32 s{sUTld}, s{sUTld}, {hx(WS_UT-WS_AT)}""")
    for ch in range(2):
        b = Y+12*ch
        for k in range(3): f(f"v_add_f32 v{b+k}, v{b+k}, v{b+9+k}")
        for k in range(8):
            f(f"v_dot2_f32_bf16 v{b+k}, v{vU+4*ch+k//2}, s{(sK0 if ch == 0 else sK1)+(k&1)}, v{b+k}")
        for k in range(4):
            f(f"v_cvt_pk_bf16_f32 v{b+8+k}, v{b+2*k}, v{b+2*k+1}")
        f(f"buffer_store_dwordx4 {vr(b+8,4)}, v{vUo}, {sr(rWS,4)}, s{sUTld} offen offset:{128*ch} sc1", "at")
    return out.add(f)

DACC = 64
H2 = 144
def stageD():
    E0 = 48
    def mf(q, T, half):
        r = S()
        for mt in range(2):
            for dt in range(2):
                d = vr(DACC + 16*(dt + 2*mt), 16)
                hb = ar(112+16*q+8*T+4*mt, 4) if half == 0 else vr(H2+16*q+8*T+4*mt, 4)
                first = half == 0 and q == 0 and T == 0
                r(f"v_mfma_f32_32x32x16_bf16 {d}, {ar(16*q+8*T+4*dt,4)}, {hb}, {0 if first else d}")
        return r
    s = S()
    chk = stageC.chk2
    d1 = S()
    for q in range(7):
        blk = mf(q, 0, 0).add(mf(q, 1, 0))
        ex = S()
        if q == 1: ex.add(chk)
        if q >= 1:
            ex.add(h_loads(q-1, H2, False))
            if q == 6: ex.add(h_loads(6, H2, False))
            ex.wait_vm(f"it{28+q-1}"); ex.add(wd_reads(q-1, q-1))
        d1.add(weave(blk, ex))
    s.add(d1)
    stamp(s, "D1")
    a, b = 128, 129
    GP = 132
    ex0 = S()
    ex0.wait_vm("it34"); ex0.add(wd_reads(6, 6))
    ex0.wait_vm("at"); ex0(flag(sF3w, vOne))
    ex0(f"v_min_u32 v{vPollA}, 27, v{vLane}\nv_lshlrev_b32 v{vPollA}, 7, v{vPollA}")
    ld1, chk1 = poll(None, 1, vPollA, f"s{sF1g}")
    ex0(ld1)
    ex2 = S().add(chk1)
    ex2(f"v_and_b32 v{a}, 31, v{vLane}\nv_lshlrev_b32 v{a}, 2, v{a}")
    for k in range(7):
        ex2(f"buffer_load_dword v{GP+k}, v{a}, {sr(rWS,4)}, s{sGld} offen offset:{256*k} sc1")
    ex2(f"v_and_b32 v{vPollA}, 15, v{vLane}\nv_lshlrev_b32 v{vPollA}, 2, v{vPollA}")
    ld3, chk3 = poll(None, 1, vPollA, f"s{sF3r}")
    ex4 = S(); ex4(ld3)
    AO, AW, AR, RW, RR, OW, OR_, OO = 16, 17, 18, 19, 20, 23, 24, 25
    ex4(f"""
    v_lshrrev_b32 v{a}, 2, v{vLane}
    v_and_b32 v{b}, 3, v{vLane}
    v_lshlrev_b32 v{AO}, 4, v{b}
    v_mov_b32 v{OO}, 896
    v_mad_u32_u24 v{OO}, v{a}, v{OO}, v{AO}
    v_mul_u32_u24 v{OR_}, 80, v{a}
    v_add3_u32 v{OR_}, v{OR_}, v{AO}, s{sM0x}
    v_lshl_add_u32 v{AO}, v{a}, 7, v{AO}
    s_mul_i32 s{sT1}, s{sW}, {UTSW}
    s_add_u32 s{sT1}, s{sT1}, {UTS}
    v_add_u32 v{AW}, s{sT1}, v{vL16}
    v_and_b32 v{a}, 3, v{a}
    v_lshlrev_b32 v{a}, 6, v{a}
    v_lshl_add_u32 v{a}, v{b}, 3, v{a}
    v_bfe_u32 v{b}, v{vLane}, 4, 1
    v_lshl_add_u32 v{a}, v{b}, 5, v{a}
    v_lshrrev_b32 v{b}, 5, v{vLane}
    v_lshl_add_u32 v{a}, v{b}, 8, v{a}
    v_add_u32 v{AR}, s{sT1}, v{a}
    v_add_u32 v{RW}, s{sM0x}, v{vL16}
    v_xor_b32 v{RR}, 0x1000, v{RW}
    v_xor_b32 v{RR+1}, 0x2000, v{RW}
    v_xor_b32 v{RR+2}, 0x3000, v{RW}
    v_and_b32 v{a}, 31, v{vLane}
    v_mul_u32_u24 v{a}, 80, v{a}
    v_lshl_add_u32 v{a}, v{b}, 3, v{a}
    v_add_u32 v{OW}, s{sM0x}, v{a}
    """)
    G, OMG, GH = 130, 131, 139
    ex5 = S()
    ex5(f"""v_add_f32 v{GP}, v{GP}, v{GP+1}
    v_add_f32 v{GP+2}, v{GP+2}, v{GP+3}
    v_add_f32 v{GP+4}, v{GP+4}, v{GP+5}
    v_add_f32 v{GP}, v{GP}, v{GP+2}
    v_add_f32 v{GP+4}, v{GP+4}, v{GP+6}
    v_add_f32 v{GP}, v{GP}, v{GP+4}
    v_cvt_pk_bf16_f32 v{GP}, v{GP}, v{GP}
    v_lshlrev_b32 v{GP}, 16, v{GP}
    v_mul_f32 v{GP}, {hx(fbits(-math.log2(math.e)))}, v{GP}
    v_exp_f32 v{GP}, v{GP}
    v_add_f32 v{GP}, 1.0, v{GP}
    v_rcp_f32 v{GP}, v{GP}
    v_cvt_pk_bf16_f32 v{G}, v{GP}, 0
    v_lshlrev_b32 v{GH}, 16, v{G}
    v_sub_f32 v{OMG}, 1.0, v{GH}
    v_cvt_pk_bf16_f32 v{OMG}, 0, v{OMG}
    """)
    ex6 = S().add(chk3)
    for q in range(2):
        ex6(f"buffer_load_dwordx4 {vr(E0+4*q,4)}, v{AO}, {sr(rWS,4)}, s{sATld} offen offset:{2048*q} sc1")
    exs = {0: ex0, 2: ex2, 4: ex4, 5: ex5, 6: ex6}
    for q in range(7):
        blk = mf(q, 0, 1).add(mf(q, 1, 1))
        s.add(weave(blk, exs[q]) if q in exs else blk)
    stamp(s, "D2")
    for t in range(1, 4):
        for k in range(4):
            s(f"ds_write_b128 v{RW}, {vr(DACC+16*t+4*k,4)} offset:{(t-1)*SLOT+1024*k}")
    for q in range(2):
        s(f"ds_write_b128 v{AW}, {vr(E0+4*q,4)} offset:{1024*q}")
    s.wait_lg(); s("s_barrier")
    for k in range(4):
        s(f"ds_read_b64_tr_b16 {vr(E0+8+2*k,2)}, v{AR} offset:{512*k}")
        for t in range(1, 4):
            s(f"ds_read_b128 {vr(H2+16*(t-1)+4*k,4)}, v{RR+t-1} offset:{(t-1)*SLOT+1024*k}")
    for k in range(4):
        for p in range(2):
            o = 4*k + 2*p
            s(f"""v_pk_add_f32 {vr(DACC+o,2)}, {vr(DACC+o,2)}, {vr(H2+o,2)}
            v_pk_add_f32 {vr(H2+16+o,2)}, {vr(H2+16+o,2)}, {vr(H2+32+o,2)}""")
        for p in range(2):
            o = 4*k + 2*p
            s(f"v_pk_add_f32 {vr(DACC+o,2)}, {vr(DACC+o,2)}, {vr(H2+16+o,2)}")
        for j in range(4): s(f"v_mul_f32 v{DACC+4*k+j}, v{DACC+4*k+j}, v{OMG}")
        for j in range(4):
            s(f"v_dot2_f32_bf16 v{DACC+4*k+j}, v{E0+8+2*k+j//2}, v{G if j % 2 == 0 else GH}, v{DACC+4*k+j}")
    for k in range(4):
        s(f"""v_cvt_pk_bf16_f32 v{E0+2*k}, v{DACC+4*k}, v{DACC+4*k+1}
        v_cvt_pk_bf16_f32 v{E0+2*k+1}, v{DACC+4*k+2}, v{DACC+4*k+3}
        ds_write_b64 v{OW}, {vr(E0+2*k,2)} offset:{3*SLOT+16*k}""")
    for q in range(2):
        s(f"ds_read_b128 {vr(E0+8+4*q,4)}, v{OR_} offset:{3*SLOT+16*80*q}")
    s(f"s_add_u32 s{sT0}, s{sOst}, {16*896}")
    s(f"buffer_store_dwordx4 {vr(E0+8,4)}, v{OO}, {sr(rO,4)}, s{sOst} offen")
    s(f"buffer_store_dwordx4 {vr(E0+12,4)}, v{OO}, {sr(rO,4)}, s{sT0} offen")
    return s

def helper(code_bytes):
    return f"""L_helper:
    s_getpc_b64 s[4:5]
L_pc:
    s_sub_u32 s4, s4, L_pc-{NAME}_kernel
    s_subb_u32 s5, s5, 0
    v_lshlrev_b32 v1, 7, v0
    v_min_u32 v1, L_pc-{NAME}_kernel, v1
    global_load_dword v2, v1, s[4:5]
    s_cmp_lg_u32 s2, 0
    s_cbranch_scc1 L_end
    v_mov_b32 v4, 0
    v_mov_b32 v5, 0
    v_mov_b32 v6, 0
    v_mov_b32 v7, 0
    v_lshlrev_b32 v3, 4, v0
    v_add_u32 v8, 0x1000, v3
    v_add_u32 v9, 0x2000, v3
    s_waitcnt lgkmcnt(0)
    global_store_dwordx4 v3, v[4:7], s[48:49] sc1
    global_store_dwordx4 v8, v[4:7], s[48:49] sc1
    global_store_dwordx4 v9, v[4:7], s[48:49] sc1
    s_waitcnt vmcnt(0)
    s_barrier
    v_mov_b32 v8, 1
    v_cmp_eq_u32 vcc, 0, v0
    s_and_saveexec_b64 s[6:7], vcc
    s_cbranch_execz L_end
    global_store_dword v4, v8, s[46:47] sc1
    s_branch L_end"""

def build():
    p0, p1, pC = prologue()
    s = S()
    if OPT['stamp']:
        s(f"s_memrealtime s[100:101]\ns_waitcnt lgkmcnt(0)\nv_writelane_b32 v47, s100, 30")
    stamp(s, "start")
    s.add(p0)
    s(f"s_mov_b32 s{sGC0}, s{sKb}")
    stamp(s, "karg")
    s.add(item(0)).add(item(1)).add(item(2))
    s.add(stageA_setup()).add(p1).add(ut_setup())
    stamp(s, "setup")
    A = stageA()
    s.add(sprinkle(A, [item(n) for n in range(3, 7)], 0.05, 0.75))
    stamp(s, "A")
    s.add(stageB(pC))
    stamp(s, "B2")
    s.add(stageTail())
    stamp(s, "tail")
    s.add(stageC())
    stamp(s, "C")
    s.add(stageD())
    stamp(s, "E")
    if OPT['stamp']:
        s(f"""s_waitcnt vmcnt(0)
        s_memtime s[100:101]
        s_waitcnt lgkmcnt(0)
        v_writelane_b32 v47, s100, {len(stamps)}
        s_memrealtime s[100:101]
        s_waitcnt lgkmcnt(0)
        v_writelane_b32 v47, s100, 31
        s_lshl_b32 s{sT0}, s{sC}, 2
        s_add_u32 s{sT0}, s{sT0}, s{sW}
        s_lshl_b32 s{sT0}, s{sT0}, 7
        s_add_u32 s{sT0}, s{sT0}, {WS_ST}
        v_and_b32 v2, 31, v{vLane}
        v_lshlrev_b32 v2, 2, v2
        s_mov_b64 exec, 0xffffffff
        buffer_store_dword v47, v2, {sr(rWS,4)}, s{sT0} offen""")
        stamps.append("end")
    if OPT['sched']:
        s = schedule(s); sys.stderr.write(f'sched cycles {s.cycles}\n')
    fin, nn = finalize(s)
    sys.stderr.write(f"instrs {len(fin)} nops {nn} est cycles {estimate(fin)} stamps {stamps}\n")
    hdr = open('cdna_kernels/' + NAME + '.s.ref').read().split('; Override launch')[0]
    out = hdr + f"""; Fused single launch: workgroups 0..{NHELP-1} are helpers (code prefetch, flag init), {NHELP}..{NHELP+NMAIN-1} do the work.
; @launch grid=({NHELP+NMAIN},1,1) block=(256,1,1) lds={LDS_SIZE}
.amdgcn_target "amdgcn-amd-amdhsa--gfx950"
.text
.globl {NAME}_kernel
.p2align 8
.type {NAME}_kernel,@function
{NAME}_kernel:
{text(fin)}
L_end:
    s_endpgm
""" + "\n".join(slow) + "\n" + helper(0) + f"""
.section .rodata,"a"
.p2align 6
.amdhsa_kernel {NAME}_kernel
  .amdhsa_next_free_vgpr 512
  .amdhsa_next_free_sgpr 102
  .amdhsa_accum_offset 256
  .amdhsa_group_segment_fixed_size 0
  .amdhsa_kernarg_size 136
  .amdhsa_user_sgpr_count 2
  .amdhsa_user_sgpr_kernarg_segment_ptr 1
  .amdhsa_system_sgpr_workgroup_id_x 1
.end_amdhsa_kernel
"""
    return out

if __name__ == "__main__":
    open(sys.argv[1], 'w').write(build())
```

```python
import sys, math, struct
from asmlib import *

NAME = "gated_mix__ssm_conv_s4__geglu_ffn__prompt"
OPT = dict(stamp=0, kb_mi=2, rotD=1, cl1=1, cl2=0, nst=5, sched=1)
PROBE = None
for a in sys.argv[2:]:
    k, v = a.split('=')
    if k == 'probe': PROBE = v.split(',')
    else: OPT[k] = int(v)

def fbits(x): return struct.unpack('<I', struct.pack('<f', x))[0]
def hx(x): return hex(x & 0xffffffff)
vr = lambda a, n: f"v[{a}:{a+n-1}]" if n > 1 else f"v{a}"
ar = lambda a, n: f"a[{a}:{a+n-1}]" if n > 1 else f"a{a}"
sr = lambda a, n: f"s[{a}:{a+n-1}]" if n > 1 else f"s{a}"

NHELP = 8; NMAIN = 224
WS_F1 = 0; WS_F2 = 28*128; WS_F3 = 60*128
WS_G = 0x4000; WS_ST = 0x18000; WS_UT = 0x40000; WS_AT = 0x200000; WS_H = 0x400000; WS_END = 0xB00000
SLOT = 16384; NSLOT = 7
KF = NSLOT*SLOT; KFS = 4224
SCR = KF + 2*KFS; SCRW = 8704
UTS = SCR; UTSW = 2304
UA = SCR + 4*UTSW; UAS = 4288
YA = UA + 2*UAS; YAS = 8704
LDS_SIZE = 163840
assert YA + 2*YAS <= LDS_SIZE

sU, sAre, sAim, sBre, sBim, sCre, sCim, sLdt = 16, 18, 20, 22, 24, 26, 28, 30
sDsk, sBx, sWg, sWu, sWdn, sGw, sOut, sDbg, sWs = 32, 34, 36, 38, 40, 42, 44, 46, 48
rX, rW, rD, rWS, rO = 52, 56, 60, 64, 68
sW = 3
sC = 4
sXo = 5
sWo = 6
sKb = 7
sKw = 8
sM0x = 9
sM0w = 10
sDo = 11
sDq = 12
sT0, sT1, sT2 = 13, 14, 15
sTmp = 50
sHst = 72
sHld = 73
sHq = 74
sF1w, sF2w, sF3w = 75, 76, 77
sF1r, sF2r, sF3r, sF1g = 78, 79, 80, 81
sUTst, sGst, sUTld = 82, 83, 84
sATld, sGld, sOst = 85, 86, 87
sLDv, sDSv = 88, 89
sK0, sK1 = 16, 18
sSpin = 96
sHf = 97
sGC0 = 98
sXs, sXe, sWs_, sWe, sDs, sDe, sHs, sHe = 22, 23, 24, 25, 26, 27, 28, 29
STAMP0 = 16

vTid = 0; vL16 = 1; vFl = 2; vOne = 3
vXd = 4
vWd = 8
vDd = 12
vXr = 16
vWr = 24
vDr = 28
vLane = 32
vPoll = 33; vPollA = 34
vC1 = vT_C1 = 88
vFr = 36; vGr = 37; vYw = 38; vYr = 39; vYc = 40
vUo = 42
vUw = 43
vH2 = 44
vH1 = 45
vTwo = 46
vYk = 35
vWf = 48
vU = 72
vT = 80
ACC1 = 128; ACC2 = 192

stamps = []
def stamp(s, name):
    if PROBE and (name in PROBE or (name == 'start' and PROBE[0] == 'h0')):
        s(f"s_memrealtime {sr(100,2)}\ns_waitcnt lgkmcnt(0)\ns_mov_b32 s{12 if name == PROBE[1] else 8}, s100")
    if OPT['stamp']:
        k = len(stamps); stamps.append(name)
        s(f"s_memtime {sr(100,2)}\ns_waitcnt lgkmcnt(0)\nv_writelane_b32 v47, s100, {k}")

slow = []
def poll(s, thr, voff, soff, srd=None, vdst=vPoll):
    srd = sr(rWS, 4) if srd is None else srd
    ld = f"buffer_load_dword v{vdst}, v{voff}, {srd}, {soff} offen sc1"
    k = len(slow)
    chk = S()
    chk(f"v_cmp_gt_u32 vcc, {thr}, v{vdst}\ns_cbranch_vccnz L_slow{k}\nL_back{k}:")
    slow.append(f"""L_slow{k}:
    s_mov_b32 s{sSpin}, 0
L_spin{k}:
    {ld}
    s_add_u32 s{sSpin}, s{sSpin}, 1
    s_cmp_gt_u32 s{sSpin}, 0x40000
    s_cbranch_scc1 L_back{k}
    s_waitcnt vmcnt(0)
    v_cmp_gt_u32 vcc, {thr}, v{vdst}
    s_nop 1
    s_cbranch_vccnz L_spin{k}
    s_branch L_back{k}""")
    return ld, chk

def prologue():
    s = S()
    s(f"""
    s_load_dwordx16 s[16:31], s[0:1], 0
    s_load_dwordx16 s[32:47], s[0:1], 64
    s_load_dwordx2 s[48:49], s[0:1], 128
    s_cmp_ge_u32 s2, {NHELP+NMAIN}
    s_cbranch_scc1 L_end
    s_cmp_lt_u32 s2, {NHELP}
    s_cbranch_scc1 L_helper
    v_lshrrev_b32 v{vT}, 6, v0
    v_and_b32 v{vLane}, 63, v0
    v_readfirstlane_b32 s{sW}, v{vT}
    s_sub_u32 s{sC}, s2, {NHELP}
    v_lshlrev_b32 v{vL16}, 4, v{vLane}
    """)
    s(f"""
    s_lshl_b32 s{sT0}, s{sC}, 10
    v_lshl_add_u32 v{vT+1}, v0, 2, s{sT0}
    """)
    x, j, mi, i, mb, fc, rb = 72, 73, 74, 75, 76, 77, 78
    X, J, MI, II, MB, FC, RB = 90, 91, 92, 93, 94, 95, 99
    s(f"""
    s_and_b32 s{X}, s{sC}, 7
    s_lshr_b32 s{J}, s{sC}, 3
    s_and_b32 s{MI}, s{J}, 3
    s_lshr_b32 s{II}, s{J}, 2
    s_lshr_b32 s{MB}, s{X}, 1
    s_lshl_b32 s{MB}, s{MB}, 2
    s_add_u32 s{MB}, s{MB}, s{MI}
    s_and_b32 s{sHf}, s{X}, 1
    s_mul_i32 s{FC}, s{sHf}, 7
    s_add_u32 s{FC}, s{FC}, s{II}
    s_lshl_b32 s{RB}, s{X}, 2
    s_add_u32 s{RB}, s{RB}, s{MI}
    s_mul_i32 s{sKb}, s{MI}, {OPT['kb_mi']}
    s_add_u32 s{sKb}, s{sKb}, s{II}
    s_sub_u32 s{sT0}, s{sKb}, 7
    s_cmp_ge_u32 s{sKb}, 7
    s_cselect_b32 s{sKb}, s{sT0}, s{sKb}
    s_lshl_b32 s{sM0x}, s{sW}, 12
    s_lshl_b32 s{sT0}, s{MB}, 2
    s_add_u32 s{sT0}, s{sT0}, s{sW}
    s_mul_i32 s{sXo}, s{sT0}, {32*896}
    s_lshl_b32 s{sT1}, s{sKb}, 7
    s_add_u32 s{sXo}, s{sXo}, s{sT1}
    s_lshr_b32 s{sT0}, s{sW}, 1
    s_lshl_b32 s{sT1}, s{sKb}, 1
    s_add_u32 s{sT1}, s{sT1}, s{sT0}
    s_mul_i32 s{sWo}, s{sT1}, {32*3584}
    s_lshl_b32 s{sT1}, s{FC}, 7
    s_add_u32 s{sWo}, s{sWo}, s{sT1}
    s_and_b32 s{sT1}, s{sW}, 1
    s_lshl_b32 s{sM0w}, s{sT1}, 13
    s_lshl_b32 s{sT0}, s{sT0}, 12
    s_add_u32 s{sM0w}, s{sM0w}, s{sT0}
    """)
    a, b, c_, d = vT+2, vT+3, vT+4, vT+5
    s(f"""
    v_lshrrev_b32 v{a}, 3, v{vLane}
    v_and_b32 v{b}, 7, v{vLane}
    v_lshrrev_b32 v{c_}, 4, v{vLane}
    v_xor_b32 v{d}, v{b}, v{c_}
    v_lshlrev_b32 v{d}, 4, v{d}
    v_mov_b32 v{vT+6}, 896
    v_mad_u32_u24 v{vXd}, v{a}, v{vT+6}, v{d}
    v_xor_b32 v{d}, 64, v{d}
    v_mad_u32_u24 v{vXd+1}, v{a}, v{vT+6}, v{d}
    v_add_u32 v{vXd+2}, {2*(8*896-1024)}, v{vXd}
    v_add_u32 v{vXd+3}, {3*(8*896-1024)}, v{vXd+1}
    v_add_u32 v{vXd+1}, {8*896-1024}, v{vXd+1}
    v_and_b32 v{c_}, 1, v{c_}
    s_lshl_b32 s{sT1}, s{sT1}, 2
    v_lshl_or_b32 v{d}, v{c_}, 1, s{sT1}
    v_xor_b32 v{d}, v{b}, v{d}
    v_lshlrev_b32 v{d}, 4, v{d}
    v_mov_b32 v{vT+7}, 3584
    v_mad_u32_u24 v{vWd}, v{a}, v{vT+7}, v{d}
    v_add_u32 v{vWd+1}, {1*(8*3584-1024)}, v{vWd}
    v_add_u32 v{vWd+2}, {2*(8*3584-1024)}, v{vWd}
    v_add_u32 v{vWd+3}, {3*(8*3584-1024)}, v{vWd}
    v_lshlrev_b32 v{d}, 2, v{c_}
    v_xor_b32 v{d}, v{b}, v{d}
    v_lshlrev_b32 v{d}, 4, v{d}
    v_mad_u32_u24 v{vDd}, v{a}, v{vT+6}, v{d}
    v_add_u32 v{vDd+1}, {1*(8*896-1024)}, v{vDd}
    v_add_u32 v{vDd+2}, {2*(8*896-1024)}, v{vDd}
    v_add_u32 v{vDd+3}, {3*(8*896-1024)}, v{vDd}
    """)
    P = ACC2
    s(f"""
    s_lshl_b32 s{sT0}, s{sC}, 2
    global_load_dword v{P+0}, v{vT+1}, {sr(sAre,2)}
    s_load_dword s{sLDv}, {sr(sLdt,2)}, s{sT0}
    global_load_dword v{P+1}, v{vT+1}, {sr(sAim,2)}
    s_load_dword s{sDSv}, {sr(sDsk,2)}, s{sT0}
    global_load_dword v{P+2}, v{vT+1}, {sr(sBre,2)}
    global_load_dword v{P+3}, v{vT+1}, {sr(sBim,2)}
    global_load_dword v{P+4}, v{vT+1}, {sr(sCre,2)}
    global_load_dword v{P+5}, v{vT+1}, {sr(sCim,2)}
    s_mov_b32 s{rX}, s{sU}
    s_mov_b32 s{rX+1}, s{sU+1}
    s_mov_b32 s{rX+2}, {2048*896}
    s_mov_b32 s{rX+3}, 0x20000
    s_bitcmp1_b32 s{sW}, 0
    s_cselect_b32 s{rW}, s{sWu}, s{sWg}
    s_cselect_b32 s{rW+1}, s{sWu+1}, s{sWg+1}
    s_mov_b32 s{rW+2}, {448*3584}
    s_mov_b32 s{rW+3}, 0x20000
    s_lshl_b32 s{sT0}, s{sKb}, 7
    s_sub_u32 s{sXs}, s{sXo}, s{sT0}
    s_add_u32 s{sXe}, s{sXs}, 896
    s_mul_i32 s{sT0}, s{sKb}, {64*3584}
    s_sub_u32 s{sWs_}, s{sWo}, s{sT0}
    s_add_u32 s{sWe}, s{sWs_}, {448*3584}
    """)
    a, b, c_, d, e = vT+2, vT+3, vT+4, vT+5, vT+6
    t = S()
    t(f"""
    s_mov_b32 s{rWS}, s{sWs}
    s_mov_b32 s{rWS+1}, s{sWs+1}
    s_mov_b32 s{rWS+2}, {WS_END}
    s_mov_b32 s{rWS+3}, 0x20000
    s_and_b32 s{sT1}, s{sW}, 1
    s_lshr_b32 s{sT2}, s{sW}, 1
    s_lshl_b32 s{sT0}, s{MB}, 1
    s_add_u32 s{sT0}, s{sT0}, s{sHf}
    s_lshl_b32 s{sTmp}, s{sGC0}, 2
    s_add_u32 s{sTmp}, s{sTmp}, s{sW}
    s_lshl_b32 s{sF1w}, s{sTmp}, 7
    s_lshl_b32 s{sTmp+1}, s{sT0}, 2
    s_add_u32 s{sF1w}, s{sF1w}, s{sTmp+1}
    s_lshl_b32 s{sUTst}, s{sTmp}, 11
    s_mul_i32 s{sTmp}, s{sT0}, 57344
    s_add_u32 s{sUTst}, s{sUTst}, s{sTmp}
    s_add_u32 s{sUTst}, s{sUTst}, {WS_UT}
    s_lshl_b32 s{sGst}, s{sT0}, 11
    s_lshl_b32 s{sTmp}, s{sGC0}, 8
    s_add_u32 s{sGst}, s{sGst}, s{sTmp}
    s_lshl_b32 s{sTmp}, s{sW}, 6
    s_add_u32 s{sGst}, s{sGst}, s{sTmp}
    s_add_u32 s{sGst}, s{sGst}, {WS_G}
    v_and_b32 v{a}, 31, v{vLane}
    v_lshlrev_b32 v{a}, 7, v{a}
    s_lshl_b32 s{sTmp}, s{sT2}, 13
    v_add_u32 v{a}, s{sTmp}, v{a}
    v_bfe_u32 v{b}, v{vLane}, 1, 3
    v_lshrrev_b32 v{c_}, 5, v{vLane}
    v_xor_b32 v{b}, v{b}, v{c_}
    v_lshl_add_u32 v{vXr}, v{b}, 4, v{a}
    v_xor_b32 v{vXr+1}, 32, v{vXr}
    v_xor_b32 v{vXr+2}, 64, v{vXr}
    v_xor_b32 v{vXr+3}, 96, v{vXr}
    v_add_u32 v{vXr+4}, 0x10000, v{vXr}
    v_add_u32 v{vXr+5}, 0x10000, v{vXr+1}
    v_add_u32 v{vXr+6}, 0x10000, v{vXr+2}
    v_add_u32 v{vXr+7}, 0x10000, v{vXr+3}
    v_bfe_u32 v{a}, v{vLane}, 2, 2
    v_and_b32 v{b}, 3, v{vLane}
    v_bfe_u32 v{d}, v{vLane}, 4, 1
    v_lshrrev_b32 v{e}, 1, v{a}
    v_lshl_or_b32 v{e}, v{d}, 1, v{e}
    s_lshl_b32 s{sTmp}, s{sT1}, 1
    v_xor_b32 v{e}, s{sTmp}, v{e}
    v_lshlrev_b32 v{e}, 5, v{e}
    v_lshl_add_u32 v{e}, v{b}, 3, v{e}
    v_lshl_add_u32 v{e}, v{a}, 7, v{e}
    v_lshl_add_u32 v{e}, v{c_}, 10, v{e}
    v_lshl_add_u32 v{vWr}, v{d}, 13, v{e}
    v_xor_b32 v{vWr+1}, 32, v{vWr}
    v_add_u32 v{vWr+2}, 0x10000, v{vWr}
    v_add_u32 v{vWr+3}, 0x10000, v{vWr+1}
    """)
    u = S()
    u(f"""
    v_mov_b32 v{vOne}, 1
    v_mov_b32 v{vTwo}, 2
    v_mov_b32 v{vC1}, {hx(fbits(-2*math.sqrt(2/math.pi)*math.log2(math.e)*0.044715))}
    v_cmp_eq_u32 vcc, 0, v{vLane}
    v_mov_b32 v{a}, 0x80000000
    v_cndmask_b32 v{vFl}, v{a}, 0, vcc
    s_mov_b32 s{rD}, s{sWdn}
    s_mov_b32 s{rD+1}, s{sWdn+1}
    s_mov_b32 s{rD+2}, {1792*896}
    s_mov_b32 s{rD+3}, 0x20000
    s_mov_b32 s{rO}, s{sOut}
    s_mov_b32 s{rO+1}, s{sOut+1}
    s_mov_b32 s{rO+2}, {2048*896}
    s_mov_b32 s{rO+3}, 0x20000
    s_and_b32 s{sT1}, s{sW}, 1
    s_lshr_b32 s{sT2}, s{sW}, 1
    s_lshl_b32 s{sT0}, s{MB}, 1
    s_add_u32 s{sT0}, s{sT0}, s{sT2}
    s_lshl_b32 s{sF2w}, s{sT0}, 7
    s_mul_i32 s{sHst}, s{sT0}, {2*112*1024}
    s_lshl_b32 s{sT0}, s{FC}, 1
    s_add_u32 s{sT0}, s{sT0}, s{sT1}
    s_lshl_b32 s{sTmp}, s{sT0}, 11
    s_add_u32 s{sHst}, s{sHst}, s{sTmp}
    s_add_u32 s{sHst}, s{sHst}, {WS_H}
    s_lshl_b32 s{sT0}, s{sT0}, 2
    s_add_u32 s{sF2w}, s{sF2w}, s{sT0}
    s_add_u32 s{sF2w}, s{sF2w}, {WS_F2}
    s_mul_i32 s{sHq}, s{II}, {OPT['rotD']}
    s_mul_i32 s{sT0}, s{sW}, 7
    s_lshl_b32 s{sF2r}, s{sT0}, 2
    s_add_u32 s{sT0}, s{sT0}, s{sHq}
    s_mul_i32 s{sDo}, s{sT0}, {32*896}
    s_lshl_b32 s{sTmp}, s{II}, 7
    s_add_u32 s{sDo}, s{sDo}, s{sTmp}
    s_lshl_b32 s{sHld}, s{sT0}, 11
    s_mul_i32 s{sTmp}, s{RB}, {2*112*1024}
    s_add_u32 s{sHld}, s{sHld}, s{sTmp}
    s_add_u32 s{sHld}, s{sHld}, {WS_H}
    s_lshl_b32 s{sTmp}, s{sHq}, 11
    s_sub_u32 s{sHs}, s{sHld}, s{sTmp}
    s_add_u32 s{sHe}, s{sHs}, {14*1024}
    s_mul_i32 s{sTmp}, s{sHq}, {32*896}
    s_sub_u32 s{sDs}, s{sDo}, s{sTmp}
    s_add_u32 s{sDe}, s{sDs}, {224*896}
    s_lshl_b32 s{sTmp}, s{RB}, 7
    s_add_u32 s{sF2r}, s{sF2r}, s{sTmp}
    s_add_u32 s{sF2r}, s{sF2r}, {WS_F2}
    s_lshr_b32 s{sTmp}, s{sC}, 3
    s_lshl_b32 s{sF1r}, s{sTmp}, 7
    s_lshl_b32 s{sTmp}, s{sW}, 5
    s_add_u32 s{sF1r}, s{sF1r}, s{sTmp}
    s_mul_i32 s{sUTld}, s{sW}, {8*57344}
    s_lshl_b32 s{sTmp}, s{sC}, 8
    s_add_u32 s{sUTld}, s{sUTld}, s{sTmp}
    s_add_u32 s{sUTld}, s{sUTld}, {WS_UT}
    s_lshr_b32 s{sTmp}, s{sC}, 5
    s_lshl_b32 s{sTmp}, s{sTmp}, 2
    s_add_u32 s{sTmp}, s{sTmp}, s{sW}
    s_lshl_b32 s{sF3w}, s{sTmp}, 7
    s_and_b32 s{sTmp}, s{sC}, 31
    s_lshl_b32 s{sTmp}, s{sTmp}, 2
    s_add_u32 s{sF3w}, s{sF3w}, s{sTmp}
    s_add_u32 s{sF3w}, s{sF3w}, {WS_F3}
    s_lshl_b32 s{sTmp}, s{II}, 2
    s_lshr_b32 s{sTmp+1}, s{RB}, 3
    s_add_u32 s{sTmp}, s{sTmp}, s{sTmp+1}
    s_lshl_b32 s{sF3r}, s{sTmp}, 7
    s_lshl_b32 s{sTmp}, s{sT1}, 6
    s_add_u32 s{sF3r}, s{sF3r}, s{sTmp}
    s_add_u32 s{sF3r}, s{sF3r}, {WS_F3}
    s_lshl_b32 s{sF1g}, s{RB}, 2
    s_lshl_b32 s{sTmp}, s{II}, 1
    s_add_u32 s{sTmp}, s{sTmp}, s{sT1}
    s_lshl_b32 s{sATld}, s{sTmp}, 12
    s_lshl_b32 s{sOst}, s{sTmp}, 6
    s_mul_i32 s{sTmp}, s{RB}, 57344
    s_add_u32 s{sATld}, s{sATld}, s{sTmp}
    s_add_u32 s{sOst}, s{sOst}, s{sTmp}
    s_lshl_b32 s{sTmp}, s{sT2}, 6
    s_add_u32 s{sATld}, s{sATld}, s{sTmp}
    s_add_u32 s{sATld}, s{sATld}, {WS_AT}
    s_mul_i32 s{sTmp}, s{sT2}, {32*896}
    s_add_u32 s{sOst}, s{sOst}, s{sTmp}
    s_lshl_b32 s{sGld}, s{RB}, 11
    s_lshl_b32 s{sTmp}, s{sT2}, 7
    s_add_u32 s{sGld}, s{sGld}, s{sTmp}
    s_add_u32 s{sGld}, s{sGld}, {WS_G}
    v_bfe_u32 v{a}, v{vLane}, 2, 2
    v_and_b32 v{b}, 3, v{vLane}
    v_bfe_u32 v{d}, v{vLane}, 4, 1
    v_lshrrev_b32 v{c_}, 5, v{vLane}
    s_lshl_b32 s{sTmp}, s{sT1}, 1
    v_and_b32 v{e}, 2, v{a}
    v_or_b32 v{e}, v{e}, v{d}
    v_xor_b32 v{e}, s{sTmp}, v{e}
    v_lshlrev_b32 v{e}, 5, v{e}
    v_lshl_add_u32 v{e}, v{b}, 3, v{e}
    v_lshl_add_u32 v{e}, v{a}, 7, v{e}
    v_lshl_add_u32 v{e}, v{c_}, 9, v{e}
    v_add_u32 v{vDr}, s{sM0x}, v{e}
    v_xor_b32 v{vDr+1}, 64, v{vDr}
    v_add_u32 v{vDr+2}, 0x10000, v{vDr}
    v_add_u32 v{vDr+3}, 0x10000, v{vDr+1}
    v_lshrrev_b32 v{c_}, 4, v{vLane}
    v_lshlrev_b32 v{e}, 3, v{a}
    v_lshl_add_u32 v{e}, v{c_}, 6, v{e}
    s_mul_i32 s{sTmp}, s{sT2}, {KFS}
    s_add_u32 s{sTmp}, s{sTmp}, {KF}
    v_lshl_add_u32 v{vFr}, v{b}, 5, v{e}
    v_add_u32 v{vFr}, s{sTmp}, v{vFr}
    s_mul_i32 s{sTmp}, s{sT2}, {UAS}
    s_lshl_b32 s{sTmp+1}, s{sT1}, 7
    s_add_u32 s{sTmp}, s{sTmp}, s{sTmp+1}
    s_add_u32 s{sTmp}, s{sTmp}, {UA+160+96-32}
    v_lshl_add_u32 v{vGr}, v{b}, 3, s{sTmp}
    v_sub_u32 v{vGr}, v{vGr}, v{e}
    s_mul_i32 s{sTmp}, s{sT2}, {YAS}
    s_mul_i32 s{sTmp+1}, s{sT1}, 272
    s_add_u32 s{sTmp}, s{sTmp}, s{sTmp+1}
    s_add_u32 s{sTmp}, s{sTmp}, {YA}
    v_lshl_add_u32 v{vYw}, v{vLane}, 2, s{sTmp}
    v_lshrrev_b32 v{a}, 3, v0
    v_and_b32 v{b}, 7, v0
    v_mul_u32_u24 v{e}, 272, v{a}
    v_add_u32 v{e}, {YA}, v{e}
    v_lshl_add_u32 v{vYr}, v{b}, 5, v{e}
    v_cmp_eq_u32 vcc, 0, v{b}
    v_cmp_ne_u32 {sr(sTmp,2)}, 0, v{a}
    s_and_b64 vcc, vcc, {sr(sTmp,2)}
    v_mov_b32 v{d}, {KF}
    v_subrev_u32 v{e}, 16, v{e}
    v_cndmask_b32 v{vYc}, v{d}, v{e}, vcc
    v_add_u32 v{e}, {YAS}, v{e}
    v_cndmask_b32 v{vYc+1}, v{d}, v{e}, vcc
    v_lshlrev_b32 v{vUw}, 4, v0
    v_add_u32 v{vUw}, {UA+160}, v{vUw}
    v_lshrrev_b32 v{a}, 3, v{vLane}
    v_mul_u32_u24 v{a}, 57344, v{a}
    v_lshl_add_u32 v{vUo}, v{b}, 4, v{a}
    s_mul_i32 s{sTmp}, s{sT2}, {112*1024}
    v_add_u32 v{vH1}, s{sTmp}, v{vL16}
    s_sub_u32 s{sTmp}, {112*1024}, s{sTmp}
    v_add_u32 v{vH2}, s{sTmp}, v{vL16}
    v_add_u32 v{a}, 4, v{vYw}
    v_add_u32 v{b}, {UTS}, v{vL16}
    v_cmp_eq_u32 vcc, 63, v{vLane}
    v_cndmask_b32 v{vYk}, v{b}, v{a}, vcc
    """)
    return s, t, u

def adv(s, o, step, st, en, extra):
    s(f"""s_add_u32 s{o}, s{o}, {step}
    s_cmp_eq_u32 s{o}, s{en}
    s_cselect_b32 s{o}, s{st}, s{o}""")
    if extra:
        s(f"s_add_u32 s{o}, s{o}, {extra}\ns_add_u32 s{st}, s{st}, {extra}\ns_add_u32 s{en}, s{en}, {extra}")

def dma_x(slot, tok):
    s = S()
    s(f"s_add_u32 m0, s{sM0x}, {slot*SLOT}")
    for q in range(4):
        s(f"buffer_load_dwordx4 v{vXd+q}, {sr(rX,4)}, s{sXo} offen offset:{1024*q} lds", tok)
    adv(s, sXo, 128, sXs, sXe, 0)
    return s

def dma_w(slot, tok, extra=0):
    s = S()
    s(f"s_add_u32 m0, s{sM0w}, {slot*SLOT}")
    for q in range(4):
        s(f"buffer_load_dwordx4 v{vWd+q}, {sr(rW,4)}, s{sWo} offen offset:{1024*q} lds", tok)
    adv(s, sWo, 64*3584, sWs_, sWe, extra)
    return s

def dma_d(slot, tok, extra=0):
    s = S()
    s(f"s_add_u32 m0, s{sM0x}, {slot*SLOT}")
    for q in range(4):
        s(f"buffer_load_dwordx4 v{vDd+q}, {sr(rD,4)}, s{sDo} offen offset:{1024*q} lds", tok)
    adv(s, sDo, 32*896, sDs, sDe, extra)
    return s

def item(n):
    if n < 14:
        return dma_x(n % NSLOT, f"it{n}") if n % 2 == 0 else dma_w(n % NSLOT, f"it{n}", 896*2 if n == 13 else 0)
    if n < 21: return dma_w(n % NSLOT, f"it{n}")
    return dma_d(n % NSLOT, f"it{n}", 896*896 if n == 27 else 0)

def sprinkle(main, groups, lo=0.0, hi=1.0):
    out = S(); n = len(main); g = 0
    pos = [int(n*(lo + (hi-lo)*k/max(1, len(groups)))) for k in range(len(groups))]
    for i, x in enumerate(main):
        while g < len(groups) and pos[g] <= i and not glued(x):
            out.add(groups[g]); g += 1
        out.append(x)
    while g < len(groups): out.add(groups[g]); g += 1
    return out

def stageA_setup():
    s = S()
    vTw, vTr, vK, vK1, vKw, vI = 48, 49, 50, 54, 55, 56
    a, b, c_, d, e = vT+2, vT+3, vT+4, vT+5, vT+6
    s(f"""
    s_mul_i32 s{sTmp}, s{sW}, {SCRW}
    s_add_u32 s{sTmp}, s{sTmp}, {SCR}
    v_lshl_add_u32 v{vTw}, v{vLane}, 3, s{sTmp}
    v_and_b32 v{a}, 15, v{vLane}
    v_lshrrev_b32 v{b}, 4, v{vLane}
    v_mul_u32_u24 v{c_}, 544, v{a}
    v_lshl_add_u32 v{c_}, v{b}, 4, v{c_}
    v_add_u32 v{vTr}, s{sTmp}, v{c_}
    v_lshl_add_u32 v{c_}, v{b}, 7, v{a}
    v_lshl_add_u32 v{vK1}, v{c_}, 2, s{sTmp}
    v_max_u32 v{c_}, 1, v{b}
    v_sub_u32 v{c_}, 6, v{c_}
    v_lshlrev_b32 v{d}, v{c_}, v{a}
    v_cmp_gt_u32 vcc, 2, v{b}
    v_lshlrev_b32 v{e}, 4, v{b}
    v_lshlrev_b32 v{a}, 9, v{b}
    v_cndmask_b32 v{a}, v{a}, v{e}, vcc
    v_add3_u32 v{vK}, v{a}, v{d}, s{sTmp}
    v_cmp_eq_u32 vcc, 3, v{b}
    v_mov_b32 v{e}, 256
    v_cndmask_b32 v{a}, 8, v{e}, vcc
    v_add_u32 v{vK+1}, v{vK}, v{a}
    v_lshlrev_b32 v{d}, v{c_}, 16
    v_add_u32 v{vK+2}, v{vK}, v{d}
    v_add_u32 v{vK+3}, v{vK+1}, v{d}
    v_lshlrev_b32 v{vKw}, 2, v0
    v_add_u32 v{vKw}, {KF+96}, v{vKw}
    """)
    s(f"v_lshlrev_b32 v{a}, 1, v0")
    for e_ in range(4):
        s(f"""
        v_add_u32 v{b}, {512*e_}, v{a}
        v_add_u32 v{c_}, {512*e_+1}, v{a}
        v_cvt_f32_u32 v{d}, v{b}
        v_cvt_f32_u32 v{e}, v{c_}
        v_cvt_pk_bf16_f32 v{d}, v{d}, v{e}
        v_lshrrev_b32 v{e}, 16, v{d}
        v_and_b32 v{d}, 0xffff, v{d}
        """)
        if e_ == 0:
            s(f"""
            v_add_u32 v{b}, 17024, v{b}
            v_add_u32 v{c_}, 17024, v{c_}
            v_cmp_gt_u32 vcc, 64, v0
            v_cndmask_b32 v{d}, v{d}, v{b}, vcc
            v_cndmask_b32 v{e}, v{e}, v{c_}, vcc
            """)
        s(f"""
        s_mov_b32 s{sTmp}, {hx(SCR - 4*17024)}
        v_lshl_add_u32 v{vI+2*e_}, v{d}, 2, s{sTmp}
        v_lshl_add_u32 v{vI+2*e_+1}, v{e}, 2, s{sTmp}
        """)
    s(f"""
    v_mov_b32 v{a}, 0
    v_min_u32 v{b}, 23, v{vLane}
    v_lshlrev_b32 v{b}, 2, v{b}
    v_add_u32 v{b}, {KF}, v{b}
    ds_write_b32 v{b}, v{a}
    ds_write_b32 v{b}, v{a} offset:{KFS}
    """)
    return s

def stageA():
    s = S()
    vTw, vTr, vK, vK1, vKw, vI = 48, 49, 50, 54, 55, 56
    P = ACC2
    R = ACC1
    def pr(k): return vr(R+2*k, 2)
    Ar, Ai, Br, Bi, Cr, Ci, Dt = range(7)
    T1, T2 = 7, 8
    Z1r, Z1i, Z8r, Z8i, Z256r, Z256i = range(9, 15)
    Wr, Wi = 15, 16
    for k in range(6):
        s(f"v_lshlrev_b32 v{R+2*k}, 16, v{P+k}\nv_and_b32 v{R+2*k+1}, 0xffff0000, v{P+k}")
    s(f"""
    s_lshr_b32 s{sT1}, s{sW}, 1
    s_lshl_b32 s{sT1}, s{sT1}, 4
    s_lshr_b32 s{sT1}, s{sLDv}, s{sT1}
    s_lshl_b32 s{sT1}, s{sT1}, 16
    v_mov_b32 v{R+2*Dt}, {hx(fbits(math.log2(math.e)))}
    v_mul_f32 v{R+2*Dt}, s{sT1}, v{R+2*Dt}
    v_exp_f32 v{R+2*Dt}, v{R+2*Dt}
    v_cvt_pk_bf16_f32 v{R+2*Dt}, v{R+2*Dt}, v{R+2*Dt}
    v_lshlrev_b32 v{R+2*Dt}, 16, v{R+2*Dt}
    v_mov_b32 v{R+2*Dt+1}, v{R+2*Dt}
    """)
    for k in (Ar, Ai, Br, Bi):
        s(f"v_pk_mul_f32 {pr(k)}, {pr(k)}, {pr(Dt)}")
    NEG = "neg_lo:[1,0,0] neg_hi:[1,0,0]"
    tc = [0]
    def cmul(dr, di, xr, xi, zr, zi):
        T1, T2 = ((7, 8), (27, 28))[tc[0] % 2]; tc[0] += 1
        s(f"""v_pk_mul_f32 {pr(T1)}, {pr(xr)}, {pr(zr)}
        v_pk_mul_f32 {pr(T2)}, {pr(xr)}, {pr(zi)}
        v_pk_fma_f32 {pr(dr)}, {pr(xi)}, {pr(zi)}, {pr(T1)} {NEG}
        v_pk_fma_f32 {pr(di)}, {pr(xi)}, {pr(zr)}, {pr(T2)}""")
    def prim(p, zr, zi):
        T1, T2 = ((7, 8), (27, 28))[tc[0] % 2]; tc[0] += 1
        c1 = hx(fbits(p*math.log2(math.e))); c2 = hx(fbits(p/(2*math.pi)))
        s(f"""s_mov_b32 s{sK0}, {c1}
        s_mov_b32 s{sK0+1}, {c1}
        s_mov_b32 s{sK1}, {c2}
        s_mov_b32 s{sK1+1}, {c2}
        v_pk_mul_f32 {pr(T1)}, {pr(Ar)}, {sr(sK0,2)}
        v_pk_mul_f32 {pr(T2)}, {pr(Ai)}, {sr(sK1,2)}
        v_exp_f32 v{R+2*T1}, v{R+2*T1}
        v_exp_f32 v{R+2*T1+1}, v{R+2*T1+1}
        v_fract_f32 v{R+2*T2}, v{R+2*T2}
        v_fract_f32 v{R+2*T2+1}, v{R+2*T2+1}
        v_cos_f32 v{R+2*zr}, v{R+2*T2}
        v_cos_f32 v{R+2*zr+1}, v{R+2*T2+1}
        v_sin_f32 v{R+2*zi}, v{R+2*T2}
        v_sin_f32 v{R+2*zi+1}, v{R+2*T2+1}
        v_pk_mul_f32 {pr(zr)}, {pr(zr)}, {pr(T1)}
        v_pk_mul_f32 {pr(zi)}, {pr(zi)}, {pr(T1)}""")
    cnt = [0]
    def row(r, xr, xi, neg):
        o = vT + 8 + 2*(cnt[0] % 4); cnt[0] += 1
        n = '-' if neg else ''
        s(f"""v_cvt_pk_bf16_f32 v{o}, v{R+2*xr}, v{R+2*xr+1}
        v_cvt_pk_bf16_f32 v{o+1}, {n}v{R+2*xi}, {n}v{R+2*xi+1}
        ds_write_b64 v{vTw}, {vr(o,2)} offset:{544*r}""")
    def frags(base):
        for ks in range(8):
            s(f"ds_read_b128 {ar(base+4*ks,4)}, v{vTr} offset:{64*ks}")
    prim(8, Z8r, Z8i)
    prim(1, Z1r, Z1i)
    prim(256, Z256r, Z256i)
    cmul(Wr, Wi, Cr, Ci, Br, Bi)
    s(f"v_mov_b32 v{vT+16}, 0x3f803f80\nv_mov_b32 v{vT+17}, 0\nds_write_b64 v{vTw}, {vr(vT+16,2)}")
    row(1, Z8r, Z8i, 0)
    Z16 = (0, 1)
    cmul(Z16[0], Z16[1], Z8r, Z8i, Z8r, Z8i)
    row(2, Z16[0], Z16[1], 0)
    E = [(17, 18), (19, 20), (2, 3), (4, 5)]
    cur = {0: Z16, 1: (Z8r, Z8i)}
    for i in range(3, 32):
        nx = E[i % 4]; x = cur[i % 2]
        cmul(nx[0], nx[1], x[0], x[1], Z16[0], Z16[1])
        if i == 16: frags(0)
        row(i % 16, nx[0], nx[1], 0)
        cur[i % 2] = nx
    Z2 = (Z8r, Z8i)
    cmul(E[0][0], E[0][1], Wr, Wi, Z1r, Z1i)
    cmul(Z2[0], Z2[1], Z1r, Z1i, Z1r, Z1i)
    frags(32)
    keep = {0: (Wr, Wi), 1: E[0], 2: (21, 22), 3: E[1], 4: (23, 24), 5: E[2], 6: (25, 26), 7: E[3]}
    row(0, Wr, Wi, 1); row(1, E[0][0], E[0][1], 1)
    for t in range(2, 8):
        nx = keep[t]; x = keep[t-2]
        cmul(nx[0], nx[1], x[0], x[1], Z2[0], Z2[1])
        row(t, nx[0], nx[1], 1)
    Z512 = (Z1r, Z1i)
    cmul(Z512[0], Z512[1], Z256r, Z256i, Z256r, Z256i)
    n256 = {0: E[0], 2: E[1], 4: E[2], 6: E[3]}
    for k, t in enumerate((0, 2, 4, 6)):
        x = keep[t]; y = n256[t]; cmul(y[0], y[1], x[0], x[1], Z256r, Z256i); row(8+k, y[0], y[1], 1)
    for k, x in enumerate((keep[0], keep[4], n256[0], n256[4])):
        cmul(x[0], x[1], x[0], x[1], Z512[0], Z512[1]); row(12+k, x[0], x[1], 1)
    for k in range(5):
        x = (keep[0], n256[0])[k % 2]
        cmul(x[0], x[1], x[0], x[1], Z512[0], Z512[1])
        if k == 0: frags(64)
        row(k, x[0], x[1], 1)
    frags(96)
    D = vT + 16
    for at in range(2):
        for ks in range(8):
            for bt in range(2):
                d = vr(D + 8*at + 4*bt, 4)
                s(f"v_mfma_f32_16x16x32_bf16 {d}, {ar(64+32*at+4*ks,4)}, {ar(32*bt+4*ks,4)}, {d if ks else 0}")
    for bt in range(2):
        s(f"ds_write_b64 v{vK+2*bt}, {vr(D+4*bt,2)}\nds_write_b64 v{vK+2*bt+1}, {vr(D+4*bt+2,2)}")
    for bt in range(2):
        for jj in range(4):
            s(f"ds_write_b32 v{vK1}, v{D+8+4*bt+jj} offset:{2048+64*bt+128*jj}")
    s.wait_lg()
    s("s_barrier")
    for k in range(8):
        s(f"ds_read2st64_b32 {vr(R+4*k,2)}, v{vI+k} offset0:0 offset1:68\nds_read2st64_b32 {vr(R+4*k+2,2)}, v{vI+k} offset0:34 offset1:102")
    for e_ in range(4):
        k0, k1 = R+8*e_, R+8*e_+4
        s(f"""v_pk_add_f32 {vr(k0,2)}, {vr(k0,2)}, {vr(k0+2,2)}
        v_pk_add_f32 {vr(k1,2)}, {vr(k1,2)}, {vr(k1+2,2)}
        v_cvt_pk_bf16_f32 v{k0+2}, v{k0}, v{k1}
        v_cvt_pk_bf16_f32 v{k0+3}, v{k0+1}, v{k1+1}
        ds_write_b32 v{vKw}, v{k0+2} offset:{1024*e_}
        ds_write_b32 v{vKw}, v{k0+3} offset:{KFS+1024*e_}""")
    return s

def lds_addr(base_lo, nset, k, slot, off):
    hi = slot >= 4
    return f"v{base_lo + k + (nset if hi else 0)}", (slot - (4 if hi else 0))*SLOT + off

def b_reads(i):
    s_, ks = divmod(i, 4)
    r = []
    wslot = (2*s_+1) % NSLOT if s_ < 7 else (7+s_) % NSLOT
    buf = vWf + 8*(i % 3)
    wr = []
    for T in range(2):
        for h in range(2):
            a, o = lds_addr(vWr, 2, T, wslot, ks*2048 + h*512)
            wr.append(f"ds_read_b64_tr_b16 {vr(buf+4*T+2*h,2)}, {a} offset:{o}")
    if s_ < 7:
        xslot = (2*s_) % NSLOT
        xr = []
        for mt in range(2):
            a, o = lds_addr(vXr, 4, ks, xslot, mt*4096)
            xr.append(f"ds_read_b128 {ar(8*i+4*mt,4)}, {a} offset:{o}")
        return [wr[0], wr[1], xr[0], xr[1], wr[2], wr[3]]
    return wr

def b_mfmas(i):
    acc = ACC1 if i < 28 else ACC2
    first = i % 28 == 0
    buf = vWf + 8*(i % 3)
    r = []
    for T in range(2):
        for mt in range(2):
            d = vr(acc + 32*T + 16*mt, 16)
            r.append(f"v_mfma_f32_32x32x16_bf16 {d}, {vr(buf+4*T,4)}, {ar(8*(i%28)+4*mt,4)}, {0 if first else d}")
    return r

def gelu(acc, half, pk, cluster=0):
    s = S(); st = S()
    for T in range(2):
        for mt in range(2):
            b = acc + 32*T + 16*mt
            o = vT + 24 + 4*(2*T+mt)
            for jp in range(0, 8, 2):
                t = vT + 2*(jp//2)
                g0, u0 = b+jp, b+8+jp
                if pk:
                    s(f"""v_pk_mul_f32 {vr(t,2)}, {vr(g0,2)}, {vr(g0,2)}
                    v_pk_mul_f32 {vr(u0,2)}, {vr(u0,2)}, {vr(g0,2)}
                    v_pk_fma_f32 {vr(t,2)}, {vr(t,2)}, {vr(vT+8,2)}, {sr(sK0,2)}
                    v_pk_mul_f32 {vr(t,2)}, {vr(t,2)}, {vr(g0,2)}
                    v_exp_f32 v{t}, v{t}
                    v_exp_f32 v{t+1}, v{t+1}
                    v_pk_add_f32 {vr(t,2)}, {vr(t,2)}, {sr(sK1,2)}
                    v_rcp_f32 v{t}, v{t}
                    v_rcp_f32 v{t+1}, v{t+1}
                    v_pk_mul_f32 {vr(t,2)}, {vr(t,2)}, {vr(u0,2)}
                    v_cvt_pk_bf16_f32 v{o+jp//2}, v{t}, v{t+1}""")
                else:
                    s(f"""v_mul_f32 v{t}, v{g0}, v{g0}
                    v_mul_f32 v{t+1}, v{g0+1}, v{g0+1}
                    v_fma_f32 v{t}, v{t}, v{vC1}, s{sK0}
                    v_fma_f32 v{t+1}, v{t+1}, v{vC1}, s{sK0}
                    v_mul_f32 v{t}, v{t}, v{g0}
                    v_mul_f32 v{t+1}, v{t+1}, v{g0+1}
                    v_exp_f32 v{t}, v{t}
                    v_mul_f32 v{u0}, v{u0}, v{g0}
                    v_exp_f32 v{t+1}, v{t+1}
                    v_mul_f32 v{u0+1}, v{u0+1}, v{g0+1}
                    v_add_f32 v{t}, 1.0, v{t}
                    v_add_f32 v{t+1}, 1.0, v{t+1}
                    v_rcp_f32 v{t}, v{t}
                    v_rcp_f32 v{t+1}, v{t+1}
                    v_mul_f32 v{t}, v{t}, v{u0}
                    v_mul_f32 v{t+1}, v{t+1}, v{u0+1}
                    v_cvt_pk_bf16_f32 v{o+jp//2}, v{t}, v{t+1}""")
            vo = vL16 if mt == 0 else vT+10
            (st if cluster else s)(f"buffer_store_dwordx4 {vr(o,4)}, v{vo}, {sr(rWS,4)}, s{sHst} offen offset:{1024*T} sc1", f"h{half}")
    return s.add(st)

def flag(soff, vval):
    return f"buffer_store_dword v{vval}, v{vFl}, {sr(rWS,4)}, s{soff} offen sc1"

def ut_setup():
    s = S()
    a, b, c_, d = vT+2, vT+3, vT+4, vT+5
    A0, A1, AW, AR, AG, GW = vT+32, vT+33, vT+34, vT+35, vT+36, vT+40
    s(f"""
    v_lshrrev_b32 v{a}, 4, v{vLane}
    s_lshl_b32 s{sTmp}, s{sGC0}, 7
    v_lshl_add_u32 v{b}, v{a}, 4, s{sTmp}
    global_load_dwordx4 {vr(GW,4)}, v{b}, {sr(sGw,2)}
    global_load_dwordx4 {vr(GW+4,4)}, v{b}, {sr(sGw,2)} offset:64
    v_bfe_u32 v{b}, v{vLane}, 2, 2
    v_lshl_add_u32 v{b}, v{a}, 3, v{b}
    v_bfe_u32 v{c_}, v{b}, 1, 3
    v_bfe_u32 v{d}, v{vLane}, 1, 1
    s_lshl_b32 s{sTmp}, s{sW}, 1
    v_or_b32 v{d}, s{sTmp}, v{d}
    v_xor_b32 v{c_}, v{c_}, v{d}
    v_lshlrev_b32 v{c_}, 4, v{c_}
    v_lshl_add_u32 v{c_}, v{b}, 7, v{c_}
    v_and_b32 v{d}, 1, v{vLane}
    v_lshl_add_u32 v{c_}, v{d}, 3, v{c_}
    s_lshl_b32 s{sTmp}, s{sHf}, 13
    v_add_u32 v{A0}, s{sTmp}, v{c_}
    v_xor_b32 v{A1}, 32, v{A0}
    s_mul_i32 s{sTmp+1}, s{sW}, {UTSW}
    s_add_u32 s{sTmp+1}, s{sTmp+1}, {UTS}
    v_and_b32 v{b}, 15, v{vLane}
    v_mul_u32_u24 v{c_}, 144, v{b}
    v_lshl_add_u32 v{c_}, v{a}, 4, v{c_}
    v_add_u32 v{AW}, s{sTmp+1}, v{c_}
    v_lshrrev_b32 v{c_}, 3, v{vLane}
    v_lshl_add_u32 v{c_}, v{c_}, 4, v{vL16}
    v_add_u32 v{AR}, s{sTmp+1}, v{c_}
    v_lshrrev_b32 v{c_}, 1, v{b}
    v_xor_b32 v{c_}, v{c_}, v{a}
    v_lshlrev_b32 v{c_}, 4, v{c_}
    v_lshl_add_u32 v{c_}, v{b}, 7, v{c_}
    s_lshl_b32 s{sTmp+1}, s{sW}, 11
    s_add_u32 s{sTmp}, s{sTmp}, s{sTmp+1}
    v_add_u32 v{AG}, s{sTmp}, v{c_}
    v_xor_b32 v{AG+1}, 64, v{AG}
    v_cmp_gt_u32 vcc, 16, v{vLane}
    v_lshlrev_b32 v{b}, 2, v{vLane}
    v_mov_b32 v{c_}, 0x80000000
    v_cndmask_b32 v{AG+2}, v{c_}, v{b}, vcc
    """)
    return s

def ut_produce():
    s = S()
    A0, A1, AW, AR, AG, GW = vT+32, vT+33, vT+34, vT+35, vT+36, vT+40
    t0 = vT; x0 = vT+8; d0 = vT+16
    for t in range(2):
        s(f"ds_read_b64_tr_b16 {vr(t0+4*t,2)}, v{A0} offset:{4096*t}\nds_read_b64_tr_b16 {vr(t0+4*t+2,2)}, v{A1} offset:{4096*t+512}")
    s(f"ds_read_b128 {vr(x0,4)}, v{AG}\nds_read_b128 {vr(x0+4,4)}, v{AG+1}")
    for t in range(2):
        s(f"ds_write_b128 v{AW}, {vr(t0+4*t,4)} offset:{64*t}")
    for t in range(2):
        s(f"ds_read_b128 {vr(vT+20+4*t,4)}, v{AR} offset:{8*144*t}")
    s(f"v_mfma_f32_16x16x32_bf16 {vr(d0,4)}, {vr(GW,4)}, {vr(x0,4)}, 0")
    s(f"v_mfma_f32_16x16x32_bf16 {vr(d0,4)}, {vr(GW+4,4)}, {vr(x0+4,4)}, {vr(d0,4)}")
    for t in range(2):
        s(f"buffer_store_dwordx4 {vr(vT+20+4*t,4)}, v{vL16}, {sr(rWS,4)}, s{sUTst} offen offset:{1024*t} sc1", "ut")
    s(f"buffer_store_dword v{d0}, v{AG+2}, {sr(rWS,4)}, s{sGst} offen sc1", "ut")
    return s

def stageB(pC):
    side = {k: S() for k in range(14)}
    side[0].add(ut_produce())
    dsched = {1: (7, 8), 2: (9, 10), 3: (11, 12), 4: (13, 14), 5: (15,), 6: (16, 17), 7: (18,), 8: (19, 21), 9: (20, 22),
              10: (23,), 11: (24,), 12: (25,), 13: (26,)}
    dm = {k: S() for k in range(14)}
    for k, v in dsched.items():
        for n in v: dm[k].add(item(n))
    n = len(pC); cc = [n*k//4 for k in range(5)]
    for k in range(4): side[1+k].add(pC[cc[k]:cc[k+1]])
    side[2](f"v_mov_b32 v{vPollA}, 0\nglobal_load_dword v{vPoll}, v{vPollA}, {sr(sDbg,2)} sc1")
    k = len(slow)
    slow.append(f"""L_slow{k}:
    s_mov_b32 s{sSpin}, 0
L_spin{k}:
    global_load_dword v{vPoll}, v{vPollA}, {sr(sDbg,2)} sc1
    s_add_u32 s{sSpin}, s{sSpin}, 1
    s_cmp_gt_u32 s{sSpin}, 0x40000
    s_cbranch_scc1 L_back{k}
    s_waitcnt vmcnt(0)
    v_cmp_gt_u32 vcc, 1, v{vPoll}
    s_nop 1
    s_cbranch_vccnz L_spin{k}
    s_branch L_back{k}""")
    pre = S()
    pre(f"v_cmp_gt_u32 vcc, 1, v{vPoll}\ns_cbranch_vccnz L_slow{k}\nL_back{k}:")
    if PROBE and PROBE[0] == 'h0': pre(f"v_readfirstlane_b32 s8, v{vPoll}")
    pre.wait_vm("ut")
    pre(flag(sF1w, vOne))
    side[5] = pre.add(side[5])
    c0 = hx(fbits(-2*math.sqrt(2/math.pi)*math.log2(math.e)))
    side[6](f"""s_mov_b32 s{sK0}, {c0}
    s_mov_b32 s{sK0+1}, {c0}
    s_mov_b32 s{sK1}, 1.0
    s_mov_b32 s{sK1+1}, 1.0
    v_mov_b32 v{vT+9}, v{vC1}
    v_add_u32 v{vT+10}, {112*1024}, v{vL16}
    v_mov_b32 v{vT+12}, 0
    v_min_u32 v{vT+11}, 39, v{vLane}
    v_lshlrev_b32 v{vT+11}, 2, v{vT+11}
    v_add_u32 v{vT+11}, {UA}, v{vT+11}
    ds_write_b32 v{vT+11}, v{vT+12}
    ds_write_b32 v{vT+11}, v{vT+12} offset:{UAS}
    v_min_u32 v{vPollA}, 7, v{vLane}
    v_lshlrev_b32 v{vPollA}, 2, v{vPollA}""")
    ld, chk = poll(None, 1, vPollA, f"s{sF1r}")
    side[9](ld)
    pre = S().add(chk)
    pre(f"buffer_load_dwordx4 {vr(vU,4)}, v{vUo}, {sr(rWS,4)}, s{sUTld} offen sc1")
    pre(f"buffer_load_dwordx4 {vr(vU+4,4)}, v{vUo}, {sr(rWS,4)}, s{sUTld} offen offset:128 sc1")
    side[11] = pre.add(side[11])
    side[13](f"ds_write_b128 v{vUw}, {vr(vU,4)}\nds_write_b128 v{vUw}, {vr(vU+4,4)} offset:{UAS}")
    g1 = gelu(ACC1, 1, False, OPT['cl1'])
    n = len(g1); nst = OPT['nst']
    cuts = [n*k//nst for k in range(nst+1)]
    out = S()
    out.wait_vm(("it0", "it1")); out.wait_lg(); out("s_barrier")
    stamp(out, "B0")
    for r in b_reads(0): out(r)
    for s_ in range(14):
        st = S()
        for ks in range(4):
            i = 4*s_ + ks
            m = b_mfmas(i)
            rd = b_reads(i+1) if i < 55 else []
            if ks == 3:
                st(m[0])
                nxt = s_ + 1
                toks = (f"it{2*nxt}", f"it{2*nxt+1}") if nxt < 7 else (f"it{7+nxt}",) if nxt < 14 else None
                if toks: st.wait_vm(toks)
                st.wait_lg(); st("s_barrier")
                h = (len(rd)+2)//3
                for q in range(3):
                    for r in rd[q*h:(q+1)*h]: st(r)
                    st(m[1+q])
            else:
                h = (len(rd)+2)//3
                for q in range(4):
                    st(m[q])
                    for r in rd[q*h:(q+1)*h]: st(r)
        sd = side[s_]
        if 7 <= s_ < 7+nst:
            gs = S(g1[cuts[s_-7]:cuts[s_-6]])
            st = weave(st, gs, start=(2 if s_ == 7 else 0))
        st = weave(st, sd, start=0, end=12) if len(sd) else st
        st = weave(st, dm[s_]) if len(dm[s_]) else st
        out.add(st)
        if s_ == 6: stamp(out, "B1")
    return out

def wd_reads(q, slot):
    s = S()
    for T in range(2):
        for dt in range(2):
            for h in range(2):
                a, o = lds_addr(vDr, 2, dt, slot, T*2048 + h*1024)
                s(f"ds_read_b64_tr_b16 {ar(16*q+8*T+4*dt+2*h,2)}, {a} offset:{o}", f"wdr{q}")
    return s

def h_loads(q, base, isa, extra=0):
    s = S()
    for T in range(2):
        for mt in range(2):
            d = (ar if isa else vr)(base+16*q+8*T+4*mt, 4)
            s(f"buffer_load_dwordx4 {d}, v{vH1 if mt == 0 else vH2}, {sr(rWS,4)}, s{sHld} offen offset:{1024*T} sc1")
    adv(s, sHld, 2048, sHs, sHe, extra)
    return s

def f_read(t):
    return f"ds_read_b64_tr_b16 {vr(ACC1+4*t,2)}, v{vFr} offset:{256*t}\nds_read_b64_tr_b16 {vr(ACC1+4*t+2,2)}, v{vFr} offset:{256*t+32}"
def g_read(e):
    return f"ds_read_b64_tr_b16 {vr(ACC2+4*e,2)}, v{vGr} offset:{256*e+32}\nds_read_b64_tr_b16 {vr(ACC2+4*e+2,2)}, v{vGr} offset:{256*e}"

def stageTail():
    s = S()
    s.add(item(27))
    s.wait_vm("h1")
    s(flag(sF2w, vOne))
    s(f"s_add_u32 s{sHst}, s{sHst}, {56*1024}")
    g2 = gelu(ACC2, 2, True, OPT['cl2'])
    groups = []
    for q in range(4):
        g = S(); g.wait_vm(f"it{21+q}"); g.add(wd_reads(q, q)); groups.append(g)
        g = S()
        for t in range(4*q, 4*q+4): g(f_read(t))
        groups.append(g)
    s.add(sprinkle(g2, groups, 0.02, 1.0))
    return s

def stageC():
    main = S()
    CA = vT + 12
    for e in range(3): main(g_read(e))
    pend = None
    def flush(c):
        d = CA + 4*(c % 3)
        t = S()
        for j in (2, 1, 0):
            t(f"v_add_f32_dpp v{d+j}, v{d+j+1}, v{d+j} wave_shr:1 row_mask:0xf bank_mask:0xf")
        t(f"ds_write_b32 v{vYw}, v{d} offset:{544*c}")
        t(f"ds_write_b128 v{vYk}, {vr(d,4)} offset:{544*c}")
        return t
    for c in range(16):
        d = vr(CA + 4*(c % 3), 4)
        ex = S()
        if c + 3 < 16: ex(g_read(c+3))
        if c >= 2: ex.add(flush(c-2))
        blk = S()
        for t in range(c+1):
            blk(f"v_mfma_f32_16x16x32_bf16 {d}, {vr(ACC1+4*t,4)}, {vr(ACC2+4*(c-t),4)}, {d if t else 0}")
        main.add(weave(blk, ex))
    main.add(flush(14)).add(flush(15))
    side = S()
    side(f"v_min_u32 v{vPollA}, 6, v{vLane}\nv_lshlrev_b32 v{vPollA}, 2, v{vPollA}")
    ld, chk = poll(None, 1, vPollA, f"s{sF2r}")
    side(ld)
    for q in range(4):
        side.wait_lg(f"wdr{q}"); side.add(item(28+q))
    for q in range(4, 7):
        side.wait_vm(f"it{21+q}"); side.add(wd_reads(q, q))
    side.add(chk)
    side.wait_vm("h2")
    side(flag(sF2w, vTwo))
    for q in range(7):
        side.add(h_loads(q, 112, True, 56*1024 if q == 6 else 0))
        if 2 <= q < 5:
            side.wait_lg(f"wdr{q+2}"); side.add(item(28+q+2))
    out = weave(main, side, start=15, end=130)
    f = S()
    ld2, chk2 = poll(None, 2, vPollA, f"s{sF2r}")
    stageC.chk2 = chk2
    f(ld2)
    f.wait_lg(); f("s_barrier")
    Y = ACC1
    for ch in range(2):
        f(f"""ds_read_b128 {vr(Y+12*ch,4)}, v{vYr} offset:{YAS*ch}
        ds_read_b128 {vr(Y+12*ch+8,4)}, v{vYc+ch}
        ds_read_b128 {vr(Y+12*ch+4,4)}, v{vYr} offset:{YAS*ch+16}""")
    f(f"""s_and_b32 s{sK0}, s{sDSv}, 0xffff
    s_lshl_b32 s{sK0+1}, s{sDSv}, 16
    s_lshr_b32 s{sK1}, s{sDSv}, 16
    s_and_b32 s{sK1+1}, s{sDSv}, 0xffff0000
    s_sub_u32 s{sUTld}, s{sUTld}, {hx(WS_UT-WS_AT)}""")
    for ch in range(2):
        b = Y+12*ch
        for k in range(3): f(f"v_add_f32 v{b+k}, v{b+k}, v{b+9+k}")
        for k in range(8):
            f(f"v_dot2_f32_bf16 v{b+k}, v{vU+4*ch+k//2}, s{(sK0 if ch == 0 else sK1)+(k&1)}, v{b+k}")
        for k in range(4):
            f(f"v_cvt_pk_bf16_f32 v{b+8+k}, v{b+2*k}, v{b+2*k+1}")
        f(f"buffer_store_dwordx4 {vr(b+8,4)}, v{vUo}, {sr(rWS,4)}, s{sUTld} offen offset:{128*ch} sc1", "at")
    return out.add(f)

DACC = 64
H2 = 144
def stageD():
    E0 = 48
    def mf(q, T, half):
        r = S()
        for mt in range(2):
            for dt in range(2):
                d = vr(DACC + 16*(dt + 2*mt), 16)
                hb = ar(112+16*q+8*T+4*mt, 4) if half == 0 else vr(H2+16*q+8*T+4*mt, 4)
                first = half == 0 and q == 0 and T == 0
                r(f"v_mfma_f32_32x32x16_bf16 {d}, {ar(16*q+8*T+4*dt,4)}, {hb}, {0 if first else d}")
        return r
    s = S()
    chk = stageC.chk2
    d1 = S()
    for q in range(7):
        blk = mf(q, 0, 0).add(mf(q, 1, 0))
        ex = S()
        if q == 1: ex.add(chk)
        if q >= 1:
            ex.add(h_loads(q-1, H2, False))
            if q == 6: ex.add(h_loads(6, H2, False))
            ex.wait_vm(f"it{28+q-1}"); ex.add(wd_reads(q-1, q-1))
        d1.add(weave(blk, ex))
    s.add(d1)
    stamp(s, "D1")
    a, b = 128, 129
    GP = 132
    ex0 = S()
    ex0.wait_vm("it34"); ex0.add(wd_reads(6, 6))
    ex0.wait_vm("at"); ex0(flag(sF3w, vOne))
    ex0(f"v_min_u32 v{vPollA}, 27, v{vLane}\nv_lshlrev_b32 v{vPollA}, 7, v{vPollA}")
    ld1, chk1 = poll(None, 1, vPollA, f"s{sF1g}")
    ex0(ld1)
    ex2 = S().add(chk1)
    ex2(f"v_and_b32 v{a}, 31, v{vLane}\nv_lshlrev_b32 v{a}, 2, v{a}")
    for k in range(7):
        ex2(f"buffer_load_dword v{GP+k}, v{a}, {sr(rWS,4)}, s{sGld} offen offset:{256*k} sc1")
    ex2(f"v_and_b32 v{vPollA}, 15, v{vLane}\nv_lshlrev_b32 v{vPollA}, 2, v{vPollA}")
    ld3, chk3 = poll(None, 1, vPollA, f"s{sF3r}")
    ex4 = S(); ex4(ld3)
    AO, AW, AR, RW, RR, OW, OR_, OO = 16, 17, 18, 19, 20, 23, 24, 25
    ex4(f"""
    v_lshrrev_b32 v{a}, 2, v{vLane}
    v_and_b32 v{b}, 3, v{vLane}
    v_lshlrev_b32 v{AO}, 4, v{b}
    v_mov_b32 v{OO}, 896
    v_mad_u32_u24 v{OO}, v{a}, v{OO}, v{AO}
    v_mul_u32_u24 v{OR_}, 80, v{a}
    v_add3_u32 v{OR_}, v{OR_}, v{AO}, s{sM0x}
    v_lshl_add_u32 v{AO}, v{a}, 7, v{AO}
    s_mul_i32 s{sT1}, s{sW}, {UTSW}
    s_add_u32 s{sT1}, s{sT1}, {UTS}
    v_add_u32 v{AW}, s{sT1}, v{vL16}
    v_and_b32 v{a}, 3, v{a}
    v_lshlrev_b32 v{a}, 6, v{a}
    v_lshl_add_u32 v{a}, v{b}, 3, v{a}
    v_bfe_u32 v{b}, v{vLane}, 4, 1
    v_lshl_add_u32 v{a}, v{b}, 5, v{a}
    v_lshrrev_b32 v{b}, 5, v{vLane}
    v_lshl_add_u32 v{a}, v{b}, 8, v{a}
    v_add_u32 v{AR}, s{sT1}, v{a}
    v_add_u32 v{RW}, s{sM0x}, v{vL16}
    v_xor_b32 v{RR}, 0x1000, v{RW}
    v_xor_b32 v{RR+1}, 0x2000, v{RW}
    v_xor_b32 v{RR+2}, 0x3000, v{RW}
    v_and_b32 v{a}, 31, v{vLane}
    v_mul_u32_u24 v{a}, 80, v{a}
    v_lshl_add_u32 v{a}, v{b}, 3, v{a}
    v_add_u32 v{OW}, s{sM0x}, v{a}
    """)
    G, OMG, GH = 130, 131, 139
    ex5 = S()
    ex5(f"""v_add_f32 v{GP}, v{GP}, v{GP+1}
    v_add_f32 v{GP+2}, v{GP+2}, v{GP+3}
    v_add_f32 v{GP+4}, v{GP+4}, v{GP+5}
    v_add_f32 v{GP}, v{GP}, v{GP+2}
    v_add_f32 v{GP+4}, v{GP+4}, v{GP+6}
    v_add_f32 v{GP}, v{GP}, v{GP+4}
    v_cvt_pk_bf16_f32 v{GP}, v{GP}, v{GP}
    v_lshlrev_b32 v{GP}, 16, v{GP}
    v_mul_f32 v{GP}, {hx(fbits(-math.log2(math.e)))}, v{GP}
    v_exp_f32 v{GP}, v{GP}
    v_add_f32 v{GP}, 1.0, v{GP}
    v_rcp_f32 v{GP}, v{GP}
    v_cvt_pk_bf16_f32 v{G}, v{GP}, 0
    v_lshlrev_b32 v{GH}, 16, v{G}
    v_sub_f32 v{OMG}, 1.0, v{GH}
    v_cvt_pk_bf16_f32 v{OMG}, 0, v{OMG}
    """)
    ex6 = S().add(chk3)
    for q in range(2):
        ex6(f"buffer_load_dwordx4 {vr(E0+4*q,4)}, v{AO}, {sr(rWS,4)}, s{sATld} offen offset:{2048*q} sc1")
    exs = {0: ex0, 2: ex2, 4: ex4, 5: ex5, 6: ex6}
    for q in range(7):
        blk = mf(q, 0, 1).add(mf(q, 1, 1))
        s.add(weave(blk, exs[q]) if q in exs else blk)
    stamp(s, "D2")
    for t in range(1, 4):
        for k in range(4):
            s(f"ds_write_b128 v{RW}, {vr(DACC+16*t+4*k,4)} offset:{(t-1)*SLOT+1024*k}")
    for q in range(2):
        s(f"ds_write_b128 v{AW}, {vr(E0+4*q,4)} offset:{1024*q}")
    s.wait_lg(); s("s_barrier")
    for k in range(4):
        s(f"ds_read_b64_tr_b16 {vr(E0+8+2*k,2)}, v{AR} offset:{512*k}")
        for t in range(1, 4):
            s(f"ds_read_b128 {vr(H2+16*(t-1)+4*k,4)}, v{RR+t-1} offset:{(t-1)*SLOT+1024*k}")
    for k in range(4):
        for p in range(2):
            o = 4*k + 2*p
            s(f"""v_pk_add_f32 {vr(DACC+o,2)}, {vr(DACC+o,2)}, {vr(H2+o,2)}
            v_pk_add_f32 {vr(H2+16+o,2)}, {vr(H2+16+o,2)}, {vr(H2+32+o,2)}""")
        for p in range(2):
            o = 4*k + 2*p
            s(f"v_pk_add_f32 {vr(DACC+o,2)}, {vr(DACC+o,2)}, {vr(H2+16+o,2)}")
        for j in range(4): s(f"v_mul_f32 v{DACC+4*k+j}, v{DACC+4*k+j}, v{OMG}")
        for j in range(4):
            s(f"v_dot2_f32_bf16 v{DACC+4*k+j}, v{E0+8+2*k+j//2}, v{G if j % 2 == 0 else GH}, v{DACC+4*k+j}")
    for k in range(4):
        s(f"""v_cvt_pk_bf16_f32 v{E0+2*k}, v{DACC+4*k}, v{DACC+4*k+1}
        v_cvt_pk_bf16_f32 v{E0+2*k+1}, v{DACC+4*k+2}, v{DACC+4*k+3}
        ds_write_b64 v{OW}, {vr(E0+2*k,2)} offset:{3*SLOT+16*k}""")
    for q in range(2):
        s(f"ds_read_b128 {vr(E0+8+4*q,4)}, v{OR_} offset:{3*SLOT+16*80*q}")
    s(f"s_add_u32 s{sT0}, s{sOst}, {16*896}")
    s(f"buffer_store_dwordx4 {vr(E0+8,4)}, v{OO}, {sr(rO,4)}, s{sOst} offen")
    s(f"buffer_store_dwordx4 {vr(E0+12,4)}, v{OO}, {sr(rO,4)}, s{sT0} offen")
    return s

def helper(code_bytes):
    return f"""L_helper:
    s_getpc_b64 s[4:5]
L_pc:
    s_sub_u32 s4, s4, L_pc-{NAME}_kernel
    s_subb_u32 s5, s5, 0
    v_lshlrev_b32 v1, 7, v0
    v_min_u32 v1, L_pc-{NAME}_kernel, v1
    global_load_dword v2, v1, s[4:5]
    s_cmp_lg_u32 s2, 0
    s_cbranch_scc1 L_end
    v_mov_b32 v4, 0
    v_mov_b32 v5, 0
    v_mov_b32 v6, 0
    v_mov_b32 v7, 0
    v_lshlrev_b32 v3, 4, v0
    v_add_u32 v8, 0x1000, v3
    v_add_u32 v9, 0x2000, v3
    s_waitcnt lgkmcnt(0)
    global_store_dwordx4 v3, v[4:7], s[48:49] sc1
    global_store_dwordx4 v8, v[4:7], s[48:49] sc1
    global_store_dwordx4 v9, v[4:7], s[48:49] sc1
    s_waitcnt vmcnt(0)
    s_barrier
    v_mov_b32 v8, {'s100' if PROBE and PROBE[0] == 'h0' else 1}
    v_cmp_eq_u32 vcc, 0, v0
    s_and_saveexec_b64 s[6:7], vcc
    s_cbranch_execz L_end
    global_store_dword v4, v8, s[46:47] sc1
    s_branch L_end"""

def build():
    p0, p1, pC = prologue()
    s = S()
    if OPT['stamp']:
        s(f"s_memrealtime s[100:101]\ns_waitcnt lgkmcnt(0)\nv_writelane_b32 v47, s100, 30")
    stamp(s, "start")
    s.add(p0)
    s(f"s_mov_b32 s{sGC0}, s{sKb}")
    stamp(s, "karg")
    s.add(item(0)).add(item(1)).add(item(2))
    s.add(stageA_setup()).add(p1).add(ut_setup())
    stamp(s, "setup")
    A = stageA()
    s.add(sprinkle(A, [item(n) for n in range(3, 7)], 0.05, 0.75))
    stamp(s, "A")
    s.add(stageB(pC))
    stamp(s, "B2")
    s.add(stageTail())
    stamp(s, "tail")
    s.add(stageC())
    stamp(s, "C")
    s.add(stageD())
    stamp(s, "E")
    if OPT['stamp']:
        s(f"""s_waitcnt vmcnt(0)
        s_memtime s[100:101]
        s_waitcnt lgkmcnt(0)
        v_writelane_b32 v47, s100, {len(stamps)}
        s_memrealtime s[100:101]
        s_waitcnt lgkmcnt(0)
        v_writelane_b32 v47, s100, 31
        s_lshl_b32 s{sT0}, s{sC}, 2
        s_add_u32 s{sT0}, s{sT0}, s{sW}
        s_lshl_b32 s{sT0}, s{sT0}, 7
        s_add_u32 s{sT0}, s{sT0}, {WS_ST}
        v_and_b32 v2, 31, v{vLane}
        v_lshlrev_b32 v2, 2, v2
        s_mov_b64 exec, 0xffffffff
        buffer_store_dword v47, v2, {sr(rWS,4)}, s{sT0} offen""")
        stamps.append("end")
    if PROBE:
        s(f"""s_sub_u32 s12, s12, s8
        s_max_i32 s12, s12, 0
        s_mul_i32 s12, s12, 10
        s_memrealtime s[100:101]
        s_waitcnt lgkmcnt(0)
        s_mov_b32 s8, s100
        L_probe:
        s_memrealtime s[100:101]
        s_waitcnt lgkmcnt(0)
        s_sub_u32 s100, s100, s8
        s_cmp_lt_u32 s100, s12
        s_cbranch_scc1 L_probe""")
    if OPT['sched']:
        s = schedule(s); sys.stderr.write(f'sched cycles {s.cycles}\n')
    fin, nn = finalize(s)
    sys.stderr.write(f"instrs {len(fin)} nops {nn} est cycles {estimate(fin)} stamps {stamps}\n")
    hdr = open('cdna_kernels/' + NAME + '.s.ref').read().split('; Override launch')[0]
    out = hdr + f"""; Fused single launch: workgroups 0..{NHELP-1} are helpers (code prefetch, flag init), {NHELP}..{NHELP+NMAIN-1} do the work.
; @launch grid=({NHELP+NMAIN},1,1) block=(256,1,1) lds={LDS_SIZE}
.amdgcn_target "amdgcn-amd-amdhsa--gfx950"
.text
.globl {NAME}_kernel
.p2align 8
.type {NAME}_kernel,@function
{NAME}_kernel:
{text(fin)}
L_end:
    s_endpgm
""" + "\n".join(slow) + "\n" + helper(0) + f"""
.section .rodata,"a"
.p2align 6
.amdhsa_kernel {NAME}_kernel
  .amdhsa_next_free_vgpr 512
  .amdhsa_next_free_sgpr 102
  .amdhsa_accum_offset 256
  .amdhsa_group_segment_fixed_size 0
  .amdhsa_kernarg_size 136
  .amdhsa_user_sgpr_count 2
  .amdhsa_user_sgpr_kernarg_segment_ptr 1
  .amdhsa_system_sgpr_workgroup_id_x 1
.end_amdhsa_kernel
"""
    return out

if __name__ == "__main__":
    open(sys.argv[1], 'w').write(build())
```

```python
import re

REG_RE = re.compile(r'^(-|\|)?(abs\()?([vas])(\d+|\[(\d+):(\d+)\])\)?\|?$')

def parse_reg(op):
    op = op.strip()
    if op == 'vcc': return [('s', 106), ('s', 107)]
    if op == 'vcc_lo': return [('s', 106)]
    if op == 'vcc_hi': return [('s', 107)]
    if op == 'exec': return [('s', 126), ('s', 127)]
    if op == 'm0': return [('s', 124)]
    m = REG_RE.match(op)
    if not m: return []
    t = m.group(3)
    if m.group(5) is not None:
        return [(t, i) for i in range(int(m.group(5)), int(m.group(6)) + 1)]
    return [(t, int(m.group(4)))]

TRANS = ('v_exp_f32', 'v_log_f32', 'v_rcp_f32', 'v_rsq_f32', 'v_sqrt_f32', 'v_sin_f32', 'v_cos_f32')
EXEC = [('s', 126), ('s', 127)]
VCC = [('s', 106), ('s', 107)]
M0 = [('s', 124)]

class I:
    __slots__ = ('text', 'op', 'kind', 'rd', 'wr', 'passes', 'srcA', 'srcB', 'srcC', 'tok', 'wide', 'data', 'dpp', 'note')
    def __init__(self, text, tok=None):
        self.text = text; self.tok = tok; self.note = None
        self.passes = 0; self.srcA = self.srcB = self.srcC = (); self.wide = False; self.data = (); self.dpp = False
        t = text.split(';')[0].strip()
        if t.endswith(':') or t.startswith('.') or not t:
            self.op = ''; self.kind = 'label' if t.endswith(':') else 'dir'; self.rd = set(); self.wr = set(); return
        parts = t.split(None, 1)
        op = parts[0]
        for suf in ('_e32', '_e64', '_dpp', '_sdwa'):
            if op.endswith(suf):
                if suf == '_dpp': self.dpp = True
                op = op[:-len(suf)]
        self.op = op
        rest = parts[1] if len(parts) > 1 else ''
        ops = []; depth = 0; cur = ''
        for ch in rest:
            if ch == '[': depth += 1
            if ch == ']': depth -= 1
            if ch == ',' and depth == 0: ops.append(cur.strip()); cur = ''
            else: cur += ch
        if cur.strip(): ops.append(cur.strip())
        mods = ''
        if ops:
            last = ops[-1].split(None, 1)
            ops[-1] = last[0]
            mods = last[1] if len(last) > 1 else ''
        R = [parse_reg(o) for o in ops]
        allr = lambda lst: set(x for l in lst for x in l)
        rd = set(); wr = set()
        if op.startswith('v_mfma'):
            self.kind = 'mfma'
            self.passes = 8 if '32x32x16' in op else 4 if '16x16x32' in op else None
            assert self.passes, op
            wr = set(R[0]); self.srcA = set(R[1]); self.srcB = set(R[2]); self.srcC = set(R[3]); rd = allr(R[1:])
        elif op.startswith('ds_'):
            self.kind = 'ds'
            if op.startswith('ds_read') or op.startswith('ds_bpermute') or op.startswith('ds_swizzle'):
                wr = set(R[0]); rd = allr(R[1:])
                if 'd16' in op: rd |= wr
            else:
                rd = allr(R)
        elif op.startswith('buffer_load') or op.startswith('global_load'):
            if ' lds' in (' ' + mods) or '_lds_' in op:
                self.kind = 'dma'; rd = allr(R) | set(M0)
            else:
                self.kind = 'vload'; wr = set(R[0]); rd = allr(R[1:])
                if 'd16' in op: rd |= wr
        elif op.startswith('buffer_store') or op.startswith('global_store'):
            self.kind = 'vstore'; rd = allr(R)
            self.data = set(R[0] if op.startswith('buffer') else R[1])
            self.wide = 'x4' in op or 'x3' in op
        elif op.startswith('buffer_') or op.startswith('global_'):
            self.kind = 'vstore'; rd = allr(R)
        elif op.startswith('s_load') or op in ('s_memtime', 's_memrealtime'):
            self.kind = 'smem'; wr = set(R[0]); rd = allr(R[1:])
        elif op == 's_waitcnt': self.kind = 'wait'
        elif op == 's_barrier': self.kind = 'barrier'
        elif op == 's_nop': self.kind = 'nop'
        elif op in ('s_branch', 's_endpgm', 's_setprio', 's_sleep') or op.startswith('s_cbranch'):
            self.kind = 'branch'
            if 'vcc' in op: rd = set(VCC)
            if 'exec' in op: rd = set(EXEC)
        elif op.startswith('s_cmp') or op.startswith('s_bitcmp'):
            self.kind = 'salu'; rd = allr(R)
        elif op.startswith('s_'):
            self.kind = 'salu'; wr = set(R[0]); rd = allr(R[1:])
            if 'saveexec' in op: wr |= set(EXEC); rd |= set(EXEC)
            if op in ('s_addk_i32', 's_mulk_i32'): rd |= wr
        elif op.startswith('v_'):
            self.kind = 'trans' if op in TRANS else 'valu'
            if op.startswith('v_permlane'):
                wr = allr(R); rd = allr(R)
            else:
                wr = set(R[0]); rd = allr(R[1:])
                if op.startswith('v_fmac') or op.startswith('v_dot2c') or op.startswith('v_pk_fmac') or op.startswith('v_writelane') or 'mixlo' in op or 'mixhi' in op or self.dpp:
                    rd |= wr
                if op.startswith('v_add_co') or op.startswith('v_sub_co') or op.startswith('v_addc_co'):
                    wr |= set(R[1]); rd = allr(R[2:])
                if op.startswith('v_cmpx'): wr |= set(EXEC)
                if op.startswith('v_cndmask') and len(R) == 3: rd |= set(VCC)
        else:
            raise ValueError('unknown op: ' + text)
        self.rd = rd; self.wr = wr

    def cost(self):
        k = self.kind
        if k in ('label', 'dir', 'mark'): return 0
        if k == 'trans': return 8
        if k == 'nop': return 4 * (int(self.text.split()[1]) + 1)
        if k == 'ds': return 4 * max(1, sum(1 for r in self.rd if r[0] in 'va' and r not in self.wr))
        if k in ('vload', 'dma'): return 8
        if k == 'vstore': return 8 + 4 * len(self.data)
        return 4

class Mark(I):
    __slots__ = ('vm', 'lg')
    def __init__(self, vm=None, lg=None):
        self.text = ''; self.op = ''; self.kind = 'mark'; self.rd = set(); self.wr = set(); self.tok = None
        self.vm = vm; self.lg = lg; self.note = None
        self.passes = 0; self.srcA = self.srcB = self.srcC = (); self.wide = False; self.data = (); self.dpp = False

class S(list):
    cycles = 0
    def __call__(self, text, tok=None):
        for line in text.split('\n'):
            line = line.strip()
            if line and not line.startswith(';'):
                self.append(I(line, tok))
        return self
    def wait_vm(self, tok):
        self.append(Mark(vm=tok)); return self
    def wait_lg(self, tok='*'):
        self.append(Mark(lg=tok)); return self
    def add(self, other):
        self.extend(other); return self

VM_KINDS = ('vload', 'vstore', 'dma')

def insert_waits(ins):
    out = []; vq = []; lq = []
    for x in ins:
        nv = None; nl = None
        if x.kind == 'wait':
            m = re.search(r'vmcnt\((\d+)\)', x.text)
            if m: vq = vq[len(vq) - min(len(vq), int(m.group(1))):]
            m = re.search(r'lgkmcnt\((\d+)\)', x.text)
            if m:
                n = int(m.group(1)); assert n == 0 or not any(e.kind == 'smem' for e in lq)
                lq = lq[len(lq) - min(len(lq), n):]
            out.append(x); continue
        touched = x.rd | x.wr
        vm_t = x.vm if x.kind == 'mark' else None
        lg_t = x.lg if x.kind == 'mark' else None
        def match(e, t):
            if t is None: return False
            if t == '*': return True
            return e.tok in t if isinstance(t, (tuple, list, set)) else e.tok == t
        for idx in range(len(vq) - 1, -1, -1):
            e = vq[idx]
            if (e.wr & touched) or match(e, vm_t):
                nv = len(vq) - 1 - idx; break
        for idx in range(len(lq) - 1, -1, -1):
            e = lq[idx]
            same_q = x.kind == 'ds' and e.kind == 'ds' and not (e.wr & x.rd)
            if ((e.wr & touched) and not same_q) or match(e, lg_t):
                nl = len(lq) - 1 - idx; break
        if nl is not None and any(e.kind == 'smem' for e in lq): nl = 0
        if nv is not None or nl is not None:
            t = 's_waitcnt'
            if nv is not None:
                nv = min(nv, 62); t += f' vmcnt({nv})'; vq = vq[len(vq) - nv:] if nv else []
            if nl is not None:
                nl = min(nl, 14); t += f' lgkmcnt({nl})'; lq = lq[len(lq) - nl:] if nl else []
            if out and out[-1].kind == 'wait' and out[-1].note == 'auto':
                p = out.pop().text
                mv = re.search(r'vmcnt\((\d+)\)', p); ml = re.search(r'lgkmcnt\((\d+)\)', p)
                if mv: nv = int(mv.group(1)) if nv is None else min(nv, int(mv.group(1)))
                if ml: nl = int(ml.group(1)) if nl is None else min(nl, int(ml.group(1)))
                t = 's_waitcnt' + (f' vmcnt({nv})' if nv is not None else '') + (f' lgkmcnt({nl})' if nl is not None else '')
            w = I(t); w.note = 'auto'; out.append(w)
        if x.kind == 'mark': continue
        if x.kind in VM_KINDS: vq.append(x)
        if x.kind in ('ds', 'smem'): lq.append(x)
        out.append(x)
    return out

def need_states(p, c):
    n = 0
    pk, ck = p.kind, c.kind
    vwr = {r for r in p.wr if r[0] in 'va'}
    swr = {r for r in p.wr if r[0] == 's'}
    isvalu = lambda k: k in ('valu', 'trans')
    if pk == 'mfma':
        big = 12 if p.passes == 8 else 8
        if ck == 'mfma':
            if p.wr & (c.srcA | c.srcB): n = max(n, big)
            if p.wr & c.srcC and not (p.wr == c.srcC and p.passes == c.passes): n = max(n, 10 if p.passes == 8 else 6)
            if p.wr & c.wr and not (p.wr == c.wr and p.wr == c.srcC and p.passes == c.passes) and not (p.wr & c.srcC):
                n = max(n, big)
        elif isvalu(ck) or ck in ('ds', 'vload', 'vstore', 'dma'):
            if p.wr & (c.rd | c.wr): n = max(n, big)
            if p.srcC & c.wr: n = max(n, 7 if p.passes == 8 else 3)
    if isvalu(pk):
        if ck == 'mfma' and vwr & c.rd: n = max(n, 2)
        if ck == 'mfma' and swr & set(EXEC): n = max(n, 4)
        if ck in VM_KINDS and swr & c.rd: n = max(n, 5)
        if isvalu(ck):
            if c.dpp and vwr & c.rd: n = max(n, 2)
            if c.dpp and swr & set(EXEC): n = max(n, 5)
            if c.op.startswith('v_permlane') and vwr & c.rd: n = max(n, 2)
            if c.op in ('v_readfirstlane_b32', 'v_readlane_b32') and vwr & c.rd: n = max(n, 1)
            if c.op in ('v_readlane_b32', 'v_writelane_b32') and swr & c.rd: n = max(n, 4)
            if swr & c.rd: n = max(n, 2)
            if pk == 'trans' and vwr & c.rd: n = max(n, 1)
            if p.op.startswith('v_dot2') and vwr & (c.rd | c.wr) and c.op != p.op: n = max(n, 3)
            if p.op.startswith('v_dot2') and vwr & c.rd and c.op == p.op: n = max(n, 3)
            if ('sdwa' in p.text or 'op_sel' in p.text and not p.op.startswith('v_pk')) and vwr & (c.rd | c.wr): n = max(n, 1)
        if p.op.startswith('v_dot2') and ck in ('ds', 'vstore', 'vload', 'mfma') and vwr & c.rd: n = max(n, 3)
        if pk == 'trans' and ck in ('ds', 'vstore', 'vload') and vwr & c.rd: n = max(n, 1)
        if ck in ('salu', 'branch', 'smem') and swr & c.rd: n = max(n, 1)
    if pk == 'vstore' and p.wide and p.data & c.wr: n = max(n, 2)
    if pk == 'salu' and set(M0) & p.wr and ck == 'dma': n = max(n, 1)
    return n

def states_of(x):
    if x.kind in ('label', 'dir', 'mark'): return 0
    if x.kind == 'nop': return int(x.text.split()[1]) + 1
    return 1

def insert_nops(ins, verbose=False):
    out = []; added = 0
    for c in ins:
        if c.kind not in ('label', 'dir', 'nop', 'wait', 'barrier'):
            dist = 0; need = 0
            for p in reversed(out):
                if dist >= 12: break
                r = need_states(p, c) - dist
                if r > need: need = r
                dist += states_of(p)
            if need > 0:
                added += need
                if verbose: print('nop', need, 'before', c.text)
                x = I(f's_nop {need-1}'); x.note = 'auto'; out.append(x)
        out.append(c)
    return out, added

class Pipe:
    def __init__(s): s.t = 0; s.mf = 0; s.tv = -99; s.tm = -99
    def earliest(s, x):
        k = x.kind
        if k in ('valu', 'trans'):
            e = max(s.t, s.tm + 8)
            if x.op.startswith('v_pk_') and x.op.endswith('f32'): e = max(e, s.mf)
            return e
        if k == 'mfma': return max(s.t, s.mf)
        if k == 'ds' or k in VM_KINDS: return max(s.t, s.tv + 8, s.tm + 8)
        return s.t
    def issue(s, x, at):
        at = max(at, s.earliest(x))
        s.t = at + x.cost()
        if x.kind == 'mfma': s.mf = at + 4 * x.passes; s.tm = at
        if x.kind in ('valu', 'trans'): s.tv = s.t
        return at

def estimate(ins):
    p = Pipe(); lastw = {}
    for x in ins:
        r = 0
        for q in x.rd:
            if q in lastw and lastw[q][1].kind in ('valu', 'trans', 'ds'): r = max(r, lastw[q][0] + lat(lastw[q][1], x))
        at = p.issue(x, r)
        for q in x.wr: lastw[q] = (at, x)
    return max(p.t, p.mf)

def glued(x):
    return x.kind == 'label' or x.op.startswith('s_cselect') or x.op.startswith('s_cbranch') or x.op in ('s_addc_u32', 's_subb_u32')

def weave(main, side, budget=None, start=0, end=None):
    mf = [i for i, x in enumerate(main) if x.kind == 'mfma']
    end = len(mf) if end is None else end
    slots = mf[start:end]
    total = sum(x.cost() for x in side)
    out = S(); si = 0; acc = 0.0; done = 0
    per = total / max(1, len(slots))
    slotset = {p: k for k, p in enumerate(slots)}
    for i, x in enumerate(main):
        out.append(x)
        if i in slotset:
            acc += per
            last = slotset[i] == len(slots) - 1
            while si < len(side) and (last or glued(side[si]) or done + side[si].cost() / 2 <= acc):
                out.append(side[si]); done += side[si].cost(); si += 1
    assert si == len(side)
    return out

def finalize(ins, verbose=False):
    a = insert_waits(ins)
    b, n = insert_nops(a, verbose)
    return b, n

def text(ins):
    return '\n'.join(('' if x.kind == 'label' else '    ') + x.text for x in ins if x.kind != 'mark')


def lat(p, c):
    k = p.kind
    if k == 'valu': return 10
    if k == 'trans': return 14
    if k == 'salu': return 4
    if k == 'ds': return 110
    if k == 'vload': return 400
    if k == 'smem': return 200
    if k == 'mfma':
        if c.kind == 'mfma' and p.wr == c.srcC and not (p.wr & (c.srcA | c.srcB)): return 0
        return 4 * p.passes + 20
    return 4

MARGIN = 6
LIM = {'mark': 1, 'barrier': 1, 'wait': 1, 'dma': 8, 'vload': 8, 'vstore': 8, 'mfma': 14, 'ds': 16}
def schedule(ins, window=32):
    n = len(ins)
    cls = []
    for x in ins:
        k = x.kind
        if k in ('branch', 'label', 'dir', 'nop'): c = ('fence',)
        elif k in ('mark', 'barrier', 'wait'): c = ('ds', 'vm', 'smem')
        elif k in VM_KINDS: c = ('vm',)
        elif k == 'smem': c = ('smem', 'salu') if x.op.startswith('s_load') else ('fence',)
        elif k in ('ds', 'salu', 'mfma'): c = (k,)
        else: c = ()
        if set(EXEC) & x.wr: c = ('fence',)
        cls.append(c)
    preds = [[] for _ in range(n)]
    lastw = {}; readers = {}; lastc = {}; fence = -1; since = []
    for i, x in enumerate(ins):
        P = {}
        def add(j, l):
            if j is not None and j >= 0: P[j] = max(P.get(j, 0), l)
        for r in x.rd:
            j = lastw.get(r)
            if j is not None: add(j, lat(ins[j], x))
        for r in x.wr:
            j = lastw.get(r)
            if j is not None: add(j, lat(ins[j], x) if ins[j].kind in ('mfma',) and x.kind != 'mfma' else 0)
            for j in readers.get(r, ()): add(j, 4 * ins[j].passes if ins[j].kind == 'mfma' and x.kind in ('ds', 'vload') else 0)
        if 'fence' in cls[i]:
            for j in since: add(j, 0)
            add(fence, 0); fence = i; since = []
        else:
            add(fence, 0); since.append(i)
            for c in cls[i]:
                j = lastc.get(c)
                add(j, 100 if (x.kind == 'mark' and x.lg == '*' and j is not None and ins[j].kind == 'ds') else 0); lastc[c] = i
        for r in x.rd: readers.setdefault(r, []).append(i)
        for r in x.wr: lastw[r] = i; readers[r] = []
        P.pop(i, None)
        preds[i] = list(P.items())
    issued = [None] * n
    out = S(); p = Pipe(); head = 0
    while head < n:
        cand = []; seen = 0; i = head; nextm = None
        while i < n and seen < window:
            if issued[i] is None:
                seen += 1
                x = ins[i]
                ok = True; rdy = 0
                for j, l in preds[i]:
                    if issued[j] is None: ok = False; break
                    rdy = max(rdy, issued[j] + l)
                lim = LIM.get(x.kind, window)
                if x.kind == 'mark' and x.lg not in (None, '*'): lim = 8
                if ok and seen > lim: ok = False
                if x.kind == 'mfma' and nextm is None: nextm = (i, max(rdy, p.earliest(x)) if ok else None)
                if ok: cand.append((i, max(rdy, p.earliest(x))))
            i += 1
        t = p.t; best = None; bestkey = None
        for i, e in cand:
            x = ins[i]; k = x.kind
            fits = nextm is None or nextm[1] is None or i <= nextm[0] or e + x.cost() <= nextm[1] - MARGIN
            if k == 'mfma': key = (0, i) if e <= t + 3 else (6, e, i)
            elif not fits: key = (7, e, i)
            elif k in ('mark', 'label', 'dir'): key = (1, i) if e <= t else (6, e, i)
            elif k in ('salu', 'wait', 'barrier', 'branch', 'smem', 'nop'):
                key = ((2, i) if t < p.tm + 8 else (4, i)) if e <= t else (6, e, i)
            elif k == 'ds' or k in VM_KINDS:
                key = (3, i) if e <= max(t, p.tm + 8) else (6, e, i)
            else:
                key = (4, i) if e <= max(t, p.tm + 8) else (6, e, i)
            if bestkey is None or key < bestkey: best, bestkey, be = i, key, e
        x = ins[best]
        issued[best] = p.issue(x, be)
        out.append(x)
        while head < n and issued[head] is not None: head += 1
    out.cycles = max(p.t, p.mf)
    return out

import subprocess
def sizes(ins):
    real = [x for x in ins if x.kind not in ('label', 'dir', 'mark')]
    src = '\n'.join(re.sub(r'L_\w+', '0', x.text) if x.kind == 'branch' else x.text for x in real)
    r = subprocess.run(['llvm-mc', '-triple=amdgcn-amd-amdhsa', '-mcpu=gfx950', '-show-encoding'], input=src, capture_output=True, text=True)
    enc = re.findall(r'encoding: \[([^\]]*)\]', r.stdout)
    assert len(enc) == len(real), (len(enc), len(real), r.stderr[:2000])
    return {id(x): len(e.split(',')) for x, e in zip(real, enc)}

NOWIDE = ('v_readfirstlane_b32', 'v_fmaak_f32', 'v_fmamk_f32', 'v_nop')
def align_pass(ins, start=0):
    sz = sizes(ins)
    out = []; off = start; nw = nn = 0
    cand = None
    for x in ins:
        if x.kind in ('label', 'dir', 'mark'): out.append(x); continue
        s = sz[id(x)]
        if s == 8 and off % 32 == 28:
            if cand is not None:
                y = out[cand]; parts = y.text.split(None, 1)
                z = I(parts[0].replace('_e32', '') + '_e64 ' + parts[1], y.tok); out[cand] = z; nw += 1
            else:
                z = I('s_nop 0'); z.note = 'align'
                k = len(out); o2 = off; pos = None
                while k > 0 and o2 % 32 != 0:
                    k -= 1
                    if out[k].kind in ('label', 'dir', 'mark'): continue
                    if out[k].kind == 'mfma' and (k + 1 == len(out) or out[k+1].kind not in ('salu', 'wait', 'nop', 'barrier')): pos = k + 1; break
                    o2 -= sz.get(id(out[k]), 4 if out[k].kind == 'nop' else 8)
                out.insert(len(out) if pos is None else pos, z); nn += 1
            off += 4; cand = None
        if off % 32 == 0: cand = None
        if s == 4 and x.kind in ('valu', 'trans') and x.op not in NOWIDE: cand = len(out)
        out.append(x); off += s
    return out, nw, nn, off
```

```python
import sys, math, struct
from asmlib import *
import asmlib

NAME = "gated_mix__ssm_conv_s4__geglu_ffn__prompt"
OPT = dict(stamp=0, cl1=0, cl2=0, nst=6, sched=1, align=1, pre=6, nh1c=2, outsc=0, margin=6, npre=3, x_pre=0, x_nohelp=0, x_bx=0)
PROBE = None
for a in sys.argv[2:]:
    k, v = a.split('=')
    if k == 'probe': PROBE = v.split(',')
    else:
        assert k in OPT, k
        OPT[k] = int(v)
asmlib.MARGIN = OPT['margin']

def fbits(x): return struct.unpack('<I', struct.pack('<f', x))[0]
def hx(x): return hex(x & 0xffffffff)
vr = lambda a, n: f"v[{a}:{a+n-1}]" if n > 1 else f"v{a}"
ar = lambda a, n: f"a[{a}:{a+n-1}]" if n > 1 else f"a{a}"
sr = lambda a, n: f"s[{a}:{a+n-1}]" if n > 1 else f"s{a}"
LOG2E = math.log2(math.e)

NHELP = 32; NMAIN = 224
WS_F2 = 0; WS_F3 = 32*128
WS_G = 0x4000; WS_ST = 0x18000; WS_UT = 0x40000; WS_AT = 0x200000; WS_H = 0x400000; WS_END = 0xB00000
SLOT = 16384; NSLOT = 7
KF = NSLOT*SLOT; KFS = 4224
SCR = KF + 2*KFS; SCRW = 8704
UTS = SCR; UTSW = 2304
UA = SCR + 4*UTSW; UAS = 4288
YA = UA + 2*UAS; YAS = 8704
LDS_SIZE = 163840
assert YA + 2*YAS <= LDS_SIZE

sU, sAre, sAim, sBre, sBim, sCre, sCim, sLdt = 16, 18, 20, 22, 24, 26, 28, 30
sDsk, sBx, sWg, sWu, sWdn, sGw, sOut, sDbg, sWs = 32, 34, 36, 38, 40, 42, 44, 46, 48
rX, rW, rD, rWS, rO = 52, 56, 60, 64, 68
sW, sC, sXo, sWo, sDo = 3, 4, 5, 6, 7
sM0x, sM0w = 9, 10
sW1, sW2 = 11, 13
sT0, sT1 = 14, 15
sTmp = 50
sHst, sHld = 72, 73
sF2w, sF3w, sF2r, sF3r = 74, 75, 76, 77
sUTld, sATld, sGld, sOst = 78, 79, 80, 81
sLDv, sDSv = 82, 83
sScr = 84
sX_, sJ_, sMI, sII, sMB, sFC, sRB = 85, 86, 87, 88, 89, 90, 91
sK0, sK1 = 92, 94
sSpin = 96

vL16, vLane, vFl, vOne, vTwo, vPoll, vPollA = 1, 2, 3, 4, 5, 6, 7
vWd, vWr, vXd, vXr = 8, 12, 16, 20
vDd = 16; vDr = 20; vFr, vGr, vYw, vYk = 24, 25, 26, 27
vTw, vTr, vK, vK1, vKw, vI = 28, 32, 33, 37, 38, 39
vYr, vYc, vUo, vUw, vH1, vH2, vHs = 28, 29, 31, 32, 33, 34, 35
AO, AW, AR, RW, RR, OW, OR_, OO, vG = 36, 37, 38, 39, 40, 43, 44, 45, 46
vWf = 48
KW = 72
vU = 72; vGt = 80; vC1 = 88; CA = 92; vGo = 104; vS = 120
ACC1 = 128; ACC2 = 192
DACC = 64; H2 = 144; E0 = 48

stamps = []
def stamp(s, name):
    if PROBE and name in PROBE:
        s(f"s_memrealtime {sr(100,2)}\ns_waitcnt lgkmcnt(0)\ns_mov_b32 s{12 if name == PROBE[1] else 8}, s100")
    if OPT['stamp']:
        k = len(stamps); stamps.append(name)
        s(f"s_memtime {sr(100,2)}\ns_waitcnt lgkmcnt(0)\nv_writelane_b32 v47, s100, {k}")

slow = []
def poll(thr, ld):
    k = len(slow)
    chk = S()
    chk(f"v_cmp_gt_u32 vcc, {thr}, v{vPoll}\ns_cbranch_vccnz L_slow{k}\nL_back{k}:")
    slow.append(f"""L_slow{k}:
    s_mov_b32 s{sSpin}, 0
L_spin{k}:
    {ld}
    s_add_u32 s{sSpin}, s{sSpin}, 1
    s_cmp_gt_u32 s{sSpin}, 0x40000
    s_cbranch_scc1 L_back{k}
    s_waitcnt vmcnt(0)
    v_cmp_gt_u32 vcc, {thr}, v{vPoll}
    s_nop 1
    s_cbranch_vccnz L_spin{k}
    s_branch L_back{k}""")
    return chk
def wsld(soff): return f"buffer_load_dword v{vPoll}, v{vPollA}, {sr(rWS,4)}, s{soff} offen sc1"
def flag(soff, vval): return f"buffer_store_dword v{vval}, v{vFl}, {sr(rWS,4)}, s{soff} offen sc1"
def srd(r, p, n): return f"s_mov_b32 s{r}, s{p}\ns_mov_b32 s{r+1}, s{p+1}\ns_mov_b32 s{r+2}, {n}\ns_mov_b32 s{r+3}, 0x20000"

def setup_early():
    s = S(); a, b, c, d, e, f = range(vS, vS+6)
    s(f"""
    v_lshrrev_b32 v{a}, 6, v0
    v_and_b32 v{vLane}, 63, v0
    s_sub_u32 s{sC}, s2, {NHELP}
    v_readfirstlane_b32 s{sW}, v{a}
    s_lshl_b32 s{sT0}, s{sC}, 10
    v_lshl_add_u32 v{vPollA}, v0, 2, s{sT0}
    v_lshlrev_b32 v{vL16}, 4, v{vLane}
    s_and_b32 s{sX_}, s{sC}, 7
    s_lshr_b32 s{sJ_}, s{sC}, 3
    s_and_b32 s{sMI}, s{sJ_}, 3
    s_lshr_b32 s{sII}, s{sJ_}, 2
    s_and_b32 s{sMB}, s{sX_}, 6
    s_lshl1_add_u32 s{sMB}, s{sMB}, s{sMI}
    s_and_b32 s{sT0}, s{sX_}, 1
    s_mul_i32 s{sFC}, s{sT0}, 7
    s_add_u32 s{sFC}, s{sFC}, s{sII}
    s_lshl2_add_u32 s{sRB}, s{sX_}, s{sMI}
    s_and_b32 s{sW1}, s{sW}, 1
    s_lshr_b32 s{sW2}, s{sW}, 1
    s_lshl_b32 s{sM0x}, s{sW}, 12
    s_lshl2_add_u32 s{sT0}, s{sMB}, s{sW}
    s_mul_i32 s{sXo}, s{sT0}, {32*896}
    s_mul_i32 s{sWo}, s{sW2}, {32*3584}
    s_lshl_b32 s{sT0}, s{sFC}, 7
    s_add_u32 s{sWo}, s{sWo}, s{sT0}
    s_lshl1_add_u32 s{sT0}, s{sW1}, s{sW2}
    s_lshl_b32 s{sM0w}, s{sT0}, 12
    s_lshl_b32 s{sT1}, s{sW1}, 2
    v_lshrrev_b32 v{a}, 3, v{vLane}
    v_and_b32 v{b}, 7, v{vLane}
    v_lshrrev_b32 v{c}, 4, v{vLane}
    v_mul_u32_u24 v{e}, 896, v{a}
    v_xor_b32 v{d}, v{b}, v{c}
    v_and_b32 v{c}, 1, v{c}
    v_lshl_add_u32 v{vXd}, v{d}, 4, v{e}
    v_lshl_or_b32 v{f}, v{c}, 1, s{sT1}
    v_xor_b32 v{d}, 64, v{vXd}
    v_add_u32 v{vXd+2}, {2*(8*896-1024)}, v{vXd}
    v_xor_b32 v{f}, v{b}, v{f}
    v_add_u32 v{vXd+1}, {8*896-1024}, v{d}
    v_add_u32 v{vXd+3}, {3*(8*896-1024)}, v{d}
    v_lshlrev_b32 v{f}, 4, v{f}
    v_lshl_add_u32 v{vWd}, v{e}, 2, v{f}
    v_add_u32 v{vWd+1}, {1*(8*3584-1024)}, v{vWd}
    v_add_u32 v{vWd+2}, {2*(8*3584-1024)}, v{vWd}
    v_add_u32 v{vWd+3}, {3*(8*3584-1024)}, v{vWd}
    """)
    return s

def setup_scalar():
    s = S()
    s(f"""
    s_mul_i32 s{sScr}, s{sW}, {SCRW}
    s_add_u32 s{sScr}, s{sScr}, {SCR}
    s_lshl1_add_u32 s{sT0}, s{sMB}, s{sW2}
    s_lshl1_add_u32 s{sT1}, s{sFC}, s{sW1}
    s_mul_i32 s{sHst}, s{sT0}, 112
    s_add_u32 s{sHst}, s{sHst}, s{sT1}
    s_lshl_b32 s{sHst}, s{sHst}, 11
    s_add_u32 s{sHst}, s{sHst}, {WS_H}
    s_lshl_b32 s{sT0}, s{sT0}, 7
    s_lshl2_add_u32 s{sF2w}, s{sT1}, s{sT0}
    s_mul_i32 s{sT0}, s{sW}, 7
    s_mul_i32 s{sHld}, s{sRB}, 112
    s_add_u32 s{sHld}, s{sHld}, s{sT0}
    s_lshl_b32 s{sHld}, s{sHld}, 11
    s_add_u32 s{sHld}, s{sHld}, {WS_H}
    s_lshl_b32 s{sT1}, s{sRB}, 7
    s_lshl2_add_u32 s{sF2r}, s{sT0}, s{sT1}
    s_mul_i32 s{sDo}, s{sW}, {224*896}
    s_lshl_b32 s{sT1}, s{sII}, 7
    s_add_u32 s{sDo}, s{sDo}, s{sT1}
    s_mul_i32 s{sUTld}, s{sW}, {8*57344}
    s_lshl_b32 s{sT1}, s{sC}, 8
    s_add_u32 s{sUTld}, s{sUTld}, s{sT1}
    s_add_u32 s{sUTld}, s{sUTld}, {WS_UT}
    s_lshr_b32 s{sT0}, s{sC}, 5
    s_lshl2_add_u32 s{sT0}, s{sT0}, s{sW}
    s_lshl_b32 s{sT0}, s{sT0}, 7
    s_and_b32 s{sT1}, s{sC}, 31
    s_lshl2_add_u32 s{sF3w}, s{sT1}, s{sT0}
    s_add_u32 s{sF3w}, s{sF3w}, {WS_F3}
    s_lshr_b32 s{sT0}, s{sRB}, 3
    s_lshl2_add_u32 s{sT0}, s{sII}, s{sT0}
    s_lshl1_add_u32 s{sT0}, s{sT0}, s{sW1}
    s_lshl_b32 s{sF3r}, s{sT0}, 6
    s_add_u32 s{sF3r}, s{sF3r}, {WS_F3}
    s_lshl1_add_u32 s{sT0}, s{sII}, s{sW1}
    s_mul_i32 s{sT1}, s{sRB}, 57344
    s_lshl_b32 s{sATld}, s{sT0}, 6
    s_add_u32 s{sOst}, s{sATld}, s{sT1}
    s_add_u32 s{sATld}, s{sATld}, s{sW2}
    s_lshl_b32 s{sATld}, s{sATld}, 6
    s_add_u32 s{sATld}, s{sATld}, s{sT1}
    s_add_u32 s{sATld}, s{sATld}, {WS_AT}
    s_mul_i32 s{sT0}, s{sW2}, {32*896}
    s_add_u32 s{sOst}, s{sOst}, s{sT0}
    s_lshl1_add_u32 s{sT0}, s{sRB}, s{sW2}
    s_lshl_b32 s{sGld}, s{sT0}, 7
    s_add_u32 s{sGld}, s{sGld}, {WS_G}
    """)
    return s

P_RAW = 112
def first_loads():
    s = S()
    s(f"""
    s_lshl_b32 s{sT0}, s{sC}, 2
    global_load_dword v{P_RAW+0}, v{vPollA}, {sr(sAre,2)}
    global_load_dword v{P_RAW+1}, v{vPollA}, {sr(sAim,2)}
    s_load_dword s{sLDv}, {sr(sLdt,2)}, s{sT0}
    s_load_dword s{sDSv}, {sr(sDsk,2)}, s{sT0}
    global_load_dword v{P_RAW+2}, v{vPollA}, {sr(sBre,2)}
    global_load_dword v{P_RAW+3}, v{vPollA}, {sr(sBim,2)}
    global_load_dword v{P_RAW+4}, v{vPollA}, {sr(sCre,2)}
    global_load_dword v{P_RAW+5}, v{vPollA}, {sr(sCim,2)}
    {srd(rX, sU, 2048*896)}
    s_cmp_eq_u32 s{sW1}, 1
    s_cselect_b32 s{rW}, s{sWu}, s{sWg}
    s_cselect_b32 s{rW+1}, s{sWu+1}, s{sWg+1}
    s_mov_b32 s{rW+2}, {448*3584}
    s_mov_b32 s{rW+3}, 0x20000
    """)
    return s

def setup_AB():
    s = S(); a, b, c, d, e, f, g, h = range(vS, vS+8)
    s(f"""
    {srd(rD, sWdn, 1792*896)}
    {srd(rWS, sWs, WS_END)}
    {srd(rO, sOut, 2048*896)}
    v_lshl_add_u32 v{vTw}, v{vLane}, 3, s{sScr}
    v_and_b32 v{a}, 15, v{vLane}
    v_lshrrev_b32 v{b}, 4, v{vLane}
    v_add_u32 v{vTw+1}, {4*544}, v{vTw}
    v_add_u32 v{vTw+2}, {8*544}, v{vTw}
    v_add_u32 v{vTw+3}, {12*544}, v{vTw}
    v_mul_u32_u24 v{c}, 544, v{a}
    v_lshl_add_u32 v{d}, v{b}, 4, s{sScr}
    v_add_u32 v{vTr}, v{c}, v{d}
    v_lshl_add_u32 v{c}, v{b}, 7, v{a}
    v_lshl_add_u32 v{vK1}, v{c}, 2, s{sScr}
    v_max_u32 v{c}, 1, v{b}
    v_sub_u32 v{c}, 6, v{c}
    v_lshlrev_b32 v{e}, v{c}, v{a}
    v_cmp_gt_u32 vcc, 2, v{b}
    v_lshl_add_u32 v{f}, v{b}, 9, s{sScr}
    v_cndmask_b32 v{f}, v{f}, v{d}, vcc
    v_add_u32 v{vK}, v{f}, v{e}
    v_cmp_eq_u32 vcc, 3, v{b}
    v_mov_b32 v{e}, 256
    v_lshlrev_b32 v{c}, v{c}, 16
    v_cndmask_b32 v{e}, 8, v{e}, vcc
    v_add_u32 v{vK+2}, v{vK}, v{c}
    v_add_u32 v{vK+1}, v{vK}, v{e}
    v_add_u32 v{vK+3}, v{vK+2}, v{e}
    v_and_b32 v{a}, 31, v{vLane}
    s_lshl_b32 s{sT0}, s{sW2}, 13
    v_lshl_add_u32 v{a}, v{a}, 7, s{sT0}
    v_bfe_u32 v{g}, v{vLane}, 1, 3
    v_lshrrev_b32 v{h}, 5, v{vLane}
    v_xor_b32 v{g}, v{g}, v{h}
    v_lshl_add_u32 v{vXr}, v{g}, 4, v{a}
    v_xor_b32 v{vXr+1}, 32, v{vXr}
    v_xor_b32 v{vXr+2}, 64, v{vXr}
    v_xor_b32 v{vXr+3}, 96, v{vXr}
    v_add_u32 v{vXr+4}, 0x10000, v{vXr}
    v_add_u32 v{vXr+5}, 0x10000, v{vXr+1}
    v_add_u32 v{vXr+6}, 0x10000, v{vXr+2}
    v_add_u32 v{vXr+7}, 0x10000, v{vXr+3}
    v_bfe_u32 v{a}, v{vLane}, 2, 2
    v_and_b32 v{b}, 3, v{vLane}
    v_bfe_u32 v{d}, v{vLane}, 4, 1
    v_bfe_u32 v{e}, v{vLane}, 3, 2
    s_lshl_b32 s{sT0}, s{sW1}, 1
    v_xor_b32 v{e}, s{sT0}, v{e}
    v_lshlrev_b32 v{b}, 3, v{b}
    v_lshl_add_u32 v{a}, v{h}, 3, v{a}
    v_lshl_add_u32 v{e}, v{e}, 5, v{b}
    v_lshl_add_u32 v{a}, v{d}, 6, v{a}
    v_lshl_add_u32 v{vWr}, v{a}, 7, v{e}
    v_xor_b32 v{vWr+1}, 32, v{vWr}
    v_add_u32 v{vWr+2}, 0x10000, v{vWr}
    v_add_u32 v{vWr+3}, 0x10000, v{vWr+1}
    """)
    return s

def setup_exp():
    s = S(); a, b, c, d, e, f, g, h = range(vS, vS+8)
    s(f"""v_lshlrev_b32 v{vKw}, 2, v0
    v_add_u32 v{vKw}, {KF+96}, v{vKw}
    v_cvt_f32_u32 v{a}, v0
    s_mov_b32 s{sT0}, {hx(SCR - 4*17024)}
    v_add_f32 v{a}, v{a}, v{a}""")
    for e_ in range(4):
        p, q = (b, c) if e_ % 2 == 0 else (d, e)
        s(f"""v_add_f32 v{p}, {hx(fbits(512.0*e_))}, v{a}
        v_add_f32 v{q}, {hx(fbits(512.0*e_+1))}, v{a}
        v_cvt_pk_bf16_f32 v{p}, v{p}, v{q}
        v_lshrrev_b32 v{q}, 16, v{p}
        v_and_b32 v{p}, 0xffff, v{p}
        v_lshl_add_u32 v{vI+2*e_+1}, v{q}, 2, s{sT0}
        v_lshl_add_u32 v{vI+2*e_}, v{p}, 2, s{sT0}""")
    s(f"""v_cmp_gt_u32 vcc, 64, v0
    v_lshlrev_b32 v{f}, 3, v0
    v_add_u32 v{g}, {SCR+4}, v{f}
    v_add_u32 v{f}, {SCR}, v{f}
    v_cndmask_b32 v{vI+1}, v{vI+1}, v{g}, vcc
    v_cndmask_b32 v{vI}, v{vI}, v{f}, vcc
    v_mov_b32 v{a}, 0
    v_min_u32 v{b}, 23, v{vLane}
    v_lshlrev_b32 v{b}, 2, v{b}
    v_add_u32 v{b}, {KF}, v{b}
    ds_write_b32 v{b}, v{a}
    ds_write_b32 v{b}, v{a} offset:{KFS}""")
    return s

def setup_late1():
    s = S(); a, b, c, d = range(vS, vS+4)
    c0 = -2*math.sqrt(2/math.pi)*LOG2E
    s(f"""
    v_lshrrev_b32 v{a}, 3, v{vLane}
    v_and_b32 v{b}, 7, v{vLane}
    v_bfe_u32 v{c}, v{vLane}, 4, 1
    v_mul_u32_u24 v{a}, 896, v{a}
    v_lshlrev_b32 v{c}, 2, v{c}
    v_xor_b32 v{b}, v{b}, v{c}
    v_lshl_add_u32 v{vDd}, v{b}, 4, v{a}
    v_add_u32 v{vDd+1}, {1*(8*896-1024)}, v{vDd}
    v_add_u32 v{vDd+2}, {2*(8*896-1024)}, v{vDd}
    v_add_u32 v{vDd+3}, {3*(8*896-1024)}, v{vDd}
    v_mov_b32 v{vOne}, 1
    v_mov_b32 v{vTwo}, 2
    v_min_u32 v{vFl}, 1, v{vLane}
    v_lshlrev_b32 v{vFl}, 31, v{vFl}
    v_and_b32 v{vPollA}, 31, v{vLane}
    v_lshlrev_b32 v{vPollA}, 2, v{vPollA}
    s_mov_b32 s{sK0}, {hx(fbits(c0))}
    s_mov_b32 s{sK0+1}, {hx(fbits(c0))}
    s_mov_b32 s{sK1}, 1.0
    s_mov_b32 s{sK1+1}, 1.0
    """)
    t = S()
    t(f"""v_mov_b32 v{vC1}, {hx(fbits(c0*0.044715))}
    v_mov_b32 v{vC1+1}, {hx(fbits(c0*0.044715))}
    v_add_u32 v{vHs}, {112*1024}, v{vL16}""")
    return s, t

def setup_late2():
    s = S(); a, b, c, d, e, f, g, h = range(vS, vS+8)
    s(f"""
    v_lshrrev_b32 v{a}, 3, v{vLane}
    v_and_b32 v{b}, 7, v{vLane}
    v_mul_u32_u24 v{a}, 57344, v{a}
    v_lshlrev_b32 v{vUw}, 4, v0
    v_lshl_add_u32 v{vUo}, v{b}, 4, v{a}
    v_add_u32 v{vUw}, {UA+160}, v{vUw}
    v_mov_b32 v{c}, 0
    v_min_u32 v{d}, 39, v{vLane}
    v_lshlrev_b32 v{d}, 2, v{d}
    v_add_u32 v{d}, {UA}, v{d}
    ds_write_b32 v{d}, v{c}
    ds_write_b32 v{d}, v{c} offset:{UAS}
    v_lshrrev_b32 v{a}, 3, v0
    v_mul_u32_u24 v{e}, 272, v{a}
    v_cmp_eq_u32 vcc, 0, v{b}
    v_cmp_ne_u32 {sr(sTmp,2)}, 0, v{a}
    v_add_u32 v{e}, {YA-16}, v{e}
    s_and_b64 vcc, vcc, {sr(sTmp,2)}
    v_mov_b32 v{f}, {KF}
    v_lshl_add_u32 v{vYr}, v{b}, 5, v{e}
    v_add_u32 v{g}, {YAS}, v{e}
    v_cndmask_b32 v{vYc}, v{f}, v{e}, vcc
    v_cndmask_b32 v{vYc+1}, v{f}, v{g}, vcc
    v_bfe_u32 v{a}, v{vLane}, 2, 2
    v_and_b32 v{b}, 3, v{vLane}
    v_lshrrev_b32 v{c}, 5, v{vLane}
    v_bfe_u32 v{d}, v{vLane}, 4, 1
    v_and_or_b32 v{e}, v{a}, 2, v{d}
    s_lshl_b32 s{sT0}, s{sW1}, 1
    v_lshl_add_u32 v{f}, v{c}, 2, v{a}
    v_xor_b32 v{e}, s{sT0}, v{e}
    v_lshl_add_u32 v{g}, v{b}, 3, s{sM0x}
    v_lshl_add_u32 v{g}, v{f}, 7, v{g}
    v_lshl_add_u32 v{vDr}, v{e}, 5, v{g}
    v_xor_b32 v{vDr+1}, 64, v{vDr}
    v_add_u32 v{vDr+2}, 0x10000, v{vDr}
    v_add_u32 v{vDr+3}, 0x10000, v{vDr+1}
    s_mul_i32 s{sT1}, s{sW}, {UTSW}
    s_add_u32 s{sT1}, s{sT1}, {UTS}
    v_lshl_add_u32 v{g}, v{b}, 3, s{sT1}
    v_lshl_add_u32 v{g}, v{d}, 5, v{g}
    v_lshl_add_u32 v{AR}, v{f}, 6, v{g}
    v_add_u32 v{AW}, s{sT1}, v{vL16}
    v_lshrrev_b32 v{e}, 4, v{vLane}
    v_lshl_add_u32 v{e}, v{e}, 3, v{a}
    v_lshlrev_b32 v{e}, 3, v{e}
    s_mul_i32 s{sT0}, s{sW2}, {KFS}
    s_add_u32 s{sT0}, s{sT0}, {KF}
    v_lshl_add_u32 v{g}, v{b}, 5, s{sT0}
    v_add_u32 v{vFr}, v{g}, v{e}
    s_mul_i32 s{sT0}, s{sW2}, {UAS}
    s_lshl_b32 s{sT1}, s{sW1}, 7
    s_add_u32 s{sT0}, s{sT0}, s{sT1}
    s_add_u32 s{sT0}, s{sT0}, {UA+160+96-32}
    v_lshl_add_u32 v{g}, v{b}, 3, s{sT0}
    v_sub_u32 v{vGr}, v{g}, v{e}
    s_mul_i32 s{sT0}, s{sW2}, {YAS}
    s_mul_i32 s{sT1}, s{sW1}, 272
    s_add_u32 s{sT0}, s{sT0}, s{sT1}
    s_add_u32 s{sT0}, s{sT0}, {YA}
    v_lshl_add_u32 v{vYw}, v{vLane}, 2, s{sT0}
    v_add_u32 v{g}, {UTS}, v{vL16}
    v_cmp_eq_u32 {sr(sTmp,2)}, 63, v{vLane}
    v_add_u32 v{h}, 4, v{vYw}
    v_cndmask_b32 v{vYk}, v{g}, v{h}, {sr(sTmp,2)}
    s_mul_i32 s{sT0}, s{sW2}, {112*1024}
    v_add_u32 v{vH1}, s{sT0}, v{vL16}
    v_subrev_u32 v{vH2}, s{sT0}, v{vHs}
    """)
    t = S()
    a, b = 128, 129
    t(f"""
    v_lshrrev_b32 v{a}, 2, v{vLane}
    v_and_b32 v{b}, 3, v{vLane}
    v_lshlrev_b32 v{b}, 4, v{b}
    v_mul_u32_u24 v{OO}, 896, v{a}
    v_mul_u32_u24 v{OR_}, 80, v{a}
    v_lshl_add_u32 v{AO}, v{a}, 7, v{b}
    v_add_u32 v{OO}, v{OO}, v{b}
    v_add3_u32 v{OR_}, v{OR_}, v{b}, s{sM0x}
    v_add_u32 v{RW}, s{sM0x}, v{vL16}
    v_and_b32 v{a}, 31, v{vLane}
    v_lshrrev_b32 v{b}, 5, v{vLane}
    v_xor_b32 v{RR}, 0x1000, v{RW}
    v_xor_b32 v{RR+1}, 0x2000, v{RW}
    v_xor_b32 v{RR+2}, 0x3000, v{RW}
    v_mul_u32_u24 v{a}, 80, v{a}
    v_lshl_add_u32 v{b}, v{b}, 3, s{sM0x}
    v_add_u32 v{OW}, v{a}, v{b}
    v_and_b32 v130, 0xffff, v{vG}
    v_lshlrev_b32 v131, 16, v{vG}
    v_and_b32 v132, 0xffff0000, v{vG}
    v_and_b32 v133, 0xffff0000, v{vG}
    """)
    return s, t

def item(n):
    if n < 14 and n % 2 == 0: m0, va, rs, so, step = sM0x, vXd, rX, sXo, 128
    elif n < 21: m0, va, rs, so, step = sM0w, vWd, rW, sWo, (64*3584 if n != 13 else 1792 - 6*64*3584)
    else: m0, va, rs, so, step = sM0x, vDd, rD, sDo, (32*896 if n != 27 else (896 - 6*32)*896)
    s = S()
    s(f"s_add_u32 m0, s{m0}, {(n % NSLOT)*SLOT}")
    for q in range(4):
        s(f"buffer_load_dwordx4 v{va+q}, {sr(rs,4)}, s{so} offen offset:{1024*q} lds", f"it{n}")
    if n not in (12, 20, 34): s(f"s_add_u32 s{so}, s{so}, {hx(step)}")
    return s

def split_vm(st):
    grp = []
    for x in st:
        if not grp or (x.kind in VM_KINDS and any(y.kind in VM_KINDS for y in grp[-1])): grp.append(S())
        grp[-1].append(x)
    return grp

def sprinkle(main, groups, lo=0.0, hi=1.0):
    out = S(); n = len(main); g = 0
    pos = [int(n*(lo + (hi-lo)*k/max(1, len(groups)))) for k in range(len(groups))]
    for i, x in enumerate(main):
        while g < len(groups) and pos[g] <= i and not glued(x):
            out.add(groups[g]); g += 1
        out.append(x)
    while g < len(groups): out.add(groups[g]); g += 1
    return out

NEG = "neg_lo:[1,0,0] neg_hi:[1,0,0]"
def cmul(s, d, x, z, pk):
    assert d != x and d != z
    if pk:
        s(f"""v_pk_mul_f32 {vr(d,2)}, {vr(x,2)}, {vr(z,2)}
        v_pk_mul_f32 {vr(d+2,2)}, {vr(x,2)}, {vr(z+2,2)}
        v_pk_fma_f32 {vr(d,2)}, {vr(x+2,2)}, {vr(z+2,2)}, {vr(d,2)} {NEG}
        v_pk_fma_f32 {vr(d+2,2)}, {vr(x+2,2)}, {vr(z,2)}, {vr(d+2,2)}""")
    else:
        for k in range(2): s(f"v_mul_f32 v{d+k}, v{x+k}, v{z+k}")
        for k in range(2): s(f"v_mul_f32 v{d+2+k}, v{x+k}, v{z+2+k}")
        for k in range(2): s(f"v_fma_f32 v{d+k}, -v{x+2+k}, v{z+2+k}, v{d+k}")
        for k in range(2): s(f"v_fmac_f32 v{d+2+k}, v{x+2+k}, v{z+k}")

class Rows:
    def __init__(self, out0): self.o = out0; self.n = 0; self.pend = None
    def row(self, s, r, x, neg, const=False):
        o = self.o + 2*(self.n % 4); self.n += 1
        n = '-' if neg else ''
        if const: s(f"v_mov_b32 v{o}, 0x3f803f80\nv_mov_b32 v{o+1}, 0")
        else: s(f"v_cvt_pk_bf16_f32 v{o}, v{x}, v{x+1}\nv_cvt_pk_bf16_f32 v{o+1}, {n}v{x+2}, {n}v{x+3}")
        if self.pend is None: self.pend = (r, o)
        else:
            r0, o0 = self.pend; self.pend = None
            assert r0 // 4 == r // 4
            s(f"ds_write2_b64 v{vTw+r//4}, {vr(o0,2)}, {vr(o,2)} offset0:{68*(r0%4)} offset1:{68*(r%4)}")
    def flush(self, s):
        if self.pend:
            r, o = self.pend; self.pend = None
            s(f"ds_write_b64 v{vTw+r//4}, {vr(o,2)} offset:{544*(r%4)}")

def frags(s, reg):
    for ks in range(8): s(f"ds_read_b128 {reg(4*ks)}, v{vTr} offset:{64*ks}")

def stageA():
    s = S()
    R = ACC1
    A_, B_, C_, Dt, T, Z8, Z16, E = R, R+4, R+8, R+12, R+16, R+28, R+32, [R+36, R+40, R+44, R+48]
    Z1, Z2, Z256, Z512, W = KW, KW+4, KW+8, KW+12, KW+16
    V = [KW+20, KW+24, KW+28, KW+32, KW+36]
    rows = Rows(KW+40)
    for k in range(6):
        s(f"v_lshlrev_b32 v{R+2*k}, 16, v{P_RAW+k}\nv_and_b32 v{R+2*k+1}, 0xffff0000, v{P_RAW+k}")
    s(f"""
    s_lshl_b32 s{sT1}, s{sW2}, 4
    s_lshr_b32 s{sT1}, s{sLDv}, s{sT1}
    s_lshl_b32 s{sT1}, s{sT1}, 16
    v_mov_b32 v{Dt}, {hx(fbits(LOG2E))}
    v_mul_f32 v{Dt}, s{sT1}, v{Dt}
    v_exp_f32 v{Dt}, v{Dt}
    v_cvt_pk_bf16_f32 v{Dt}, 0, v{Dt}
    v_mov_b32 v{Dt+1}, v{Dt}
    """)
    for k in (A_, A_+2, B_, B_+2): s(f"v_pk_mul_f32 {vr(k,2)}, {vr(k,2)}, {vr(Dt,2)}")
    def prim(p, z, t):
        c1 = hx(fbits(p*LOG2E)); c2 = hx(fbits(p/(2*math.pi)))
        for k in range(2): s(f"v_mul_f32 v{t+k}, {c1}, v{A_+k}\nv_mul_f32 v{t+2+k}, {c2}, v{A_+2+k}")
        for k in range(2): s(f"v_exp_f32 v{t+k}, v{t+k}\nv_fract_f32 v{t+2+k}, v{t+2+k}")
        for k in range(2): s(f"v_cos_f32 v{z+k}, v{t+2+k}\nv_sin_f32 v{z+2+k}, v{t+2+k}")
        s(f"v_pk_mul_f32 {vr(z,2)}, {vr(z,2)}, {vr(t,2)}\nv_pk_mul_f32 {vr(z+2,2)}, {vr(z+2,2)}, {vr(t,2)}")
    prim(8, Z8, T); prim(1, Z1, T+4); prim(256, Z256, T+8)
    cmul(s, W, C_, B_, 1)
    stamp(s, 'A1')
    rows.row(s, 0, 0, 0, True); rows.row(s, 1, Z8, 0)
    cmul(s, Z16, Z8, Z8, 1)
    cmul(s, Z2, Z1, Z1, 1)
    rows.row(s, 2, Z16, 0)
    cur = {0: Z16, 1: Z8}
    for i in range(3, 32):
        nx = E[i % 4]
        cmul(s, nx, cur[i % 2], Z16, 1)
        if i == 16: frags(s, lambda o: vr(ACC2+o, 4))
        rows.row(s, i % 16, nx, 0); cur[i % 2] = nx
    cmul(s, Z512, Z256, Z256, 1)
    frags(s, lambda o: vr(ACC2+32+o, 4))
    stamp(s, 'A2')
    S0, S1 = V[3], V[4]
    ops = [(None, W, None, 0), (V[0], W, Z1, 1),
           (V[1], W, Z2, 2), (Z1, V[0], Z2, 3),
           (V[2], W, Z256, 8), (V[0], V[1], Z256, 9),
           (S0, W, Z512, 12), (S1, V[2], Z512, 14),
           (W, V[1], Z2, 4), (V[0], Z1, Z2, 5),
           (V[1], W, Z2, 6), (Z1, V[0], Z2, 7),
           (V[2], W, Z256, 10), (V[0], V[1], Z256, 11),
           (Z1, W, Z512, 13), (V[1], V[2], Z512, 15)]
    w1 = S()
    for k, (d, x, z, r) in enumerate(ops):
        t = s if k < OPT['pre'] else w1
        if d is not None: cmul(t, d, x, z, k < OPT['pre'])
        rows.row(t, r, x if d is None else d, 1)
    allpre = OPT['pre'] >= 99
    w2 = S()
    frags(w2, lambda o: ar(224+o, 4))
    ch = [(V[0], S0), (V[1], S1), (S0, V[0]), (S1, V[1]), (V[0], S0)]
    for k, (d, x) in enumerate(ch):
        cmul(w2, d, x, Z512, allpre); rows.row(w2, k, d, 1)
    rows.flush(w2)
    D = [KW, KW+4, KW+8, KW+16]
    def mm(t, at):
        for ks in range(8):
            for bt in range(2):
                d = vr(D[2*at+bt], 4)
                t(f"v_mfma_f32_16x16x32_bf16 {d}, {ar(224+4*ks,4)}, {vr(ACC2+32*bt+4*ks,4)}, {d if ks else 0}")
    mm(w2, 0)
    w3 = S()
    frags(w3, lambda o: ar(224+o, 4))
    for bt in range(2):
        w3(f"ds_write_b64 v{vK+2*bt}, {vr(D[bt],2)}\nds_write_b64 v{vK+2*bt+1}, {vr(D[bt]+2,2)}")
    mm(w3, 1)
    w3(f"v_add_u32 v{vK1}, 2048, v{vK1}")
    for bt in range(2):
        for jj in (0, 2):
            w3(f"ds_write2_b32 v{vK1}, v{D[2+bt]+jj}, v{D[2+bt]+jj+1} offset0:{16*bt+32*jj} offset1:{16*bt+32*jj+32}")
    w4 = S()
    X = KW
    for e_ in range(4):
        for k in (2*e_, 2*e_+1):
            w4(f"ds_read2st64_b32 {vr(X+4*k,2)}, v{vI+k} offset0:0 offset1:68\nds_read2st64_b32 {vr(X+4*k+2,2)}, v{vI+k} offset0:34 offset1:102")
    for e_ in range(4):
        k0, k1 = X+8*e_, X+8*e_+4
        w4(f"""v_add_f32 v{k0}, v{k0}, v{k0+2}
        v_add_f32 v{k1}, v{k1}, v{k1+2}
        v_add_f32 v{k0+1}, v{k0+1}, v{k0+3}
        v_add_f32 v{k1+1}, v{k1+1}, v{k1+3}
        v_cvt_pk_bf16_f32 v{k0+2}, v{k0}, v{k1}
        v_cvt_pk_bf16_f32 v{k0+3}, v{k0+1}, v{k1+1}
        ds_write_b32 v{vKw}, v{k0+2} offset:{1024*e_}
        ds_write_b32 v{vKw}, v{k0+3} offset:{KFS+1024*e_}""")
    return s, [w1, w2, w3, w4]

def lds_addr(base_lo, nset, k, slot, off):
    hi = slot >= 4
    return f"v{base_lo + k + (nset if hi else 0)}", (slot - (4 if hi else 0))*SLOT + off

def b_reads(i):
    s_, ks = divmod(i, 4)
    wslot = (2*s_+1) % NSLOT if s_ < 7 else (7+s_) % NSLOT
    buf = vWf + 8*(i % 3)
    wr = []
    for T in range(2):
        for h in range(2):
            a, o = lds_addr(vWr, 2, T, wslot, ks*2048 + h*512)
            wr.append(f"ds_read_b64_tr_b16 {vr(buf+4*T+2*h,2)}, {a} offset:{o}")
    if s_ < 7:
        xr = []
        for mt in range(2):
            a, o = lds_addr(vXr, 4, ks, (2*s_) % NSLOT, mt*4096)
            xr.append(f"ds_read_b128 {ar(8*i+4*mt,4)}, {a} offset:{o}")
        return [xr[0], wr[0], wr[1], xr[1], wr[2], wr[3]]
    return wr

def b_mfmas(i):
    acc = ACC1 if i < 28 else ACC2
    buf = vWf + 8*(i % 3)
    r = []
    for T in range(2):
        for mt in range(2):
            d = vr(acc + 32*T + 16*mt, 16)
            r.append(f"v_mfma_f32_32x32x16_bf16 {d}, {vr(buf+4*T,4)}, {ar(8*(i%28)+4*mt,4)}, {0 if i % 28 == 0 else d}")
    return r

def gelu(acc, half, pk, cluster=0):
    s = S(); st = S()
    for T in range(2):
        for mt in range(2):
            b = acc + 32*T + 16*mt
            o = vGo + 4*(2*T+mt)
            for jp in range(0, 8, 2):
                t = vGt + jp
                g0, u0 = b+jp, b+8+jp
                if pk:
                    s(f"""v_pk_mul_f32 {vr(t,2)}, {vr(g0,2)}, {vr(g0,2)}
                    v_pk_mul_f32 {vr(u0,2)}, {vr(u0,2)}, {vr(g0,2)}
                    v_pk_fma_f32 {vr(t,2)}, {vr(t,2)}, {vr(vC1,2)}, {sr(sK0,2)}
                    v_pk_mul_f32 {vr(t,2)}, {vr(t,2)}, {vr(g0,2)}
                    v_exp_f32 v{t}, v{t}
                    v_exp_f32 v{t+1}, v{t+1}
                    v_pk_add_f32 {vr(t,2)}, {vr(t,2)}, {sr(sK1,2)}
                    v_rcp_f32 v{t}, v{t}
                    v_rcp_f32 v{t+1}, v{t+1}
                    v_pk_mul_f32 {vr(t,2)}, {vr(t,2)}, {vr(u0,2)}
                    v_cvt_pk_bf16_f32 v{o+jp//2}, v{t}, v{t+1}""")
                else:
                    s(f"""v_mul_f32 v{t}, v{g0}, v{g0}
                    v_mul_f32 v{t+1}, v{g0+1}, v{g0+1}
                    v_mul_f32 v{u0}, v{u0}, v{g0}
                    v_fma_f32 v{t}, v{t}, v{vC1}, s{sK0}
                    v_fma_f32 v{t+1}, v{t+1}, v{vC1}, s{sK0}
                    v_mul_f32 v{u0+1}, v{u0+1}, v{g0+1}
                    v_mul_f32 v{t}, v{t}, v{g0}
                    v_mul_f32 v{t+1}, v{t+1}, v{g0+1}
                    v_exp_f32 v{t}, v{t}
                    v_exp_f32 v{t+1}, v{t+1}
                    v_add_f32 v{t}, 1.0, v{t}
                    v_add_f32 v{t+1}, 1.0, v{t+1}
                    v_rcp_f32 v{t}, v{t}
                    v_rcp_f32 v{t+1}, v{t+1}
                    v_mul_f32 v{t}, v{t}, v{u0}
                    v_mul_f32 v{t+1}, v{t+1}, v{u0+1}
                    v_cvt_pk_bf16_f32 v{o+jp//2}, v{t}, v{t+1}""")
            (st if cluster else s)(f"buffer_store_dwordx4 {vr(o,4)}, v{vL16 if mt == 0 else vHs}, {sr(rWS,4)}, s{sHst} offen offset:{1024*T} sc1", f"h{half}")
    return s.add(st)

def chunks(st, n):
    m = len(st); c = [m*k//n for k in range(n+1)]
    for k in range(1, n):
        while c[k] < m and glued(st[c[k]]): c[k] += 1
    return [S(st[c[k]:c[k+1]]) for k in range(n)]

def stageB(aw):
    w1, w2, w3, w4 = aw
    side = {k: [] for k in range(14)}
    l1a, l1b = setup_late1(); l2, stageB.eaddr = setup_late2()
    if OPT['pre'] >= 99:
        side[0].append((setup_exp(), 0, 16)); side[1].append((w4, 0, 16))
    else:
        c = chunks(S(w1).add(setup_exp()), 2)
        side[0].append((c[0], 0, 16)); side[1].append((c[1], 0, 16))
        c = chunks(w2, 2)
        side[2].append((c[0], 0, 16)); side[3].append((c[1], 0, 16))
        side[4].append((w3, 0, 16))
        c = chunks(w4, 2)
        side[5].append((c[0], 9, 16)); side[6].append((c[1], 0, 12))
    side[5].append((l1a, 0, 8))
    side[6].append((l1b, 12, 16))
    for k, c in enumerate(chunks(l2, 3)): side[8+k].append((c, 0, 16))
    dsched = {1: (7, 8), 2: (9, 10), 3: (11, 12), 4: (13, 14), 5: (15, 16), 6: (17, 18), 7: (19, 20), 8: (21,), 9: (22,),
              10: (23,), 11: (24,), 12: (25,), 13: (26,)}
    vm = {k: S() for k in range(14)}
    ld = f"global_load_dword v{vPoll}, v{vPollA}, {sr(sDbg,2)} sc1"
    vm[8](ld)
    vm[10].add(poll(1, ld))
    vm[10](f"""buffer_load_dwordx4 {vr(vU,4)}, v{vUo}, {sr(rWS,4)}, s{sUTld} offen sc1
    buffer_load_dwordx4 {vr(vU+4,4)}, v{vUo}, {sr(rWS,4)}, s{sUTld} offen offset:128 sc1
    buffer_load_dword v{vG}, v{vPollA}, {sr(rWS,4)}, s{sGld} offen sc1""")
    for k, v in dsched.items():
        for n in v: vm[k].add(item(n))
    t = S(); t(f"ds_write_b128 v{vUw}, {vr(vU,4)}\nds_write_b128 v{vUw}, {vr(vU+4,4)} offset:{UAS}")
    side[13].append((t, 2, 6))
    for k, c in enumerate(chunks(gelu(ACC1, 1, False, OPT['cl1']), OPT['nst'])): side[7+k].insert(0, (c, 2 if k == 0 else 0, 16))
    out = S()
    out.wait_vm(("it0", "it1")); out.wait_lg(); out("s_barrier")
    stamp(out, "B0")
    for i in range(2):
        for r in b_reads(i): out(r, f"br{i}")
    for s_ in range(14):
        base = S()
        for ks in range(4):
            i = 4*s_ + ks
            m = b_mfmas(i)
            rd = b_reads(i+2) if i < 54 else []
            cuts4 = [len(rd)*q//4 for q in range(5)]
            for q in range(4):
                base(m[q])
                if ks == 2 and q == 0:
                    nxt = s_ + 1
                    toks = (f"it{2*nxt}", f"it{2*nxt+1}") if nxt < 7 else (f"it{7+nxt}",) if nxt < 14 else None
                    if toks: base.wait_vm(toks)
                    base.wait_lg(); base("s_barrier")
                elif q == 3 and ks != 2: base.wait_lg(f"br{i+1}")
                for r in rd[cuts4[q]:cuts4[q+1]]: base(r, f"br{i+2}")
        st = weave(base, vm[s_]) if len(vm[s_]) else base
        for sd, a, b in sorted(side[s_], key=lambda e: any(x.kind == 'mfma' for x in e[0])):
            if len(sd): st = weave(st, sd, start=a, end=b)
        out.add(st)
        if s_ == 6: stamp(out, "B1")
    return out

def wd_reads(q, tok):
    s = S()
    for T in range(2):
        for dt in range(2):
            for h in range(2):
                a, o = lds_addr(vDr, 2, dt, q, T*2048 + h*1024)
                s(f"ds_read_b64_tr_b16 {ar(16*q+8*T+4*dt+2*h,2)}, {a} offset:{o}", tok)
    return s

def h_loads(u):
    q, half = u % 7, u // 7
    s = S()
    for T in range(2):
        for mt in range(2):
            d = ar(112+16*q+8*T+4*mt, 4) if half == 0 else vr(H2+16*q+8*T+4*mt, 4)
            s(f"buffer_load_dwordx4 {d}, v{vH1 if mt == 0 else vH2}, {sr(rWS,4)}, s{sHld} offen offset:{1024*T} sc1")
    if u != 13: s(f"s_add_u32 s{sHld}, s{sHld}, {2048 if u != 6 else (56-12)*1024}")
    return s

def f_read(t):
    return f"ds_read_b64_tr_b16 {vr(ACC1+4*t,2)}, v{vFr} offset:{256*t}\nds_read_b64_tr_b16 {vr(ACC1+4*t+2,2)}, v{vFr} offset:{256*t+32}"
def g_read(e):
    return f"ds_read_b64_tr_b16 {vr(ACC2+4*e,2)}, v{vGr} offset:{256*e+32}\nds_read_b64_tr_b16 {vr(ACC2+4*e+2,2)}, v{vGr} offset:{256*e}"

def wd_move(q):
    a = S(); a.wait_vm(f"it{21+q}"); a.add(wd_reads(q, f"wda{q}"))
    b = S(); b.wait_lg(f"wda{q}"); b.add(item(28+q))
    return a, b

def stageTail():
    s = S()
    s.add(item(27))
    s.wait_vm("h1")
    s(flag(sF2w, vOne))
    s(f"s_add_u32 s{sHst}, s{sHst}, {56*1024}")
    g2 = gelu(ACC2, 2, True, OPT['cl2'])
    groups = []
    for q in range(2):
        a, b = wd_move(q)
        groups += chunks(a, 2) + [S()(f_read(2*q)), S()(f_read(2*q+1))] + split_vm(b)
    s.add(sprinkle(g2, groups, 0.0, 1.0))
    return s

def stageC():
    main = S()
    for e in range(3): main(g_read(e))
    def flush(c):
        d = CA + 4*(c % 3); t = S()
        for j in (2, 1, 0):
            t(f"v_add_f32_dpp v{d+j}, v{d+j+1}, v{d+j} wave_shr:1 row_mask:0xf bank_mask:0xf")
        t(f"ds_write_b32 v{vYw}, v{d} offset:{544*c}")
        t(f"ds_write_b128 v{vYk}, {vr(d,4)} offset:{544*c}")
        return t
    for c in range(16):
        d = vr(CA + 4*(c % 3), 4)
        ex = S()
        if c + 3 < 16: ex(g_read(c+3))
        if 4 <= c + 3 < 16: ex(f_read(c+3))
        if c >= 2: ex.add(flush(c-2))
        blk = S()
        for t in range(c+1):
            blk(f"v_mfma_f32_16x16x32_bf16 {d}, {vr(ACC1+4*t,4)}, {vr(ACC2+4*(c-t),4)}, {d if t else 0}")
        main.add(weave(blk, ex))
    main.add(flush(14)).add(flush(15))
    side = S()
    side(f"v_min_u32 v{vPollA}, 6, v{vLane}\nv_lshlrev_b32 v{vPollA}, 2, v{vPollA}")
    mv = [wd_move(q) for q in range(2, 7)]
    side.add(mv[0][0])
    for k in range(5):
        if k + 1 < 5: side.add(mv[k+1][0])
        if k == 2:
            side.wait_vm("h2"); side(flag(sF2w, vTwo)); side(wsld(sF2r))
        side.add(mv[k][1])
    side.add(poll(1, wsld(sF2r)))
    for u in range(OPT['nh1c']): side.add(h_loads(u))
    out = weave(main, side, start=21, end=134)
    f = S()
    f.wait_lg(); f("s_barrier")
    Y = ACC1
    for ch in range(2):
        f(f"""ds_read_b128 {vr(Y+12*ch,4)}, v{vYr} offset:{YAS*ch+16}
        ds_read_b128 {vr(Y+12*ch+8,4)}, v{vYc+ch}
        ds_read_b128 {vr(Y+12*ch+4,4)}, v{vYr} offset:{YAS*ch+32}""")
    f(f"""s_and_b32 s{sK0}, s{sDSv}, 0xffff
    s_lshl_b32 s{sK0+1}, s{sDSv}, 16
    s_lshr_b32 s{sK1}, s{sDSv}, 16
    s_and_b32 s{sK1+1}, s{sDSv}, 0xffff0000
    s_add_u32 s{sUTld}, s{sUTld}, {WS_AT-WS_UT}""")
    for ch in range(2):
        b = Y+12*ch
        for k in range(3): f(f"v_add_f32 v{b+k}, v{b+k}, v{b+9+k}")
        for k in range(8):
            f(f"v_dot2_f32_bf16 v{b+k}, v{vU+4*ch+k//2}, s{(sK0 if ch == 0 else sK1)+(k&1)}, v{b+k}")
        for k in range(4):
            f(f"v_cvt_pk_bf16_f32 v{b+8+k}, v{b+2*k}, v{b+2*k+1}")
        f(f"buffer_store_dwordx4 {vr(b+8,4)}, v{vUo}, {sr(rWS,4)}, s{sUTld} offen offset:{128*ch} sc1", "at")
    return out.add(f)

def stageD():
    def mf(u):
        q, half = u % 7, u // 7
        r = S()
        for T in range(2):
            for mt in range(2):
                for dt in range(2):
                    d = vr(DACC + 16*(dt + 2*mt), 16)
                    hb = ar(112+16*q+8*T+4*mt, 4) if half == 0 else vr(H2+16*q+8*T+4*mt, 4)
                    r(f"v_mfma_f32_32x32x16_bf16 {d}, {ar(16*q+8*T+4*dt,4)}, {hb}, {0 if u == 0 and T == 0 else d}")
        return r
    s = S()
    LA = 3
    nxt = OPT['nh1c']
    while nxt < LA: s.add(h_loads(nxt)); nxt += 1
    for u in range(14):
        ex = S()
        if nxt == 5: ex(wsld(sF2r))
        if nxt == 7: ex.add(poll(2, wsld(sF2r)))
        if u == OPT['nh1c']:
            ex.wait_vm("at"); ex(flag(sF3w, vOne))
        if nxt < 14: ex.add(h_loads(nxt)); nxt += 1
        if 1 <= u <= 7:
            ex.wait_vm(f"it{28+u-1}"); ex.add(wd_reads(u-1, f"wdb{u-1}"))
        if u == 8:
            ex(f"v_and_b32 v{vPollA}, 15, v{vLane}\nv_lshlrev_b32 v{vPollA}, 2, v{vPollA}")
            ex(wsld(sF3r)); ex.add(stageB.eaddr)
        if u == 11:
            ex.add(poll(1, wsld(sF3r)))
            for q in range(2):
                ex(f"buffer_load_dwordx4 {vr(E0+4*q,4)}, v{AO}, {sr(rWS,4)}, s{sATld} offen offset:{2048*q} sc1")
        s.add(weave(mf(u), ex) if len(ex) else mf(u))
        if u == 6: stamp(s, "D1")
    stamp(s, "D2")
    G, GH, OMG = 130, 131, 132
    for q in range(2):
        s(f"ds_write_b128 v{AW}, {vr(E0+4*q,4)} offset:{1024*q}")
    for t in range(1, 4):
        for k in range(4):
            s(f"ds_write_b128 v{RW}, {vr(DACC+16*t+4*k,4)} offset:{(t-1)*SLOT+1024*k}")
    for k in range(4):
        s(f"ds_read_b64_tr_b16 {vr(E0+8+2*k,2)}, v{AR} offset:{512*k}")
    s.wait_lg(); s("s_barrier")
    for k in range(4):
        for t in range(1, 4):
            s(f"ds_read_b128 {vr(H2+16*(t-1)+4*k,4)}, v{RR+t-1} offset:{(t-1)*SLOT+1024*k}")
    for k in range(4):
        for p in range(2):
            o = 4*k + 2*p
            s(f"""v_pk_add_f32 {vr(DACC+o,2)}, {vr(DACC+o,2)}, {vr(H2+o,2)}
            v_pk_add_f32 {vr(H2+16+o,2)}, {vr(H2+16+o,2)}, {vr(H2+32+o,2)}""")
        for p in range(2):
            o = 4*k + 2*p
            s(f"v_pk_add_f32 {vr(DACC+o,2)}, {vr(DACC+o,2)}, {vr(H2+16+o,2)}")
        for p in range(2):
            o = 4*k + 2*p
            s(f"v_pk_mul_f32 {vr(DACC+o,2)}, {vr(DACC+o,2)}, {vr(OMG,2)}")
        for j in range(4):
            s(f"v_dot2_f32_bf16 v{DACC+4*k+j}, v{E0+8+2*k+j//2}, v{G if j % 2 == 0 else GH}, v{DACC+4*k+j}")
        s(f"""v_cvt_pk_bf16_f32 v{E0+2*k}, v{DACC+4*k}, v{DACC+4*k+1}
        v_cvt_pk_bf16_f32 v{E0+2*k+1}, v{DACC+4*k+2}, v{DACC+4*k+3}""")
    for k in range(4):
        s(f"ds_write_b64 v{OW}, {vr(E0+2*k,2)} offset:{3*SLOT+16*k}")
    for q in range(2):
        s(f"ds_read_b128 {vr(H2+4*q,4)}, v{OR_} offset:{3*SLOT+16*80*q}")
    sc = " sc1" if OPT['outsc'] else ""
    s(f"s_add_u32 s{sT0}, s{sOst}, {16*896}")
    s(f"buffer_store_dwordx4 {vr(H2,4)}, v{OO}, {sr(rO,4)}, s{sOst} offen{sc}")
    s(f"buffer_store_dwordx4 {vr(H2+4,4)}, v{OO}, {sr(rO,4)}, s{sT0} offen{sc}")
    return s

def helper():
    s = S()
    GWL = 57344; TS = 59392
    s(f"""
    v_lshrrev_b32 v3, 6, v0
    v_and_b32 v2, 63, v0
    v_readfirstlane_b32 s3, v3
    v_lshlrev_b32 v1, 4, v2
    s_mul_i32 s6, s2, 57344
    s_mul_i32 s7, s3, 14336
    s_add_u32 s8, s6, s7
    {srd(rX, sU, 2048*896)}
    {srd(rW, sGw, 896)}
    {srd(rWS, sWs, WS_END)}
    """)
    for k in range(14):
        if k % 4 == 0: s(f"s_add_u32 m0, s7, {1024*k}\ns_add_u32 s9, s8, {1024*k}")
        s(f"buffer_load_dwordx4 v1, {sr(rX,4)}, s9 offen offset:{1024*(k%4)} lds", "x")
    s(f"s_mov_b32 m0, {GWL}\nbuffer_load_dwordx4 v1, {sr(rW,4)}, 0 offen lds", "x")
    s(f"""
    v_mov_b32 v8, 0
    v_mov_b32 v9, 0
    v_mov_b32 v10, 0
    v_mov_b32 v11, 0
    v_cmp_gt_u32 vcc, 16, v0
    v_mov_b32 v4, 0x80000000
    v_cndmask_b32 v5, v4, v1, vcc
    s_lshl_b32 s9, s2, 8
    buffer_store_dwordx4 v[8:11], v5, {sr(rWS,4)}, s9 offen sc1
    v_lshrrev_b32 v6, 4, v2
    v_bfe_u32 v7, v2, 2, 2
    v_lshl_add_u32 v7, v6, 3, v7
    v_mul_u32_u24 v7, 896, v7
    v_and_b32 v12, 3, v2
    s_mul_i32 s9, s3, 224
    v_lshl_add_u32 v12, v12, 3, s9
    v_add_u32 v12, v12, v7
    s_mul_i32 s10, s3, {2*UTSW}
    s_add_u32 s10, s10, {TS}
    v_and_b32 v13, 15, v2
    v_mul_u32_u24 v14, 144, v13
    v_lshl_add_u32 v14, v6, 4, v14
    v_add_u32 v14, s10, v14
    v_lshrrev_b32 v15, 3, v2
    v_lshl_add_u32 v15, v15, 4, v1
    v_add_u32 v15, s10, v15
    v_mul_u32_u24 v16, 896, v13
    v_lshl_add_u32 v16, v6, 4, v16
    v_add_u32 v16, s7, v16
    v_lshlrev_b32 v17, 4, v6
    v_cmp_gt_u32 vcc, 16, v2
    v_lshlrev_b32 v18, 2, v2
    v_cndmask_b32 v18, v4, v18, vcc
    s_add_u32 s11, s8, {WS_UT}
    s_lshl2_add_u32 s13, s2, s3
    s_lshl_b32 s13, s13, 6
    s_add_u32 s13, s13, {WS_G}
    """)
    s.wait_vm("x"); s("s_barrier")
    for cg in range(7):
        t0 = 32 + 16*(cg % 2); so = UTSW*(cg % 2)
        for t in range(2):
            for h in range(2):
                s(f"ds_read_b64_tr_b16 {vr(t0+4*t+2*h,2)}, v12 offset:{(32*t+4*h)*896+32*cg}")
        for t in range(2): s(f"ds_write_b128 v14, {vr(t0+4*t,4)} offset:{so+64*t}")
        for t in range(2): s(f"ds_read_b128 {vr(t0+8+4*t,4)}, v15 offset:{so+8*144*t}")
        for t in range(2): s(f"buffer_store_dwordx4 {vr(t0+8+4*t,4)}, v1, {sr(rWS,4)}, s11 offen offset:{1024*t} sc1")
        s(f"s_add_u32 s11, s11, 2048")
    for ks in range(14):
        r = 64 + 8*(ks % 4)
        s(f"""ds_read_b128 {vr(r,4)}, v17 offset:{GWL+64*ks}
        ds_read_b128 {vr(r+4,4)}, v16 offset:{64*ks}
        v_mfma_f32_16x16x32_bf16 v[20:23], {vr(r,4)}, {vr(r+4,4)}, {'v[20:23]' if ks else 0}""")
    s(f"""v_cvt_pk_bf16_f32 v20, 0, v20
    v_mul_f32 v20, {hx(fbits(-LOG2E))}, v20
    v_exp_f32 v20, v20
    v_add_f32 v20, 1.0, v20
    v_rcp_f32 v20, v20
    v_cvt_pk_bf16_f32 v21, 0, v20
    v_sub_f32 v22, 1.0, v21
    v_cvt_pk_bf16_f32 v20, v21, v22
    buffer_store_dword v20, v18, {sr(rWS,4)}, s13 offen sc1""")
    s.wait_vm('*'); s("s_barrier")
    s(f"""s_lshl_b32 s9, s2, 2
    v_mov_b32 v8, s9
    v_mov_b32 v9, 1
    v_cmp_eq_u32 vcc, 0, v0
    s_and_saveexec_b64 s[6:7], vcc
    s_cbranch_execz L_end
    global_store_dword v8, v9, {sr(sDbg,2)} sc1
    s_endpgm""")
    fin, _ = finalize(schedule(s))
    return f"""L_helper:
    s_getpc_b64 s[4:5]
L_pc:
    s_sub_u32 s4, s4, L_pc-{NAME}_kernel
    s_subb_u32 s5, s5, 0
    v_lshlrev_b32 v1, 7, v0
    v_min_u32 v1, L_last-{NAME}_kernel, v1
    global_load_dword v19, v1, s[4:5]
    {'s_endpgm' if OPT['x_nohelp'] else ''}
    s_waitcnt lgkmcnt(0)
""" + text(fin) + "\nL_last:\n    s_endpgm"

def build():
    s = S()
    if OPT['stamp']:
        s(f"s_memrealtime s[100:101]\ns_waitcnt lgkmcnt(0)\nv_writelane_b32 v47, s100, 30")
    stamp(s, "start")
    s(f"""s_load_dwordx16 s[16:31], s[0:1], 0
    s_load_dwordx16 s[32:47], s[0:1], 64
    s_load_dwordx2 s[48:49], s[0:1], 128
    s_cmp_ge_u32 s2, {NHELP+NMAIN}
    s_cbranch_scc1 L_end
    s_cmp_lt_u32 s2, {NHELP}
    s_cbranch_scc1 L_helper""")
    s.add(setup_early()).add(setup_scalar())
    s("s_waitcnt lgkmcnt(0)")
    stamp(s, "karg")
    if OPT['x_bx']:
        src, n = {1: (sBx, 2048*896), 2: (sWdn, 1792*896), 3: (sU, 2048*896)}[OPT['x_bx']]
        s(srd(rX, src, n))
        stamp(s, 'bx0')
        for n in range(0, 14, 2): s.add(item(n))
        s.wait_vm('*')
        stamp(s, 'bx1')
        s(f"s_sub_u32 s{sXo}, s{sXo}, {6*128}\ns_barrier")
    s.add(first_loads())
    if OPT['x_pre']:
        s.add(setup_AB())
        l1a, _ = setup_late1()
        for n in range(3): s.add(item(n))
        s(f'v_mov_b32 v3, v{P_RAW+5}')
        stamp(s, 'par')
        for n in range(24):
            s.wait_vm(f'it{n}'); stamp(s, f'i{n}')
            if n == 12: s.add(l1a)
            s.add(item(n+3))
    else:
        g0 = S()
        for n in range(OPT['npre']): g0.add(item(n))
        s.add(sprinkle(setup_AB(), split_vm(g0), 0.0, 0.8))
        stamp(s, "setup")
        A, aw = stageA()
        if OPT['pre'] >= 99:
            A.add(aw[1]).add(aw[2])
        g1 = S()
        for n in range(OPT['npre'], 7): g1.add(item(n))
        s.add(sprinkle(A, split_vm(g1), 0.1, 0.9 if OPT['pre'] < 99 else 0.7))
        stamp(s, "A")
        s.add(stageB(aw))
        stamp(s, "B2")
        s.add(stageTail())
        stamp(s, "tail")
        s.add(stageC())
        stamp(s, "C")
        s.add(stageD())
        stamp(s, "E")
    if OPT['stamp']:
        s(f"""s_waitcnt vmcnt(0)
        s_memtime s[100:101]
        s_waitcnt lgkmcnt(0)
        v_writelane_b32 v47, s100, {len(stamps)}
        s_memrealtime s[100:101]
        s_waitcnt lgkmcnt(0)
        v_writelane_b32 v47, s100, 31
        s_lshl2_add_u32 s{sT0}, s{sC}, s{sW}
        s_lshl_b32 s{sT0}, s{sT0}, 7
        s_add_u32 s{sT0}, s{sT0}, {WS_ST}
        v_and_b32 v3, 31, v{vLane}
        v_lshlrev_b32 v3, 2, v3
        s_mov_b64 exec, 0xffffffff
        buffer_store_dword v47, v3, {sr(rWS,4)}, s{sT0} offen""")
        stamps.append("end")
    if PROBE:
        s(f"""s_sub_u32 s12, s12, s8
        s_max_i32 s12, s12, 0
        s_mul_i32 s12, s12, 10
        s_memrealtime s[100:101]
        s_waitcnt lgkmcnt(0)
        s_mov_b32 s8, s100
        L_probe:
        s_memrealtime s[100:101]
        s_waitcnt lgkmcnt(0)
        s_sub_u32 s100, s100, s8
        s_cmp_lt_u32 s100, s12
        s_cbranch_scc1 L_probe""")
    if OPT['sched']: s = schedule(s)
    fin, nn = finalize(s)
    info = ''
    if OPT['align']:
        fin, nw, na, nb = align_pass(fin); info = f"widened {nw} alignnops {na} bytes {nb}"
    open(sys.argv[1]+'.names', 'w').write(','.join(stamps))
    sys.stderr.write(f"instrs {len(fin)} nops {nn} est {estimate(fin)} {info}\n")
    hdr = open('cdna_kernels/' + NAME + '.s.ref').read().split('; Override launch')[0]
    return hdr + f"""; One fused launch. Workgroups 0..{NHELP-1}: transpose of u, gate, flag init. Workgroups {NHELP}..{NHELP+NMAIN-1}: S4 kernel
; generation, gate/up GEMM + GELU, causal convolution, down GEMM and the final mix.
; @launch grid=({NHELP+NMAIN},1,1) block=(256,1,1) lds={LDS_SIZE}
.amdgcn_target "amdgcn-amd-amdhsa--gfx950"
.text
.globl {NAME}_kernel
.p2align 8
.type {NAME}_kernel,@function
{NAME}_kernel:
{text(fin)}
L_end:
    s_endpgm
""" + "\n".join(slow) + "\n" + helper() + f"""
.section .rodata,"a"
.p2align 6
.amdhsa_kernel {NAME}_kernel
  .amdhsa_next_free_vgpr 512
  .amdhsa_next_free_sgpr 102
  .amdhsa_accum_offset 256
  .amdhsa_group_segment_fixed_size 0
  .amdhsa_kernarg_size 136
  .amdhsa_user_sgpr_count 2
  .amdhsa_user_sgpr_kernarg_segment_ptr 1
  .amdhsa_system_sgpr_workgroup_id_x 1
.end_amdhsa_kernel
"""

if __name__ == "__main__":
    open(sys.argv[1], 'w').write(build())
```

```python
import re

REG_RE = re.compile(r'^(-|\|)?(abs\()?([vas])(\d+|\[(\d+):(\d+)\])\)?\|?$')

def parse_reg(op):
    op = op.strip()
    if op == 'vcc': return [('s', 106), ('s', 107)]
    if op == 'vcc_lo': return [('s', 106)]
    if op == 'vcc_hi': return [('s', 107)]
    if op == 'exec': return [('s', 126), ('s', 127)]
    if op == 'm0': return [('s', 124)]
    m = REG_RE.match(op)
    if not m: return []
    t = m.group(3)
    if m.group(5) is not None:
        return [(t, i) for i in range(int(m.group(5)), int(m.group(6)) + 1)]
    return [(t, int(m.group(4)))]

TRANS = ('v_exp_f32', 'v_log_f32', 'v_rcp_f32', 'v_rsq_f32', 'v_sqrt_f32', 'v_sin_f32', 'v_cos_f32')
EXEC = [('s', 126), ('s', 127)]
VCC = [('s', 106), ('s', 107)]
M0 = [('s', 124)]

class I:
    __slots__ = ('text', 'op', 'kind', 'rd', 'wr', 'passes', 'srcA', 'srcB', 'srcC', 'tok', 'wide', 'data', 'dpp', 'note')
    def __init__(self, text, tok=None):
        self.text = text; self.tok = tok; self.note = None
        self.passes = 0; self.srcA = self.srcB = self.srcC = (); self.wide = False; self.data = (); self.dpp = False
        t = text.split(';')[0].strip()
        if t.endswith(':') or t.startswith('.') or not t:
            self.op = ''; self.kind = 'label' if t.endswith(':') else 'dir'; self.rd = set(); self.wr = set(); return
        parts = t.split(None, 1)
        op = parts[0]
        for suf in ('_e32', '_e64', '_dpp', '_sdwa'):
            if op.endswith(suf):
                if suf == '_dpp': self.dpp = True
                op = op[:-len(suf)]
        self.op = op
        rest = parts[1] if len(parts) > 1 else ''
        ops = []; depth = 0; cur = ''
        for ch in rest:
            if ch == '[': depth += 1
            if ch == ']': depth -= 1
            if ch == ',' and depth == 0: ops.append(cur.strip()); cur = ''
            else: cur += ch
        if cur.strip(): ops.append(cur.strip())
        mods = ''
        if ops:
            last = ops[-1].split(None, 1)
            ops[-1] = last[0]
            mods = last[1] if len(last) > 1 else ''
        R = [parse_reg(o) for o in ops]
        allr = lambda lst: set(x for l in lst for x in l)
        rd = set(); wr = set()
        if op.startswith('v_mfma'):
            self.kind = 'mfma'
            self.passes = 8 if '32x32x16' in op else 4 if '16x16x32' in op else None
            assert self.passes, op
            wr = set(R[0]); self.srcA = set(R[1]); self.srcB = set(R[2]); self.srcC = set(R[3]); rd = allr(R[1:])
        elif op.startswith('ds_'):
            self.kind = 'ds'
            if op.startswith('ds_read') or op.startswith('ds_bpermute') or op.startswith('ds_swizzle'):
                wr = set(R[0]); rd = allr(R[1:])
                if 'd16' in op: rd |= wr
            else:
                rd = allr(R)
        elif op.startswith('buffer_load') or op.startswith('global_load'):
            if ' lds' in (' ' + mods) or '_lds_' in op:
                self.kind = 'dma'; rd = allr(R) | set(M0)
            else:
                self.kind = 'vload'; wr = set(R[0]); rd = allr(R[1:])
                if 'd16' in op: rd |= wr
        elif op.startswith('buffer_store') or op.startswith('global_store'):
            self.kind = 'vstore'; rd = allr(R)
            self.data = set(R[0] if op.startswith('buffer') else R[1])
            self.wide = 'x4' in op or 'x3' in op
        elif op.startswith('buffer_') or op.startswith('global_'):
            self.kind = 'vstore'; rd = allr(R)
        elif op.startswith('s_load') or op in ('s_memtime', 's_memrealtime'):
            self.kind = 'smem'; wr = set(R[0]); rd = allr(R[1:])
        elif op == 's_waitcnt': self.kind = 'wait'
        elif op == 's_barrier': self.kind = 'barrier'
        elif op == 's_nop': self.kind = 'nop'
        elif op in ('s_branch', 's_endpgm', 's_setprio', 's_sleep') or op.startswith('s_cbranch'):
            self.kind = 'branch'
            if 'vcc' in op: rd = set(VCC)
            if 'exec' in op: rd = set(EXEC)
        elif op.startswith('s_cmp') or op.startswith('s_bitcmp'):
            self.kind = 'salu'; rd = allr(R)
        elif op.startswith('s_'):
            self.kind = 'salu'; wr = set(R[0]); rd = allr(R[1:])
            if 'saveexec' in op: wr |= set(EXEC); rd |= set(EXEC)
            if op in ('s_addk_i32', 's_mulk_i32'): rd |= wr
        elif op.startswith('v_'):
            self.kind = 'trans' if op in TRANS else 'valu'
            if op.startswith('v_permlane'):
                wr = allr(R); rd = allr(R)
            else:
                wr = set(R[0]); rd = allr(R[1:])
                if op.startswith('v_fmac') or op.startswith('v_dot2c') or op.startswith('v_pk_fmac') or op.startswith('v_writelane') or 'mixlo' in op or 'mixhi' in op or self.dpp:
                    rd |= wr
                if op.startswith('v_add_co') or op.startswith('v_sub_co') or op.startswith('v_addc_co'):
                    wr |= set(R[1]); rd = allr(R[2:])
                if op.startswith('v_cmpx'): wr |= set(EXEC)
                if op.startswith('v_cndmask') and len(R) == 3: rd |= set(VCC)
        else:
            raise ValueError('unknown op: ' + text)
        self.rd = rd; self.wr = wr

    def cost(self):
        k = self.kind
        if k in ('label', 'dir', 'mark'): return 0
        if k == 'trans': return 8
        if k == 'nop': return 4 * (int(self.text.split()[1]) + 1)
        if k == 'ds': return 4 * max(1, sum(1 for r in self.rd if r[0] in 'va' and r not in self.wr))
        if k in ('vload', 'dma'): return 16
        if k == 'vstore': return 16 + 8 * len(self.data)
        return 4

class Mark(I):
    __slots__ = ('vm', 'lg')
    def __init__(self, vm=None, lg=None):
        self.text = ''; self.op = ''; self.kind = 'mark'; self.rd = set(); self.wr = set(); self.tok = None
        self.vm = vm; self.lg = lg; self.note = None
        self.passes = 0; self.srcA = self.srcB = self.srcC = (); self.wide = False; self.data = (); self.dpp = False

class S(list):
    cycles = 0
    def __call__(self, text, tok=None):
        for line in text.split('\n'):
            line = line.strip()
            if line and not line.startswith(';'):
                self.append(I(line, tok))
        return self
    def wait_vm(self, tok):
        self.append(Mark(vm=tok)); return self
    def wait_lg(self, tok='*'):
        self.append(Mark(lg=tok)); return self
    def add(self, other):
        self.extend(other); return self

VM_KINDS = ('vload', 'vstore', 'dma')

def insert_waits(ins):
    out = []; vq = []; lq = []
    for x in ins:
        nv = None; nl = None
        if x.kind == 'wait':
            m = re.search(r'vmcnt\((\d+)\)', x.text)
            if m: vq = vq[len(vq) - min(len(vq), int(m.group(1))):]
            m = re.search(r'lgkmcnt\((\d+)\)', x.text)
            if m:
                n = int(m.group(1)); assert n == 0 or not any(e.kind == 'smem' for e in lq)
                lq = lq[len(lq) - min(len(lq), n):]
            out.append(x); continue
        touched = x.rd | x.wr
        vm_t = x.vm if x.kind == 'mark' else None
        lg_t = x.lg if x.kind == 'mark' else None
        def match(e, t):
            if t is None: return False
            if t == '*': return True
            return e.tok in t if isinstance(t, (tuple, list, set)) else e.tok == t
        for idx in range(len(vq) - 1, -1, -1):
            e = vq[idx]
            if (e.wr & touched) or match(e, vm_t):
                nv = len(vq) - 1 - idx; break
        for idx in range(len(lq) - 1, -1, -1):
            e = lq[idx]
            same_q = x.kind == 'ds' and e.kind == 'ds' and not (e.wr & x.rd)
            if ((e.wr & touched) and not same_q) or match(e, lg_t):
                nl = len(lq) - 1 - idx; break
        if nl is not None and any(e.kind == 'smem' for e in lq): nl = 0
        if nv is not None or nl is not None:
            t = 's_waitcnt'
            if nv is not None:
                nv = min(nv, 62); t += f' vmcnt({nv})'; vq = vq[len(vq) - nv:] if nv else []
            if nl is not None:
                nl = min(nl, 14); t += f' lgkmcnt({nl})'; lq = lq[len(lq) - nl:] if nl else []
            if out and out[-1].kind == 'wait' and out[-1].note == 'auto':
                p = out.pop().text
                mv = re.search(r'vmcnt\((\d+)\)', p); ml = re.search(r'lgkmcnt\((\d+)\)', p)
                if mv: nv = int(mv.group(1)) if nv is None else min(nv, int(mv.group(1)))
                if ml: nl = int(ml.group(1)) if nl is None else min(nl, int(ml.group(1)))
                t = 's_waitcnt' + (f' vmcnt({nv})' if nv is not None else '') + (f' lgkmcnt({nl})' if nl is not None else '')
            w = I(t); w.note = 'auto'; out.append(w)
        if x.kind == 'mark': continue
        if x.kind in VM_KINDS: vq.append(x)
        if x.kind in ('ds', 'smem'): lq.append(x)
        out.append(x)
    return out

def need_states(p, c):
    n = 0
    pk, ck = p.kind, c.kind
    vwr = {r for r in p.wr if r[0] in 'va'}
    swr = {r for r in p.wr if r[0] == 's'}
    isvalu = lambda k: k in ('valu', 'trans')
    if pk == 'mfma':
        big = 12 if p.passes == 8 else 8
        if ck == 'mfma':
            if p.wr & (c.srcA | c.srcB): n = max(n, big)
            if p.wr & c.srcC and not (p.wr == c.srcC and p.passes == c.passes): n = max(n, 10 if p.passes == 8 else 6)
            if p.wr & c.wr and not (p.wr == c.wr and p.wr == c.srcC and p.passes == c.passes) and not (p.wr & c.srcC):
                n = max(n, big)
        elif isvalu(ck) or ck in ('ds', 'vload', 'vstore', 'dma'):
            if p.wr & (c.rd | c.wr): n = max(n, big)
            if p.srcC & c.wr: n = max(n, 7 if p.passes == 8 else 3)
    if isvalu(pk):
        if ck == 'mfma' and vwr & c.rd: n = max(n, 2)
        if ck == 'mfma' and swr & set(EXEC): n = max(n, 4)
        if ck in VM_KINDS and swr & c.rd: n = max(n, 5)
        if isvalu(ck):
            if c.dpp and vwr & c.rd: n = max(n, 2)
            if c.dpp and swr & set(EXEC): n = max(n, 5)
            if c.op.startswith('v_permlane') and vwr & c.rd: n = max(n, 2)
            if c.op in ('v_readfirstlane_b32', 'v_readlane_b32') and vwr & c.rd: n = max(n, 1)
            if c.op in ('v_readlane_b32', 'v_writelane_b32') and swr & c.rd: n = max(n, 4)
            if swr & c.rd: n = max(n, 2)
            if pk == 'trans' and vwr & c.rd: n = max(n, 1)
            if p.op.startswith('v_dot2') and vwr & (c.rd | c.wr) and c.op != p.op: n = max(n, 3)
            if p.op.startswith('v_dot2') and vwr & c.rd and c.op == p.op: n = max(n, 3)
            if ('sdwa' in p.text or 'op_sel' in p.text and not p.op.startswith('v_pk')) and vwr & (c.rd | c.wr): n = max(n, 1)
        if p.op.startswith('v_dot2') and ck in ('ds', 'vstore', 'vload', 'mfma') and vwr & c.rd: n = max(n, 3)
        if pk == 'trans' and ck in ('ds', 'vstore', 'vload') and vwr & c.rd: n = max(n, 1)
        if ck in ('salu', 'branch', 'smem') and swr & c.rd: n = max(n, 1)
    if pk == 'vstore' and p.wide and p.data & c.wr: n = max(n, 2)
    if pk == 'salu' and set(M0) & p.wr and ck == 'dma': n = max(n, 1)
    return n

def states_of(x):
    if x.kind in ('label', 'dir', 'mark'): return 0
    if x.kind == 'nop': return int(x.text.split()[1]) + 1
    return 1

def insert_nops(ins, verbose=False):
    out = []; added = 0
    for c in ins:
        if c.kind not in ('label', 'dir', 'nop', 'wait', 'barrier'):
            dist = 0; need = 0
            for p in reversed(out):
                if dist >= 12: break
                r = need_states(p, c) - dist
                if r > need: need = r
                dist += states_of(p)
            if need > 0:
                added += need
                if verbose: print('nop', need, 'before', c.text)
                x = I(f's_nop {need-1}'); x.note = 'auto'; out.append(x)
        out.append(c)
    return out, added

class Pipe:
    def __init__(s): s.t = 0; s.mf = 0; s.tv = -99; s.tm = -99
    def earliest(s, x):
        k = x.kind
        if k in ('valu', 'trans'):
            e = max(s.t, s.tm + 8)
            if x.op.startswith('v_pk_') and x.op.endswith('f32'): e = max(e, s.mf)
            return e
        if k == 'mfma': return max(s.t, s.mf)
        if k == 'ds' or k in VM_KINDS: return max(s.t, s.tv + 8, s.tm + 8)
        return s.t
    def issue(s, x, at):
        at = max(at, s.earliest(x))
        s.t = at + x.cost()
        if x.kind == 'mfma': s.mf = at + 4 * x.passes; s.tm = at
        if x.kind in ('valu', 'trans'): s.tv = s.t
        return at

def estimate(ins):
    p = Pipe(); lastw = {}
    for x in ins:
        r = 0
        for q in x.rd:
            if q in lastw and lastw[q][1].kind in ('valu', 'trans', 'ds'): r = max(r, lastw[q][0] + lat(lastw[q][1], x))
        at = p.issue(x, r)
        for q in x.wr: lastw[q] = (at, x)
    return max(p.t, p.mf)

def glued(x):
    return x.kind == 'label' or x.op.startswith('s_cselect') or x.op.startswith('s_cbranch') or x.op in ('s_addc_u32', 's_subb_u32')

def weave(main, side, budget=None, start=0, end=None):
    mf = [i for i, x in enumerate(main) if x.kind == 'mfma']
    end = len(mf) if end is None else end
    slots = mf[start:end]
    total = sum(x.cost() for x in side)
    out = S(); si = 0; acc = 0.0; done = 0
    per = total / max(1, len(slots))
    slotset = {p: k for k, p in enumerate(slots)}
    for i, x in enumerate(main):
        out.append(x)
        if i in slotset:
            acc += per
            last = slotset[i] == len(slots) - 1
            while si < len(side) and (last or glued(side[si]) or done + side[si].cost() / 2 <= acc):
                out.append(side[si]); done += side[si].cost(); si += 1
    assert si == len(side)
    return out

def finalize(ins, verbose=False):
    a = insert_waits(ins)
    b, n = insert_nops(a, verbose)
    return b, n

def text(ins):
    return '\n'.join(('' if x.kind == 'label' else '    ') + x.text for x in ins if x.kind != 'mark')


def lat(p, c):
    k = p.kind
    if k == 'valu': return 10
    if k == 'trans': return 14
    if k == 'salu': return 4
    if k == 'ds': return 110
    if k == 'vload': return 400
    if k == 'smem': return 200
    if k == 'mfma':
        if c.kind == 'mfma' and p.wr == c.srcC and not (p.wr & (c.srcA | c.srcB)): return 0
        return 4 * p.passes + 20
    return 4

MARGIN = 6
LIM = {'mark': 1, 'barrier': 1, 'wait': 1, 'dma': 8, 'vload': 8, 'vstore': 8, 'mfma': 14, 'ds': 16}
def schedule(ins, window=32):
    n = len(ins)
    cls = []
    for x in ins:
        k = x.kind
        if k in ('branch', 'label', 'dir', 'nop'): c = ('fence',)
        elif k in ('mark', 'barrier', 'wait'): c = ('ds', 'vm', 'smem')
        elif k in VM_KINDS: c = ('vm',)
        elif k == 'smem': c = ('smem', 'salu') if x.op.startswith('s_load') else ('fence',)
        elif k in ('ds', 'salu', 'mfma'): c = (k,)
        else: c = ()
        if set(EXEC) & x.wr: c = ('fence',)
        cls.append(c)
    preds = [[] for _ in range(n)]
    lastw = {}; readers = {}; lastc = {}; fence = -1; since = []
    for i, x in enumerate(ins):
        P = {}
        def add(j, l):
            if j is not None and j >= 0: P[j] = max(P.get(j, 0), l)
        for r in x.rd:
            j = lastw.get(r)
            if j is not None: add(j, lat(ins[j], x))
        for r in x.wr:
            j = lastw.get(r)
            if j is not None: add(j, lat(ins[j], x) if ins[j].kind in ('mfma',) and x.kind != 'mfma' else 0)
            for j in readers.get(r, ()): add(j, 4 * ins[j].passes if ins[j].kind == 'mfma' and x.kind in ('ds', 'vload') else 0)
        if 'fence' in cls[i]:
            for j in since: add(j, 0)
            add(fence, 0); fence = i; since = []
        else:
            add(fence, 0); since.append(i)
            if x.kind in ('ds', 'mark', 'barrier', 'wait') or x.kind in VM_KINDS: add(lastc.get('mfma'), 0)
            for c in cls[i]:
                j = lastc.get(c)
                add(j, 100 if (x.kind == 'mark' and x.lg == '*' and j is not None and ins[j].kind == 'ds') else 0); lastc[c] = i
        for r in x.rd: readers.setdefault(r, []).append(i)
        for r in x.wr: lastw[r] = i; readers[r] = []
        P.pop(i, None)
        preds[i] = list(P.items())
    issued = [None] * n
    out = S(); p = Pipe(); head = 0
    while head < n:
        cand = []; seen = 0; i = head; nextm = None
        while i < n and seen < window:
            if issued[i] is None:
                seen += 1
                x = ins[i]
                ok = True; rdy = 0
                for j, l in preds[i]:
                    if issued[j] is None: ok = False; break
                    rdy = max(rdy, issued[j] + l)
                lim = LIM.get(x.kind, window)
                if x.kind in ('mark', 'barrier'): lim = 10
                if ok and seen > lim: ok = False
                if x.kind == 'mfma' and nextm is None: nextm = (i, max(rdy, p.earliest(x)) if ok else None)
                if ok: cand.append((i, max(rdy, p.earliest(x))))
            i += 1
        t = p.t; best = None; bestkey = None
        for i, e in cand:
            x = ins[i]; k = x.kind
            fits = nextm is None or nextm[1] is None or i <= nextm[0] or e + x.cost() <= nextm[1] - MARGIN
            if k == 'mfma': key = (0, i) if e <= t + 3 else (6, e, i)
            elif not fits: key = (7, e, i)
            elif k in ('mark', 'label', 'dir'): key = (1, i) if e <= t else (6, e, i)
            elif k in ('salu', 'wait', 'barrier', 'branch', 'smem', 'nop'):
                key = ((2, i) if t < p.tm + 8 else (4, i)) if e <= t else (6, e, i)
            elif k == 'ds' or k in VM_KINDS:
                key = (3, i) if e <= max(t, p.tm + 8) else (6, e, i)
            else:
                key = (4, i) if e <= max(t, p.tm + 8) else (6, e, i)
            if bestkey is None or key < bestkey: best, bestkey, be = i, key, e
        x = ins[best]
        issued[best] = p.issue(x, be)
        out.append(x)
        while head < n and issued[head] is not None: head += 1
    out.cycles = max(p.t, p.mf)
    return out

import subprocess
def sizes(ins):
    real = [x for x in ins if x.kind not in ('label', 'dir', 'mark')]
    src = '\n'.join(re.sub(r'L_\w+', '0', x.text) if x.kind == 'branch' else x.text for x in real)
    r = subprocess.run(['llvm-mc', '-triple=amdgcn-amd-amdhsa', '-mcpu=gfx950', '-show-encoding'], input=src, capture_output=True, text=True)
    enc = re.findall(r'encoding: \[([^\]]*)\]', r.stdout)
    assert len(enc) == len(real), (len(enc), len(real), r.stderr[:2000])
    return {id(x): len(e.split(',')) for x, e in zip(real, enc)}

NOWIDE = ('v_readfirstlane_b32', 'v_fmaak_f32', 'v_fmamk_f32', 'v_nop')
def align_pass(ins, start=0):
    sz = sizes(ins)
    out = []; off = start; nw = nn = 0
    cand = None
    for x in ins:
        if x.kind in ('label', 'dir', 'mark'): out.append(x); continue
        s = sz[id(x)]
        if s == 8 and off % 32 == 28:
            if cand is not None:
                y = out[cand]; parts = y.text.split(None, 1)
                z = I(parts[0].replace('_e32', '') + '_e64 ' + parts[1], y.tok); out[cand] = z; nw += 1
            elif any(y.kind == 'mfma' for y in out[-12:]):
                off -= 4
            else:
                z = I('s_nop 0'); z.note = 'align'
                k = len(out); o2 = off; pos = None
                while k > 0 and o2 % 32 != 0:
                    k -= 1
                    if out[k].kind in ('label', 'dir', 'mark'): continue
                    if out[k].kind == 'mfma' and (k + 1 == len(out) or out[k+1].kind not in ('salu', 'wait', 'nop', 'barrier')): pos = k + 1; break
                    o2 -= sz.get(id(out[k]), 4 if out[k].kind == 'nop' else 8)
                out.insert(len(out) if pos is None else pos, z); nn += 1
            off += 4; cand = None
        if off % 32 == 0: cand = None
        if s == 4 and x.kind in ('valu', 'trans') and x.op not in NOWIDE: cand = len(out)
        out.append(x); off += s
    return out, nw, nn, off

def place(main, groups, slots):
    out = S(); k = 0; m = -1
    for x in main:
        if x.kind == 'mfma':
            while k < len(groups) and slots[k] <= m: out.add(groups[k]); k += 1
            m += 1
        out.append(x)
    while k < len(groups): out.add(groups[k]); k += 1
    return out
```

```python
import sys, math, struct
from asmlib import *
import asmlib

NAME = "gated_mix__ssm_conv_s4__geglu_ffn__prompt"
OPT = dict(stamp=0, cl1=0, cl2=0, nst=6, sched=1, align=1, pre=99, nh1c=2, outsc=0, margin=6, npre=3, x_pre=0, x_nohelp=0, fstr=256, ra=0, rb=0, rc=0, rx=2, rd=0, hpf=3, x_bx=0, x_nodma=0, x_nogelu=0, x_nost=0, x_nout=0)
PROBE = None
for a in sys.argv[2:]:
    k, v = a.split('=')
    if k == 'probe': PROBE = v.split(',')
    else:
        assert k in OPT, k
        OPT[k] = int(v)
asmlib.MARGIN = OPT['margin']

def fbits(x): return struct.unpack('<I', struct.pack('<f', x))[0]
def hx(x): return hex(x & 0xffffffff)
vr = lambda a, n: f"v[{a}:{a+n-1}]" if n > 1 else f"v{a}"
ar = lambda a, n: f"a[{a}:{a+n-1}]" if n > 1 else f"a{a}"
sr = lambda a, n: f"s[{a}:{a+n-1}]" if n > 1 else f"s{a}"
LOG2E = math.log2(math.e)

NHELP = 32; NMAIN = 224
FS = OPT['fstr']; WS_F2 = 0xB00000; WS_F3 = WS_F2 + 256*FS
WS_G = 0x4000; WS_ST = 0x18000; WS_UT = 0x40000; WS_AT = 0x200000; WS_H = 0x400000; WS_END = 0xD00000
SLOT = 16384; NSLOT = 7
KF = NSLOT*SLOT; KFS = 4224
SCR = KF + 2*KFS; SCRW = 8704
UTS = SCR; UTSW = 2304
UA = SCR + 4*UTSW; UAS = 4288
YA = UA + 2*UAS; YAS = 8704
LDS_SIZE = 163840
assert YA + 2*YAS <= LDS_SIZE

sU, sAre, sAim, sBre, sBim, sCre, sCim, sLdt = 16, 18, 20, 22, 24, 26, 28, 30
sDsk, sBx, sWg, sWu, sWdn, sGw, sOut, sDbg, sWs = 32, 34, 36, 38, 40, 42, 44, 46, 48
rX, rW, rD, rWS, rO = 52, 56, 60, 64, 68
sW, sC, sXo, sWo, sDo = 3, 4, 5, 6, 7
sM0x, sM0w = 9, 10
sW1, sW2 = 11, 13
sT0, sT1 = 14, 15
sTmp = 16
sHst, sHld = 72, 73
sF2w, sF3w, sF2r, sF3r = 74, 75, 76, 77
sUTld, sATld, sGld, sOst = 78, 79, 80, 81
sLDv, sDSv = 82, 83
sScr = 84
sX_, sJ_, sMI, sII, sMB, sFC, sRB = 85, 86, 87, 88, 89, 90, 91
sK0, sK1 = 92, 94
sSpin = 96
sXe, sWe, sDe, sHe = 97, 98, 99, 51
sKb = 50

vL16, vLane, vFl, vOne, vTwo, vPoll, vPollA = 1, 2, 3, 4, 5, 6, 7
vWd, vWr, vXd, vXr = 8, 12, 16, 20
vDd = 16; vDr = 39; vFr, vGr, vYw, vYk = 43, 44, 45, 36
vTw, vTr, vK, vK1, vKw, vI = 28, 32, 33, 37, 38, 39
vYr, vYc, vUo, vUw, vH1, vH2, vHs = 28, 29, 31, 32, 33, 34, 35
AO, AW, AR, RW, RR, OW, OR_, OO, vG = 20, 37, 38, 21, 22, 25, 26, 27, 46
vWf = 48
KW = 72
vU = 72; vGt = 80; vC1 = 88; CA = 92; vGo = 104; vS = 120
ACC1 = 128; ACC2 = 192
DACC = 64; H2 = 144; E0 = 48

stamps = []
def stamp(s, name):
    if PROBE and name in PROBE:
        s(f"s_memrealtime {sr(100,2)}\ns_waitcnt lgkmcnt(0)\ns_mov_b32 s{12 if name == PROBE[1] else 8}, s100")
    if OPT['stamp']:
        k = len(stamps); stamps.append(name)
        s(f"{'s_memtime' if OPT['stamp'] == 1 else 's_memrealtime'} {sr(100,2)}\ns_waitcnt lgkmcnt(0)\nv_writelane_b32 v47, s100, {k}")

slow = []
def poll(thr, ld):
    k = len(slow)
    chk = S()
    chk(f"v_cmp_gt_u32 vcc, {thr}, v{vPoll}\ns_cbranch_vccnz L_slow{k}\nL_back{k}:")
    slow.append(f"""L_slow{k}:
    s_mov_b32 s{sKb}, 0
L_spin{k}:
    {ld}
    s_add_u32 s{sKb}, s{sKb}, 1
    s_cmp_gt_u32 s{sKb}, 0x40000
    s_cbranch_scc1 L_back{k}
    s_waitcnt vmcnt(0)
    v_cmp_gt_u32 vcc, {thr}, v{vPoll}
    s_nop 1
    s_cbranch_vccnz L_spin{k}
    s_branch L_back{k}""")
    return chk
def wsld(soff): return f"buffer_load_dword v{vPoll}, v{vPollA}, {sr(rWS,4)}, s{soff} offen sc1"
def flag(soff, vval): return f"buffer_store_dword v{vval}, v{vFl}, {sr(rWS,4)}, s{soff} offen sc1"
def srd(r, p, n): return f"s_mov_b32 s{r}, s{p}\ns_mov_b32 s{r+1}, s{p+1}\ns_mov_b32 s{r+2}, {n}\ns_mov_b32 s{r+3}, 0x20000"

def setup_early():
    s = S(); a, b, c, d, e, f = range(vS, vS+6)
    s(f"""
    v_lshrrev_b32 v{a}, 6, v0
    v_and_b32 v{vLane}, 63, v0
    s_sub_u32 s{sC}, s2, {NHELP}
    v_readfirstlane_b32 s{sW}, v{a}
    s_lshl_b32 s{sT0}, s{sC}, 10
    v_lshl_add_u32 v{vPollA}, v0, 2, s{sT0}
    v_lshlrev_b32 v{vL16}, 4, v{vLane}
    s_and_b32 s{sX_}, s{sC}, 7
    s_lshr_b32 s{sJ_}, s{sC}, 3
    s_and_b32 s{sMI}, s{sJ_}, 3
    s_lshr_b32 s{sII}, s{sJ_}, 2
    s_and_b32 s{sMB}, s{sX_}, 6
    s_lshl1_add_u32 s{sMB}, s{sMB}, s{sMI}
    s_and_b32 s{sT0}, s{sX_}, 1
    s_lshr_b32 s{sKb}, s{sX_}, 1
    s_mul_i32 s{sKb}, s{sKb}, {OPT['rx']}
    {f"s_mul_i32 s{sT1}, s{sT0}, {OPT['ra']}" if OPT['ra'] else ''}
    {f"s_add_u32 s{sKb}, s{sKb}, s{sT1}" if OPT['ra'] else ''}
    {f"s_mul_i32 s{sT1}, s{sMI}, {OPT['rb']}" if OPT['rb'] else ''}
    {f"s_add_u32 s{sKb}, s{sKb}, s{sT1}" if OPT['rb'] else ''}
    {f"s_add_u32 s{sKb}, s{sKb}, s{sII}" if OPT['rc'] else ''}
    s_mul_i32 s{sT1}, s{sKb}, 37
    s_lshr_b32 s{sT1}, s{sT1}, 8
    s_mul_i32 s{sT1}, s{sT1}, 7
    s_sub_u32 s{sKb}, s{sKb}, s{sT1}
    s_mul_i32 s{sFC}, s{sT0}, 7
    s_add_u32 s{sFC}, s{sFC}, s{sII}
    s_lshl2_add_u32 s{sRB}, s{sX_}, s{sMI}
    s_and_b32 s{sW1}, s{sW}, 1
    s_lshr_b32 s{sW2}, s{sW}, 1
    s_lshl_b32 s{sM0x}, s{sW}, 12
    s_lshl2_add_u32 s{sT0}, s{sMB}, s{sW}
    s_mul_i32 s{sXo}, s{sT0}, {32*896}
    s_mul_i32 s{sWo}, s{sW2}, {32*3584}
    s_lshl_b32 s{sT0}, s{sFC}, 7
    s_add_u32 s{sWo}, s{sWo}, s{sT0}
    s_add_u32 s{sXe}, s{sXo}, 896
    s_add_u32 s{sWe}, s{sWo}, {448*3584}
    s_lshl_b32 s{sT0}, s{sKb}, 7
    s_add_u32 s{sXo}, s{sXo}, s{sT0}
    s_mul_i32 s{sT0}, s{sKb}, {64*3584}
    s_add_u32 s{sWo}, s{sWo}, s{sT0}
    s_lshl1_add_u32 s{sT0}, s{sW1}, s{sW2}
    s_lshl_b32 s{sM0w}, s{sT0}, 12
    s_lshl_b32 s{sT1}, s{sW1}, 2
    v_lshrrev_b32 v{a}, 3, v{vLane}
    v_and_b32 v{b}, 7, v{vLane}
    v_lshrrev_b32 v{c}, 4, v{vLane}
    v_mul_u32_u24 v{e}, 896, v{a}
    v_xor_b32 v{d}, v{b}, v{c}
    v_and_b32 v{c}, 1, v{c}
    v_lshl_add_u32 v{vXd}, v{d}, 4, v{e}
    v_lshl_or_b32 v{f}, v{c}, 1, s{sT1}
    v_xor_b32 v{d}, 64, v{vXd}
    v_add_u32 v{vXd+2}, {2*(8*896-1024)}, v{vXd}
    v_xor_b32 v{f}, v{b}, v{f}
    v_add_u32 v{vXd+1}, {8*896-1024}, v{d}
    v_add_u32 v{vXd+3}, {3*(8*896-1024)}, v{d}
    v_lshlrev_b32 v{f}, 4, v{f}
    v_lshl_add_u32 v{vWd}, v{e}, 2, v{f}
    v_add_u32 v{vWd+1}, {1*(8*3584-1024)}, v{vWd}
    v_add_u32 v{vWd+2}, {2*(8*3584-1024)}, v{vWd}
    v_add_u32 v{vWd+3}, {3*(8*3584-1024)}, v{vWd}
    """)
    return s

def setup_scalar():
    s = S()
    s(f"""
    s_mul_i32 s{sScr}, s{sW}, {SCRW}
    s_add_u32 s{sScr}, s{sScr}, {SCR}
    s_lshl1_add_u32 s{sT0}, s{sMB}, s{sW2}
    s_lshl1_add_u32 s{sT1}, s{sFC}, s{sW1}
    s_mul_i32 s{sHst}, s{sT0}, 112
    s_add_u32 s{sHst}, s{sHst}, s{sT1}
    s_lshl_b32 s{sHst}, s{sHst}, 11
    s_add_u32 s{sHst}, s{sHst}, {WS_H}
    s_mul_i32 s{sSpin}, s{sT1}, 37
    s_lshr_b32 s{sSpin}, s{sSpin}, 8
    s_lshl2_add_u32 s{sT0}, s{sT0}, s{sSpin}
    s_mul_i32 s{sT0}, s{sT0}, {FS}
    s_mul_i32 s{sSpin}, s{sSpin}, 7
    s_sub_u32 s{sT1}, s{sT1}, s{sSpin}
    s_lshl2_add_u32 s{sF2w}, s{sT1}, s{sT0}
    s_add_u32 s{sF2w}, s{sF2w}, {WS_F2}
    s_mul_i32 s{sT0}, s{sW}, 7
    s_mul_i32 s{sHld}, s{sRB}, 112
    s_add_u32 s{sHld}, s{sHld}, s{sT0}
    s_lshl_b32 s{sHld}, s{sHld}, 11
    s_add_u32 s{sHld}, s{sHld}, {WS_H}
    s_lshl2_add_u32 s{sT1}, s{sRB}, s{sW}
    s_mul_i32 s{sF2r}, s{sT1}, {FS}
    s_add_u32 s{sF2r}, s{sF2r}, {WS_F2}
    s_mul_i32 s{sDo}, s{sW}, {224*896}
    s_lshl_b32 s{sT1}, s{sII}, 7
    s_add_u32 s{sDo}, s{sDo}, s{sT1}
    s_add_u32 s{sDe}, s{sDo}, {224*896}
    s_add_u32 s{sHe}, s{sHld}, {14*1024}
    s_cmp_eq_u32 s{sX_}, 7
    s_cselect_b32 s{sT0}, 3, s{sX_}
    s_mul_i32 s{sT0}, s{sT0}, {OPT['rd']}
    s_mul_i32 s{sT1}, s{sT0}, {32*896}
    s_add_u32 s{sDo}, s{sDo}, s{sT1}
    s_lshl_b32 s{sT1}, s{sT0}, 11
    s_add_u32 s{sHld}, s{sHld}, s{sT1}
    s_mul_i32 s{sUTld}, s{sW}, {8*57344}
    s_lshl_b32 s{sT1}, s{sC}, 8
    s_add_u32 s{sUTld}, s{sUTld}, s{sT1}
    s_add_u32 s{sUTld}, s{sUTld}, {WS_UT}
    s_lshr_b32 s{sT0}, s{sC}, 5
    s_lshl2_add_u32 s{sT0}, s{sT0}, s{sW}
    s_bfe_u32 s{sT1}, s{sC}, 0x10004
    s_lshl1_add_u32 s{sT0}, s{sT0}, s{sT1}
    s_mul_i32 s{sT0}, s{sT0}, {FS}
    s_and_b32 s{sT1}, s{sC}, 15
    s_lshl2_add_u32 s{sF3w}, s{sT1}, s{sT0}
    s_add_u32 s{sF3w}, s{sF3w}, {WS_F3}
    s_lshr_b32 s{sT0}, s{sRB}, 3
    s_lshl2_add_u32 s{sT0}, s{sII}, s{sT0}
    s_lshl1_add_u32 s{sT0}, s{sT0}, s{sW1}
    s_mul_i32 s{sF3r}, s{sT0}, {FS}
    s_add_u32 s{sF3r}, s{sF3r}, {WS_F3}
    s_lshl1_add_u32 s{sT0}, s{sII}, s{sW1}
    s_mul_i32 s{sT1}, s{sRB}, 57344
    s_lshl_b32 s{sATld}, s{sT0}, 6
    s_add_u32 s{sOst}, s{sATld}, s{sT1}
    s_add_u32 s{sATld}, s{sATld}, s{sW2}
    s_lshl_b32 s{sATld}, s{sATld}, 6
    s_add_u32 s{sATld}, s{sATld}, s{sT1}
    s_add_u32 s{sATld}, s{sATld}, {WS_AT}
    s_mul_i32 s{sT0}, s{sW2}, {32*896}
    s_add_u32 s{sOst}, s{sOst}, s{sT0}
    s_lshl1_add_u32 s{sT0}, s{sRB}, s{sW2}
    s_lshl_b32 s{sGld}, s{sT0}, 7
    s_add_u32 s{sGld}, s{sGld}, {WS_G}
    """)
    return s

P_RAW = 112
def first_loads():
    s = S()
    s(f"""
    s_lshl_b32 s{sT0}, s{sC}, 2
    global_load_dword v{P_RAW+0}, v{vPollA}, {sr(sAre,2)}
    global_load_dword v{P_RAW+1}, v{vPollA}, {sr(sAim,2)}
    s_load_dword s{sLDv}, {sr(sLdt,2)}, s{sT0}
    s_load_dword s{sDSv}, {sr(sDsk,2)}, s{sT0}
    global_load_dword v{P_RAW+2}, v{vPollA}, {sr(sBre,2)}
    global_load_dword v{P_RAW+3}, v{vPollA}, {sr(sBim,2)}
    global_load_dword v{P_RAW+4}, v{vPollA}, {sr(sCre,2)}
    global_load_dword v{P_RAW+5}, v{vPollA}, {sr(sCim,2)}
    {srd(rX, sU, 2048*896)}
    s_cmp_eq_u32 s{sW1}, 1
    s_cselect_b32 s{rW}, s{sWu}, s{sWg}
    s_cselect_b32 s{rW+1}, s{sWu+1}, s{sWg+1}
    s_mov_b32 s{rW+2}, {448*3584}
    s_mov_b32 s{rW+3}, 0x20000
    """)
    return s

def setup_AB():
    s = S(); a, b, c, d, e, f, g, h = range(vS, vS+8)
    s(f"""
    {srd(rD, sWdn, 1792*896)}
    {srd(rWS, sWs, WS_END)}
    {srd(rO, sOut, 2048*896)}
    v_lshl_add_u32 v{vTw}, v{vLane}, 3, s{sScr}
    v_and_b32 v{a}, 15, v{vLane}
    v_lshrrev_b32 v{b}, 4, v{vLane}
    v_add_u32 v{vTw+1}, {4*544}, v{vTw}
    v_add_u32 v{vTw+2}, {8*544}, v{vTw}
    v_add_u32 v{vTw+3}, {12*544}, v{vTw}
    v_mul_u32_u24 v{c}, 544, v{a}
    v_lshl_add_u32 v{d}, v{b}, 4, s{sScr}
    v_add_u32 v{vTr}, v{c}, v{d}
    v_lshl_add_u32 v{c}, v{b}, 7, v{a}
    v_lshl_add_u32 v{vK1}, v{c}, 2, s{sScr}
    v_max_u32 v{c}, 1, v{b}
    v_sub_u32 v{c}, 6, v{c}
    v_lshlrev_b32 v{e}, v{c}, v{a}
    v_cmp_gt_u32 vcc, 2, v{b}
    v_lshl_add_u32 v{f}, v{b}, 9, s{sScr}
    v_cndmask_b32 v{f}, v{f}, v{d}, vcc
    v_add_u32 v{vK}, v{f}, v{e}
    v_cmp_eq_u32 vcc, 3, v{b}
    v_mov_b32 v{e}, 256
    v_lshlrev_b32 v{c}, v{c}, 16
    v_cndmask_b32 v{e}, 8, v{e}, vcc
    v_add_u32 v{vK+2}, v{vK}, v{c}
    v_add_u32 v{vK+1}, v{vK}, v{e}
    v_add_u32 v{vK+3}, v{vK+2}, v{e}
    v_and_b32 v{a}, 31, v{vLane}
    s_lshl_b32 s{sT0}, s{sW2}, 13
    v_lshl_add_u32 v{a}, v{a}, 7, s{sT0}
    v_bfe_u32 v{g}, v{vLane}, 1, 3
    v_lshrrev_b32 v{h}, 5, v{vLane}
    v_xor_b32 v{g}, v{g}, v{h}
    v_lshl_add_u32 v{vXr}, v{g}, 4, v{a}
    v_xor_b32 v{vXr+1}, 32, v{vXr}
    v_xor_b32 v{vXr+2}, 64, v{vXr}
    v_xor_b32 v{vXr+3}, 96, v{vXr}
    v_add_u32 v{vXr+4}, 0x10000, v{vXr}
    v_add_u32 v{vXr+5}, 0x10000, v{vXr+1}
    v_add_u32 v{vXr+6}, 0x10000, v{vXr+2}
    v_add_u32 v{vXr+7}, 0x10000, v{vXr+3}
    v_bfe_u32 v{a}, v{vLane}, 2, 2
    v_and_b32 v{b}, 3, v{vLane}
    v_bfe_u32 v{d}, v{vLane}, 4, 1
    v_bfe_u32 v{e}, v{vLane}, 3, 2
    s_lshl_b32 s{sT0}, s{sW1}, 1
    v_xor_b32 v{e}, s{sT0}, v{e}
    v_lshlrev_b32 v{b}, 3, v{b}
    v_lshl_add_u32 v{a}, v{h}, 3, v{a}
    v_lshl_add_u32 v{e}, v{e}, 5, v{b}
    v_lshl_add_u32 v{a}, v{d}, 6, v{a}
    v_lshl_add_u32 v{vWr}, v{a}, 7, v{e}
    v_xor_b32 v{vWr+1}, 32, v{vWr}
    v_add_u32 v{vWr+2}, 0x10000, v{vWr}
    v_add_u32 v{vWr+3}, 0x10000, v{vWr+1}
    """)
    return s

def setup_exp():
    s = S(); a, b, c, d, e, f, g, h = range(vS, vS+8)
    s(f"""v_lshlrev_b32 v{vKw}, 2, v0
    v_add_u32 v{vKw}, {KF+96}, v{vKw}
    v_cvt_f32_u32 v{a}, v0
    s_mov_b32 s{sT0}, {hx(SCR - 4*17024)}
    v_add_f32 v{a}, v{a}, v{a}""")
    for e_ in range(4):
        p, q = (b, c) if e_ % 2 == 0 else (d, e)
        s(f"""v_add_f32 v{p}, {hx(fbits(512.0*e_))}, v{a}
        v_add_f32 v{q}, {hx(fbits(512.0*e_+1))}, v{a}
        v_cvt_pk_bf16_f32 v{p}, v{p}, v{q}
        v_lshrrev_b32 v{q}, 16, v{p}
        v_and_b32 v{p}, 0xffff, v{p}
        v_lshl_add_u32 v{vI+2*e_+1}, v{q}, 2, s{sT0}
        v_lshl_add_u32 v{vI+2*e_}, v{p}, 2, s{sT0}""")
    s(f"""v_cmp_gt_u32 vcc, 64, v0
    v_lshlrev_b32 v{f}, 3, v0
    v_add_u32 v{g}, {SCR+4}, v{f}
    v_add_u32 v{f}, {SCR}, v{f}
    v_cndmask_b32 v{vI+1}, v{vI+1}, v{g}, vcc
    v_cndmask_b32 v{vI}, v{vI}, v{f}, vcc
    v_mov_b32 v{a}, 0
    v_min_u32 v{b}, 23, v{vLane}
    v_lshlrev_b32 v{b}, 2, v{b}
    v_add_u32 v{b}, {KF}, v{b}
    ds_write_b32 v{b}, v{a}
    ds_write_b32 v{b}, v{a} offset:{KFS}""")
    return s

def setup_late1():
    s = S(); a, b, c, d = range(vS, vS+4)
    c0 = -2*math.sqrt(2/math.pi)*LOG2E
    s(f"""
    v_lshrrev_b32 v{a}, 3, v{vLane}
    v_and_b32 v{b}, 7, v{vLane}
    v_bfe_u32 v{c}, v{vLane}, 4, 1
    v_mul_u32_u24 v{a}, 896, v{a}
    v_lshlrev_b32 v{c}, 2, v{c}
    v_xor_b32 v{b}, v{b}, v{c}
    v_lshl_add_u32 v{vDd}, v{b}, 4, v{a}
    v_add_u32 v{vDd+1}, {1*(8*896-1024)}, v{vDd}
    v_add_u32 v{vDd+2}, {2*(8*896-1024)}, v{vDd}
    v_add_u32 v{vDd+3}, {3*(8*896-1024)}, v{vDd}
    v_mov_b32 v{vOne}, 1
    v_min_u32 v{vFl}, 1, v{vLane}
    v_lshlrev_b32 v{vFl}, 31, v{vFl}
    v_and_b32 v{vPollA}, 31, v{vLane}
    v_lshlrev_b32 v{vPollA}, 2, v{vPollA}
    s_mov_b32 s{sK0}, {hx(fbits(c0))}
    s_mov_b32 s{sK0+1}, {hx(fbits(c0))}
    s_mov_b32 s{sK1}, 1.0
    s_mov_b32 s{sK1+1}, 1.0
    """)
    t = S()
    t(f"""v_mov_b32 v{vC1}, {hx(fbits(c0*0.044715))}
    v_mov_b32 v{vC1+1}, {hx(fbits(c0*0.044715))}
    v_add_u32 v{vHs}, {112*1024}, v{vL16}""")
    return s, t

def setup_late2():
    s = S(); a, b, c, d, e, f, g, h = range(vS, vS+8)
    s(f"""
    v_lshrrev_b32 v{a}, 3, v{vLane}
    v_and_b32 v{b}, 7, v{vLane}
    v_mul_u32_u24 v{a}, 57344, v{a}
    v_lshlrev_b32 v{vUw}, 4, v0
    v_lshl_add_u32 v{vUo}, v{b}, 4, v{a}
    v_add_u32 v{vUw}, {UA+160}, v{vUw}
    v_mov_b32 v{c}, 0
    v_min_u32 v{d}, 39, v{vLane}
    v_lshlrev_b32 v{d}, 2, v{d}
    v_add_u32 v{d}, {UA}, v{d}
    ds_write_b32 v{d}, v{c}
    ds_write_b32 v{d}, v{c} offset:{UAS}
    v_lshrrev_b32 v{a}, 3, v0
    v_mul_u32_u24 v{e}, 272, v{a}
    v_cmp_eq_u32 vcc, 0, v{b}
    v_cmp_ne_u32 {sr(sTmp,2)}, 0, v{a}
    v_add_u32 v{e}, {YA-16}, v{e}
    s_and_b64 vcc, vcc, {sr(sTmp,2)}
    v_mov_b32 v{f}, {KF}
    v_lshl_add_u32 v{vYr}, v{b}, 5, v{e}
    v_add_u32 v{g}, {YAS}, v{e}
    v_cndmask_b32 v{vYc}, v{f}, v{e}, vcc
    v_cndmask_b32 v{vYc+1}, v{f}, v{g}, vcc
    v_bfe_u32 v{a}, v{vLane}, 2, 2
    v_and_b32 v{b}, 3, v{vLane}
    v_lshrrev_b32 v{c}, 5, v{vLane}
    v_bfe_u32 v{d}, v{vLane}, 4, 1
    v_and_or_b32 v{e}, v{a}, 2, v{d}
    s_lshl_b32 s{sT0}, s{sW1}, 1
    v_lshl_add_u32 v{f}, v{c}, 2, v{a}
    v_xor_b32 v{e}, s{sT0}, v{e}
    v_lshl_add_u32 v{g}, v{b}, 3, s{sM0x}
    v_lshl_add_u32 v{g}, v{f}, 7, v{g}
    v_lshl_add_u32 v{vDr}, v{e}, 5, v{g}
    v_xor_b32 v{vDr+1}, 64, v{vDr}
    v_add_u32 v{vDr+2}, 0x10000, v{vDr}
    v_add_u32 v{vDr+3}, 0x10000, v{vDr+1}
    s_mul_i32 s{sT1}, s{sW}, {UTSW}
    s_add_u32 s{sT1}, s{sT1}, {UTS}
    v_lshl_add_u32 v{g}, v{b}, 3, s{sT1}
    v_lshl_add_u32 v{g}, v{d}, 5, v{g}
    v_lshl_add_u32 v{AR}, v{f}, 6, v{g}
    v_add_u32 v{AW}, s{sT1}, v{vL16}
    v_lshrrev_b32 v{e}, 4, v{vLane}
    v_lshl_add_u32 v{e}, v{e}, 3, v{a}
    v_lshlrev_b32 v{e}, 3, v{e}
    s_mul_i32 s{sT0}, s{sW2}, {KFS}
    s_add_u32 s{sT0}, s{sT0}, {KF}
    v_lshl_add_u32 v{g}, v{b}, 5, s{sT0}
    v_add_u32 v{vFr}, v{g}, v{e}
    s_mul_i32 s{sT0}, s{sW2}, {UAS}
    s_lshl_b32 s{sT1}, s{sW1}, 7
    s_add_u32 s{sT0}, s{sT0}, s{sT1}
    s_add_u32 s{sT0}, s{sT0}, {UA+160+96-32}
    v_lshl_add_u32 v{g}, v{b}, 3, s{sT0}
    v_sub_u32 v{vGr}, v{g}, v{e}
    s_mul_i32 s{sT0}, s{sW2}, {YAS}
    s_mul_i32 s{sT1}, s{sW1}, 272
    s_add_u32 s{sT0}, s{sT0}, s{sT1}
    s_add_u32 s{sT0}, s{sT0}, {YA}
    v_lshl_add_u32 v{vYw}, v{vLane}, 2, s{sT0}
    v_add_u32 v{g}, {UTS}, v{vL16}
    v_cmp_eq_u32 {sr(sTmp,2)}, 63, v{vLane}
    v_add_u32 v{h}, 4, v{vYw}
    v_cndmask_b32 v{vYk}, v{g}, v{h}, {sr(sTmp,2)}
    s_mul_i32 s{sT0}, s{sW2}, {112*1024}
    v_add_u32 v{vH1}, s{sT0}, v{vL16}
    v_subrev_u32 v{vH2}, s{sT0}, v{vHs}
    """)
    t = S()
    a, b = 128, 129
    t(f"""
    v_lshrrev_b32 v{a}, 2, v{vLane}
    v_and_b32 v{b}, 3, v{vLane}
    v_lshlrev_b32 v{b}, 4, v{b}
    v_mul_u32_u24 v{OO}, 896, v{a}
    v_mul_u32_u24 v{OR_}, 80, v{a}
    v_lshl_add_u32 v{AO}, v{a}, 7, v{b}
    v_add_u32 v{OO}, v{OO}, v{b}
    v_add3_u32 v{OR_}, v{OR_}, v{b}, s{sM0x}
    v_add_u32 v{RW}, s{sM0x}, v{vL16}
    v_and_b32 v{a}, 31, v{vLane}
    v_lshrrev_b32 v{b}, 5, v{vLane}
    v_xor_b32 v{RR}, 0x1000, v{RW}
    v_xor_b32 v{RR+1}, 0x2000, v{RW}
    v_xor_b32 v{RR+2}, 0x3000, v{RW}
    v_mul_u32_u24 v{a}, 80, v{a}
    v_lshl_add_u32 v{b}, v{b}, 3, s{sM0x}
    v_add_u32 v{OW}, v{a}, v{b}
    v_and_b32 v130, 0xffff, v{vG}
    v_lshlrev_b32 v131, 16, v{vG}
    v_and_b32 v132, 0xffff0000, v{vG}
    v_and_b32 v133, 0xffff0000, v{vG}
    """)
    return s, t

def adv(s, so, step, en, span, extra):
    s(f"""s_add_u32 s{so}, s{so}, {step}
    s_cmp_eq_u32 s{so}, s{en}
    s_cselect_b32 s{sSpin}, {span}, 0
    s_sub_u32 s{so}, s{so}, s{sSpin}""")
    if extra: s(f"s_add_u32 s{so}, s{so}, {extra}\ns_add_u32 s{en}, s{en}, {extra}")

def item(n):
    if n < 14 and n % 2 == 0: m0, va, rs, so, step, en, ex = sM0x, vXd, rX, sXo, 128, sXe, 0
    elif n < 21: m0, va, rs, so, step, en, ex = sM0w, vWd, rW, sWo, 64*3584, sWe, (1792 if n == 13 else 0)
    else: m0, va, rs, so, step, en, ex = sM0x, vDd, rD, sDo, 32*896, sDe, (896*896 if n == 27 else 0)
    s = S()
    s(f"s_add_u32 m0, s{m0}, {(n % NSLOT)*SLOT}")
    for q in range(4):
        s(f"buffer_load_dwordx4 v{va+q}, {sr(rs,4)}, s{so} offen offset:{1024*q} lds", f"it{n}")
    if n not in (12, 20, 34): adv(s, so, step, en, 7*step, ex)
    return s

def split_vm(st):
    grp = []
    for x in st:
        if not grp or (x.kind in VM_KINDS and any(y.kind in VM_KINDS for y in grp[-1])): grp.append(S())
        grp[-1].append(x)
    return grp

def sprinkle(main, groups, lo=0.0, hi=1.0):
    out = S(); n = len(main); g = 0
    pos = [int(n*(lo + (hi-lo)*k/max(1, len(groups)))) for k in range(len(groups))]
    for i, x in enumerate(main):
        while g < len(groups) and pos[g] <= i and not glued(x):
            out.add(groups[g]); g += 1
        out.append(x)
    while g < len(groups): out.add(groups[g]); g += 1
    return out

NEG = "neg_lo:[1,0,0] neg_hi:[1,0,0]"
def cmul(s, d, x, z, pk):
    assert d != x and d != z
    if pk:
        s(f"""v_pk_mul_f32 {vr(d,2)}, {vr(x,2)}, {vr(z,2)}
        v_pk_mul_f32 {vr(d+2,2)}, {vr(x,2)}, {vr(z+2,2)}
        v_pk_fma_f32 {vr(d,2)}, {vr(x+2,2)}, {vr(z+2,2)}, {vr(d,2)} {NEG}
        v_pk_fma_f32 {vr(d+2,2)}, {vr(x+2,2)}, {vr(z,2)}, {vr(d+2,2)}""")
    else:
        for k in range(2): s(f"v_mul_f32 v{d+k}, v{x+k}, v{z+k}")
        for k in range(2): s(f"v_mul_f32 v{d+2+k}, v{x+k}, v{z+2+k}")
        for k in range(2): s(f"v_fma_f32 v{d+k}, -v{x+2+k}, v{z+2+k}, v{d+k}")
        for k in range(2): s(f"v_fmac_f32 v{d+2+k}, v{x+2+k}, v{z+k}")

class Rows:
    def __init__(self, out0): self.o = out0; self.n = 0; self.pend = None
    def row(self, s, r, x, neg, const=False):
        o = self.o + 2*(self.n % 4); self.n += 1
        n = '-' if neg else ''
        if const: s(f"v_mov_b32 v{o}, 0x3f803f80\nv_mov_b32 v{o+1}, 0")
        else: s(f"v_cvt_pk_bf16_f32 v{o}, v{x}, v{x+1}\nv_cvt_pk_bf16_f32 v{o+1}, {n}v{x+2}, {n}v{x+3}")
        if self.pend is None: self.pend = (r, o)
        else:
            r0, o0 = self.pend; self.pend = None
            assert r0 // 4 == r // 4
            s(f"ds_write2_b64 v{vTw+r//4}, {vr(o0,2)}, {vr(o,2)} offset0:{68*(r0%4)} offset1:{68*(r%4)}")
    def flush(self, s):
        if self.pend:
            r, o = self.pend; self.pend = None
            s(f"ds_write_b64 v{vTw+r//4}, {vr(o,2)} offset:{544*(r%4)}")

def frags(s, reg):
    for ks in range(8): s(f"ds_read_b128 {reg(4*ks)}, v{vTr} offset:{64*ks}")

def stageA():
    s = S()
    R = ACC1
    A_, B_, C_, Dt, T, Z8, Z16, E = R, R+4, R+8, R+12, R+16, R+28, R+32, [R+36, R+40, R+44, R+48]
    Z1, Z2, Z256, Z512, W = KW, KW+4, KW+8, KW+12, KW+16
    V = [KW+20, KW+24, KW+28, KW+32, KW+36]
    rows = Rows(KW+40)
    for k in range(6):
        s(f"v_lshlrev_b32 v{R+2*k}, 16, v{P_RAW+k}\nv_and_b32 v{R+2*k+1}, 0xffff0000, v{P_RAW+k}")
    s(f"""
    s_lshl_b32 s{sT1}, s{sW2}, 4
    s_lshr_b32 s{sT1}, s{sLDv}, s{sT1}
    s_lshl_b32 s{sT1}, s{sT1}, 16
    v_mov_b32 v{Dt}, {hx(fbits(LOG2E))}
    v_mul_f32 v{Dt}, s{sT1}, v{Dt}
    v_exp_f32 v{Dt}, v{Dt}
    v_cvt_pk_bf16_f32 v{Dt}, 0, v{Dt}
    v_mov_b32 v{Dt+1}, v{Dt}
    """)
    for k in (A_, A_+2, B_, B_+2): s(f"v_pk_mul_f32 {vr(k,2)}, {vr(k,2)}, {vr(Dt,2)}")
    def prim(p, z, t):
        c1 = hx(fbits(p*LOG2E)); c2 = hx(fbits(p/(2*math.pi)))
        for k in range(2): s(f"v_mul_f32 v{t+k}, {c1}, v{A_+k}\nv_mul_f32 v{t+2+k}, {c2}, v{A_+2+k}")
        for k in range(2): s(f"v_exp_f32 v{t+k}, v{t+k}\nv_fract_f32 v{t+2+k}, v{t+2+k}")
        for k in range(2): s(f"v_cos_f32 v{z+k}, v{t+2+k}\nv_sin_f32 v{z+2+k}, v{t+2+k}")
        s(f"v_pk_mul_f32 {vr(z,2)}, {vr(z,2)}, {vr(t,2)}\nv_pk_mul_f32 {vr(z+2,2)}, {vr(z+2,2)}, {vr(t,2)}")
    prim(8, Z8, T); prim(1, Z1, T+4); prim(256, Z256, T+8)
    cmul(s, W, C_, B_, 1)
    stamp(s, 'A1')
    rows.row(s, 0, 0, 0, True); rows.row(s, 1, Z8, 0)
    cmul(s, Z16, Z8, Z8, 1)
    cmul(s, Z2, Z1, Z1, 1)
    rows.row(s, 2, Z16, 0)
    cur = {0: Z16, 1: Z8}
    for i in range(3, 32):
        nx = E[i % 4]
        cmul(s, nx, cur[i % 2], Z16, 1)
        if i == 16: frags(s, lambda o: vr(ACC2+o, 4))
        rows.row(s, i % 16, nx, 0); cur[i % 2] = nx
    cmul(s, Z512, Z256, Z256, 1)
    frags(s, lambda o: vr(ACC2+32+o, 4))
    stamp(s, 'A2')
    S0, S1 = V[3], V[4]
    ops = [(None, W, None, 0), (V[0], W, Z1, 1),
           (V[1], W, Z2, 2), (Z1, V[0], Z2, 3),
           (V[2], W, Z256, 8), (V[0], V[1], Z256, 9),
           (S0, W, Z512, 12), (S1, V[2], Z512, 14),
           (W, V[1], Z2, 4), (V[0], Z1, Z2, 5),
           (V[1], W, Z2, 6), (Z1, V[0], Z2, 7),
           (V[2], W, Z256, 10), (V[0], V[1], Z256, 11),
           (Z1, W, Z512, 13), (V[1], V[2], Z512, 15)]
    w1 = S()
    for k, (d, x, z, r) in enumerate(ops):
        t = s if k < OPT['pre'] else w1
        if d is not None: cmul(t, d, x, z, k < OPT['pre'])
        rows.row(t, r, x if d is None else d, 1)
    allpre = OPT['pre'] >= 99
    w2 = S()
    frags(w2, lambda o: ar(224+o, 4))
    ch = [(V[0], S0), (V[1], S1), (S0, V[0]), (S1, V[1]), (V[0], S0)]
    for k, (d, x) in enumerate(ch):
        cmul(w2, d, x, Z512, allpre); rows.row(w2, k, d, 1)
    rows.flush(w2)
    D = [KW, KW+4, KW+8, KW+16]
    def mm(t, at):
        for ks in range(8):
            for bt in range(2):
                d = vr(D[2*at+bt], 4)
                t(f"v_mfma_f32_16x16x32_bf16 {d}, {ar(224+4*ks,4)}, {vr(ACC2+32*bt+4*ks,4)}, {d if ks else 0}")
    mm(w2, 0)
    w3 = S()
    frags(w3, lambda o: ar(224+o, 4))
    for bt in range(2):
        w3(f"ds_write_b64 v{vK+2*bt}, {vr(D[bt],2)}\nds_write_b64 v{vK+2*bt+1}, {vr(D[bt]+2,2)}")
    mm(w3, 1)
    w3(f"v_add_u32 v{vK1}, 2048, v{vK1}")
    for bt in range(2):
        for jj in (0, 2):
            w3(f"ds_write2_b32 v{vK1}, v{D[2+bt]+jj}, v{D[2+bt]+jj+1} offset0:{16*bt+32*jj} offset1:{16*bt+32*jj+32}")
    w4 = S()
    X = KW
    for e_ in range(4):
        for k in (2*e_, 2*e_+1):
            w4(f"ds_read2st64_b32 {vr(X+4*k,2)}, v{vI+k} offset0:0 offset1:68\nds_read2st64_b32 {vr(X+4*k+2,2)}, v{vI+k} offset0:34 offset1:102")
    for e_ in range(4):
        k0, k1 = X+8*e_, X+8*e_+4
        w4(f"""v_add_f32 v{k0}, v{k0}, v{k0+2}
        v_add_f32 v{k1}, v{k1}, v{k1+2}
        v_add_f32 v{k0+1}, v{k0+1}, v{k0+3}
        v_add_f32 v{k1+1}, v{k1+1}, v{k1+3}
        v_cvt_pk_bf16_f32 v{k0+2}, v{k0}, v{k1}
        v_cvt_pk_bf16_f32 v{k0+3}, v{k0+1}, v{k1+1}
        ds_write_b32 v{vKw}, v{k0+2} offset:{1024*e_}
        ds_write_b32 v{vKw}, v{k0+3} offset:{KFS+1024*e_}""")
    return s, [w1, w2, w3, w4]

def lds_addr(base_lo, nset, k, slot, off):
    hi = slot >= 4
    return f"v{base_lo + k + (nset if hi else 0)}", (slot - (4 if hi else 0))*SLOT + off

def b_reads(i):
    s_, ks = divmod(i, 4)
    wslot = (2*s_+1) % NSLOT if s_ < 7 else (7+s_) % NSLOT
    buf = vWf + 8*(i % 3)
    wr = []
    for T in range(2):
        for h in range(2):
            a, o = lds_addr(vWr, 2, T, wslot, ks*2048 + h*512)
            wr.append(f"ds_read_b64_tr_b16 {vr(buf+4*T+2*h,2)}, {a} offset:{o}")
    if s_ < 7:
        xr = []
        for mt in range(2):
            a, o = lds_addr(vXr, 4, ks, (2*s_) % NSLOT, mt*4096)
            xr.append(f"ds_read_b128 {ar(8*i+4*mt,4)}, {a} offset:{o}")
        return [xr[0], wr[0], wr[1], xr[1], wr[2], wr[3]]
    return wr

def b_mfmas(i):
    acc = ACC1 if i < 28 else ACC2
    buf = vWf + 8*(i % 3)
    r = []
    for T in range(2):
        for mt in range(2):
            d = vr(acc + 32*T + 16*mt, 16)
            r.append(f"v_mfma_f32_32x32x16_bf16 {d}, {vr(buf+4*T,4)}, {ar(8*(i%28)+4*mt,4)}, {0 if i % 28 == 0 else d}")
    return r

def gelu(acc, half, pk, cluster=0):
    s = S(); st = S()
    for T in range(2):
        for mt in range(2):
            b = acc + 32*T + 16*mt
            o = vGo + 4*(2*T+mt)
            for jp in range(0, 8, 2):
                t = vGt + jp
                g0, u0 = b+jp, b+8+jp
                if pk:
                    s(f"""v_pk_mul_f32 {vr(t,2)}, {vr(g0,2)}, {vr(g0,2)}
                    v_pk_mul_f32 {vr(u0,2)}, {vr(u0,2)}, {vr(g0,2)}
                    v_pk_fma_f32 {vr(t,2)}, {vr(t,2)}, {vr(vC1,2)}, {sr(sK0,2)}
                    v_pk_mul_f32 {vr(t,2)}, {vr(t,2)}, {vr(g0,2)}
                    v_exp_f32 v{t}, v{t}
                    v_exp_f32 v{t+1}, v{t+1}
                    v_pk_add_f32 {vr(t,2)}, {vr(t,2)}, {sr(sK1,2)}
                    v_rcp_f32 v{t}, v{t}
                    v_rcp_f32 v{t+1}, v{t+1}
                    v_pk_mul_f32 {vr(t,2)}, {vr(t,2)}, {vr(u0,2)}
                    v_cvt_pk_bf16_f32 v{o+jp//2}, v{t}, v{t+1}""")
                else:
                    s(f"""v_mul_f32 v{t}, v{g0}, v{g0}
                    v_mul_f32 v{t+1}, v{g0+1}, v{g0+1}
                    v_mul_f32 v{u0}, v{u0}, v{g0}
                    v_fma_f32 v{t}, v{t}, v{vC1}, s{sK0}
                    v_fma_f32 v{t+1}, v{t+1}, v{vC1}, s{sK0}
                    v_mul_f32 v{u0+1}, v{u0+1}, v{g0+1}
                    v_mul_f32 v{t}, v{t}, v{g0}
                    v_mul_f32 v{t+1}, v{t+1}, v{g0+1}
                    v_exp_f32 v{t}, v{t}
                    v_exp_f32 v{t+1}, v{t+1}
                    v_add_f32 v{t}, 1.0, v{t}
                    v_add_f32 v{t+1}, 1.0, v{t+1}
                    v_rcp_f32 v{t}, v{t}
                    v_rcp_f32 v{t+1}, v{t+1}
                    v_mul_f32 v{t}, v{t}, v{u0}
                    v_mul_f32 v{t+1}, v{t+1}, v{u0+1}
                    v_cvt_pk_bf16_f32 v{o+jp//2}, v{t}, v{t+1}""")
            (st if cluster else s)(f"buffer_store_dwordx4 {vr(o,4)}, v{vL16 if mt == 0 else vHs}, {sr(rWS,4)}, s{sHst} offen offset:{1024*T} sc1", f"h{half}")
    return s.add(st)

def chunks(st, n):
    m = len(st); c = [m*k//n for k in range(n+1)]
    for k in range(1, n):
        while c[k] < m and glued(st[c[k]]): c[k] += 1
    return [S(st[c[k]:c[k+1]]) for k in range(n)]

def stageB(aw):
    w1, w2, w3, w4 = aw
    side = {k: [] for k in range(14)}
    l1a, l1b = setup_late1(); l2, stageB.eaddr = setup_late2()
    assert OPT['pre'] >= 99
    side[0].append((setup_exp(), 0, 16)); side[1].append((w4, 0, 16))
    for k, c in enumerate(chunks(S(l1b).add(l2), 3)): side[3+k].append((c, 0, 16))
    side[6].append((l1a, 0, 16))
    dsched = {1: (7, 8), 2: (9, 10), 3: (11, 12), 4: (13, 14), 5: (15, 16), 6: (17, 18), 7: (19, 20), 8: (21,), 9: (22,),
              10: (23,), 11: (24,), 12: (25,), 13: (26,)}
    vm = {k: S() for k in range(14)}
    ld = f"global_load_dword v{vPoll}, v{vPollA}, {sr(sDbg,2)} sc1"
    vm[8](ld)
    vm[10].add(poll(1, ld))
    vm[10](f"""buffer_load_dwordx4 {vr(vU,4)}, v{vUo}, {sr(rWS,4)}, s{sUTld} offen sc1
    buffer_load_dwordx4 {vr(vU+4,4)}, v{vUo}, {sr(rWS,4)}, s{sUTld} offen offset:128 sc1
    buffer_load_dword v{vG}, v{vPollA}, {sr(rWS,4)}, s{sGld} offen sc1""")
    if OPT['x_nout']: vm[8] = S(); vm[10] = S(); vm[10](f'L_back{len(slow)-1}:')
    for k, v in dsched.items():
        for n in v:
            if not (OPT['x_nodma'] and k >= OPT['x_nodma']): vm[k].add(item(n))
    t = S(); t(f"ds_write_b128 v{vUw}, {vr(vU,4)}\nds_write_b128 v{vUw}, {vr(vU+4,4)} offset:{UAS}", "pub")
    side[13].append((t, 2, 6))
    g1 = gelu(ACC1, 1, False, OPT['cl1'])
    if OPT['x_nogelu']: g1 = S(x for x in g1 if x.kind == 'vstore')
    if OPT['x_nost']: g1 = S(x for x in g1 if x.kind != 'vstore')
    for k, c in enumerate(chunks(g1, OPT['nst'])): side[7+k].insert(0, (c, 2 if k == 0 else 0, 16))
    out = S()
    out.wait_vm(("it0", "it1")); out.wait_lg(); out("s_barrier")
    stamp(out, "B0")
    for i in range(2):
        for r in b_reads(i): out(r, f"br{i}")
    for s_ in range(14):
        base = S()
        for ks in range(4):
            i = 4*s_ + ks
            m = b_mfmas(i)
            rd = b_reads(i+2) if i < 54 else []
            n = len(rd)
            dist = {1: [2, 2, 2, 0], 2: [0, 2, 2, 2]}.get(ks, [2, 1, 2, 1]) if n == 6 else {1: [2, 1, 1, 0], 2: [0, 2, 1, 1]}.get(ks, [1, 1, 1, 1])
            p = 0
            for q in range(4):
                base(m[q])
                if ks == 2 and q == 1:
                    nxt = s_ + 1
                    toks = (f"it{2*nxt}", f"it{2*nxt+1}") if nxt < 7 else (f"it{7+nxt}",) if nxt < 14 else None
                    if toks: base.wait_vm(toks)
                    base.wait_lg((f"br{i+1}", "pub")); base("s_barrier")
                elif q == 3 and ks != 2: base.wait_lg(f"br{i+1}")
                for r in rd[p:p+dist[q]]: base(r, f"br{i+2}")
                p += dist[q]
        grp = split_vm(vm[s_])
        sl = {0: [], 1: [1], 3: [1, 5, 9], 4: [3, 7, 11, 15], 5: [1, 4, 7, 11, 15], 7: [1, 2, 3, 5, 8, 11, 15], 8: [1, 3, 5, 7, 8, 11, 13, 15]}[len(grp)]
        st = place(base, grp, sl)
        for sd, a, b in sorted(side[s_], key=lambda e: any(x.kind == 'mfma' for x in e[0])):
            if len(sd): st = weave(st, sd, start=a, end=b)
        out.add(st)
        if s_ == 6: stamp(out, "B1")
    return out

def wd_reads(q, tok):
    s = S()
    for T in range(2):
        for dt in range(2):
            for h in range(2):
                a, o = lds_addr(vDr, 2, dt, q, T*2048 + h*1024)
                s(f"ds_read_b64_tr_b16 {ar(16*q+8*T+4*dt+2*h,2)}, {a} offset:{o}", tok)
    return s

def h_loads(u):
    q, half = u % 7, u // 7
    s = S()
    for T in range(2):
        for mt in range(2):
            d = ar(112+16*q+8*T+4*mt, 4) if half == 0 else vr(H2+16*q+8*T+4*mt, 4)
            s(f"buffer_load_dwordx4 {d}, v{vH1 if mt == 0 else vH2}, {sr(rWS,4)}, s{sHld} offen offset:{1024*T} sc1")
    if u != 13: adv(s, sHld, 2048, sHe, 14*1024, 56*1024 if u == 6 else 0)
    return s

def f_read(t):
    return f"ds_read_b64_tr_b16 {vr(ACC1+4*t,2)}, v{vFr} offset:{256*t}\nds_read_b64_tr_b16 {vr(ACC1+4*t+2,2)}, v{vFr} offset:{256*t+32}"
def g_read(e):
    return f"ds_read_b64_tr_b16 {vr(ACC2+4*e,2)}, v{vGr} offset:{256*e+32}\nds_read_b64_tr_b16 {vr(ACC2+4*e+2,2)}, v{vGr} offset:{256*e}"

def wd_move(q):
    a = S(); a.wait_vm(f"it{21+q}"); a.add(wd_reads(q, f"wda{q}"))
    b = S(); b.wait_lg(f"wda{q}"); b.add(item(28+q))
    return a, b

def stageTail():
    s = S()
    s.add(item(27))
    s.wait_vm("h1")
    s(flag(sF2w, vOne))
    s(f"s_add_u32 s{sHst}, s{sHst}, {56*1024}")
    g2 = gelu(ACC2, 2, True, OPT['cl2'])
    groups = []
    for q in range(2):
        a, b = wd_move(q)
        groups += chunks(a, 2) + [S()(f_read(2*q)), S()(f_read(2*q+1))] + split_vm(b)
    s.add(sprinkle(g2, groups, 0.0, 1.0))
    return s

def stageC():
    main = S()
    for e in range(3): main(g_read(e))
    def flush(c):
        d = CA + 4*(c % 3); t = S()
        for j in (2, 1, 0):
            t(f"v_add_f32_dpp v{d+j}, v{d+j+1}, v{d+j} wave_shr:1 row_mask:0xf bank_mask:0xf")
        t(f"ds_write_b32 v{vYw}, v{d} offset:{544*c}")
        t(f"ds_write_b128 v{vYk}, {vr(d,4)} offset:{544*c}")
        return t
    for c in range(16):
        d = vr(CA + 4*(c % 3), 4)
        ex = S()
        if c + 3 < 16: ex(g_read(c+3))
        if 4 <= c + 3 < 16: ex(f_read(c+3))
        if c >= 2: ex.add(flush(c-2))
        blk = S()
        for t in range(c+1):
            blk(f"v_mfma_f32_16x16x32_bf16 {d}, {vr(ACC1+4*t,4)}, {vr(ACC2+4*(c-t),4)}, {d if t else 0}")
        main.add(weave(blk, ex))
    main.add(flush(14)).add(flush(15))
    side = S()
    side(f"v_min_u32 v{vPollA}, 6, v{vLane}\nv_lshlrev_b32 v{vPollA}, 2, v{vPollA}")
    mv = [wd_move(q) for q in range(2, 7)]
    side.add(mv[0][0])
    for k in range(5):
        if k + 1 < 5: side.add(mv[k+1][0])
        if k == 1: side(wsld(sF2r))
        if k == 2:
            stamp(side, 'c1'); side.wait_vm("h2"); stamp(side, 'c2'); side(f"s_add_u32 s{sF2w}, s{sF2w}, {128*FS}"); side(flag(sF2w, vOne))
        side.add(mv[k][1])
    stamp(side, 'c3')
    side.add(poll(1, wsld(sF2r)))
    stamp(side, 'c4')
    for u in range(OPT['nh1c']): side.add(h_loads(u))
    out = weave(main, side, start=21, end=134)
    f = S()
    stamp(f, 'c5')
    f.wait_lg(); f("s_barrier")
    Y = ACC1
    for ch in range(2):
        f(f"""ds_read_b128 {vr(Y+12*ch,4)}, v{vYr} offset:{YAS*ch+16}
        ds_read_b128 {vr(Y+12*ch+8,4)}, v{vYc+ch}
        ds_read_b128 {vr(Y+12*ch+4,4)}, v{vYr} offset:{YAS*ch+32}""")
    f(f"""s_and_b32 s{sK0}, s{sDSv}, 0xffff
    s_lshl_b32 s{sK0+1}, s{sDSv}, 16
    s_lshr_b32 s{sK1}, s{sDSv}, 16
    s_and_b32 s{sK1+1}, s{sDSv}, 0xffff0000
    s_add_u32 s{sUTld}, s{sUTld}, {WS_AT-WS_UT}""")
    for ch in range(2):
        b = Y+12*ch
        for k in range(3): f(f"v_add_f32 v{b+k}, v{b+k}, v{b+9+k}")
        for k in range(8):
            f(f"v_dot2_f32_bf16 v{b+k}, v{vU+4*ch+k//2}, s{(sK0 if ch == 0 else sK1)+(k&1)}, v{b+k}")
        for k in range(4):
            f(f"v_cvt_pk_bf16_f32 v{b+8+k}, v{b+2*k}, v{b+2*k+1}")
        f(f"buffer_store_dwordx4 {vr(b+8,4)}, v{vUo}, {sr(rWS,4)}, s{sUTld} offen offset:{128*ch} sc1", "at")
    return out.add(f)

def stageD():
    def mf(u):
        q, half = u % 7, u // 7
        r = S()
        for T in range(2):
            for mt in range(2):
                for dt in range(2):
                    d = vr(DACC + 16*(dt + 2*mt), 16)
                    hb = ar(112+16*q+8*T+4*mt, 4) if half == 0 else vr(H2+16*q+8*T+4*mt, 4)
                    r(f"v_mfma_f32_32x32x16_bf16 {d}, {ar(16*q+8*T+4*dt,4)}, {hb}, {0 if u == 0 and T == 0 else d}")
        return r
    s = S()
    LA = 3
    nxt = OPT['nh1c']
    while nxt < LA: s.add(h_loads(nxt)); nxt += 1
    for u in range(14):
        ex = S()
        if nxt == 5: ex(f"s_add_u32 s{sF2r}, s{sF2r}, {128*FS}"); ex(wsld(sF2r))
        if nxt == 7: ex.add(poll(1, wsld(sF2r)))
        if u == OPT['nh1c']:
            ex.wait_vm("at"); ex(flag(sF3w, vOne))
        if nxt < 14: ex.add(h_loads(nxt)); nxt += 1
        if 1 <= u <= 7:
            ex.wait_vm(f"it{28+u-1}"); ex.add(wd_reads(u-1, f"wdb{u-1}"))
        if u == 8:
            ex(f"v_and_b32 v{vPollA}, 15, v{vLane}\nv_lshlrev_b32 v{vPollA}, 2, v{vPollA}")
            ex(wsld(sF3r)); ex.add(stageB.eaddr)
        if u == 11:
            ex.add(poll(1, wsld(sF3r)))
            for q in range(2):
                ex(f"buffer_load_dwordx4 {vr(E0+4*q,4)}, v{AO}, {sr(rWS,4)}, s{sATld} offen offset:{2048*q} sc1")
        s.add(weave(mf(u), ex) if len(ex) else mf(u))
        if u == 6: stamp(s, "D1")
    stamp(s, "D2")
    G, GH, OMG = 130, 131, 132
    for q in range(2):
        s(f"ds_write_b128 v{AW}, {vr(E0+4*q,4)} offset:{1024*q}")
    for t in range(1, 4):
        for k in range(4):
            s(f"ds_write_b128 v{RW}, {vr(DACC+16*t+4*k,4)} offset:{(t-1)*SLOT+1024*k}")
    for k in range(4):
        s(f"ds_read_b64_tr_b16 {vr(E0+8+2*k,2)}, v{AR} offset:{512*k}")
    s.wait_lg(); s("s_barrier")
    for k in range(4):
        for t in range(1, 4):
            s(f"ds_read_b128 {vr(H2+16*(t-1)+4*k,4)}, v{RR+t-1} offset:{(t-1)*SLOT+1024*k}")
    for k in range(4):
        for p in range(2):
            o = 4*k + 2*p
            s(f"""v_pk_add_f32 {vr(DACC+o,2)}, {vr(DACC+o,2)}, {vr(H2+o,2)}
            v_pk_add_f32 {vr(H2+16+o,2)}, {vr(H2+16+o,2)}, {vr(H2+32+o,2)}""")
        for p in range(2):
            o = 4*k + 2*p
            s(f"v_pk_add_f32 {vr(DACC+o,2)}, {vr(DACC+o,2)}, {vr(H2+16+o,2)}")
        for p in range(2):
            o = 4*k + 2*p
            s(f"v_pk_mul_f32 {vr(DACC+o,2)}, {vr(DACC+o,2)}, {vr(OMG,2)}")
        for j in range(4):
            s(f"v_dot2_f32_bf16 v{DACC+4*k+j}, v{E0+8+2*k+j//2}, v{G if j % 2 == 0 else GH}, v{DACC+4*k+j}")
        s(f"""v_cvt_pk_bf16_f32 v{E0+2*k}, v{DACC+4*k}, v{DACC+4*k+1}
        v_cvt_pk_bf16_f32 v{E0+2*k+1}, v{DACC+4*k+2}, v{DACC+4*k+3}""")
    for k in range(4):
        s(f"ds_write_b64 v{OW}, {vr(E0+2*k,2)} offset:{3*SLOT+16*k}")
    for q in range(2):
        s(f"ds_read_b128 {vr(H2+4*q,4)}, v{OR_} offset:{3*SLOT+16*80*q}")
    sc = " sc1" if OPT['outsc'] else ""
    s(f"s_add_u32 s{sT0}, s{sOst}, {16*896}")
    s(f"buffer_store_dwordx4 {vr(H2,4)}, v{OO}, {sr(rO,4)}, s{sOst} offen{sc}")
    s(f"buffer_store_dwordx4 {vr(H2+4,4)}, v{OO}, {sr(rO,4)}, s{sT0} offen{sc}")
    return s

def helper():
    s = S()
    GWL = 57344; TS = 59392
    s(f"""
    v_lshrrev_b32 v3, 6, v0
    v_and_b32 v2, 63, v0
    v_readfirstlane_b32 s3, v3
    v_lshlrev_b32 v1, 4, v2
    s_mul_i32 s6, s2, 57344
    s_mul_i32 s7, s3, 14336
    s_add_u32 s8, s6, s7
    {srd(rX, sU, 2048*896)}
    {srd(rW, sGw, 896)}
    {srd(rWS, sWs, WS_END)}
    """)
    for k in range(14):
        if k % 4 == 0: s(f"s_add_u32 m0, s7, {1024*k}\ns_add_u32 s9, s8, {1024*k}")
        s(f"buffer_load_dwordx4 v1, {sr(rX,4)}, s9 offen offset:{1024*(k%4)} lds", "x")
    s(f"s_mov_b32 m0, {GWL}\nbuffer_load_dwordx4 v1, {sr(rW,4)}, 0 offen lds", "x")
    s(f"""
    v_min_u32 v24, 195, v0
    v_mul_u32_u24 v25, 4682, v24
    v_lshrrev_b32 v25, 16, v25
    v_mul_u32_u24 v25, {3584-14*128}, v25
    v_lshlrev_b32 v24, 7, v24
    s_mul_i32 s14, s2, {14*3584}
    v_add3_u32 v25, v25, v24, s14
    v_add_u32 v24, s14, v24
    v_add_u32 v26, {196*128}, v24""")
    if OPT['hpf'] & 1: s(f"global_load_dword v27, v25, {sr(sWg,2)} offset:1792\nglobal_load_dword v28, v25, {sr(sWu,2)} offset:1792")
    s(f"""
    v_mov_b32 v8, 0
    v_mov_b32 v9, 0
    v_mov_b32 v10, 0
    v_mov_b32 v11, 0
    v_cmp_gt_u32 vcc, 40, v0
    v_mov_b32 v4, 0x80000000
    v_lshrrev_b32 v5, 2, v0
    v_mul_u32_u24 v5, {FS-64}, v5
    v_add_u32 v5, v5, v1
    v_cndmask_b32 v5, v4, v5, vcc
    s_mul_i32 s9, s2, {10*FS}
    s_add_u32 s9, s9, {WS_F2}
    buffer_store_dwordx4 v[8:11], v5, {sr(rWS,4)}, s9 offen sc1
    v_lshrrev_b32 v6, 4, v2
    v_bfe_u32 v7, v2, 2, 2
    v_lshl_add_u32 v7, v6, 3, v7
    v_mul_u32_u24 v7, 896, v7
    v_and_b32 v12, 3, v2
    s_mul_i32 s9, s3, 224
    v_lshl_add_u32 v12, v12, 3, s9
    v_add_u32 v12, v12, v7
    s_mul_i32 s10, s3, {2*UTSW}
    s_add_u32 s10, s10, {TS}
    v_and_b32 v13, 15, v2
    v_mul_u32_u24 v14, 144, v13
    v_lshl_add_u32 v14, v6, 4, v14
    v_add_u32 v14, s10, v14
    v_lshrrev_b32 v15, 3, v2
    v_lshl_add_u32 v15, v15, 4, v1
    v_add_u32 v15, s10, v15
    v_mul_u32_u24 v16, 896, v13
    v_lshl_add_u32 v16, v6, 4, v16
    v_add_u32 v16, s7, v16
    v_lshlrev_b32 v17, 4, v6
    v_cmp_gt_u32 vcc, 16, v2
    v_lshlrev_b32 v18, 2, v2
    v_cndmask_b32 v18, v4, v18, vcc
    s_add_u32 s11, s8, {WS_UT}
    s_lshl2_add_u32 s13, s2, s3
    s_lshl_b32 s13, s13, 6
    s_add_u32 s13, s13, {WS_G}
    """)
    s.wait_vm("x"); s("s_barrier")
    for cg in range(7):
        t0 = 32 + 16*(cg % 2); so = UTSW*(cg % 2)
        for t in range(2):
            for h in range(2):
                s(f"ds_read_b64_tr_b16 {vr(t0+4*t+2*h,2)}, v12 offset:{(32*t+4*h)*896+32*cg}")
        for t in range(2): s(f"ds_write_b128 v14, {vr(t0+4*t,4)} offset:{so+64*t}")
        for t in range(2): s(f"ds_read_b128 {vr(t0+8+4*t,4)}, v15 offset:{so+8*144*t}")
        for t in range(2): s(f"buffer_store_dwordx4 {vr(t0+8+4*t,4)}, v1, {sr(rWS,4)}, s11 offen offset:{1024*t} sc1")
        s(f"s_add_u32 s11, s11, 2048")
    if OPT['hpf'] & 2: s(f"global_load_dword v29, v24, {sr(sWdn,2)}\nglobal_load_dword v30, v26, {sr(sWdn,2)}")
    for ks in range(14):
        r = 64 + 8*(ks % 4)
        s(f"""ds_read_b128 {vr(r,4)}, v17 offset:{GWL+64*ks}
        ds_read_b128 {vr(r+4,4)}, v16 offset:{64*ks}
        v_mfma_f32_16x16x32_bf16 v[20:23], {vr(r,4)}, {vr(r+4,4)}, {'v[20:23]' if ks else 0}""")
    s(f"""v_cvt_pk_bf16_f32 v20, 0, v20
    v_mul_f32 v20, {hx(fbits(-LOG2E))}, v20
    v_exp_f32 v20, v20
    v_add_f32 v20, 1.0, v20
    v_rcp_f32 v20, v20
    v_cvt_pk_bf16_f32 v21, 0, v20
    v_sub_f32 v22, 1.0, v21
    v_cvt_pk_bf16_f32 v20, v21, v22
    buffer_store_dword v20, v18, {sr(rWS,4)}, s13 offen sc1""")
    s.wait_vm('*'); s("s_barrier")
    s(f"""s_lshl_b32 s9, s2, 2
    v_mov_b32 v8, s9
    v_mov_b32 v9, 1
    v_cmp_eq_u32 vcc, 0, v0
    s_and_saveexec_b64 s[6:7], vcc
    s_cbranch_execz L_end
    global_store_dword v8, v9, {sr(sDbg,2)} sc1
    s_endpgm""")
    fin, _ = finalize(schedule(s))
    return f"""L_helper:
    s_getpc_b64 s[4:5]
L_pc:
    s_sub_u32 s4, s4, L_pc-{NAME}_kernel
    s_subb_u32 s5, s5, 0
    v_lshlrev_b32 v1, 7, v0
    v_min_u32 v1, L_last-{NAME}_kernel, v1
    global_load_dword v19, v1, s[4:5]
    {'s_endpgm' if OPT['x_nohelp'] else ''}
    s_waitcnt lgkmcnt(0)
""" + text(fin) + "\nL_last:\n    s_endpgm"

def build():
    s = S()
    if OPT['stamp']:
        s(f"s_memrealtime s[100:101]\ns_waitcnt lgkmcnt(0)\nv_writelane_b32 v47, s100, 30")
    stamp(s, "start")
    s(f"""s_load_dwordx16 s[16:31], s[0:1], 0
    s_load_dwordx16 s[32:47], s[0:1], 64
    s_load_dwordx2 s[48:49], s[0:1], 128
    s_cmp_ge_u32 s2, {NHELP+NMAIN}
    s_cbranch_scc1 L_end
    s_cmp_lt_u32 s2, {NHELP}
    s_cbranch_scc1 L_helper""")
    s.add(setup_early()).add(setup_scalar())
    s("s_waitcnt lgkmcnt(0)")
    stamp(s, "karg")
    if OPT['x_bx']:
        src, n = {1: (sBx, 2048*896), 2: (sWdn, 1792*896), 3: (sU, 2048*896)}[OPT['x_bx']]
        s(srd(rX, src, n))
        stamp(s, 'bx0')
        for n in range(0, 14, 2): s.add(item(n))
        s.wait_vm('*')
        stamp(s, 'bx1')
        s(f"s_sub_u32 s{sXo}, s{sXo}, {6*128}\ns_barrier")
    s.add(first_loads())
    if OPT['x_pre']:
        s.add(setup_AB())
        l1a, _ = setup_late1()
        for n in range(3): s.add(item(n))
        s(f'v_mov_b32 v3, v{P_RAW+5}')
        stamp(s, 'par')
        for n in range(24):
            s.wait_vm(f'it{n}'); stamp(s, f'i{n}')
            if n == 12: s.add(l1a)
            s.add(item(n+3))
    else:
        g0 = S()
        for n in range(OPT['npre']): g0.add(item(n))
        s.add(sprinkle(setup_AB(), split_vm(g0), 0.0, 0.8))
        stamp(s, "setup")
        A, aw = stageA()
        if OPT['pre'] >= 99:
            A.add(aw[1]).add(aw[2])
        g1 = S()
        for n in range(OPT['npre'], 7): g1.add(item(n))
        s.add(sprinkle(A, split_vm(g1), 0.1, 0.9 if OPT['pre'] < 99 else 0.7))
        stamp(s, "A")
        s.add(stageB(aw))
        stamp(s, "B2")
        s.add(stageTail())
        stamp(s, "tail")
        s.add(stageC())
        stamp(s, "C")
        s.add(stageD())
        stamp(s, "E")
    if OPT['stamp']:
        s(f"""s_waitcnt vmcnt(0)
        {'s_memtime' if OPT['stamp'] == 1 else 's_memrealtime'} s[100:101]
        s_waitcnt lgkmcnt(0)
        v_writelane_b32 v47, s100, {len(stamps)}
        s_memrealtime s[100:101]
        s_waitcnt lgkmcnt(0)
        v_writelane_b32 v47, s100, 31
        s_lshl2_add_u32 s{sT0}, s{sC}, s{sW}
        s_lshl_b32 s{sT0}, s{sT0}, 7
        s_add_u32 s{sT0}, s{sT0}, {WS_ST}
        v_and_b32 v3, 31, v{vLane}
        v_lshlrev_b32 v3, 2, v3
        s_mov_b64 exec, 0xffffffff
        buffer_store_dword v47, v3, {sr(rWS,4)}, s{sT0} offen""")
        stamps.append("end")
    if PROBE:
        s(f"""s_sub_u32 s12, s12, s8
        s_max_i32 s12, s12, 0
        s_mul_i32 s12, s12, 10
        s_memrealtime s[100:101]
        s_waitcnt lgkmcnt(0)
        s_mov_b32 s8, s100
        L_probe:
        s_memrealtime s[100:101]
        s_waitcnt lgkmcnt(0)
        s_sub_u32 s100, s100, s8
        s_cmp_lt_u32 s100, s12
        s_cbranch_scc1 L_probe""")
    if OPT['sched']: s = schedule(s)
    fin, nn = finalize(s)
    info = ''
    if OPT['align']:
        fin, nw, na, nb = align_pass(fin); info = f"widened {nw} alignnops {na} bytes {nb}"
    open(sys.argv[1]+'.names', 'w').write(','.join(stamps))
    sys.stderr.write(f"instrs {len(fin)} nops {nn} est {estimate(fin)} {info}\n")
    hdr = open('cdna_kernels/' + NAME + '.s.ref').read().split('; Override launch')[0]
    return hdr + f"""; One fused launch. Workgroups 0..{NHELP-1}: transpose of u, gate, flag init. Workgroups {NHELP}..{NHELP+NMAIN-1}: S4 kernel
; generation, gate/up GEMM + GELU, causal convolution, down GEMM and the final mix.
; @launch grid=({NHELP+NMAIN},1,1) block=(256,1,1) lds={LDS_SIZE}
.amdgcn_target "amdgcn-amd-amdhsa--gfx950"
.text
.globl {NAME}_kernel
.p2align 8
.type {NAME}_kernel,@function
{NAME}_kernel:
{text(fin)}
L_end:
    s_endpgm
""" + "\n".join(slow) + "\n" + helper() + f"""
.section .rodata,"a"
.p2align 6
.amdhsa_kernel {NAME}_kernel
  .amdhsa_next_free_vgpr 512
  .amdhsa_next_free_sgpr 102
  .amdhsa_accum_offset 256
  .amdhsa_group_segment_fixed_size 0
  .amdhsa_kernarg_size 136
  .amdhsa_user_sgpr_count 2
  .amdhsa_user_sgpr_kernarg_segment_ptr 1
  .amdhsa_system_sgpr_workgroup_id_x 1
.end_amdhsa_kernel
"""

if __name__ == "__main__":
    open(sys.argv[1], 'w').write(build())
```

```python
import re

REG_RE = re.compile(r'^(-|\|)?(abs\()?([vas])(\d+|\[(\d+):(\d+)\])\)?\|?$')

def parse_reg(op):
    op = op.strip()
    if op == 'vcc': return [('s', 106), ('s', 107)]
    if op == 'vcc_lo': return [('s', 106)]
    if op == 'vcc_hi': return [('s', 107)]
    if op == 'exec': return [('s', 126), ('s', 127)]
    if op == 'm0': return [('s', 124)]
    m = REG_RE.match(op)
    if not m: return []
    t = m.group(3)
    if m.group(5) is not None:
        return [(t, i) for i in range(int(m.group(5)), int(m.group(6)) + 1)]
    return [(t, int(m.group(4)))]

TRANS = ('v_exp_f32', 'v_log_f32', 'v_rcp_f32', 'v_rsq_f32', 'v_sqrt_f32', 'v_sin_f32', 'v_cos_f32')
EXEC = [('s', 126), ('s', 127)]
VCC = [('s', 106), ('s', 107)]
M0 = [('s', 124)]

class I:
    __slots__ = ('text', 'op', 'kind', 'rd', 'wr', 'passes', 'srcA', 'srcB', 'srcC', 'tok', 'wide', 'data', 'dpp', 'note')
    def __init__(self, text, tok=None):
        self.text = text; self.tok = tok; self.note = None
        self.passes = 0; self.srcA = self.srcB = self.srcC = (); self.wide = False; self.data = (); self.dpp = False
        t = text.split(';')[0].strip()
        if t.endswith(':') or t.startswith('.') or not t:
            self.op = ''; self.kind = 'label' if t.endswith(':') else 'dir'; self.rd = set(); self.wr = set(); return
        parts = t.split(None, 1)
        op = parts[0]
        for suf in ('_e32', '_e64', '_dpp', '_sdwa'):
            if op.endswith(suf):
                if suf == '_dpp': self.dpp = True
                op = op[:-len(suf)]
        self.op = op
        rest = parts[1] if len(parts) > 1 else ''
        ops = []; depth = 0; cur = ''
        for ch in rest:
            if ch == '[': depth += 1
            if ch == ']': depth -= 1
            if ch == ',' and depth == 0: ops.append(cur.strip()); cur = ''
            else: cur += ch
        if cur.strip(): ops.append(cur.strip())
        mods = ''
        if ops:
            last = ops[-1].split(None, 1)
            ops[-1] = last[0]
            mods = last[1] if len(last) > 1 else ''
        R = [parse_reg(o) for o in ops]
        allr = lambda lst: set(x for l in lst for x in l)
        rd = set(); wr = set()
        if op.startswith('v_mfma'):
            self.kind = 'mfma'
            self.passes = 8 if '32x32x16' in op else 4 if '16x16x32' in op else None
            assert self.passes, op
            wr = set(R[0]); self.srcA = set(R[1]); self.srcB = set(R[2]); self.srcC = set(R[3]); rd = allr(R[1:])
        elif op.startswith('ds_'):
            self.kind = 'ds'
            if op.startswith('ds_read') or op.startswith('ds_bpermute') or op.startswith('ds_swizzle'):
                wr = set(R[0]); rd = allr(R[1:])
                if 'd16' in op: rd |= wr
            else:
                rd = allr(R)
            if 'addtid' in op: rd |= set(M0)
        elif op.startswith('buffer_load') or op.startswith('global_load'):
            if ' lds' in (' ' + mods) or '_lds_' in op:
                self.kind = 'dma'; rd = allr(R) | set(M0)
            else:
                self.kind = 'vload'; wr = set(R[0]); rd = allr(R[1:])
                if 'd16' in op: rd |= wr
        elif op.startswith('buffer_store') or op.startswith('global_store'):
            self.kind = 'vstore'; rd = allr(R)
            self.data = set(R[0] if op.startswith('buffer') else R[1])
            self.wide = 'x4' in op or 'x3' in op
        elif op.startswith('buffer_') or op.startswith('global_'):
            self.kind = 'vstore'; rd = allr(R)
        elif op.startswith('s_atomic') or tok == 'async':
            self.kind = 'asmem'; rd = allr(R); self.tok = None
            if not op.startswith('s_atomic'): wr = set(R[0]); rd = allr(R[1:])
        elif op.startswith('s_load') or op in ('s_memtime', 's_memrealtime'):
            self.kind = 'smem'; wr = set(R[0]); rd = allr(R[1:])
        elif op == 's_waitcnt': self.kind = 'wait'
        elif op == 's_barrier': self.kind = 'barrier'
        elif op == 's_nop': self.kind = 'nop'
        elif op in ('s_branch', 's_endpgm', 's_setprio', 's_sleep') or op.startswith('s_cbranch'):
            self.kind = 'branch'
            if 'vcc' in op: rd = set(VCC)
            if 'exec' in op: rd = set(EXEC)
        elif op.startswith('s_cmp') or op.startswith('s_bitcmp'):
            self.kind = 'salu'; rd = allr(R)
        elif op.startswith('s_'):
            self.kind = 'salu'; wr = set(R[0]); rd = allr(R[1:])
            if 'saveexec' in op: wr |= set(EXEC); rd |= set(EXEC)
            if op in ('s_addk_i32', 's_mulk_i32'): rd |= wr
        elif op.startswith('v_'):
            self.kind = 'trans' if op in TRANS else 'valu'
            if op.startswith('v_permlane'):
                wr = allr(R); rd = allr(R)
            else:
                wr = set(R[0]); rd = allr(R[1:])
                if op.startswith('v_fmac') or op.startswith('v_dot2c') or op.startswith('v_pk_fmac') or op.startswith('v_writelane') or 'mixlo' in op or 'mixhi' in op or self.dpp:
                    rd |= wr
                if op.startswith('v_add_co') or op.startswith('v_sub_co') or op.startswith('v_addc_co'):
                    wr |= set(R[1]); rd = allr(R[2:])
                if op.startswith('v_cmpx'): wr |= set(EXEC)
                if op.startswith('v_cndmask') and len(R) == 3: rd |= set(VCC)
        else:
            raise ValueError('unknown op: ' + text)
        self.rd = rd; self.wr = wr

    def cost(self):
        k = self.kind
        if k in ('label', 'dir', 'mark'): return 0
        if k == 'trans': return 8
        if k == 'nop': return 4 * (int(self.text.split()[1]) + 1)
        if k == 'ds': return 4 * max(1, sum(1 for r in self.rd if r[0] in 'va' and r not in self.wr))
        if k in ('vload', 'dma'): return 16
        if k == 'vstore': return 16 + 8 * len(self.data)
        return 4

class Mark(I):
    __slots__ = ('vm', 'lg')
    def __init__(self, vm=None, lg=None):
        self.text = ''; self.op = ''; self.kind = 'mark'; self.rd = set(); self.wr = set(); self.tok = None
        self.vm = vm; self.lg = lg; self.note = None
        self.passes = 0; self.srcA = self.srcB = self.srcC = (); self.wide = False; self.data = (); self.dpp = False

class S(list):
    cycles = 0
    def __call__(self, text, tok=None):
        for line in text.split('\n'):
            line = line.strip()
            if line and not line.startswith(';'):
                self.append(I(line, tok))
        return self
    def wait_vm(self, tok):
        self.append(Mark(vm=tok)); return self
    def wait_lg(self, tok='*'):
        self.append(Mark(lg=tok)); return self
    def add(self, other):
        self.extend(other); return self

VM_KINDS = ('vload', 'vstore', 'dma')
ASYNC_WINDOW = 200
DUMMY = 'ds_read_b32 v3, v1'

def insert_waits(ins):
    out = []; vq = []; lq = []; seen = set(); waited = set(); asy = []
    for x in ins:
        nv = None; nl = None
        if x.kind == 'mark':
            for t in (x.vm, x.lg):
                for q in (t if isinstance(t, (tuple, list, set)) else (t,)):
                    assert q in (None, '*', 'pub') or q in seen, f"wait on token {q} never issued"
                    waited.add(q)
        elif x.tok:
            assert x.tok == 'pub' or x.tok not in waited, f"token {x.tok} issued after its wait"
            seen.add(x.tok)
        if x.kind == 'wait':
            m = re.search(r'vmcnt\((\d+)\)', x.text)
            if m: vq = vq[len(vq) - min(len(vq), int(m.group(1))):]
            m = re.search(r'lgkmcnt\((\d+)\)', x.text)
            if m:
                n = int(m.group(1)); assert n == 0 or not any(e.kind == 'smem' for e in lq)
                lq = lq[len(lq) - min(len(lq), n):]
            out.append(x); continue
        touched = x.rd | x.wr
        vm_t = x.vm if x.kind == 'mark' else None
        lg_t = x.lg if x.kind == 'mark' else None
        def match(e, t):
            if t is None: return False
            if t == '*': return True
            return e.tok in t if isinstance(t, (tuple, list, set)) else e.tok == t
        for idx in range(len(vq) - 1, -1, -1):
            e = vq[idx]
            if (e.wr & touched) or match(e, vm_t):
                nv = len(vq) - 1 - idx; break
        for idx in range(len(lq) - 1, -1, -1):
            e = lq[idx]
            same_q = x.kind == 'ds' and e.kind == 'ds' and not (e.wr & x.rd)
            if ((e.wr & touched) and not same_q) or match(e, lg_t):
                nl = len(lq) - 1 - idx; break
        if nl is not None and any(e.kind == 'smem' for e in lq): nl = 0
        elif nl is not None:
            k = sum(1 for p in asy if len(out) - p < ASYNC_WINDOW)
            while nl < k:
                d = I(DUMMY); d.note = 'dummy'; out.append(d); lq.append(I('ds_nop')); nl += 1
        if nv is not None or nl is not None:
            t = 's_waitcnt'
            if nv is not None:
                nv = min(nv, 62); t += f' vmcnt({nv})'; vq = vq[len(vq) - nv:] if nv else []
            if nl is not None:
                nl = min(nl, 14); t += f' lgkmcnt({nl})'; lq = lq[len(lq) - nl:] if nl else []
            if out and out[-1].kind == 'wait' and out[-1].note == 'auto':
                p = out.pop().text
                mv = re.search(r'vmcnt\((\d+)\)', p); ml = re.search(r'lgkmcnt\((\d+)\)', p)
                if mv: nv = int(mv.group(1)) if nv is None else min(nv, int(mv.group(1)))
                if ml: nl = int(ml.group(1)) if nl is None else min(nl, int(ml.group(1)))
                t = 's_waitcnt' + (f' vmcnt({nv})' if nv is not None else '') + (f' lgkmcnt({nl})' if nl is not None else '')
            w = I(t); w.note = 'auto'; out.append(w)
        if x.kind == 'mark': continue
        if x.kind == 'asmem' and 'time' not in x.op: asy.append(len(out))
        if x.kind in VM_KINDS: vq.append(x)
        if x.kind in ('ds', 'smem'): lq.append(x)
        out.append(x)
    return out

def need_states(p, c):
    n = 0
    pk, ck = p.kind, c.kind
    vwr = {r for r in p.wr if r[0] in 'va'}
    swr = {r for r in p.wr if r[0] == 's'}
    isvalu = lambda k: k in ('valu', 'trans')
    if pk == 'mfma':
        big = 12 if p.passes == 8 else 8
        if ck == 'mfma':
            if p.wr & (c.srcA | c.srcB): n = max(n, big)
            if p.wr & c.srcC and not (p.wr == c.srcC and p.passes == c.passes): n = max(n, 10 if p.passes == 8 else 6)
            if p.wr & c.wr and not (p.wr == c.wr and p.wr == c.srcC and p.passes == c.passes) and not (p.wr & c.srcC):
                n = max(n, big)
        elif isvalu(ck) or ck in ('ds', 'vload', 'vstore', 'dma'):
            if p.wr & (c.rd | c.wr): n = max(n, big)
            if p.srcC & c.wr: n = max(n, 7 if p.passes == 8 else 3)
    if isvalu(pk):
        if ck == 'mfma' and vwr & c.rd: n = max(n, 2)
        if ck == 'mfma' and swr & set(EXEC): n = max(n, 4)
        if ck in VM_KINDS and swr & c.rd: n = max(n, 5)
        if isvalu(ck):
            if c.dpp and vwr & c.rd: n = max(n, 2)
            if c.dpp and swr & set(EXEC): n = max(n, 5)
            if c.op.startswith('v_permlane') and vwr & c.rd: n = max(n, 2)
            if c.op in ('v_readfirstlane_b32', 'v_readlane_b32') and vwr & c.rd: n = max(n, 1)
            if c.op in ('v_readlane_b32', 'v_writelane_b32') and swr & c.rd: n = max(n, 4)
            if swr & c.rd: n = max(n, 2)
            if pk == 'trans' and vwr & c.rd: n = max(n, 1)
            if p.op.startswith('v_dot2') and vwr & (c.rd | c.wr) and c.op != p.op: n = max(n, 3)
            if p.op.startswith('v_dot2') and vwr & c.rd and c.op == p.op: n = max(n, 3)
            if ('sdwa' in p.text or 'op_sel' in p.text and not p.op.startswith('v_pk')) and vwr & (c.rd | c.wr): n = max(n, 1)
        if p.op.startswith('v_dot2') and ck in ('ds', 'vstore', 'vload', 'mfma') and vwr & c.rd: n = max(n, 3)
        if pk == 'trans' and ck in ('ds', 'vstore', 'vload') and vwr & c.rd: n = max(n, 1)
        if ck in ('salu', 'branch', 'smem', 'asmem') and swr & c.rd: n = max(n, 1)
    if pk == 'vstore' and p.wide and p.data & c.wr: n = max(n, 2)
    if pk == 'salu' and set(M0) & p.wr and set(M0) & c.rd and ck in ('dma', 'ds'): n = max(n, 1)
    return n

def states_of(x):
    if x.kind in ('label', 'dir', 'mark'): return 0
    if x.kind == 'nop': return int(x.text.split()[1]) + 1
    return 1

def insert_nops(ins, verbose=False):
    out = []; added = 0
    for c in ins:
        if c.kind not in ('label', 'dir', 'nop', 'wait', 'barrier'):
            dist = 0; need = 0
            for p in reversed(out):
                if dist >= 12: break
                r = need_states(p, c) - dist
                if r > need: need = r
                dist += states_of(p)
            if need > 0:
                added += need
                if verbose: print('nop', need, 'before', c.text)
                x = I(f's_nop {need-1}'); x.note = 'auto'; out.append(x)
        out.append(c)
    return out, added

class Pipe:
    def __init__(s): s.t = 0; s.mf = 0; s.tv = -99; s.tm = -99
    def earliest(s, x):
        k = x.kind
        if k in ('valu', 'trans'):
            e = max(s.t, s.tm + 8)
            if x.op.startswith('v_pk_') and x.op.endswith('f32'): e = max(e, s.mf)
            return e
        if k == 'mfma': return max(s.t, s.mf)
        if k == 'ds' or k in VM_KINDS: return max(s.t, s.tv + 8, s.tm + 8)
        return s.t
    def issue(s, x, at):
        at = max(at, s.earliest(x))
        s.t = at + x.cost()
        if x.kind == 'mfma': s.mf = at + 4 * x.passes; s.tm = at
        if x.kind in ('valu', 'trans'): s.tv = s.t
        return at

def estimate(ins):
    p = Pipe(); lastw = {}
    for x in ins:
        r = 0
        for q in x.rd:
            if q in lastw and lastw[q][1].kind in ('valu', 'trans', 'ds'): r = max(r, lastw[q][0] + lat(lastw[q][1], x))
        at = p.issue(x, r)
        for q in x.wr: lastw[q] = (at, x)
    return max(p.t, p.mf)

def glued(x):
    return x.kind == 'label' or x.op.startswith('s_cselect') or x.op.startswith('s_cbranch') or x.op in ('s_addc_u32', 's_subb_u32')

def weave(main, side, budget=None, start=0, end=None):
    mf = [i for i, x in enumerate(main) if x.kind == 'mfma']
    end = len(mf) if end is None else end
    slots = mf[start:end]
    total = sum(x.cost() for x in side)
    out = S(); si = 0; acc = 0.0; done = 0
    per = total / max(1, len(slots))
    slotset = {p: k for k, p in enumerate(slots)}
    for i, x in enumerate(main):
        out.append(x)
        if i in slotset:
            acc += per
            last = slotset[i] == len(slots) - 1
            while si < len(side) and (last or glued(side[si]) or done + side[si].cost() / 2 <= acc):
                out.append(side[si]); done += side[si].cost(); si += 1
    assert si == len(side)
    return out

def finalize(ins, verbose=False):
    a = insert_waits(ins)
    b, n = insert_nops(a, verbose)
    return b, n

def text(ins):
    return '\n'.join(('' if x.kind == 'label' else '    ') + x.text for x in ins if x.kind != 'mark')


def lat(p, c):
    k = p.kind
    if k == 'valu': return 10
    if k == 'trans': return 14
    if k == 'salu': return 4
    if k == 'ds': return 110
    if k == 'vload': return 400
    if k == 'smem': return 200
    if k == 'mfma':
        if c.kind == 'mfma' and p.wr == c.srcC and not (p.wr & (c.srcA | c.srcB)): return 0
        return 4 * p.passes + 20
    return 4

MARGIN = 6
LIM = {'mark': 1, 'barrier': 1, 'wait': 1, 'dma': 8, 'vload': 8, 'vstore': 8, 'mfma': 14, 'ds': 16, 'asmem': 4}
def schedule(ins, window=32):
    n = len(ins)
    cls = []
    for x in ins:
        k = x.kind
        if k in ('branch', 'label', 'dir', 'nop'): c = ('fence',)
        elif k in ('mark', 'barrier', 'wait'): c = ('ds', 'vm', 'smem')
        elif k in VM_KINDS: c = ('vm',)
        elif k == 'asmem': c = ('smem', 'salu', 'vm')
        elif k == 'smem': c = ('smem', 'salu') if x.op.startswith('s_load') else ('fence',)
        elif k in ('ds', 'salu', 'mfma'): c = (k,)
        else: c = ()
        if set(EXEC) & x.wr: c = ('fence',)
        cls.append(c)
    preds = [[] for _ in range(n)]
    lastw = {}; readers = {}; lastc = {}; fence = -1; since = []
    for i, x in enumerate(ins):
        P = {}
        def add(j, l):
            if j is not None and j >= 0: P[j] = max(P.get(j, 0), l)
        for r in x.rd:
            j = lastw.get(r)
            if j is not None: add(j, lat(ins[j], x))
        for r in x.wr:
            j = lastw.get(r)
            if j is not None: add(j, lat(ins[j], x) if ins[j].kind in ('mfma',) and x.kind != 'mfma' else 0)
            for j in readers.get(r, ()): add(j, 4 * ins[j].passes if ins[j].kind == 'mfma' and x.kind in ('ds', 'vload') else 0)
        if 'fence' in cls[i]:
            for j in since: add(j, 0)
            add(fence, 0); fence = i; since = []
        else:
            add(fence, 0); since.append(i)
            if x.kind in ('ds', 'mark', 'barrier', 'wait', 'asmem') or x.kind in VM_KINDS: add(lastc.get('mfma'), 0)
            for c in cls[i]:
                j = lastc.get(c)
                add(j, 100 if (x.kind == 'mark' and x.lg == '*' and j is not None and ins[j].kind == 'ds') else 0); lastc[c] = i
        for r in x.rd: readers.setdefault(r, []).append(i)
        for r in x.wr: lastw[r] = i; readers[r] = []
        P.pop(i, None)
        preds[i] = list(P.items())
    issued = [None] * n
    out = S(); p = Pipe(); head = 0
    while head < n:
        cand = []; seen = 0; i = head; nextm = None
        while i < n and seen < window:
            if issued[i] is None:
                seen += 1
                x = ins[i]
                ok = True; rdy = 0
                for j, l in preds[i]:
                    if issued[j] is None: ok = False; break
                    rdy = max(rdy, issued[j] + l)
                lim = LIM.get(x.kind, window)
                if x.kind in ('mark', 'barrier'): lim = 10
                if ok and seen > lim: ok = False
                if x.kind == 'mfma' and nextm is None: nextm = (i, max(rdy, p.earliest(x)) if ok else None)
                if ok: cand.append((i, max(rdy, p.earliest(x))))
            i += 1
        t = p.t; best = None; bestkey = None
        for i, e in cand:
            x = ins[i]; k = x.kind
            fits = nextm is None or nextm[1] is None or i <= nextm[0] or e + x.cost() <= nextm[1] - MARGIN
            if k == 'mfma': key = (0, i) if e <= t + 3 else (6, e, i)
            elif not fits: key = (7, e, i)
            elif k in ('mark', 'label', 'dir'): key = (1, i) if e <= t else (6, e, i)
            elif k in ('salu', 'wait', 'barrier', 'branch', 'smem', 'asmem', 'nop'):
                key = ((2, i) if t < p.tm + 8 else (4, i)) if e <= t else (6, e, i)
            elif k == 'ds' or k in VM_KINDS:
                key = (3, i) if e <= max(t, p.tm + 8) else (6, e, i)
            else:
                key = (4, i) if e <= max(t, p.tm + 8) else (6, e, i)
            if bestkey is None or key < bestkey: best, bestkey, be = i, key, e
        x = ins[best]
        issued[best] = p.issue(x, be)
        out.append(x)
        while head < n and issued[head] is not None: head += 1
    out.cycles = max(p.t, p.mf)
    return out

import subprocess
def sizes(ins):
    real = [x for x in ins if x.kind not in ('label', 'dir', 'mark')]
    src = '\n'.join(re.sub(r'L_\w+', '0', x.text) if x.kind == 'branch' else x.text.replace('CODE_BYTES', '0x12345') for x in real)
    r = subprocess.run(['llvm-mc', '-triple=amdgcn-amd-amdhsa', '-mcpu=gfx950', '-show-encoding'], input=src, capture_output=True, text=True)
    enc = re.findall(r'encoding: \[([^\]]*)\]', r.stdout)
    assert len(enc) == len(real), (len(enc), len(real), r.stderr[:2000])
    return {id(x): len(e.split(',')) for x, e in zip(real, enc)}

NOWIDE = ('v_readfirstlane_b32', 'v_fmaak_f32', 'v_fmamk_f32', 'v_nop')
def align_pass(ins, start=0):
    sz = sizes(ins)
    out = []; off = start; nw = nn = 0
    cand = None
    for x in ins:
        if x.kind in ('label', 'dir', 'mark'): out.append(x); continue
        s = sz[id(x)]
        if s == 8 and off % 32 == 28:
            if cand is not None:
                y = out[cand]; parts = y.text.split(None, 1)
                z = I(parts[0].replace('_e32', '') + '_e64 ' + parts[1], y.tok); out[cand] = z; nw += 1
            elif any(y.kind == 'mfma' for y in out[-12:]):
                off -= 4
            else:
                z = I('s_nop 0'); z.note = 'align'
                k = len(out); o2 = off; pos = None
                while k > 0 and o2 % 32 != 0:
                    k -= 1
                    if out[k].kind in ('label', 'dir', 'mark'): continue
                    if out[k].kind == 'mfma' and (k + 1 == len(out) or out[k+1].kind not in ('salu', 'wait', 'nop', 'barrier')): pos = k + 1; break
                    o2 -= sz.get(id(out[k]), 4 if out[k].kind == 'nop' else 8)
                out.insert(len(out) if pos is None else pos, z); nn += 1
            off += 4; cand = None
        if off % 32 == 0: cand = None
        if s == 4 and x.kind in ('valu', 'trans') and x.op not in NOWIDE: cand = len(out)
        out.append(x); off += s
    return out, nw, nn, off

def place(main, groups, slots):
    out = S(); k = 0; m = -1
    for x in main:
        if x.kind == 'mfma':
            while k < len(groups) and slots[k] <= m: out.add(groups[k]); k += 1
            m += 1
        out.append(x)
    while k < len(groups): out.add(groups[k]); k += 1
    return out
```

```python
import sys, math, struct
from asmlib import *
import asmlib

NAME = "gated_mix__ssm_conv_s4__geglu_ffn__prompt"
OPT = dict(stamp=0, cl2=1, nst=6, sched=1, align=1, outsc=0, margin=6, npre=5, fstr=128, rx=2, hpf=1, mpf=1,
           slp=8, agw=1, f1=11, ntail=3, f2a=1, p2a=20, c2a=70, nha=2, nhx=0, wh2=105, c0=10, p2b=45, f3=7, p3=11, c3=0)
PROBE = None
STSEL = 'start,karg,setup,ka,kb,B0,B1,B2,tail,A2,exp,C,D1,D2,E'.split(',')
for a in sys.argv[2:]:
    k, v = a.split('=')
    if k == 'probe': PROBE = v.split(',')
    elif k == 'st': STSEL = v.split(',')
    else:
        assert k in OPT, k
        OPT[k] = int(v)
asmlib.MARGIN = OPT['margin']

def fbits(x): return struct.unpack('<I', struct.pack('<f', x))[0]
def hx(x): return hex(x & 0xffffffff)
vr = lambda a, n: f"v[{a}:{a+n-1}]" if n > 1 else f"v{a}"
ar = lambda a, n: f"a[{a}:{a+n-1}]" if n > 1 else f"a{a}"
sr = lambda a, n: f"s[{a}:{a+n-1}]" if n > 1 else f"s{a}"
LOG2E = math.log2(math.e)

NHELP = 32; NMAIN = 224
FS = OPT['fstr']; WS_F2 = 0xB00000; WS_F3 = WS_F2 + 256*FS
WS_G = 0x4000; WS_ST = 0x18000; WS_UT = 0x40000; WS_AT = 0x200000; WS_H = 0x400000; WS_END = 0xD00000
SLOT = 16384; NSLOT = 7
RING = 49152
SCR = 0; SCRW = 4352; SCRH = 4*SCRW
YA = 0; YAS = 8704
KFS = 4224; KF = SCRH
UTS = KF + 2*KFS; UTSW = 2048
UA = 2*SCRH; UAS = 4288
LDS_SIZE = 163840
assert UTS + 4*UTSW <= UA and UA + 2*UAS <= RING and RING + NSLOT*SLOT <= LDS_SIZE

sU, sAre, sAim, sBre, sBim, sCre, sCim, sLdt = 16, 18, 20, 22, 24, 26, 28, 30
sDsk, sBx, sWg, sWu, sWdn, sGw, sOut, sDbg, sWs = 32, 34, 36, 38, 40, 42, 44, 46, 48
rX, rW, rD, rWS, rO = 52, 56, 60, 64, 68
sW, sC, sXo, sWo, sDo = 3, 4, 5, 6, 7
sM0x, sM0w = 9, 10
sW1, sW2 = 11, 13
sT0, sT1 = 14, 15
sTmp = 16
sHst, sHld = 72, 73
sF2w, sF3w, sF2r, sF3r = 74, 75, 76, 77
sUTld, sATld, sGld, sOst = 78, 79, 80, 81
sLDv, sDSv = 82, 83
sScr = 84
sX_, sJ_, sMI, sII, sMB, sFC, sRB = 85, 86, 87, 88, 89, 90, 91
sK0, sK1 = 92, 94
sSpin = 96
sXe, sWe, sDe, sHe = 97, 98, 99, 51
sKb = 50
sOne, sPoll = 51, 99

vL16, vLane, vPoll, vZero, vG, vHs = 1, 2, 4, 5, 6, 7
vWd, vWr, vXd, vXr = 8, 12, 16, 20
vDd = 16
vDr, vUo, vUw, vH1, vH2 = 28, 32, 33, 34, 35
vTr, vK, vK1 = 42, 43, 82
vI, vKw = 20, 8
vFr, vGr, vYk, vYr, vYc = 36, 37, 38, 39, 40
AW, AR, AO, RW, RR, OW, OR_, OO = 42, 43, 20, 21, 22, 25, 26, 27
vWf = 48
vGt = 72; vC1 = 80; vGo = 84
PARK = list(range(92, 128)) + list(range(36, 42))
ACC1 = 128; ACC2 = 192
vU = ACC1
vS = 240
vPar = 83
DACC = 64; E0 = 48
sYw = 8

stamps = []; asyncst = []
def stamp(s, name):
    if PROBE and name in PROBE:
        s(f"s_memrealtime {sr(100,2)}\ns_waitcnt lgkmcnt(0)\ns_mov_b32 s{12 if name == PROBE[1] else 86}, s100")
    if OPT['stamp'] and name in STSEL:
        k = len(stamps); stamps.append(name)
        op = 's_memtime' if OPT['stamp'] == 1 else 's_memrealtime'
        if name in ('start', 'karg', 'setup'): s(f"{op} {sr(100,2)}\ns_waitcnt lgkmcnt(0)\nv_writelane_b32 v47, s100, {k}")
        else:
            asyncst.append(k); assert len(asyncst) <= 14
            s(f"{op} {sr(16+2*len(asyncst),2)}", "async")

slow = []
def poll(thr, base, off):
    k = len(slow)
    iss = S(); iss(f"s_mov_b32 s{sPoll}, 0"); iss(f"s_load_dword s{sPoll}, {sr(base,2)}, {off}", "async")
    chk = S(); chk(f"s_cmp_lt_u32 s{sPoll}, {thr}\ns_cbranch_scc1 L_slow{k}\nL_back{k}:")
    back = f"L_out{k}" if OPT['stamp'] else f"L_back{k}"
    slow.append(f"""L_slow{k}:
    {'s_memtime s[100:101]' if OPT['stamp'] else ''}
    s_mov_b32 s{sKb}, 0
    s_waitcnt lgkmcnt(0)
    s_cmp_ge_u32 s{sPoll}, {thr}
    s_cbranch_scc1 {back}
    v_mov_b32 v{vZero}, {off}
L_spin{k}:
    global_load_dword v{vPoll}, v{vZero}, {sr(base,2)} sc1
    s_add_u32 s{sKb}, s{sKb}, 1
    s_cmp_gt_u32 s{sKb}, 0x40000
    s_cbranch_scc1 {back}
    s_waitcnt vmcnt(0)
    v_readfirstlane_b32 s{sPoll}, v{vPoll}
    s_nop 0
    s_cmp_ge_u32 s{sPoll}, {thr}
    s_cbranch_scc1 {back}
    s_sleep {OPT['slp']}
    s_branch L_spin{k}""" + (f"""
L_out{k}:
    s_mov_b32 s12, s100
    s_memtime s[100:101]
    s_waitcnt lgkmcnt(0)
    s_sub_u32 s12, s100, s12
    v_writelane_b32 v47, s12, {20+k}
    v_writelane_b32 v47, s{sKb}, {25+k}
    s_branch L_back{k}""" if OPT['stamp'] else ""))
    return iss, chk
def flag(soff): return f"s_atomic_add s{sOne}, {sr(sWs,2)}, s{soff}"
def srd(r, p, n): return f"s_mov_b32 s{r}, s{p}\ns_mov_b32 s{r+1}, s{p+1}\ns_mov_b32 s{r+2}, {n}\ns_mov_b32 s{r+3}, 0x20000"

def setup_early():
    s = S(); a, b, c, d, e, f = range(vS, vS+6)
    s(f"""
    v_lshrrev_b32 v{a}, 6, v0
    v_and_b32 v{vLane}, 63, v0
    s_sub_u32 s{sC}, s2, {NHELP}
    v_readfirstlane_b32 s{sW}, v{a}
    s_lshl_b32 s{sT0}, s{sC}, 10
    v_lshl_add_u32 v{vPar}, v0, 2, s{sT0}
    v_lshlrev_b32 v{vL16}, 4, v{vLane}
    s_and_b32 s{sX_}, s{sC}, 7
    s_lshr_b32 s{sJ_}, s{sC}, 3
    s_and_b32 s{sMI}, s{sJ_}, 3
    s_lshr_b32 s{sII}, s{sJ_}, 2
    s_and_b32 s{sMB}, s{sX_}, 6
    s_lshl1_add_u32 s{sMB}, s{sMB}, s{sMI}
    s_and_b32 s{sT0}, s{sX_}, 1
    s_lshr_b32 s{sKb}, s{sX_}, 1
    s_mul_i32 s{sKb}, s{sKb}, {OPT['rx']}
    s_mul_i32 s{sFC}, s{sT0}, 7
    s_add_u32 s{sFC}, s{sFC}, s{sII}
    s_lshl2_add_u32 s{sRB}, s{sX_}, s{sMI}
    s_and_b32 s{sW1}, s{sW}, 1
    s_lshr_b32 s{sW2}, s{sW}, 1
    s_lshl_b32 s{sM0x}, s{sW}, 12
    s_add_u32 s{sM0x}, s{sM0x}, {RING}
    s_lshl2_add_u32 s{sT0}, s{sMB}, s{sW}
    s_mul_i32 s{sXo}, s{sT0}, {32*896}
    s_mul_i32 s{sWo}, s{sW2}, {32*3584}
    s_lshl_b32 s{sT0}, s{sFC}, 7
    s_add_u32 s{sWo}, s{sWo}, s{sT0}
    s_add_u32 s{sXe}, s{sXo}, 896
    s_add_u32 s{sWe}, s{sWo}, {448*3584}
    s_lshl_b32 s{sT0}, s{sKb}, 7
    s_add_u32 s{sXo}, s{sXo}, s{sT0}
    s_mul_i32 s{sT0}, s{sKb}, {64*3584}
    s_add_u32 s{sWo}, s{sWo}, s{sT0}
    s_lshl1_add_u32 s{sT0}, s{sW1}, s{sW2}
    s_lshl_b32 s{sM0w}, s{sT0}, 12
    s_add_u32 s{sM0w}, s{sM0w}, {RING}
    s_lshl_b32 s{sT1}, s{sW1}, 2
    v_lshrrev_b32 v{a}, 3, v{vLane}
    v_and_b32 v{b}, 7, v{vLane}
    v_lshrrev_b32 v{c}, 4, v{vLane}
    v_mul_u32_u24 v{e}, 896, v{a}
    v_xor_b32 v{d}, v{b}, v{c}
    v_and_b32 v{c}, 1, v{c}
    v_lshl_add_u32 v{vXd}, v{d}, 4, v{e}
    v_lshl_or_b32 v{f}, v{c}, 1, s{sT1}
    v_xor_b32 v{d}, 64, v{vXd}
    v_add_u32 v{vXd+2}, {2*(8*896-1024)}, v{vXd}
    v_xor_b32 v{f}, v{b}, v{f}
    v_add_u32 v{vXd+1}, {8*896-1024}, v{d}
    v_add_u32 v{vXd+3}, {3*(8*896-1024)}, v{d}
    v_lshlrev_b32 v{f}, 4, v{f}
    v_lshl_add_u32 v{vWd}, v{e}, 2, v{f}
    v_add_u32 v{vWd+1}, {1*(8*3584-1024)}, v{vWd}
    v_add_u32 v{vWd+2}, {2*(8*3584-1024)}, v{vWd}
    v_add_u32 v{vWd+3}, {3*(8*3584-1024)}, v{vWd}
    """)
    return s

def setup_scalar():
    s = S()
    s(f"""
    s_mul_i32 s{sScr}, s{sW}, {SCRW}
    ; h store / F2 write
    s_lshl1_add_u32 s{sT0}, s{sMB}, s{sW2}
    s_lshl1_add_u32 s{sT1}, s{sFC}, s{sW1}
    s_mul_i32 s{sHst}, s{sT0}, 112
    s_add_u32 s{sHst}, s{sHst}, s{sT1}
    s_lshl_b32 s{sHst}, s{sHst}, 11
    s_add_u32 s{sHst}, s{sHst}, {WS_H}
    s_mul_i32 s{sSpin}, s{sT1}, 37
    s_lshr_b32 s{sSpin}, s{sSpin}, 8
    s_lshl2_add_u32 s{sT0}, s{sT0}, s{sSpin}
    s_mul_i32 s{sT0}, s{sT0}, {FS}
    s_add_u32 s{sF2w}, s{sT0}, {WS_F2}
    s_mov_b32 s{sOne}, 1
    s_mul_i32 s{sT0}, s{sW}, 7
    s_mul_i32 s{sHld}, s{sRB}, 112
    s_add_u32 s{sHld}, s{sHld}, s{sT0}
    s_lshl_b32 s{sHld}, s{sHld}, 11
    s_add_u32 s{sHld}, s{sHld}, {WS_H}
    s_lshl2_add_u32 s{sT1}, s{sRB}, s{sW}
    s_mul_i32 s{sF2r}, s{sT1}, {FS}
    s_add_u32 s{sF2r}, s{sF2r}, {WS_F2}
    s_mul_i32 s{sDo}, s{sW}, {224*896}
    s_lshl_b32 s{sT1}, s{sII}, 7
    s_add_u32 s{sDo}, s{sDo}, s{sT1}
    ; uT load / aT store
    s_mul_i32 s{sUTld}, s{sW}, {8*57344}
    s_lshl_b32 s{sT1}, s{sC}, 8
    s_add_u32 s{sUTld}, s{sUTld}, s{sT1}
    s_add_u32 s{sUTld}, s{sUTld}, {WS_UT}
    s_lshr_b32 s{sT0}, s{sC}, 5
    s_lshl2_add_u32 s{sT0}, s{sT0}, s{sW}
    s_bfe_u32 s{sT1}, s{sC}, 0x10004
    s_lshl1_add_u32 s{sT0}, s{sT0}, s{sT1}
    s_mul_i32 s{sT0}, s{sT0}, {FS}
    s_add_u32 s{sF3w}, s{sT0}, {WS_F3}
    s_lshr_b32 s{sT0}, s{sRB}, 3
    s_lshl2_add_u32 s{sT0}, s{sII}, s{sT0}
    s_lshl1_add_u32 s{sT0}, s{sT0}, s{sW1}
    s_mul_i32 s{sF3r}, s{sT0}, {FS}
    s_add_u32 s{sF3r}, s{sF3r}, {WS_F3}
    ; aT load, out store, g load
    s_lshl1_add_u32 s{sT0}, s{sII}, s{sW1}
    s_mul_i32 s{sT1}, s{sRB}, 57344
    s_lshl_b32 s{sATld}, s{sT0}, 6
    s_add_u32 s{sOst}, s{sATld}, s{sT1}
    s_add_u32 s{sATld}, s{sATld}, s{sW2}
    s_lshl_b32 s{sATld}, s{sATld}, 6
    s_add_u32 s{sATld}, s{sATld}, s{sT1}
    s_add_u32 s{sATld}, s{sATld}, {WS_AT}
    s_mul_i32 s{sT0}, s{sW2}, {32*896}
    s_add_u32 s{sOst}, s{sOst}, s{sT0}
    s_lshl1_add_u32 s{sT0}, s{sRB}, s{sW2}
    s_lshl_b32 s{sGld}, s{sT0}, 7
    s_add_u32 s{sGld}, s{sGld}, {WS_G}
    """)
    return s

P_RAW = 232
def first_loads():
    s = S()
    s(f"""
    s_lshl_b32 s{sT0}, s{sC}, 2
    global_load_dword v{P_RAW+0}, v{vPar}, {sr(sAre,2)}
    global_load_dword v{P_RAW+1}, v{vPar}, {sr(sAim,2)}
    s_load_dword s{sLDv}, {sr(sLdt,2)}, s{sT0}
    s_load_dword s{sDSv}, {sr(sDsk,2)}, s{sT0}
    global_load_dword v{P_RAW+2}, v{vPar}, {sr(sBre,2)}
    global_load_dword v{P_RAW+3}, v{vPar}, {sr(sBim,2)}
    global_load_dword v{P_RAW+4}, v{vPar}, {sr(sCre,2)}
    global_load_dword v{P_RAW+5}, v{vPar}, {sr(sCim,2)}
    {srd(rX, sU, 2048*896)}
    s_cmp_eq_u32 s{sW1}, 1
    s_cselect_b32 s{rW}, s{sWu}, s{sWg}
    s_cselect_b32 s{rW+1}, s{sWu+1}, s{sWg+1}
    s_mov_b32 s{rW+2}, {448*3584}
    s_mov_b32 s{rW+3}, 0x20000
    """)
    return s

def setup_AB():
    s = S(); a, b, c, d, e, f, g, h = range(vS, vS+8)
    s(f"""
    {srd(rD, sWdn, 1792*896)}
    {srd(rWS, sWs, WS_END)}
    {srd(rO, sOut, 2048*896)}
    v_and_b32 v{a}, 31, v{vLane}
    s_lshl_b32 s{sT0}, s{sW2}, 13
    s_add_u32 s{sT0}, s{sT0}, {RING}
    v_lshl_add_u32 v{a}, v{a}, 7, s{sT0}
    v_bfe_u32 v{g}, v{vLane}, 1, 3
    v_lshrrev_b32 v{h}, 5, v{vLane}
    v_xor_b32 v{g}, v{g}, v{h}
    v_lshl_add_u32 v{vXr}, v{g}, 4, v{a}
    v_xor_b32 v{vXr+1}, 32, v{vXr}
    v_xor_b32 v{vXr+2}, 64, v{vXr}
    v_xor_b32 v{vXr+3}, 96, v{vXr}
    v_add_u32 v{vXr+4}, 0x10000, v{vXr}
    v_add_u32 v{vXr+5}, 0x10000, v{vXr+1}
    v_add_u32 v{vXr+6}, 0x10000, v{vXr+2}
    v_add_u32 v{vXr+7}, 0x10000, v{vXr+3}
    v_bfe_u32 v{a}, v{vLane}, 2, 2
    v_and_b32 v{b}, 3, v{vLane}
    v_bfe_u32 v{d}, v{vLane}, 4, 1
    v_bfe_u32 v{e}, v{vLane}, 3, 2
    s_lshl_b32 s{sT0}, s{sW1}, 1
    v_xor_b32 v{e}, s{sT0}, v{e}
    s_mov_b32 s{sT1}, {RING}
    v_lshl_add_u32 v{b}, v{b}, 3, s{sT1}
    v_lshl_add_u32 v{a}, v{h}, 3, v{a}
    v_lshl_add_u32 v{e}, v{e}, 5, v{b}
    v_lshl_add_u32 v{a}, v{d}, 6, v{a}
    v_lshl_add_u32 v{vWr}, v{a}, 7, v{e}
    v_xor_b32 v{vWr+1}, 32, v{vWr}
    v_add_u32 v{vWr+2}, 0x10000, v{vWr}
    v_add_u32 v{vWr+3}, 0x10000, v{vWr+1}
    """)
    return s

def setup_start2():
    s = S(); a, b, c, d, e, f, g, h = range(vS, vS+8)
    c0 = -2*math.sqrt(2/math.pi)*LOG2E
    s(f"""
    v_and_b32 v{a}, 15, v{vLane}
    v_lshrrev_b32 v{b}, 4, v{vLane}
    v_bfe_u32 v{e}, v{vLane}, 3, 1
    v_mul_u32_u24 v{c}, 544, v{a}
    v_lshl_add_u32 v{d}, v{b}, 4, s{sScr}
    v_mul_u32_u24 v{e}, {SCRH-8*544}, v{e}
    v_add3_u32 v{vTr}, v{c}, v{d}, v{e}
    v_lshl_add_u32 v{c}, v{b}, 7, v{a}
    s_add_u32 s{sT0}, s{sScr}, 2048
    v_lshl_add_u32 v{vK1}, v{c}, 2, s{sT0}
    v_max_u32 v{c}, 1, v{b}
    v_sub_u32 v{c}, 6, v{c}
    v_lshlrev_b32 v{e}, v{c}, v{a}
    v_cmp_gt_u32 vcc, 2, v{b}
    v_lshl_add_u32 v{f}, v{b}, 9, s{sScr}
    v_cndmask_b32 v{f}, v{f}, v{d}, vcc
    v_add_u32 v{vK}, v{f}, v{e}
    v_cmp_eq_u32 vcc, 3, v{b}
    v_mov_b32 v{e}, 256
    v_lshlrev_b32 v{c}, v{c}, 16
    v_cndmask_b32 v{e}, 8, v{e}, vcc
    v_add_u32 v{vK+2}, v{vK}, v{c}
    v_add_u32 v{vK+1}, v{vK}, v{e}
    v_add_u32 v{vK+3}, v{vK+2}, v{e}
    s_mov_b32 s{sK0}, {hx(fbits(c0))}
    s_mov_b32 s{sK0+1}, {hx(fbits(c0))}
    s_mov_b32 s{sK1}, 1.0
    s_mov_b32 s{sK1+1}, 1.0
    v_mov_b32 v{vC1}, {hx(fbits(c0*0.044715))}
    v_mov_b32 v{vC1+1}, {hx(fbits(c0*0.044715))}
    v_add_u32 v{vHs}, {112*1024}, v{vL16}
    v_lshrrev_b32 v{a}, 3, v{vLane}
    v_and_b32 v{b}, 7, v{vLane}
    v_mul_u32_u24 v{a}, 57344, v{a}
    v_lshlrev_b32 v{vUw}, 4, v0
    v_lshl_add_u32 v{vUo}, v{b}, 4, v{a}
    v_mov_b32 v{c}, 0
    v_min_u32 v{d}, 39, v{vLane}
    v_lshlrev_b32 v{d}, 2, v{d}
    ds_write_b32 v{d}, v{c} offset:{UA}
    ds_write_b32 v{d}, v{c} offset:{UA+UAS}
    v_bfe_u32 v{a}, v{vLane}, 2, 2
    v_and_b32 v{b}, 3, v{vLane}
    v_lshrrev_b32 v{g}, 5, v{vLane}
    v_bfe_u32 v{h}, v{vLane}, 4, 1
    v_and_or_b32 v{e}, v{a}, 2, v{h}
    s_lshl_b32 s{sT0}, s{sW1}, 1
    v_lshl_add_u32 v{f}, v{g}, 2, v{a}
    v_xor_b32 v{e}, s{sT0}, v{e}
    v_lshl_add_u32 v{g}, v{b}, 3, s{sM0x}
    v_lshl_add_u32 v{g}, v{f}, 7, v{g}
    v_lshl_add_u32 v{vDr}, v{e}, 5, v{g}
    v_xor_b32 v{vDr+1}, 64, v{vDr}
    v_add_u32 v{vDr+2}, 0x10000, v{vDr}
    v_add_u32 v{vDr+3}, 0x10000, v{vDr+1}
    s_mul_i32 s{sT0}, s{sW2}, {112*1024}
    v_add_u32 v{vH1}, s{sT0}, v{vL16}
    v_subrev_u32 v{vH2}, s{sT0}, v{vHs}
    v_and_b32 v{vG}, 31, v{vLane}
    v_lshlrev_b32 v{vG}, 2, v{vG}
    """)
    return s

def wd_touch():
    s = S()
    s(f"""s_lshl2_add_u32 s{sT0}, s{sC}, s{sW}
    s_mul_i32 s{sT0}, s{sT0}, {14*128}
    v_min_u32 v{vPoll}, 13, v{vLane}
    v_lshlrev_b32 v{vPoll}, 7, v{vPoll}
    buffer_load_dword v{vZero}, v{vPoll}, {sr(rD,4)}, s{sT0} offen""")
    return s

def setup_dd():
    s = S(); a, b, c = range(vS, vS+3)
    s(f"""
    v_lshrrev_b32 v{a}, 3, v{vLane}
    v_and_b32 v{b}, 7, v{vLane}
    v_bfe_u32 v{c}, v{vLane}, 4, 1
    v_mul_u32_u24 v{a}, 896, v{a}
    v_lshlrev_b32 v{c}, 2, v{c}
    v_xor_b32 v{b}, v{b}, v{c}
    v_lshl_add_u32 v{vDd}, v{b}, 4, v{a}
    v_add_u32 v{vDd+1}, {1*(8*896-1024)}, v{vDd}
    v_add_u32 v{vDd+2}, {2*(8*896-1024)}, v{vDd}
    v_add_u32 v{vDd+3}, {3*(8*896-1024)}, v{vDd}""")
    return s

def setup_exp():
    s = S(); a, b, c, d, e, f, g, h = range(64, 72)
    s(f"""v_lshlrev_b32 v{vKw}, 2, v0
    v_cvt_f32_u32 v{a}, v0
    s_mov_b32 s{sT0}, {hx(SCR - 4*17024)}
    v_add_f32 v{a}, v{a}, v{a}""")
    for e_ in range(4):
        p, q = (b, c) if e_ % 2 == 0 else (d, e)
        s(f"""v_add_f32 v{p}, {hx(fbits(512.0*e_))}, v{a}
        v_add_f32 v{q}, {hx(fbits(512.0*e_+1))}, v{a}
        v_cvt_pk_bf16_f32 v{p}, v{p}, v{q}
        v_lshrrev_b32 v{q}, 16, v{p}
        v_and_b32 v{p}, 0xffff, v{p}
        v_lshl_add_u32 v{vI+2*e_+1}, v{q}, 2, s{sT0}
        v_lshl_add_u32 v{vI+2*e_}, v{p}, 2, s{sT0}""")
    s(f"""v_cmp_gt_u32 vcc, 64, v0
    v_lshlrev_b32 v{f}, 3, v0
    v_add_u32 v{g}, 4, v{f}
    v_cndmask_b32 v{vI}, v{vI}, v{f}, vcc
    v_cndmask_b32 v{vI+1}, v{vI+1}, v{g}, vcc
    v_mov_b32 v9, 0
    v_min_u32 v10, 23, v{vLane}
    v_lshlrev_b32 v10, 2, v10""")
    return s

def setup_conv():
    s = S(); a, b, c, d, e, f, g, h = range(72, 80)
    s(f"""
    v_lshrrev_b32 v{a}, 3, v0
    v_and_b32 v{b}, 7, v0
    v_mul_u32_u24 v{e}, 272, v{a}
    v_cmp_eq_u32 vcc, 0, v{b}
    v_cmp_ne_u32 {sr(sTmp,2)}, 0, v{a}
    v_lshl_add_u32 v{vYr}, v{b}, 5, v{e}
    s_and_b64 vcc, vcc, {sr(sTmp,2)}
    v_mov_b32 v{f}, {UA}
    v_add_u32 v{g}, {YAS-16}, v{e}
    v_add_u32 v{e}, -16, v{e}
    v_cndmask_b32 v{vYc+1}, v{f}, v{g}, vcc
    v_cndmask_b32 v{vYc}, v{f}, v{e}, vcc
    v_bfe_u32 v{a}, v{vLane}, 2, 2
    v_and_b32 v{b}, 3, v{vLane}
    v_lshrrev_b32 v{c}, 4, v{vLane}
    v_lshl_add_u32 v{c}, v{c}, 3, v{a}
    v_lshlrev_b32 v{c}, 3, v{c}
    s_mul_i32 s{sT0}, s{sW2}, {KFS}
    s_add_u32 s{sT0}, s{sT0}, {KF}
    v_lshl_add_u32 v{d}, v{b}, 5, s{sT0}
    v_add_u32 v{vFr}, v{d}, v{c}
    s_mul_i32 s{sT0}, s{sW2}, {UAS}
    s_lshl_b32 s{sT1}, s{sW1}, 7
    s_add_u32 s{sT0}, s{sT0}, s{sT1}
    s_add_u32 s{sT0}, s{sT0}, {UA+160+96-32}
    v_lshl_add_u32 v{h}, v{b}, 3, s{sT0}
    v_sub_u32 v{vGr}, v{h}, v{c}
    s_mul_i32 s{sT0}, s{sW2}, {YAS}
    s_mul_i32 s{sT1}, s{sW1}, 272
    s_add_u32 s{sYw}, s{sT0}, s{sT1}
    s_add_u32 s{sT0}, s{sYw}, {hx(256-48*544)}
    v_mov_b32 v{e}, 544
    v_add_u32 v{g}, {UTS}, v{vL16}
    v_cmp_lt_u32 vcc, 47, v{vLane}
    v_mad_u32_u24 v{e}, v{e}, v{vLane}, s{sT0}
    v_cndmask_b32 v{vYk}, v{g}, v{e}, vcc
    """)
    return s

def setup_E():
    t = S(); a, b, c, d = 12, 13, 14, 15
    t(f"""
    v_lshrrev_b32 v{a}, 2, v{vLane}
    v_and_b32 v{b}, 3, v{vLane}
    s_lshl_b32 s{sT1}, s{sW}, 11
    s_add_u32 s{sT1}, s{sT1}, {UTS}
    v_lshl_add_u32 v{c}, v{b}, 3, s{sT1}
    v_add_u32 v{AW}, s{sT1}, v{vL16}
    v_lshlrev_b32 v{b}, 4, v{b}
    v_mul_u32_u24 v{OO}, 896, v{a}
    v_mul_u32_u24 v{OR_}, 80, v{a}
    v_lshl_add_u32 v{AO}, v{a}, 7, v{b}
    v_add_u32 v{OO}, v{OO}, v{b}
    v_add3_u32 v{OR_}, v{OR_}, v{b}, s{sM0x}
    v_and_b32 v{a}, 3, v{a}
    v_bfe_u32 v{d}, v{vLane}, 4, 1
    v_lshl_add_u32 v{c}, v{a}, 6, v{c}
    v_lshrrev_b32 v{b}, 5, v{vLane}
    v_lshl_add_u32 v{c}, v{d}, 5, v{c}
    v_add_u32 v{RW}, s{sM0x}, v{vL16}
    v_lshl_add_u32 v{AR}, v{b}, 8, v{c}
    v_and_b32 v{a}, 31, v{vLane}
    v_xor_b32 v{RR}, 0x1000, v{RW}
    v_xor_b32 v{RR+1}, 0x2000, v{RW}
    v_xor_b32 v{RR+2}, 0x3000, v{RW}
    v_mul_u32_u24 v{a}, 80, v{a}
    v_lshl_add_u32 v{b}, v{b}, 3, s{sM0x}
    v_add_u32 v{OW}, v{a}, v{b}
    v_and_b32 v8, 0xffff, v{vG}
    v_lshlrev_b32 v9, 16, v{vG}
    v_and_b32 v10, 0xffff0000, v{vG}
    v_and_b32 v11, 0xffff0000, v{vG}
    """)
    return t

USLOT = [0, 1, 2, 0, 3, 1, 4, 2, 5, 0, 3, 6, 1, 4]
def adv(s, so, step, en, span, extra):
    s(f"""s_add_u32 s{so}, s{so}, {step}
    s_cmp_eq_u32 s{so}, s{en}
    s_cselect_b32 s{sSpin}, {span}, 0
    s_sub_u32 s{so}, s{so}, s{sSpin}""")
    if extra: s(f"s_add_u32 s{so}, s{so}, {extra}\ns_add_u32 s{en}, s{en}, {extra}")

def item(n):
    if n < 14 and n % 2 == 0: m0, va, rs, so, step, en, ex = sM0x, vXd, rX, sXo, 128, sXe, 0
    elif n < 21: m0, va, rs, so, step, en, ex = sM0w, vWd, rW, sWo, 64*3584, sWe, (1792 if n == 13 else 0)
    else: m0, va, rs, so, step, en, ex = sM0x, vDd, rD, sDo, 32*896, sDe, (896*896 if n == 27 else 0)
    s = S()
    s(f"s_add_u32 m0, s{m0}, {(n % NSLOT if n < 21 else USLOT[n-21])*SLOT}")
    for q in range(4):
        s(f"buffer_load_dwordx4 v{va+q}, {sr(rs,4)}, s{so} offen offset:{1024*q} lds", f"it{n}")
    if n >= 21:
        if n != 34: s(f"s_add_u32 s{so}, s{so}, {step if n != 27 else (896-6*32)*896}")
    elif n not in (12, 20): adv(s, so, step, en, 7*step, ex)
    return s

def split_vm(st):
    grp = []
    for x in st:
        if not grp or (x.kind in VM_KINDS and any(y.kind in VM_KINDS for y in grp[-1])): grp.append(S())
        grp[-1].append(x)
    return grp

def sprinkle(main, groups, lo=0.0, hi=1.0):
    out = S(); n = len(main); g = 0
    pos = [int(n*(lo + (hi-lo)*k/max(1, len(groups)))) for k in range(len(groups))]
    for i, x in enumerate(main):
        while g < len(groups) and pos[g] <= i and not glued(x):
            out.add(groups[g]); g += 1
        out.append(x)
    while g < len(groups): out.add(groups[g]); g += 1
    return out

NEG = "neg_lo:[1,0,0] neg_hi:[1,0,0]"
def cmul(s, d, x, z, pk):
    assert d != x and d != z
    if pk:
        s(f"""v_pk_mul_f32 {vr(d,2)}, {vr(x,2)}, {vr(z,2)}
        v_pk_mul_f32 {vr(d+2,2)}, {vr(x,2)}, {vr(z+2,2)}
        v_pk_fma_f32 {vr(d,2)}, {vr(x+2,2)}, {vr(z+2,2)}, {vr(d,2)} {NEG}
        v_pk_fma_f32 {vr(d+2,2)}, {vr(x+2,2)}, {vr(z,2)}, {vr(d+2,2)}""")
    else:
        for k in range(2): s(f"v_mul_f32 v{d+k}, v{x+k}, v{z+k}")
        for k in range(2): s(f"v_mul_f32 v{d+2+k}, v{x+k}, v{z+2+k}")
        for k in range(2): s(f"v_fma_f32 v{d+k}, -v{x+2+k}, v{z+2+k}, v{d+k}")
        for k in range(2): s(f"v_fmac_f32 v{d+2+k}, v{x+2+k}, v{z+k}")

def tile_w(t, regs, n):
    for r in range(n):
        for h in range(2):
            t(f"ds_write_addtid_b32 {regs(2*r+h)} offset:{(r&7)*544+(r>>3)*SCRH+256*h}")

def krows():
    s = S()
    R = ACC1
    A_, B_, C_, Dt, T = R, R+4, R+8, R+12, R+16
    Z8, Z1, Z256, W, Z16, Z2, Z512 = [R+28+4*k for k in range(7)]
    E = [R, R+4, R+8, R+12]; V = [R+16, R+20, R+24, R+56, R+60]
    for k in range(6):
        s(f"v_lshlrev_b32 v{R+2*k}, 16, v{P_RAW+k}\nv_and_b32 v{R+2*k+1}, 0xffff0000, v{P_RAW+k}")
    s(f"""
    s_lshl_b32 s{sT1}, s{sW2}, 4
    s_lshr_b32 s{sT1}, s{sLDv}, s{sT1}
    s_lshl_b32 s{sT1}, s{sT1}, 16
    v_mov_b32 v{Dt}, {hx(fbits(LOG2E))}
    v_mul_f32 v{Dt}, s{sT1}, v{Dt}
    v_exp_f32 v{Dt}, v{Dt}
    v_cvt_pk_bf16_f32 v{Dt}, 0, v{Dt}
    v_mov_b32 v{Dt+1}, v{Dt}
    """)
    for k in (A_, A_+2, B_, B_+2): s(f"v_pk_mul_f32 {vr(k,2)}, {vr(k,2)}, {vr(Dt,2)}")
    def prim(p, z, t):
        c1 = hx(fbits(p*LOG2E)); c2 = hx(fbits(p/(2*math.pi)))
        for k in range(2): s(f"v_mul_f32 v{t+k}, {c1}, v{A_+k}\nv_mul_f32 v{t+2+k}, {c2}, v{A_+2+k}")
        for k in range(2): s(f"v_exp_f32 v{t+k}, v{t+k}\nv_fract_f32 v{t+2+k}, v{t+2+k}")
        for k in range(2): s(f"v_cos_f32 v{z+k}, v{t+2+k}\nv_sin_f32 v{z+2+k}, v{t+2+k}")
        s(f"v_pk_mul_f32 {vr(z,2)}, {vr(z,2)}, {vr(t,2)}\nv_pk_mul_f32 {vr(z+2,2)}, {vr(z+2,2)}, {vr(t,2)}")
    prim(1, Z1, T); prim(256, Z256, T+4); prim(8, Z8, T+8)
    cmul(s, W, C_, B_, 1)
    def row(t, o0, o1, x, neg):
        m = '-' if neg else ''
        t(f"v_cvt_pk_bf16_f32 v{o0}, v{x}, v{x+1}\nv_cvt_pk_bf16_f32 v{o1}, {m}v{x+2}, {m}v{x+3}")
    cmul(s, Z2, Z1, Z1, 1); cmul(s, Z512, Z256, Z256, 1); cmul(s, Z16, Z8, Z8, 1)
    S0, S1 = V[3], V[4]
    ops = [(None, W, None, 0), (V[0], W, Z1, 1),
           (V[1], W, Z2, 2), (Z1, V[0], Z2, 3),
           (V[2], W, Z256, 8), (V[0], V[1], Z256, 9),
           (S0, W, Z512, 12), (S1, V[2], Z512, 14),
           (W, V[1], Z2, 4), (V[0], Z1, Z2, 5),
           (V[1], W, Z2, 6), (Z1, V[0], Z2, 7),
           (V[2], W, Z256, 10), (V[0], V[1], Z256, 11),
           (Z1, W, Z512, 13), (V[1], V[2], Z512, 15),
           (V[0], S0, Z512, 16), (V[2], S1, Z512, 17), (S0, V[0], Z512, 18), (S1, V[2], Z512, 19), (V[0], S0, Z512, 20)]
    for d, x, z, r in ops:
        if d is not None: cmul(s, d, x, z, 1)
        o = (ACC2+2*r, ACC2+2*r+1) if r < 16 else (PARK[2*r], PARK[2*r+1])
        row(s, o[0], o[1], x if d is None else d, 1)
    w = S()
    w(f"s_mov_b32 m0, s{sScr}")
    tile_w(w, lambda k: f"v{ACC2+k}", 16)
    b = S(); mv = S()
    b(f"v_mov_b32 v{PARK[0]}, 0x3f803f80\nv_mov_b32 v{PARK[1]}, 0")
    row(b, PARK[2], PARK[3], Z8, 0); row(b, PARK[4], PARK[5], Z16, 0)
    cur = {0: Z16, 1: Z8}
    for i in range(3, 32):
        nx = E[i % 4]
        cmul(b, nx, cur[i % 2], Z16, 1)
        if i < 16: row(b, PARK[2*i], PARK[2*i+1], nx, 0)
        else: row(b, ACC2+2*i, ACC2+2*i+1, nx, 0)
        cur[i % 2] = nx
    for k in range(32): mv(f"v_accvgpr_write_b32 a{224+k}, v{ACC2+32+k}")
    return s, w, b, mv

def stageA():
    p = S()
    fr = {0: ACC2, 1: ACC2+32, 2: ACC1+32, 3: ACC1}
    def rd(t, k):
        for ks in range(8): t(f"ds_read_b128 {vr(fr[k]+4*ks,4)}, v{vTr} offset:{64*ks}")
    D = [48, 52, 56, 60]
    def mm(at, bt):
        t = S()
        for ks in range(8):
            d = vr(D[2*at+bt], 4)
            t(f"v_mfma_f32_16x16x32_bf16 {d}, {vr(fr[2+at]+4*ks,4)}, {vr(fr[bt]+4*ks,4)}, {d if ks else 0}")
        return t
    p(f"s_mov_b32 m0, s{sScr}")
    rd(p, 2)
    p(f"ds_write_b128 v{vUw}, {vr(vU,4)} offset:{UA+160}\nds_write_b128 v{vUw}, {vr(vU+4,4)} offset:{UA+160+UAS}")
    tile_w(p, lambda k: f"v{PARK[32+k]}", 5); rd(p, 3)
    tile_w(p, lambda k: f"v{PARK[k]}", 16); rd(p, 0)
    va = chunks(setup_exp().add(setup_conv()), 5)
    p = sprinkle(p, va, 0.35, 1.0)
    t = S()
    if OPT['agw'] == 0: tile_w(t, lambda k: f"a{224+k}", 16)
    else:
        p(f"v_lshl_add_u32 v11, v{vLane}, 2, s{sScr}")
        for r in range(16):
            for h in range(2): t(f"ds_write_b32 v11, a{224+2*r+h} offset:{(r&7)*544+(r>>3)*SCRH+256*h}")
    t[-1].tok = "b1w"; rd(t, 1)
    p.add(t[:8]).add(weave(mm(0, 0).add(mm(1, 0)), S(t[8:])))
    def pl0(bt): return f"ds_write_b64 v{vK+2*bt}, {vr(D[bt],2)}\nds_write_b64 v{vK+2*bt+1}, {vr(D[bt]+2,2)}"
    def pl1(bt): return "\n".join(f"ds_write2_b32 v{vK1}, v{D[2+bt]+jj}, v{D[2+bt]+jj+1} offset0:{16*bt+32*jj} offset1:{16*bt+32*jj+32}" for jj in (0, 2))
    p(pl0(0))
    p.add(weave(mm(0, 1), S()(pl1(0)), start=2)).add(weave(mm(1, 1), S()(pl0(1)), start=4))
    p(pl1(1))
    x = S()
    X = 64
    x.wait_lg(); x("s_barrier")
    for k in range(8):
        x(f"ds_read2st64_b32 {vr(X+4*k,2)}, v{vI+k} offset0:0 offset1:34\nds_read2st64_b32 {vr(X+4*k+2,2)}, v{vI+k} offset0:17 offset1:51")
    x(f"ds_write_b32 v10, v9 offset:{KF}\nds_write_b32 v10, v9 offset:{KF+KFS}")
    for e in range(0, 4): x(g_read(e))
    for e_ in range(4):
        k0, k1 = X+8*e_, X+8*e_+4
        x(f"""v_pk_add_f32 {vr(k0,2)}, {vr(k0,2)}, {vr(k0+2,2)}
        v_pk_add_f32 {vr(k1,2)}, {vr(k1,2)}, {vr(k1+2,2)}
        v_cvt_pk_bf16_f32 v{k0+2}, v{k0}, v{k1}
        v_cvt_pk_bf16_f32 v{k0+3}, v{k0+1}, v{k1+1}""")
    for e_ in range(4):
        k0 = X+8*e_
        x(f"ds_write_b32 v{vKw}, v{k0+2} offset:{KF+96+1024*e_}\nds_write_b32 v{vKw}, v{k0+3} offset:{KF+96+KFS+1024*e_}")
    x[-1].tok = "kf"
    for e in range(4, 8): x(g_read(e))
    x.wait_lg("kf"); x("s_barrier")
    return p, x

def lds_addr(base_lo, nset, k, slot, off):
    hi = slot >= 4
    return f"v{base_lo + k + (nset if hi else 0)}", (slot - (4 if hi else 0))*SLOT + off

def b_reads(i):
    s_, ks = divmod(i, 4)
    wslot = (2*s_+1) % NSLOT if s_ < 7 else (7+s_) % NSLOT
    buf = vWf + 8*(i % 3)
    wr = []
    for T in range(2):
        for h in range(2):
            a, o = lds_addr(vWr, 2, T, wslot, ks*2048 + h*512)
            wr.append(f"ds_read_b64_tr_b16 {vr(buf+4*T+2*h,2)}, {a} offset:{o}")
    if s_ < 7:
        xr = []
        for mt in range(2):
            a, o = lds_addr(vXr, 4, ks, (2*s_) % NSLOT, mt*4096)
            xr.append(f"ds_read_b128 {ar(8*i+4*mt,4)}, {a} offset:{o}")
        return [xr[0], wr[0], wr[1], xr[1], wr[2], wr[3]]
    return wr

def b_mfmas(i):
    acc = ACC1 if i < 28 else ACC2
    buf = vWf + 8*(i % 3)
    r = []
    for T in range(2):
        for mt in range(2):
            d = vr(acc + 32*T + 16*mt, 16)
            r.append(f"v_mfma_f32_32x32x16_bf16 {d}, {vr(buf+4*T,4)}, {ar(8*(i%28)+4*mt,4)}, {0 if i % 28 == 0 else d}")
    return r

def gelu(acc, half, pk, cluster=0):
    s = S(); st = S()
    for T in range(2):
        for mt in range(2):
            b = acc + 32*T + 16*mt
            o = ACC1 + 16 + 4*(2*T+mt) if cluster else vGo + 4*mt
            for jp in range(0, 8, 2):
                t = vGt + jp
                g0, u0 = b+jp, b+8+jp
                if pk:
                    s(f"""v_pk_mul_f32 {vr(t,2)}, {vr(g0,2)}, {vr(g0,2)}
                    v_pk_mul_f32 {vr(u0,2)}, {vr(u0,2)}, {vr(g0,2)}
                    v_pk_fma_f32 {vr(t,2)}, {vr(t,2)}, {vr(vC1,2)}, {sr(sK0,2)}
                    v_pk_mul_f32 {vr(t,2)}, {vr(t,2)}, {vr(g0,2)}
                    v_exp_f32 v{t}, v{t}
                    v_exp_f32 v{t+1}, v{t+1}
                    v_pk_add_f32 {vr(t,2)}, {vr(t,2)}, {sr(sK1,2)}
                    v_rcp_f32 v{t}, v{t}
                    v_rcp_f32 v{t+1}, v{t+1}
                    v_pk_mul_f32 {vr(t,2)}, {vr(t,2)}, {vr(u0,2)}
                    v_cvt_pk_bf16_f32 v{o+jp//2}, v{t}, v{t+1}""")
                else:
                    s(f"""v_mul_f32 v{t}, v{g0}, v{g0}
                    v_mul_f32 v{t+1}, v{g0+1}, v{g0+1}
                    v_mul_f32 v{u0}, v{u0}, v{g0}
                    v_fma_f32 v{t}, v{t}, v{vC1}, s{sK0}
                    v_fma_f32 v{t+1}, v{t+1}, v{vC1}, s{sK0}
                    v_mul_f32 v{u0+1}, v{u0+1}, v{g0+1}
                    v_mul_f32 v{t}, v{t}, v{g0}
                    v_mul_f32 v{t+1}, v{t+1}, v{g0+1}
                    v_exp_f32 v{t}, v{t}
                    v_exp_f32 v{t+1}, v{t+1}
                    v_add_f32 v{t}, 1.0, v{t}
                    v_add_f32 v{t+1}, 1.0, v{t+1}
                    v_rcp_f32 v{t}, v{t}
                    v_rcp_f32 v{t+1}, v{t+1}
                    v_mul_f32 v{t}, v{t}, v{u0}
                    v_mul_f32 v{t+1}, v{t+1}, v{u0+1}
                    v_cvt_pk_bf16_f32 v{o+jp//2}, v{t}, v{t+1}""")
            (st if cluster else s)(f"buffer_store_dwordx4 {vr(o,4)}, v{vL16 if mt == 0 else vHs}, {sr(rWS,4)}, s{sHst} offen offset:{1024*T} sc1", f"h{half}")
    return s.add(st)

def chunks(st, n):
    m = len(st); c = [m*k//n for k in range(n+1)]
    for k in range(1, n):
        while c[k] < m and glued(st[c[k]]): c[k] += 1
    return [S(st[c[k]:c[k+1]]) for k in range(n)]

def wd_move(q):
    t = S(); t.wait_vm(f"it{21+q}"); t.add(wd_reads(q)); return t
def wd_item(u):
    t = S()
    prev = [p for p in range(u) if USLOT[p] == USLOT[u]]
    if prev: t.wait_lg(f"wd{prev[-1]}")
    return split_vm(t.add(item(21+u)))

def stageB(mv):
    side = {k: [] for k in range(14)}
    side[0].append((mv, 0, 16))
    side[6].append((setup_dd(), 0, 16))
    allg = []
    for n in range(OPT['npre'], 21): allg += split_vm(item(n))
    for u in range(8): allg += wd_item(u)
    cnt = [4*(7-OPT['npre'])] + [8]*6 + [6, 6, 4, 6, 6, 6, 6]
    assert sum(cnt) == len(allg)
    vm = {}; p = 0
    for k in range(14): vm[k] = allg[p:p+cnt[k]]; p += cnt[k]
    for q, st in enumerate((10, 11, 12, 13, 13)): side[st].append((wd_move(q), 0 if q != 4 else 8, 8 if q != 4 else 16))
    iss, chk = poll(NHELP, sDbg, 0)
    f1 = OPT['f1']
    vm[f1][0] = iss.add(vm[f1][0])
    chk(f"""buffer_load_dwordx4 {vr(vU,4)}, v{vUo}, {sr(rWS,4)}, s{sUTld} offen sc1
    buffer_load_dwordx4 {vr(vU+4,4)}, v{vUo}, {sr(rWS,4)}, s{sUTld} offen offset:128 sc1
    buffer_load_dword v{vG}, v{vG}, {sr(rWS,4)}, s{sGld} offen sc1""")
    if f1 + 2 < 14: vm[f1+2] = split_vm(chk) + vm[f1+2]; stageB.ut = []
    else: stageB.ut = [chk]
    for k, c in enumerate(chunks(gelu(ACC1, 1, False, 0), OPT['nst'])): side[7+k].insert(0, (c, 2 if k == 0 else 0, 16))
    out = S()
    out.wait_vm(("it0", "it1")); out.wait_lg(); out("s_barrier")
    stamp(out, "B0")
    for i in range(2):
        for r in b_reads(i): out(r, f"br{i}")
    for s_ in range(14):
        base = S()
        for ks in range(4):
            i = 4*s_ + ks
            m = b_mfmas(i)
            rd = b_reads(i+2) if i < 54 else []
            n = len(rd)
            dist = {1: [2, 2, 2, 0], 2: [0, 2, 2, 2]}.get(ks, [2, 1, 2, 1]) if n == 6 else {1: [2, 1, 1, 0], 2: [0, 2, 1, 1]}.get(ks, [1, 1, 1, 1])
            p = 0
            for q in range(4):
                base(m[q])
                if ks == 2 and q == 1:
                    nxt = s_ + 1
                    toks = (f"it{2*nxt}", f"it{2*nxt+1}") if nxt < 7 else (f"it{7+nxt}",) if nxt < 14 else None
                    if toks: base.wait_vm(toks)
                    base.wait_lg((f"br{i+1}", "pub")); base("s_barrier")
                elif q == 3 and ks != 2 and i < 55: base.wait_lg(f"br{i+1}")
                for r in rd[p:p+dist[q]]: base(r, f"br{i+2}")
                p += dist[q]
        grp = vm[s_]
        sl = {0: [], 5: [1, 3, 7, 11, 15], 4: [3, 7, 11, 15], 6: [1, 3, 7, 8, 12, 15], 7: [1, 3, 5, 7, 8, 12, 15], 8: [1, 3, 5, 7, 8, 11, 13, 15],
              9: [0, 1, 3, 5, 7, 8, 11, 13, 15], 12: [0, 1, 2, 3, 4, 5, 7, 8, 11, 13, 14, 15]}[len(grp)]
        st = place(base, grp, sl)
        for sd, a, b in sorted(side[s_], key=lambda e: any(x.kind == 'mfma' for x in e[0])):
            if len(sd): st = weave(st, sd, start=a, end=b)
        out.add(st)
        stamp(out, f's{s_}')
        if s_ == 6: stamp(out, "B1")
    return out

def wd_reads(u):
    s = S()
    for T in range(2):
        for dt in range(2):
            for h in range(2):
                a, o = lds_addr(vDr, 2, dt, USLOT[u], T*2048 + h*1024)
                s(f"ds_read_b64_tr_b16 {ar(16*(u%7)+8*T+4*dt+2*h, 2)}, {a} offset:{o}", f"wd{u}")
    return s

def hreg(u, o): return ar(112+16*u+o, 4) if u < 9 else vr(176+16*(u-9)+o, 4)
def h_loads(u):
    s = S()
    for T in range(2):
        for mt in range(2):
            s(f"buffer_load_dwordx4 {hreg(u, 8*T+4*mt)}, v{vH1 if mt == 0 else vH2}, {sr(rWS,4)}, s{sHld} offen offset:{1024*T} sc1")
    if u != 13: s(f"s_add_u32 s{sHld}, s{sHld}, {2048 if u != 6 else (56-12)*1024}")
    return s

def f_read(t):
    b = vWf + 4*(t % 4)
    return f"ds_read_b64_tr_b16 {vr(b,2)}, v{vFr} offset:{256*t}\nds_read_b64_tr_b16 {vr(b+2,2)}, v{vFr} offset:{256*t+32}"
def g_read(e):
    return f"ds_read_b64_tr_b16 {vr(ACC2+4*e,2)}, v{vGr} offset:{256*e+32}\nds_read_b64_tr_b16 {vr(ACC2+4*e+2,2)}, v{vGr} offset:{256*e}"

def pairup(g):
    return [S(g[k]).add(g[k+1] if k+1 < len(g) else []) for k in range(0, len(g), 2)]

def stageTail():
    s = S()
    s(f"s_add_u32 s{sHst}, s{sHst}, {56*1024}")
    g = list(stageB.ut)
    for u in range(8, 8+OPT['ntail']):
        g += pairup(wd_item(u))
        if u < 10: g.append(wd_move(u-3))
    t = S(); t.wait_vm("h1"); t(flag(sF2w)); t(f"s_add_u32 s{sF2w}, s{sF2w}, {128*FS}")
    g.insert(min(len(g), len(stageB.ut) + OPT['f2a']), t)
    s.add(sprinkle(gelu(ACC2, 2, True, OPT['cl2']), g, 0.0, 0.95))
    return s

def stageSSM():
    a2, ex = stageA()
    s = S()
    iss, chk = poll(7, sWs, f"s{sF2r}")
    a2 = sprinkle(a2, [iss], OPT['p2a']/100, 1.0)
    hl = S().add(chk)
    for u in range(OPT['nha']): hl.add(h_loads(u))
    s.add(sprinkle(a2, split_vm(hl), OPT['c2a']/100, 1.0))
    stamp(s, "A2")
    t = S(); t.wait_vm("h2"); t(flag(sF2w)); t(f"s_add_u32 s{sF2r}, s{sF2r}, {128*FS}")
    hq = OPT['nha']; hl = S()
    for u in range(hq, hq+OPT['nhx']): hl.add(h_loads(u))
    hq += OPT['nhx']
    if OPT['wh2'] <= 100: s.add(sprinkle(ex, [t] + pairup(split_vm(hl)), OPT['wh2']/100, 1.0)); th2 = []
    else: s.add(sprinkle(ex, pairup(split_vm(hl)), 0.5, 1.0)); th2 = [t]
    stamp(s, "exp")
    main = S()
    for t in range(3): main(f_read(t))
    def flush(c):
        d = ACC1 + 4*c; t = S()
        for j in (2, 1, 0):
            t(f"v_add_f32_dpp v{d+j}, v{d+j+1}, v{d+j} wave_shr:1 row_mask:0xf bank_mask:0xf")
        if c:
            for j in (3, 2, 1):
                t(f"v_mov_b32_dpp v{d+j}, v{d-4+j} wave_shl:1 row_mask:0xf bank_mask:0xf")
        return t
    for t in range(16):
        blk = S()
        for c in range(t, 16):
            d = vr(ACC1 + 4*c, 4)
            blk(f"v_mfma_f32_16x16x32_bf16 {d}, {vr(vWf+4*(t%4),4)}, {vr(ACC2+4*(c-t),4)}, {d if t else 0}")
        e = S()
        if t == 0:
            g4 = S()
            for q in range(8, 16): g4(g_read(q))
            blk = weave(blk, g4, start=0, end=8)
        if t + 3 < 16: e(f_read(t+3))
        if 1 <= t <= 12: e.add(flush(t-1))
        main.add(weave(blk, e, start=(8 if t == 0 else 0)))
    g = []
    for u in range(hq, 7): g += split_vm(h_loads(u))
    iss, chk = poll(7, sWs, f"s{sF2r}")
    for u in range(8+OPT['ntail'], 14): g += wd_item(u)
    n1 = len(g)
    hl = S().add(chk); hl.wait_lg("b1w")
    g += split_vm(hl.add(h_loads(7)).add(h_loads(8)))
    c0 = OPT['c0']
    main = place(main, g, [c0 + ((132-c0)*k)//len(g) for k in range(len(g))])
    main = place(main, th2, [OPT['wh2']-100])
    s.add(place(main, [iss], [c0 + ((132-c0)*n1)//len(g) - OPT['p2b']]))
    stamp(s, "C")
    f = S()
    for c in range(12, 16): f.add(flush(c))
    f(f"s_mov_b32 m0, s{sYw}")
    for c in range(16): f(f"ds_write_addtid_b32 v{ACC1+4*c} offset:{544*c}")
    f(f"ds_write_b128 v{vYk}, {vr(ACC1+60,4)}", "yw")
    f2 = S()
    f2.wait_lg("yw"); f2("s_barrier")
    Y = ACC1; UU = ACC1+24; O = ACC1+32
    for ch in range(2):
        f2(f"""ds_read_b128 {vr(Y+12*ch,4)}, v{vYr} offset:{YAS*ch}
        ds_read_b128 {vr(Y+12*ch+8,4)}, v{vYc+ch}
        ds_read_b128 {vr(UU+4*ch,4)}, v{vUw} offset:{UA+160+UAS*ch}
        ds_read_b128 {vr(Y+12*ch+4,4)}, v{vYr} offset:{YAS*ch+16}""")
    f2(f"""s_and_b32 s{sK0}, s{sDSv}, 0xffff
    s_lshl_b32 s{sK0+1}, s{sDSv}, 16
    s_lshr_b32 s{sK1}, s{sDSv}, 16
    s_and_b32 s{sK1+1}, s{sDSv}, 0xffff0000
    s_add_u32 s{sUTld}, s{sUTld}, {WS_AT-WS_UT}""")
    f3 = S()
    for ch in range(2):
        b = Y+12*ch
        for k in range(3): f3(f"v_add_f32 v{b+k}, v{b+k}, v{b+9+k}")
        for k in range(8):
            f3(f"v_dot2_f32_bf16 v{b+k}, v{UU+4*ch+k//2}, s{(sK0 if ch == 0 else sK1)+(k&1)}, v{b+k}")
        for k in range(4):
            f3(f"v_cvt_pk_bf16_f32 v{O+4*ch+k}, v{b+2*k}, v{b+2*k+1}")
        f3(f"buffer_store_dwordx4 {vr(O+4*ch,4)}, v{vUo}, {sr(rWS,4)}, s{sUTld} offen offset:{128*ch} sc1", "at")
    return s, (f, f2, f3)

def stageD(fin):
    def mf(u):
        r = S()
        for T in range(2):
            for mt in range(2):
                for dt in range(2):
                    d = vr(DACC + 16*(dt + 2*mt), 16)
                    r(f"v_mfma_f32_32x32x16_bf16 {d}, {ar(16*(u%7)+8*T+4*dt, 4)}, {hreg(u, 8*T+4*mt)}, {0 if u == 0 and T == 0 else d}")
        return r
    s = S()
    H2 = ACC1
    iss, chk = poll(16, sWs, f"s{sF3r}")
    hsched = {1: 9, 3: 10, 4: 11, 6: 12, 7: 13}
    for u in range(14):
        blk = mf(u)
        if 3 <= u < 10:
            r = wd_move(u+4)
            blk = place(blk, chunks(r, 4), [0, 2, 4, 6])
        ex = S()
        if u == OPT['f3']: ex.wait_vm("at"); ex(flag(sF3w))
        if u in hsched: ex.add(h_loads(hsched[u]))
        if u == OPT['p3']: ex.add(iss)
        if len(ex):
            gq = split_vm(ex); blk = place(blk, gq, [1, 3, 5, 7, 7][:len(gq)])
        if u == 0: blk = weave(blk, fin[0])
        if u == 1: blk = weave(blk, fin[1], start=2, end=5)
        if u == 2: blk = weave(blk, fin[2])
        if u == 8: blk = weave(blk, setup_E())
        s.add(blk)
        stamp(s, f'd{u}')
        if u == 6: stamp(s, "D1")
    stamp(s, "D2")
    G, GH, OMG = 8, 9, 10
    al = S().add(chk)
    for q in range(2):
        al(f"buffer_load_dwordx4 {vr(E0+4*q,4)}, v{AO}, {sr(rWS,4)}, s{sATld} offen offset:{2048*q} sc1")
    if OPT['c3'] == 0: s.add(al)
    for t in range(1, 4):
        for k in range(4):
            s(f"ds_write_b128 v{RW}, {vr(DACC+16*t+4*k,4)} offset:{(t-1)*SLOT+1024*k}")
        if OPT['c3'] == t: s.add(al)
    s.wait_lg(); s("s_barrier")
    stamp(s, 'e1')
    for k in range(4):
        for t in range(1, 4):
            s(f"ds_read_b128 {vr(H2+16*(t-1)+4*k,4)}, v{RR+t-1} offset:{(t-1)*SLOT+1024*k}")
    for k in range(4):
        for p in range(2):
            o = 4*k + 2*p
            s(f"""v_pk_add_f32 {vr(DACC+o,2)}, {vr(DACC+o,2)}, {vr(H2+o,2)}
            v_pk_add_f32 {vr(H2+16+o,2)}, {vr(H2+16+o,2)}, {vr(H2+32+o,2)}""")
        for p in range(2):
            o = 4*k + 2*p
            s(f"v_pk_add_f32 {vr(DACC+o,2)}, {vr(DACC+o,2)}, {vr(H2+16+o,2)}")
        for p in range(2):
            o = 4*k + 2*p
            s(f"v_pk_mul_f32 {vr(DACC+o,2)}, {vr(DACC+o,2)}, {vr(OMG,2)}")
    stamp(s, 'e2')
    for q in range(2):
        s(f"ds_write_b128 v{AW}, {vr(E0+4*q,4)} offset:{1024*q}")
    for k in range(4):
        s(f"ds_read_b64_tr_b16 {vr(E0+8+2*k,2)}, v{AR} offset:{512*k}")
    for k in range(4):
        for j in range(4):
            s(f"v_dot2_f32_bf16 v{DACC+4*k+j}, v{E0+8+2*k+j//2}, v{G if j % 2 == 0 else GH}, v{DACC+4*k+j}")
        s(f"""v_cvt_pk_bf16_f32 v{E0+2*k}, v{DACC+4*k}, v{DACC+4*k+1}
        v_cvt_pk_bf16_f32 v{E0+2*k+1}, v{DACC+4*k+2}, v{DACC+4*k+3}""")
    for k in range(4):
        s(f"ds_write_b64 v{OW}, {vr(E0+2*k,2)} offset:{3*SLOT+16*k}")
    for q in range(2):
        s(f"ds_read_b128 {vr(H2+4*q,4)}, v{OR_} offset:{3*SLOT+16*80*q}")
    sc = " sc1" if OPT['outsc'] else ""
    s(f"s_add_u32 s{sT0}, s{sOst}, {16*896}")
    s(f"buffer_store_dwordx4 {vr(H2,4)}, v{OO}, {sr(rO,4)}, s{sOst} offen{sc}")
    s(f"buffer_store_dwordx4 {vr(H2+4,4)}, v{OO}, {sr(rO,4)}, s{sT0} offen{sc}")
    return s

def helper():
    s = S()
    GWL = 57344; TS = 59392
    s(f"""
    v_lshrrev_b32 v3, 6, v0
    v_and_b32 v2, 63, v0
    v_readfirstlane_b32 s3, v3
    v_lshlrev_b32 v1, 4, v2
    s_mul_i32 s6, s2, 57344
    s_mul_i32 s7, s3, 14336
    s_add_u32 s8, s6, s7
    {srd(rX, sU, 2048*896)}
    {srd(rW, sGw, 896)}
    {srd(rWS, sWs, WS_END)}
    {srd(rO, sDbg, 256)}
    v_mov_b32 v8, 0
    v_mov_b32 v9, 0
    v_mov_b32 v10, 0
    v_mov_b32 v11, 0
    v_cmp_gt_u32 vcc, 40, v0
    v_mov_b32 v4, 0x80000000
    v_lshrrev_b32 v5, 2, v0
    v_mul_u32_u24 v5, {FS-64}, v5
    v_add_u32 v5, v5, v1
    v_cndmask_b32 v5, v4, v5, vcc
    s_mul_i32 s9, s2, {10*FS}
    s_add_u32 s9, s9, {WS_F2}
    buffer_store_dwordx4 v[8:11], v5, {sr(rWS,4)}, s9 offen sc1
    """)
    for k in range(14):
        if k % 4 == 0: s(f"s_add_u32 m0, s7, {1024*k}\ns_add_u32 s9, s8, {1024*k}")
        s(f"buffer_load_dwordx4 v1, {sr(rX,4)}, s9 offen offset:{1024*(k%4)} lds", "x")
    s(f"s_mov_b32 m0, {GWL}\nbuffer_load_dwordx4 v1, {sr(rW,4)}, 0 offen lds", "x")
    s(f"""
    v_min_u32 v24, 195, v0
    v_mul_u32_u24 v25, 4682, v24
    v_lshrrev_b32 v25, 16, v25
    v_mul_u32_u24 v25, {3584-14*128}, v25
    v_lshlrev_b32 v24, 7, v24
    s_mul_i32 s14, s2, {14*3584}
    v_add3_u32 v25, v25, v24, s14
    v_add_u32 v24, s14, v24
    v_add_u32 v26, {196*128}, v24
    v_min_u32 v31, 1, v0
    v_lshlrev_b32 v31, 31, v31
    v_mov_b32 v9, 1
    s_lshl_b32 s15, s2, 2""")
    if OPT['hpf'] & 1: s(f"global_load_dword v27, v25, {sr(sWg,2)} offset:1792\nglobal_load_dword v28, v25, {sr(sWu,2)} offset:1792")
    if OPT['hpf'] & 4: s(f"global_load_dword v29, v24, {sr(sWdn,2)}\nglobal_load_dword v30, v26, {sr(sWdn,2)}")
    s(f"""
    v_lshrrev_b32 v6, 4, v2
    v_bfe_u32 v7, v2, 2, 2
    v_lshl_add_u32 v7, v6, 3, v7
    v_mul_u32_u24 v7, 896, v7
    v_and_b32 v12, 3, v2
    s_mul_i32 s9, s3, 224
    v_lshl_add_u32 v12, v12, 3, s9
    v_add_u32 v12, v12, v7
    s_mul_i32 s10, s3, {2*2304}
    s_add_u32 s10, s10, {TS}
    v_and_b32 v13, 15, v2
    v_mul_u32_u24 v14, 144, v13
    v_lshl_add_u32 v14, v6, 4, v14
    v_add_u32 v14, s10, v14
    v_lshrrev_b32 v15, 3, v2
    v_lshl_add_u32 v15, v15, 4, v1
    v_add_u32 v15, s10, v15
    v_mul_u32_u24 v16, 896, v13
    v_lshl_add_u32 v16, v6, 4, v16
    v_add_u32 v16, s7, v16
    v_lshlrev_b32 v17, 4, v6
    v_cmp_gt_u32 vcc, 16, v2
    v_lshlrev_b32 v18, 2, v2
    v_cndmask_b32 v18, v4, v18, vcc
    s_add_u32 s11, s8, {WS_UT}
    s_lshl2_add_u32 s13, s2, s3
    s_lshl_b32 s13, s13, 6
    s_add_u32 s13, s13, {WS_G}
    """)
    s.wait_vm("x"); s("s_barrier")
    for cg in range(7):
        t0 = 32 + 16*(cg % 2); so = 2304*(cg % 2)
        for t in range(2):
            for h in range(2):
                s(f"ds_read_b64_tr_b16 {vr(t0+4*t+2*h,2)}, v12 offset:{(32*t+4*h)*896+32*cg}")
        for t in range(2): s(f"ds_write_b128 v14, {vr(t0+4*t,4)} offset:{so+64*t}")
        for t in range(2): s(f"ds_read_b128 {vr(t0+8+4*t,4)}, v15 offset:{so+8*144*t}")
        for t in range(2): s(f"buffer_store_dwordx4 {vr(t0+8+4*t,4)}, v1, {sr(rWS,4)}, s11 offen offset:{1024*t} sc1")
        s(f"s_add_u32 s11, s11, 2048")
    if OPT['hpf'] & 2: s(f"global_load_dword v29, v24, {sr(sWdn,2)}\nglobal_load_dword v30, v26, {sr(sWdn,2)}")
    for ks in range(14):
        r = 64 + 8*(ks % 4)
        s(f"""ds_read_b128 {vr(r,4)}, v17 offset:{GWL+64*ks}
        ds_read_b128 {vr(r+4,4)}, v16 offset:{64*ks}
        v_mfma_f32_16x16x32_bf16 v[20:23], {vr(r,4)}, {vr(r+4,4)}, {'v[20:23]' if ks else 0}""")
    s(f"""v_cvt_pk_bf16_f32 v20, 0, v20
    v_mul_f32 v20, {hx(fbits(-LOG2E))}, v20
    v_exp_f32 v20, v20
    v_add_f32 v20, 1.0, v20
    v_rcp_f32 v20, v20
    v_cvt_pk_bf16_f32 v21, 0, v20
    v_sub_f32 v22, 1.0, v21
    v_cvt_pk_bf16_f32 v20, v21, v22
    buffer_store_dword v20, v18, {sr(rWS,4)}, s13 offen sc1""")
    s.wait_vm('*'); s("s_barrier")
    s(f"buffer_atomic_add v9, v31, {sr(rO,4)}, 0 offen sc1")
    if OPT['stamp']:
        s(f"""s_mov_b32 s6, s100
        s_memtime s[100:101]
        s_waitcnt lgkmcnt(0)
        s_sub_u32 s6, s100, s6
        v_mov_b32 v8, s6
        s_add_u32 s15, s15, {WS_ST+224*512}
        buffer_store_dword v8, v31, {sr(rWS,4)}, s15 offen""")
    s("s_endpgm")
    fin, _ = finalize(schedule(s))
    return f"""L_helper:
    s_getpc_b64 s[4:5]
L_pc:
    s_sub_u32 s4, s4, L_pc-{NAME}_kernel
    s_subb_u32 s5, s5, 0
    v_lshlrev_b32 v1, 7, v0
    v_min_u32 v1, L_last-{NAME}_kernel, v1
    global_load_dword v19, v1, s[4:5]
    s_waitcnt lgkmcnt(0)
""" + text(fin) + "\nL_last:\n    s_endpgm"

def build():
    s = S()
    if OPT['stamp']:
        s(f"v_mov_b32 v47, 0\ns_memrealtime s[100:101]\ns_waitcnt lgkmcnt(0)\nv_writelane_b32 v47, s100, 30")
    stamp(s, "start")
    s(f"""s_load_dwordx16 s[16:31], s[0:1], 0
    s_load_dwordx16 s[32:47], s[0:1], 64
    s_load_dwordx2 s[48:49], s[0:1], 128
    s_cmp_ge_u32 s2, {NHELP+NMAIN}
    s_cbranch_scc1 L_end
    s_cmp_lt_u32 s2, {NHELP}
    s_cbranch_scc1 L_helper""")
    s.add(setup_early()).add(setup_scalar())
    s("s_waitcnt lgkmcnt(0)")
    stamp(s, "karg")
    s.add(first_loads())
    g0 = []
    for n in range(OPT['npre']): g0 += split_vm(item(n))
    s.add(sprinkle(setup_AB().add(setup_start2()), g0[:8], 0.0, 0.3))
    stamp(s, "setup")
    ka, kw, kb, mv = krows()
    s.add(sprinkle(ka, g0[8:16] + ([wd_touch()] if OPT['mpf'] else []), 0.1, 1.0))
    s.add(kw)
    stamp(s, "ka")
    s.add(sprinkle(kb, g0[16:], 0.0, 1.0))
    stamp(s, "kb")
    s.add(stageB(mv))
    stamp(s, "B2")
    s.add(stageTail())
    stamp(s, "tail")
    ssm, fin = stageSSM()
    s.add(ssm)
    s.add(stageD(fin))
    stamp(s, "E")
    if OPT['stamp']:
        s(f"""s_waitcnt vmcnt(0)
        {'s_memtime' if OPT['stamp'] == 1 else 's_memrealtime'} s[100:101]
        s_waitcnt lgkmcnt(0)
        v_writelane_b32 v47, s100, {len(stamps)}
        {chr(10).join(f'v_writelane_b32 v47, s{18+2*j}, {k}' for j, k in enumerate(asyncst))}
        s_memrealtime s[100:101]
        s_waitcnt lgkmcnt(0)
        v_writelane_b32 v47, s100, 31
        s_lshl2_add_u32 s{sT0}, s{sC}, s{sW}
        s_lshl_b32 s{sT0}, s{sT0}, 7
        s_add_u32 s{sT0}, s{sT0}, {WS_ST}
        v_and_b32 v3, 31, v{vLane}
        v_lshlrev_b32 v3, 2, v3
        s_mov_b64 exec, 0xffffffff
        buffer_store_dword v47, v3, {sr(rWS,4)}, s{sT0} offen""")
        stamps.append("end")
    if PROBE:
        s('s_waitcnt vmcnt(0)'); stamp(s, 'fin')
        s(f"""s_sub_u32 s12, s12, s86
        s_max_i32 s12, s12, 0
        s_mul_i32 s12, s12, 10
        s_memrealtime s[100:101]
        s_waitcnt lgkmcnt(0)
        s_mov_b32 s8, s100
        L_probe:
        s_memrealtime s[100:101]
        s_waitcnt lgkmcnt(0)
        s_sub_u32 s100, s100, s8
        s_cmp_lt_u32 s100, s12
        s_cbranch_scc1 L_probe""")
    if OPT['sched']: s = schedule(s)
    fin, nn = finalize(s)
    info = ''
    if OPT['align']:
        fin, nw, na, nb = align_pass(fin); info = f"widened {nw} alignnops {na} bytes {nb}"
    open(sys.argv[1]+'.names', 'w').write(','.join(stamps))
    sys.stderr.write(f"instrs {len(fin)} nops {nn} est {estimate(fin)} {info}\n")
    hdr = open('cdna_kernels/' + NAME + '.s.ref').read().split('; Override launch')[0]
    return hdr + f"""; One fused launch. Workgroups 0..{NHELP-1}: transpose of u, gate, flag init. Workgroups {NHELP}..{NHELP+NMAIN-1}: S4 kernel
; generation, gate/up GEMM + GELU, causal convolution, down GEMM and the final mix.
; @launch grid=({NHELP+NMAIN},1,1) block=(256,1,1) lds={LDS_SIZE}
.amdgcn_target "amdgcn-amd-amdhsa--gfx950"
.text
.globl {NAME}_kernel
.p2align 8
.type {NAME}_kernel,@function
{NAME}_kernel:
{text(fin)}
L_end:
    s_endpgm
""" + "\n".join(slow) + "\n" + helper() + f"""
.section .rodata,"a"
.p2align 6
.amdhsa_kernel {NAME}_kernel
  .amdhsa_next_free_vgpr 512
  .amdhsa_next_free_sgpr 102
  .amdhsa_accum_offset 256
  .amdhsa_group_segment_fixed_size 0
  .amdhsa_kernarg_size 136
  .amdhsa_user_sgpr_count 2
  .amdhsa_user_sgpr_kernarg_segment_ptr 1
  .amdhsa_system_sgpr_workgroup_id_x 1
.end_amdhsa_kernel
"""

if __name__ == "__main__":
    open(sys.argv[1], 'w').write(build())
```

```python
import sys, math, struct
from asmlib import *
import asmlib

NAME = "gated_mix__ssm_conv_s4__geglu_ffn__prompt"
OPT = dict(x_sync=0, x_strip=0, stamp=0, cl2=1, nst=6, sched=1, align=1, outsc=0, margin=6, npre=5, fstr=128, rx=2, hpf=1, mpf=1, cl1=0, tlb=0, stlb=1, x_ack=0, hs=0,
           slp=8, agw=1, f1=12, ntail=3, f2a=1, p2a=20, c2a=70, nha=1, nhx=2, wh2=105, c0=10, p2b=45, f3=7, p3=11, c3=0)
PROBE = None
STSEL = 'start,karg,setup,ka,kb,B0,B1,B2,tail,A2,exp,C,D1,D2,E'.split(',')
for a in sys.argv[2:]:
    k, v = a.split('=')
    if k == 'probe': PROBE = v.split(',')
    elif k == 'st': STSEL = v.split(',')
    else:
        assert k in OPT, k
        OPT[k] = int(v)
asmlib.MARGIN = OPT['margin']

def fbits(x): return struct.unpack('<I', struct.pack('<f', x))[0]
def hx(x): return hex(x & 0xffffffff)
vr = lambda a, n: f"v[{a}:{a+n-1}]" if n > 1 else f"v{a}"
ar = lambda a, n: f"a[{a}:{a+n-1}]" if n > 1 else f"a{a}"
sr = lambda a, n: f"s[{a}:{a+n-1}]" if n > 1 else f"s{a}"
LOG2E = math.log2(math.e)

NHELP = 32; NMAIN = 224
FS = OPT['fstr']; WS_F2 = 0xB00000; WS_F3 = WS_F2 + 256*FS
WS_G = 0x4000; WS_ST = 0x18000; WS_UT = 0x40000; WS_AT = 0x200000; WS_H = 0x400000; WS_END = 0xD00000
SLOT = 16384; NSLOT = 7
RING = 49152
SCR = 0; SCRW = 4352; SCRH = 4*SCRW
YA = 0; YAS = 8704
KFS = 4224; KF = SCRH
UTS = KF + 2*KFS; UTSW = 2048
UA = 2*SCRH; UAS = 4288
LDS_SIZE = 163840
assert UTS + 4*UTSW <= UA and UA + 2*UAS <= RING and RING + NSLOT*SLOT <= LDS_SIZE

sU, sAre, sAim, sBre, sBim, sCre, sCim, sLdt = 16, 18, 20, 22, 24, 26, 28, 30
sDsk, sBx, sWg, sWu, sWdn, sGw, sOut, sDbg, sWs = 32, 34, 36, 38, 40, 42, 44, 46, 48
rX, rW, rD, rWS, rO = 52, 56, 60, 64, 68
sW, sC, sXo, sWo, sDo = 3, 4, 5, 6, 7
sM0x, sM0w = 9, 10
sW1, sW2 = 11, 13
sT0, sT1 = 14, 15
sTmp = 16
sHst, sHld = 72, 73
sF2w, sF3w, sF2r, sF3r = 74, 75, 76, 77
sUTld, sATld, sGld, sOst = 78, 79, 80, 81
sLDv, sDSv = 82, 83
sScr = 84
sX_, sJ_, sMI, sII, sMB, sFC, sRB = 85, 86, 87, 88, 89, 90, 91
sK0, sK1 = 92, 94
sSpin = 96
sXe, sWe, sDe, sHe = 97, 98, 99, 51
sKb = 50
sOne, sPoll = 51, 99

vL16, vLane, vPoll, vZero, vG, vHs = 1, 2, 4, 5, 6, 7
vWd, vWr, vXd, vXr = 8, 12, 16, 20
vDd = 16
vDr, vUo, vUw, vH1, vH2 = 28, 32, 33, 34, 35
vTr, vK, vK1 = 42, 43, 82
vI, vKw, vKp = 20, 84, 85
vFr, vGr, vYk, vYr, vYc = 36, 37, 38, 39, 40
AW, AR, AO, RW, RR, OW, OR_, OO = 42, 43, 20, 21, 22, 25, 26, 27
vWf = 48
vGt = 72; vC1 = 80
PARK = list(range(86, 128))
ACC1 = 128; ACC2 = 192
aU = 112
vS = 240
vPar = 83
DACC = 64; E0 = 48
sYw = 8

stamps = []; asyncst = []
def stamp(s, name):
    if PROBE and name in PROBE:
        if name == 'karg': s(f"s_memrealtime {sr(100,2)}\ns_waitcnt lgkmcnt(0)")
        else: s(f"s_memrealtime {sr(20 if name == PROBE[1] else 100,2)}", "async")
    if OPT['stamp'] and name in STSEL:
        k = len(stamps); stamps.append(name)
        op = 's_memtime' if OPT['stamp'] == 1 else 's_memrealtime'
        if name in ('start', 'karg', 'setup'): s(f"{op} {sr(100,2)}\ns_waitcnt lgkmcnt(0)\nv_writelane_b32 v47, s100, {k}")
        else:
            asyncst.append(k); assert len(asyncst) <= 14
            s(f"{op} {sr(16+2*len(asyncst),2)}", "async")

slow = []
def poll(thr, base, off):
    k = len(slow)
    iss = S(); iss(f"s_mov_b32 s{sPoll}, 0"); iss(f"s_load_dword s{sPoll}, {sr(base,2)}, {off}", "async")
    chk = S(); chk(f"s_cmp_lt_u32 s{sPoll}, {thr}\ns_cbranch_scc1 L_slow{k}\nL_back{k}:"); chk[0].kind = 'branch'
    back = f"L_out{k}" if OPT['stamp'] else f"L_back{k}"
    slow.append(f"""L_slow{k}:
    {'s_memtime s[100:101]' if OPT['stamp'] else ''}
    s_mov_b32 s{sKb}, 0
    s_waitcnt lgkmcnt(0)
    s_cmp_ge_u32 s{sPoll}, {thr}
    s_cbranch_scc1 {back}
    v_mov_b32 v{vZero}, {off}
L_spin{k}:
    global_load_dword v{vPoll}, v{vZero}, {sr(base,2)} sc1
    s_add_u32 s{sKb}, s{sKb}, 1
    s_cmp_gt_u32 s{sKb}, 0x40000
    s_cbranch_scc1 {back}
    s_waitcnt vmcnt(0)
    v_readfirstlane_b32 s{sPoll}, v{vPoll}
    s_nop 0
    s_cmp_ge_u32 s{sPoll}, {thr}
    s_cbranch_scc1 {back}
    s_sleep {OPT['slp']}
    s_branch L_spin{k}""" + (f"""
L_out{k}:
    s_mov_b32 s12, s100
    s_memtime s[100:101]
    s_waitcnt lgkmcnt(0)
    s_sub_u32 s12, s100, s12
    v_writelane_b32 v47, s12, {20+k}
    v_writelane_b32 v47, s{sKb}, {25+k}
    s_branch L_back{k}""" if OPT['stamp'] else ""))
    return iss, chk
def flag(soff): return f"s_atomic_add s{sOne}, {sr(sWs,2)}, s{soff}"
def srd(r, p, n): return f"s_mov_b32 s{r}, s{p}\ns_mov_b32 s{r+1}, s{p+1}\ns_mov_b32 s{r+2}, {n}\ns_mov_b32 s{r+3}, 0x20000"

def setup_early():
    s = S(); a, b, c, d, e, f = range(vS, vS+6)
    s(f"""
    v_lshrrev_b32 v{a}, 6, v0
    v_and_b32 v{vLane}, 63, v0
    s_sub_u32 s{sC}, s2, {NHELP}
    v_readfirstlane_b32 s{sW}, v{a}
    s_lshl_b32 s{sT0}, s{sC}, 10
    v_lshl_add_u32 v{vPar}, v0, 2, s{sT0}
    v_lshlrev_b32 v{vL16}, 4, v{vLane}
    s_and_b32 s{sX_}, s{sC}, 7
    s_lshr_b32 s{sJ_}, s{sC}, 3
    s_and_b32 s{sMI}, s{sJ_}, 3
    s_lshr_b32 s{sII}, s{sJ_}, 2
    s_and_b32 s{sMB}, s{sX_}, 6
    s_lshl1_add_u32 s{sMB}, s{sMB}, s{sMI}
    s_and_b32 s{sT0}, s{sX_}, 1
    s_lshr_b32 s{sKb}, s{sX_}, 1
    s_mul_i32 s{sKb}, s{sKb}, {OPT['rx']}
    s_mul_i32 s{sFC}, s{sT0}, 7
    s_add_u32 s{sFC}, s{sFC}, s{sII}
    s_lshl2_add_u32 s{sRB}, s{sX_}, s{sMI}
    s_and_b32 s{sW1}, s{sW}, 1
    s_lshr_b32 s{sW2}, s{sW}, 1
    s_lshl_b32 s{sM0x}, s{sW}, 12
    s_add_u32 s{sM0x}, s{sM0x}, {RING}
    s_lshl2_add_u32 s{sT0}, s{sMB}, s{sW}
    s_mul_i32 s{sXo}, s{sT0}, {32*896}
    s_mul_i32 s{sWo}, s{sW2}, {32*3584}
    s_lshl_b32 s{sT0}, s{sFC}, 7
    s_add_u32 s{sWo}, s{sWo}, s{sT0}
    s_add_u32 s{sXe}, s{sXo}, 896
    s_add_u32 s{sWe}, s{sWo}, {448*3584}
    s_lshl_b32 s{sT0}, s{sKb}, 7
    s_add_u32 s{sXo}, s{sXo}, s{sT0}
    s_mul_i32 s{sT0}, s{sKb}, {64*3584}
    s_add_u32 s{sWo}, s{sWo}, s{sT0}
    s_lshl1_add_u32 s{sT0}, s{sW1}, s{sW2}
    s_lshl_b32 s{sM0w}, s{sT0}, 12
    s_add_u32 s{sM0w}, s{sM0w}, {RING}
    s_lshl_b32 s{sT1}, s{sW1}, 2
    v_lshrrev_b32 v{a}, 3, v{vLane}
    v_and_b32 v{b}, 7, v{vLane}
    v_lshrrev_b32 v{c}, 4, v{vLane}
    v_mul_u32_u24 v{e}, 896, v{a}
    v_xor_b32 v{d}, v{b}, v{c}
    v_and_b32 v{c}, 1, v{c}
    v_lshl_add_u32 v{vXd}, v{d}, 4, v{e}
    v_lshl_or_b32 v{f}, v{c}, 1, s{sT1}
    v_xor_b32 v{d}, 64, v{vXd}
    v_add_u32 v{vXd+2}, {2*(8*896-1024)}, v{vXd}
    v_xor_b32 v{f}, v{b}, v{f}
    v_add_u32 v{vXd+1}, {8*896-1024}, v{d}
    v_add_u32 v{vXd+3}, {3*(8*896-1024)}, v{d}
    v_lshlrev_b32 v{f}, 4, v{f}
    v_lshl_add_u32 v{vWd}, v{e}, 2, v{f}
    v_add_u32 v{vWd+1}, {1*(8*3584-1024)}, v{vWd}
    v_add_u32 v{vWd+2}, {2*(8*3584-1024)}, v{vWd}
    v_add_u32 v{vWd+3}, {3*(8*3584-1024)}, v{vWd}
    """)
    return s

def setup_scalar():
    s = S()
    s(f"""
    s_mul_i32 s{sScr}, s{sW}, {SCRW}
    ; h store / F2 write
    s_lshl1_add_u32 s{sT0}, s{sMB}, s{sW2}
    s_lshl1_add_u32 s{sT1}, s{sFC}, s{sW1}
    s_mul_i32 s{sHst}, s{sT0}, 112
    s_add_u32 s{sHst}, s{sHst}, s{sT1}
    s_lshl_b32 s{sHst}, s{sHst}, 11
    s_add_u32 s{sHst}, s{sHst}, {WS_H}
    s_mul_i32 s{sSpin}, s{sT1}, 37
    s_lshr_b32 s{sSpin}, s{sSpin}, 8
    s_lshl2_add_u32 s{sT0}, s{sT0}, s{sSpin}
    s_mul_i32 s{sT0}, s{sT0}, {FS}
    s_add_u32 s{sF2w}, s{sT0}, {WS_F2}
    s_mov_b32 s{sOne}, 1
    s_mul_i32 s{sT0}, s{sW}, 7
    s_mul_i32 s{sHld}, s{sRB}, 112
    s_add_u32 s{sHld}, s{sHld}, s{sT0}
    s_lshl_b32 s{sHld}, s{sHld}, 11
    s_add_u32 s{sHld}, s{sHld}, {WS_H}
    s_lshl2_add_u32 s{sT1}, s{sRB}, s{sW}
    s_mul_i32 s{sF2r}, s{sT1}, {FS}
    s_add_u32 s{sF2r}, s{sF2r}, {WS_F2}
    s_mul_i32 s{sDo}, s{sW}, {224*896}
    s_lshl_b32 s{sT1}, s{sII}, 7
    s_add_u32 s{sDo}, s{sDo}, s{sT1}
    ; uT load / aT store
    s_mul_i32 s{sUTld}, s{sW}, {8*57344}
    s_lshl_b32 s{sT1}, s{sC}, 8
    s_add_u32 s{sUTld}, s{sUTld}, s{sT1}
    s_add_u32 s{sUTld}, s{sUTld}, {WS_UT}
    s_lshr_b32 s{sT0}, s{sC}, 5
    s_lshl2_add_u32 s{sT0}, s{sT0}, s{sW}
    s_bfe_u32 s{sT1}, s{sC}, 0x10004
    s_lshl1_add_u32 s{sT0}, s{sT0}, s{sT1}
    s_mul_i32 s{sT0}, s{sT0}, {FS}
    s_add_u32 s{sF3w}, s{sT0}, {WS_F3}
    s_lshr_b32 s{sT0}, s{sRB}, 3
    s_lshl2_add_u32 s{sT0}, s{sII}, s{sT0}
    s_lshl1_add_u32 s{sT0}, s{sT0}, s{sW1}
    s_mul_i32 s{sF3r}, s{sT0}, {FS}
    s_add_u32 s{sF3r}, s{sF3r}, {WS_F3}
    ; aT load, out store, g load
    s_lshl1_add_u32 s{sT0}, s{sII}, s{sW1}
    s_mul_i32 s{sT1}, s{sRB}, 57344
    s_lshl_b32 s{sATld}, s{sT0}, 6
    s_add_u32 s{sOst}, s{sATld}, s{sT1}
    s_add_u32 s{sATld}, s{sATld}, s{sW2}
    s_lshl_b32 s{sATld}, s{sATld}, 6
    s_add_u32 s{sATld}, s{sATld}, s{sT1}
    s_add_u32 s{sATld}, s{sATld}, {WS_AT}
    s_mul_i32 s{sT0}, s{sW2}, {32*896}
    s_add_u32 s{sOst}, s{sOst}, s{sT0}
    s_lshl1_add_u32 s{sT0}, s{sRB}, s{sW2}
    s_lshl_b32 s{sGld}, s{sT0}, 7
    s_add_u32 s{sGld}, s{sGld}, {WS_G}
    """)
    return s

P_RAW = 232
def first_loads():
    s = S()
    s(f"""
    s_lshl_b32 s{sT0}, s{sC}, 2
    global_load_dword v{P_RAW+0}, v{vPar}, {sr(sAre,2)}
    global_load_dword v{P_RAW+1}, v{vPar}, {sr(sAim,2)}
    s_load_dword s{sLDv}, {sr(sLdt,2)}, s{sT0}
    s_load_dword s{sDSv}, {sr(sDsk,2)}, s{sT0}
    {f's_load_dword s{sPoll}, {sr(sDbg,2)}, 128' if OPT['stlb'] else ''}
    {f's_mov_b32 s{sT0}, {WS_F2+320*FS}' if OPT['stlb'] else ''}
    {f's_load_dword s{sJ_}, {sr(sWs,2)}, s{sT0}' if OPT['stlb'] else ''}
    global_load_dword v{P_RAW+2}, v{vPar}, {sr(sBre,2)}
    global_load_dword v{P_RAW+3}, v{vPar}, {sr(sBim,2)}
    global_load_dword v{P_RAW+4}, v{vPar}, {sr(sCre,2)}
    global_load_dword v{P_RAW+5}, v{vPar}, {sr(sCim,2)}
    {srd(rX, sU, 2048*896)}
    s_cmp_eq_u32 s{sW1}, 1
    s_cselect_b32 s{rW}, s{sWu}, s{sWg}
    s_cselect_b32 s{rW+1}, s{sWu+1}, s{sWg+1}
    s_mov_b32 s{rW+2}, {448*3584}
    s_mov_b32 s{rW+3}, 0x20000
    """)
    return s

def setup_AB():
    s = S(); a, b, c, d, e, f, g, h = range(vS, vS+8)
    s(f"""
    {srd(rD, sWdn, 1792*896)}
    {srd(rWS, sWs, WS_END)}
    {srd(rO, sOut, 2048*896)}
    v_and_b32 v{a}, 31, v{vLane}
    s_lshl_b32 s{sT0}, s{sW2}, 13
    s_add_u32 s{sT0}, s{sT0}, {RING}
    v_lshl_add_u32 v{a}, v{a}, 7, s{sT0}
    v_bfe_u32 v{g}, v{vLane}, 1, 3
    v_lshrrev_b32 v{h}, 5, v{vLane}
    v_xor_b32 v{g}, v{g}, v{h}
    v_lshl_add_u32 v{vXr}, v{g}, 4, v{a}
    v_xor_b32 v{vXr+1}, 32, v{vXr}
    v_xor_b32 v{vXr+2}, 64, v{vXr}
    v_xor_b32 v{vXr+3}, 96, v{vXr}
    v_add_u32 v{vXr+4}, 0x10000, v{vXr}
    v_add_u32 v{vXr+5}, 0x10000, v{vXr+1}
    v_add_u32 v{vXr+6}, 0x10000, v{vXr+2}
    v_add_u32 v{vXr+7}, 0x10000, v{vXr+3}
    v_bfe_u32 v{a}, v{vLane}, 2, 2
    v_and_b32 v{b}, 3, v{vLane}
    v_bfe_u32 v{d}, v{vLane}, 4, 1
    v_bfe_u32 v{e}, v{vLane}, 3, 2
    s_lshl_b32 s{sT0}, s{sW1}, 1
    v_xor_b32 v{e}, s{sT0}, v{e}
    s_mov_b32 s{sT1}, {RING}
    v_lshl_add_u32 v{b}, v{b}, 3, s{sT1}
    v_lshl_add_u32 v{a}, v{h}, 3, v{a}
    v_lshl_add_u32 v{e}, v{e}, 5, v{b}
    v_lshl_add_u32 v{a}, v{d}, 6, v{a}
    v_lshl_add_u32 v{vWr}, v{a}, 7, v{e}
    v_xor_b32 v{vWr+1}, 32, v{vWr}
    v_add_u32 v{vWr+2}, 0x10000, v{vWr}
    v_add_u32 v{vWr+3}, 0x10000, v{vWr+1}
    """)
    return s

def setup_start2():
    s = S(); a, b, c, d, e, f, g, h = range(vS, vS+8)
    c0 = -2*math.sqrt(2/math.pi)*LOG2E
    s(f"""
    v_and_b32 v{a}, 15, v{vLane}
    v_lshrrev_b32 v{b}, 4, v{vLane}
    v_bfe_u32 v{e}, v{vLane}, 3, 1
    v_mul_u32_u24 v{c}, 544, v{a}
    v_lshl_add_u32 v{d}, v{b}, 4, s{sScr}
    v_mul_u32_u24 v{e}, {SCRH-8*544}, v{e}
    v_add3_u32 v{vTr}, v{c}, v{d}, v{e}
    v_lshl_add_u32 v{c}, v{b}, 7, v{a}
    s_add_u32 s{sT0}, s{sScr}, 2048
    v_lshl_add_u32 v{vK1}, v{c}, 2, s{sT0}
    v_max_u32 v{c}, 1, v{b}
    v_sub_u32 v{c}, 6, v{c}
    v_lshlrev_b32 v{e}, v{c}, v{a}
    v_cmp_gt_u32 vcc, 2, v{b}
    v_lshl_add_u32 v{f}, v{b}, 9, s{sScr}
    v_cndmask_b32 v{f}, v{f}, v{d}, vcc
    v_add_u32 v{vK}, v{f}, v{e}
    v_cmp_eq_u32 vcc, 3, v{b}
    v_mov_b32 v{e}, 256
    v_lshlrev_b32 v{c}, v{c}, 16
    v_cndmask_b32 v{e}, 8, v{e}, vcc
    v_add_u32 v{vK+2}, v{vK}, v{c}
    v_add_u32 v{vK+1}, v{vK}, v{e}
    v_add_u32 v{vK+3}, v{vK+2}, v{e}
    s_mov_b32 s{sK0}, {hx(fbits(c0))}
    s_mov_b32 s{sK0+1}, {hx(fbits(c0))}
    s_mov_b32 s{sK1}, 1.0
    s_mov_b32 s{sK1+1}, 1.0
    v_mov_b32 v{vC1}, {hx(fbits(c0*0.044715))}
    v_mov_b32 v{vC1+1}, {hx(fbits(c0*0.044715))}
    v_add_u32 v{vHs}, {112*1024}, v{vL16}
    v_lshrrev_b32 v{a}, 3, v{vLane}
    v_and_b32 v{b}, 7, v{vLane}
    v_mul_u32_u24 v{a}, 57344, v{a}
    v_lshlrev_b32 v{vUw}, 4, v0
    v_lshl_add_u32 v{vUo}, v{b}, 4, v{a}
    v_mov_b32 v{c}, 0
    v_min_u32 v{d}, 39, v{vLane}
    v_lshlrev_b32 v{d}, 2, v{d}
    ds_write_b32 v{d}, v{c} offset:{UA}
    ds_write_b32 v{d}, v{c} offset:{UA+UAS}
    v_bfe_u32 v{a}, v{vLane}, 2, 2
    v_and_b32 v{b}, 3, v{vLane}
    v_lshrrev_b32 v{g}, 5, v{vLane}
    v_bfe_u32 v{h}, v{vLane}, 4, 1
    v_and_or_b32 v{e}, v{a}, 2, v{h}
    s_lshl_b32 s{sT0}, s{sW1}, 1
    v_lshl_add_u32 v{f}, v{g}, 2, v{a}
    v_xor_b32 v{e}, s{sT0}, v{e}
    v_lshl_add_u32 v{g}, v{b}, 3, s{sM0x}
    v_lshl_add_u32 v{g}, v{f}, 7, v{g}
    v_lshl_add_u32 v{vDr}, v{e}, 5, v{g}
    v_xor_b32 v{vDr+1}, 64, v{vDr}
    v_add_u32 v{vDr+2}, 0x10000, v{vDr}
    v_add_u32 v{vDr+3}, 0x10000, v{vDr+1}
    s_mul_i32 s{sT0}, s{sW2}, {112*1024}
    v_add_u32 v{vH1}, s{sT0}, v{vL16}
    v_subrev_u32 v{vH2}, s{sT0}, v{vHs}
    v_and_b32 v{vG}, 31, v{vLane}
    v_lshlrev_b32 v{vG}, 2, v{vG}
    """)
    return s

def touches():
    s = S()
    s(f"""s_lshl2_add_u32 s{sT0}, s{sC}, s{sW}
    s_lshr_b32 s{sT1}, s{sT0}, 1
    s_mul_i32 s{sT0}, s{sT0}, {14*128}
    s_mul_i32 s{sT1}, s{sT1}, 3584
    v_min_u32 v{vPoll}, 13, v{vLane}
    v_lshlrev_b32 v{vPoll}, 7, v{vPoll}""")
    if OPT['tlb']:
        s(f"""v_mov_b32 v{vS}, 0
        buffer_load_dword v{vS+1}, v{vS}, {sr(rWS,4)}, s{sHst} offen sc1
        buffer_load_dword v{vS+2}, v{vS}, {sr(rO,4)}, s{sOst} offen sc1
        v_min_u32 v{vS+3}, 6, v{vLane}
        v_lshlrev_b32 v{vS+3}, 21, v{vS+3}
        buffer_load_dword v{vS+4}, v{vS+3}, {sr(rWS,4)}, 0 offen offset:0 sc1""")
    if OPT['mpf'] & 2: s(f"buffer_load_dword v3, v{vPoll}, {sr(rW,4)}, s{sT1} offen offset:1792")
    if OPT['mpf'] & 1: s(f"buffer_load_dword v{vZero}, v{vPoll}, {sr(rD,4)}, s{sT0} offen")
    return s

def setup_dd():
    s = S(); a, b, c = range(vS, vS+3)
    s(f"""
    v_lshrrev_b32 v{a}, 3, v{vLane}
    v_and_b32 v{b}, 7, v{vLane}
    v_bfe_u32 v{c}, v{vLane}, 4, 1
    v_mul_u32_u24 v{a}, 896, v{a}
    v_lshlrev_b32 v{c}, 2, v{c}
    v_xor_b32 v{b}, v{b}, v{c}
    v_lshl_add_u32 v{vDd}, v{b}, 4, v{a}
    v_add_u32 v{vDd+1}, {1*(8*896-1024)}, v{vDd}
    v_add_u32 v{vDd+2}, {2*(8*896-1024)}, v{vDd}
    v_add_u32 v{vDd+3}, {3*(8*896-1024)}, v{vDd}""")
    return s

def setup_exp():
    s = S(); a, b, c, d, e, f, g, h = range(vS+4, vS+12)
    s(f"""v_lshlrev_b32 v{vKw}, 2, v0
    v_cvt_f32_u32 v{a}, v0
    s_mov_b32 s{sT0}, {hx(SCR - 4*17024)}
    v_add_f32 v{a}, v{a}, v{a}""")
    for e_ in range(4):
        p, q = (b, c) if e_ % 2 == 0 else (d, e)
        s(f"""v_add_f32 v{p}, {hx(fbits(512.0*e_))}, v{a}
        v_add_f32 v{q}, {hx(fbits(512.0*e_+1))}, v{a}
        v_cvt_pk_bf16_f32 v{p}, v{p}, v{q}
        v_lshrrev_b32 v{q}, 16, v{p}
        v_and_b32 v{p}, 0xffff, v{p}
        v_lshl_add_u32 v{vI+2*e_+1}, v{q}, 2, s{sT0}
        v_lshl_add_u32 v{vI+2*e_}, v{p}, 2, s{sT0}""")
    s(f"""v_cmp_gt_u32 vcc, 64, v0
    v_lshlrev_b32 v{f}, 3, v0
    v_add_u32 v{g}, 4, v{f}
    v_cndmask_b32 v{vI}, v{vI}, v{f}, vcc
    v_cndmask_b32 v{vI+1}, v{vI+1}, v{g}, vcc
    v_mov_b32 v{vPar}, 0
    v_min_u32 v{vKp}, 23, v{vLane}
    v_lshlrev_b32 v{vKp}, 2, v{vKp}""")
    return s

def setup_conv():
    s = S(); a, b, c, d, e, f, g, h = range(vS, vS+8)
    s(f"""
    v_lshrrev_b32 v{a}, 3, v0
    v_and_b32 v{b}, 7, v0
    v_mul_u32_u24 v{e}, 272, v{a}
    v_cmp_eq_u32 vcc, 0, v{b}
    v_cmp_ne_u32 {sr(sTmp,2)}, 0, v{a}
    v_lshl_add_u32 v{vYr}, v{b}, 5, v{e}
    s_and_b64 vcc, vcc, {sr(sTmp,2)}
    v_mov_b32 v{f}, {UA}
    v_add_u32 v{g}, {YAS-16}, v{e}
    v_add_u32 v{e}, -16, v{e}
    v_cndmask_b32 v{vYc+1}, v{f}, v{g}, vcc
    v_cndmask_b32 v{vYc}, v{f}, v{e}, vcc
    v_bfe_u32 v{a}, v{vLane}, 2, 2
    v_and_b32 v{b}, 3, v{vLane}
    v_lshrrev_b32 v{c}, 4, v{vLane}
    v_lshl_add_u32 v{c}, v{c}, 3, v{a}
    v_lshlrev_b32 v{c}, 3, v{c}
    s_mul_i32 s{sT0}, s{sW2}, {KFS}
    s_add_u32 s{sT0}, s{sT0}, {KF}
    v_lshl_add_u32 v{d}, v{b}, 5, s{sT0}
    v_add_u32 v{vFr}, v{d}, v{c}
    s_mul_i32 s{sT0}, s{sW2}, {UAS}
    s_lshl_b32 s{sT1}, s{sW1}, 7
    s_add_u32 s{sT0}, s{sT0}, s{sT1}
    s_add_u32 s{sT0}, s{sT0}, {UA+160+96-32}
    v_lshl_add_u32 v{h}, v{b}, 3, s{sT0}
    v_sub_u32 v{vGr}, v{h}, v{c}
    s_mul_i32 s{sT0}, s{sW2}, {YAS}
    s_mul_i32 s{sT1}, s{sW1}, 272
    s_add_u32 s{sYw}, s{sT0}, s{sT1}
    s_add_u32 s{sT0}, s{sYw}, {hx(256-48*544)}
    v_mov_b32 v{e}, 544
    v_add_u32 v{g}, {UTS}, v{vL16}
    v_cmp_lt_u32 vcc, 47, v{vLane}
    v_mad_u32_u24 v{e}, v{e}, v{vLane}, s{sT0}
    v_cndmask_b32 v{vYk}, v{g}, v{e}, vcc
    """)
    return s

def setup_E():
    t = S(); a, b, c, d = 12, 13, 14, 15
    t(f"""
    v_lshrrev_b32 v{a}, 2, v{vLane}
    v_and_b32 v{b}, 3, v{vLane}
    s_lshl_b32 s{sT1}, s{sW}, 11
    s_add_u32 s{sT1}, s{sT1}, {UTS}
    v_lshl_add_u32 v{c}, v{b}, 3, s{sT1}
    v_add_u32 v{AW}, s{sT1}, v{vL16}
    v_lshlrev_b32 v{b}, 4, v{b}
    v_mul_u32_u24 v{OO}, 896, v{a}
    v_mul_u32_u24 v{OR_}, 80, v{a}
    v_lshl_add_u32 v{AO}, v{a}, 7, v{b}
    v_add_u32 v{OO}, v{OO}, v{b}
    v_add3_u32 v{OR_}, v{OR_}, v{b}, s{sM0x}
    v_and_b32 v{a}, 3, v{a}
    v_bfe_u32 v{d}, v{vLane}, 4, 1
    v_lshl_add_u32 v{c}, v{a}, 6, v{c}
    v_lshrrev_b32 v{b}, 5, v{vLane}
    v_lshl_add_u32 v{c}, v{d}, 5, v{c}
    v_add_u32 v{RW}, s{sM0x}, v{vL16}
    v_lshl_add_u32 v{AR}, v{b}, 8, v{c}
    v_and_b32 v{a}, 31, v{vLane}
    v_xor_b32 v{RR}, 0x1000, v{RW}
    v_xor_b32 v{RR+1}, 0x2000, v{RW}
    v_xor_b32 v{RR+2}, 0x3000, v{RW}
    v_mul_u32_u24 v{a}, 80, v{a}
    v_lshl_add_u32 v{b}, v{b}, 3, s{sM0x}
    v_add_u32 v{OW}, v{a}, v{b}
    v_and_b32 v8, 0xffff, v{vG}
    v_lshlrev_b32 v9, 16, v{vG}
    v_and_b32 v10, 0xffff0000, v{vG}
    v_and_b32 v11, 0xffff0000, v{vG}
    """)
    return t

USLOT = [0, 1, 2, 0, 3, 1, 4, 2, 5, 0, 3, 6, 1, 4]
def adv(s, so, step, en, span, extra):
    s(f"""s_add_u32 s{so}, s{so}, {step}
    s_cmp_eq_u32 s{so}, s{en}
    s_cselect_b32 s{sSpin}, {span}, 0
    s_sub_u32 s{so}, s{so}, s{sSpin}""")
    if extra: s(f"s_add_u32 s{so}, s{so}, {extra}\ns_add_u32 s{en}, s{en}, {extra}")

def item(n):
    if n < 14 and n % 2 == 0: m0, va, rs, so, step, en, ex = sM0x, vXd, rX, sXo, 128, sXe, 0
    elif n < 21: m0, va, rs, so, step, en, ex = sM0w, vWd, rW, sWo, 64*3584, sWe, (1792 if n == 13 else 0)
    else: m0, va, rs, so, step, en, ex = sM0x, vDd, rD, sDo, 32*896, sDe, (896*896 if n == 27 else 0)
    s = S()
    s(f"s_add_u32 m0, s{m0}, {(n % NSLOT if n < 21 else USLOT[n-21])*SLOT}")
    for q in range(4):
        s(f"buffer_load_dwordx4 v{va+q}, {sr(rs,4)}, s{so} offen offset:{1024*q} lds", f"it{n}")
    if n >= 21:
        if n != 34: s(f"s_add_u32 s{so}, s{so}, {step if n != 27 else (896-6*32)*896}")
    elif n not in (12, 20): adv(s, so, step, en, 7*step, ex)
    return s

def split_vm(st):
    grp = []
    for x in st:
        if not grp or (x.kind in VM_KINDS and any(y.kind in VM_KINDS for y in grp[-1])): grp.append(S())
        grp[-1].append(x)
    return grp

def sprinkle(main, groups, lo=0.0, hi=1.0):
    out = S(); n = len(main); g = 0
    pos = [int(n*(lo + (hi-lo)*k/max(1, len(groups)))) for k in range(len(groups))]
    for i, x in enumerate(main):
        while g < len(groups) and pos[g] <= i and not glued(x):
            out.add(groups[g]); g += 1
        out.append(x)
    while g < len(groups): out.add(groups[g]); g += 1
    return out

NEG = "neg_lo:[1,0,0] neg_hi:[1,0,0]"
def cmul(s, d, x, z, pk):
    assert d != x and d != z
    if pk:
        s(f"""v_pk_mul_f32 {vr(d,2)}, {vr(x,2)}, {vr(z,2)}
        v_pk_mul_f32 {vr(d+2,2)}, {vr(x,2)}, {vr(z+2,2)}
        v_pk_fma_f32 {vr(d,2)}, {vr(x+2,2)}, {vr(z+2,2)}, {vr(d,2)} {NEG}
        v_pk_fma_f32 {vr(d+2,2)}, {vr(x+2,2)}, {vr(z,2)}, {vr(d+2,2)}""")
    else:
        for k in range(2): s(f"v_mul_f32 v{d+k}, v{x+k}, v{z+k}")
        for k in range(2): s(f"v_mul_f32 v{d+2+k}, v{x+k}, v{z+2+k}")
        for k in range(2): s(f"v_fma_f32 v{d+k}, -v{x+2+k}, v{z+2+k}, v{d+k}")
        for k in range(2): s(f"v_fmac_f32 v{d+2+k}, v{x+2+k}, v{z+k}")

def tile_w(t, regs, n):
    for r in range(n):
        for h in range(2):
            t(f"ds_write_addtid_b32 {regs(2*r+h)} offset:{(r&7)*544+(r>>3)*SCRH+256*h}")

FR = {0: ACC2, 1: ACC1, 2: ACC1+32, 3: ACC2+32}
def tile_r(t, k):
    for ks in range(8): t(f"ds_read_b128 {vr(FR[k]+4*ks,4)}, v{vTr} offset:{64*ks}")

def krows():
    s = S()
    R = ACC1
    A_, B_, C_, Dt, T = R, R+4, R+8, R+12, R+16
    Z8, Z1, Z256, W, Z16, Z2, Z512 = [R+28+4*k for k in range(7)]
    E = [R, R+4, R+8, R+12]; V = [R+16, R+20, R+24, R+56, R+60]
    for k in range(6):
        s(f"v_lshlrev_b32 v{R+2*k}, 16, v{P_RAW+k}\nv_and_b32 v{R+2*k+1}, 0xffff0000, v{P_RAW+k}")
    s(f"""
    s_lshl_b32 s{sT1}, s{sW2}, 4
    s_lshr_b32 s{sT1}, s{sLDv}, s{sT1}
    s_lshl_b32 s{sT1}, s{sT1}, 16
    v_mov_b32 v{Dt}, {hx(fbits(LOG2E))}
    v_mul_f32 v{Dt}, s{sT1}, v{Dt}
    v_exp_f32 v{Dt}, v{Dt}
    v_cvt_pk_bf16_f32 v{Dt}, 0, v{Dt}
    v_mov_b32 v{Dt+1}, v{Dt}
    """)
    for k in (A_, A_+2, B_, B_+2): s(f"v_pk_mul_f32 {vr(k,2)}, {vr(k,2)}, {vr(Dt,2)}")
    def prim(p, z, t):
        c1 = hx(fbits(p*LOG2E)); c2 = hx(fbits(p/(2*math.pi)))
        for k in range(2): s(f"v_mul_f32 v{t+k}, {c1}, v{A_+k}\nv_mul_f32 v{t+2+k}, {c2}, v{A_+2+k}")
        for k in range(2): s(f"v_exp_f32 v{t+k}, v{t+k}\nv_fract_f32 v{t+2+k}, v{t+2+k}")
        for k in range(2): s(f"v_cos_f32 v{z+k}, v{t+2+k}\nv_sin_f32 v{z+2+k}, v{t+2+k}")
        s(f"v_pk_mul_f32 {vr(z,2)}, {vr(z,2)}, {vr(t,2)}\nv_pk_mul_f32 {vr(z+2,2)}, {vr(z+2,2)}, {vr(t,2)}")
    prim(1, Z1, T); prim(256, Z256, T+4); prim(8, Z8, T+8)
    cmul(s, W, C_, B_, 1)
    def row(t, o0, o1, x, neg):
        m = '-' if neg else ''
        t(f"v_cvt_pk_bf16_f32 v{o0}, v{x}, v{x+1}\nv_cvt_pk_bf16_f32 v{o1}, {m}v{x+2}, {m}v{x+3}")
    cmul(s, Z2, Z1, Z1, 1); cmul(s, Z512, Z256, Z256, 1); cmul(s, Z16, Z8, Z8, 1)
    S0, S1 = V[3], V[4]
    ops = [(None, W, None, 0), (V[0], W, Z1, 1),
           (V[1], W, Z2, 2), (Z1, V[0], Z2, 3),
           (V[2], W, Z256, 8), (V[0], V[1], Z256, 9),
           (S0, W, Z512, 12), (S1, V[2], Z512, 14),
           (W, V[1], Z2, 4), (V[0], Z1, Z2, 5),
           (V[1], W, Z2, 6), (Z1, V[0], Z2, 7),
           (V[2], W, Z256, 10), (V[0], V[1], Z256, 11),
           (Z1, W, Z512, 13), (V[1], V[2], Z512, 15),
           (V[0], S0, Z512, 16), (V[2], S1, Z512, 17), (S0, V[0], Z512, 18), (S1, V[2], Z512, 19), (V[0], S0, Z512, 20)]
    for d, x, z, r in ops:
        if d is not None: cmul(s, d, x, z, 1)
        o = (ACC2+2*r, ACC2+2*r+1) if r < 16 else (PARK[2*r], PARK[2*r+1])
        row(s, o[0], o[1], x if d is None else d, 1)
    w = S()
    w(f"s_mov_b32 m0, s{sScr}")
    tile_w(w, lambda k: f"v{ACC2+k}", 16)
    b = S(); mv = S()
    b(f"v_mov_b32 v{PARK[0]}, 0x3f803f80\nv_mov_b32 v{PARK[1]}, 0")
    row(b, PARK[2], PARK[3], Z8, 0); row(b, PARK[4], PARK[5], Z16, 0)
    cur = {0: Z16, 1: Z8}
    for i in range(3, 32):
        nx = E[i % 4]
        cmul(b, nx, cur[i % 2], Z16, 1)
        if i < 16: row(b, PARK[2*i], PARK[2*i+1], nx, 0)
        else: row(b, ACC2+2*i, ACC2+2*i+1, nx, 0)
        cur[i % 2] = nx
    for k in range(32): mv(f"v_accvgpr_write_b32 a{224+k}, v{ACC2+32+k}")
    return s, w, b, mv

def stageA():
    p = S()
    rd = tile_r; fr = FR
    D = [48, 52, 56, 60]
    def mm(at, bt):
        t = S()
        for ks in range(8):
            d = vr(D[2*at+bt], 4)
            t(f"v_mfma_f32_16x16x32_bf16 {d}, {vr(fr[2+at]+4*ks,4)}, {vr(fr[bt]+4*ks,4)}, {d if ks else 0}")
        return t
    p(f"s_mov_b32 m0, s{sScr}")
    p(f"ds_write_b128 v{vUw}, {ar(aU,4)} offset:{UA+160}\nds_write_b128 v{vUw}, {ar(aU+4,4)} offset:{UA+160+UAS}")
    tile_w(p, lambda k: f"v{PARK[32+k]}", 5); rd(p, 3)
    tile_w(p, lambda k: f"v{PARK[k]}", 16); rd(p, 0)
    t = S(); tile_w(t, lambda k: f"v{ACC1+k}", 16); rd(t, 1)
    p.add(t[:8]).add(weave(mm(0, 0).add(mm(1, 0)), S(t[8:])))
    def pl0(bt): return f"ds_write_b64 v{vK+2*bt}, {vr(D[bt],2)}\nds_write_b64 v{vK+2*bt+1}, {vr(D[bt]+2,2)}"
    def pl1(bt): return "\n".join(f"ds_write2_b32 v{vK1}, v{D[2+bt]+jj}, v{D[2+bt]+jj+1} offset0:{16*bt+32*jj} offset1:{16*bt+32*jj+32}" for jj in (0, 2))
    p(pl0(0))
    p.add(weave(mm(0, 1), S()(pl1(0)), start=2)).add(weave(mm(1, 1), S()(pl0(1)), start=4))
    p(pl1(1))
    x = S()
    X = 92
    x.wait_lg(); x("s_barrier")
    for k in range(8):
        x(f"ds_read2st64_b32 {vr(X+4*k,2)}, v{vI+k} offset0:0 offset1:34\nds_read2st64_b32 {vr(X+4*k+2,2)}, v{vI+k} offset0:17 offset1:51")
    x(f"ds_write_b32 v{vKp}, v{vPar} offset:{KF}\nds_write_b32 v{vKp}, v{vPar} offset:{KF+KFS}")
    for e in range(0, 4): x(g_read(e))
    for e_ in range(4):
        k0, k1 = X+8*e_, X+8*e_+4
        x(f"""v_pk_add_f32 {vr(k0,2)}, {vr(k0,2)}, {vr(k0+2,2)}
        v_pk_add_f32 {vr(k1,2)}, {vr(k1,2)}, {vr(k1+2,2)}
        v_cvt_pk_bf16_f32 v{k0+2}, v{k0}, v{k1}
        v_cvt_pk_bf16_f32 v{k0+3}, v{k0+1}, v{k1+1}""")
    for e_ in range(4):
        k0 = X+8*e_
        x(f"ds_write_b32 v{vKw}, v{k0+2} offset:{KF+96+1024*e_}\nds_write_b32 v{vKw}, v{k0+3} offset:{KF+96+KFS+1024*e_}")
    x[-1].tok = "kf"
    for e in range(4, 8): x(g_read(e))
    x.wait_lg("kf"); x("s_barrier")
    return p, x

def lds_addr(base_lo, nset, k, slot, off):
    hi = slot >= 4
    return f"v{base_lo + k + (nset if hi else 0)}", (slot - (4 if hi else 0))*SLOT + off

def b_reads(i):
    s_, ks = divmod(i, 4)
    wslot = (2*s_+1) % NSLOT if s_ < 7 else (7+s_) % NSLOT
    buf = vWf + 8*(i % 3)
    wr = []
    for T in range(2):
        for h in range(2):
            a, o = lds_addr(vWr, 2, T, wslot, ks*2048 + h*512)
            wr.append(f"ds_read_b64_tr_b16 {vr(buf+4*T+2*h,2)}, {a} offset:{o}")
    if s_ < 7:
        xr = []
        for mt in range(2):
            a, o = lds_addr(vXr, 4, ks, (2*s_) % NSLOT, mt*4096)
            xr.append(f"ds_read_b128 {ar(8*i+4*mt,4)}, {a} offset:{o}")
        return [xr[0], wr[0], wr[1], xr[1], wr[2], wr[3]]
    return wr

def b_mfmas(i):
    acc = ACC1 if i < 28 else ACC2
    buf = vWf + 8*(i % 3)
    r = []
    for T in range(2):
        for mt in range(2):
            d = vr(acc + 32*T + 16*mt, 16)
            r.append(f"v_mfma_f32_32x32x16_bf16 {d}, {vr(buf+4*T,4)}, {ar(8*(i%28)+4*mt,4)}, {0 if i % 28 == 0 else d}")
    return r

def gelu(acc, half, pk, cluster=0):
    s = S(); st = S()
    for T in range(2):
        for mt in range(2):
            b = acc + 32*T + 16*mt
            o = b
            for jp in range(0, 8, 2):
                t = vGt + jp
                g0, u0 = b+jp, b+8+jp
                if pk:
                    s(f"""v_pk_mul_f32 {vr(t,2)}, {vr(g0,2)}, {vr(g0,2)}
                    v_pk_mul_f32 {vr(u0,2)}, {vr(u0,2)}, {vr(g0,2)}
                    v_pk_fma_f32 {vr(t,2)}, {vr(t,2)}, {vr(vC1,2)}, {sr(sK0,2)}
                    v_pk_mul_f32 {vr(t,2)}, {vr(t,2)}, {vr(g0,2)}
                    v_exp_f32 v{t}, v{t}
                    v_exp_f32 v{t+1}, v{t+1}
                    v_pk_add_f32 {vr(t,2)}, {vr(t,2)}, {sr(sK1,2)}
                    v_rcp_f32 v{t}, v{t}
                    v_rcp_f32 v{t+1}, v{t+1}
                    v_pk_mul_f32 {vr(t,2)}, {vr(t,2)}, {vr(u0,2)}
                    v_cvt_pk_bf16_f32 v{o+jp//2}, v{t}, v{t+1}""")
                else:
                    s(f"""v_mul_f32 v{t}, v{g0}, v{g0}
                    v_mul_f32 v{t+1}, v{g0+1}, v{g0+1}
                    v_mul_f32 v{u0}, v{u0}, v{g0}
                    v_fma_f32 v{t}, v{t}, v{vC1}, s{sK0}
                    v_fma_f32 v{t+1}, v{t+1}, v{vC1}, s{sK0}
                    v_mul_f32 v{u0+1}, v{u0+1}, v{g0+1}
                    v_mul_f32 v{t}, v{t}, v{g0}
                    v_mul_f32 v{t+1}, v{t+1}, v{g0+1}
                    v_exp_f32 v{t}, v{t}
                    v_exp_f32 v{t+1}, v{t+1}
                    v_add_f32 v{t}, 1.0, v{t}
                    v_add_f32 v{t+1}, 1.0, v{t+1}
                    v_rcp_f32 v{t}, v{t}
                    v_rcp_f32 v{t+1}, v{t+1}
                    v_mul_f32 v{t}, v{t}, v{u0}
                    v_mul_f32 v{t+1}, v{t+1}, v{u0+1}
                    v_cvt_pk_bf16_f32 v{o+jp//2}, v{t}, v{t+1}""")
            (st if cluster else s)(f"buffer_store_dwordx4 {vr(o,4)}, v{vL16 if mt == 0 else vHs}, {sr(rWS,4)}, s{sHst} offen offset:{1024*T} sc1", f"h{half}")
    return s.add(st)

def chunks(st, n):
    m = len(st); c = [m*k//n for k in range(n+1)]
    for k in range(1, n):
        while c[k] < m and glued(st[c[k]]): c[k] += 1
    return [S(st[c[k]:c[k+1]]) for k in range(n)]

def wd_move(q):
    t = S(); t.wait_vm(f"it{21+q}"); t.add(wd_reads(q)); return t
def wd_item(u):
    t = S()
    prev = [p for p in range(u) if USLOT[p] == USLOT[u]]
    if prev: t.wait_lg(f"wd{prev[-1]}")
    return split_vm(t.add(item(21+u)))

def stageB(mv):
    side = {k: [] for k in range(14)}
    side[0].append((mv, 0, 16))
    side[2].append((setup_conv(), 0, 16))
    side[5].append((setup_dd(), 0, 16))
    side[6].append((setup_exp(), 7, 16))
    t = S()
    for k in range(32): t(f"v_accvgpr_read_b32 v{ACC1+k}, a{224+k}")
    side[13].append((t, 0, 16))
    t = S(); tile_r(t, 2); side[13].append((t, 10, 16))
    allg = []
    for n in range(OPT['npre'], 21): allg += split_vm(item(n))
    for u in range(8): allg += wd_item(u)
    cnt = [4*(7-OPT['npre'])] + [8]*6 + [6, 6, 4, 6, 6, 6, 6]
    assert sum(cnt) == len(allg)
    vm = {}; p = 0
    for k in range(14): vm[k] = allg[p:p+cnt[k]]; p += cnt[k]
    for q, st in enumerate((10, 11, 12, 13, 13)): side[st].append((wd_move(q), 0 if q != 4 else 8, 8 if q != 4 else 16))
    iss, chk = poll(NHELP, sDbg, 0)
    f1 = OPT['f1']
    vm[f1][0] = iss.add(vm[f1][0])
    chk(f"""buffer_load_dwordx4 {ar(aU,4)}, v{vUo}, {sr(rWS,4)}, s{sUTld} offen sc1
    buffer_load_dwordx4 {ar(aU+4,4)}, v{vUo}, {sr(rWS,4)}, s{sUTld} offen offset:128 sc1
    buffer_load_dword v{vG}, v{vG}, {sr(rWS,4)}, s{sGld} offen sc1""")
    if f1 + 2 < 14: vm[f1+2] = split_vm(chk) + vm[f1+2]; stageB.ut = []
    else: stageB.ut = [chk]
    for k, c in enumerate(chunks(gelu(ACC1, 1, False, OPT['cl1']), OPT['nst'])): side[7+k].insert(0, (c, 2 if k == 0 else 0, 16))
    out = S()
    out.wait_vm(("it0", "it1")); out.wait_lg(); out("s_barrier")
    stamp(out, "B0")
    for i in range(2):
        for r in b_reads(i): out(r, f"br{i}")
    for s_ in range(14):
        base = S()
        for ks in range(4):
            i = 4*s_ + ks
            m = b_mfmas(i)
            rd = b_reads(i+2) if i < 54 else []
            n = len(rd)
            dist = {1: [2, 2, 2, 0], 2: [0, 2, 2, 2]}.get(ks, [2, 1, 2, 1]) if n == 6 else {1: [2, 1, 1, 0], 2: [0, 2, 1, 1]}.get(ks, [1, 1, 1, 1])
            p = 0
            for q in range(4):
                base(m[q])
                if ks == 2 and q == 1:
                    nxt = s_ + 1
                    toks = (f"it{2*nxt}", f"it{2*nxt+1}") if nxt < 7 else (f"it{7+nxt}",) if nxt < 14 else None
                    if toks: base.wait_vm(toks)
                    base.wait_lg((f"br{i+1}", "pub")); base("s_barrier")
                elif q == 3 and ks != 2 and i < 55: base.wait_lg(f"br{i+1}")
                for r in rd[p:p+dist[q]]: base(r, f"br{i+2}")
                p += dist[q]
        grp = vm[s_]
        sl = {0: [], 5: [1, 3, 7, 11, 15], 4: [3, 7, 11, 15], 6: [1, 3, 7, 8, 12, 15], 7: [1, 3, 5, 7, 8, 12, 15], 8: [1, 3, 5, 7, 8, 11, 13, 15],
              9: [0, 1, 3, 5, 7, 8, 11, 13, 15], 12: [0, 1, 2, 3, 4, 5, 7, 8, 11, 13, 14, 15]}[len(grp)]
        st = place(base, grp, sl)
        for sd, a, b in sorted(side[s_], key=lambda e: any(x.kind == 'mfma' for x in e[0])):
            if len(sd): st = weave(st, sd, start=a, end=b)
        out.add(st)
        stamp(out, f's{s_}')
        if s_ == 6: stamp(out, "B1")
    return out

def wd_reads(u):
    s = S()
    for T in range(2):
        for dt in range(2):
            for h in range(2):
                a, o = lds_addr(vDr, 2, dt, USLOT[u], T*2048 + h*1024)
                s(f"ds_read_b64_tr_b16 {ar(16*(u%7)+8*T+4*dt+2*h, 2)}, {a} offset:{o}", f"wd{u}")
    return s

def hreg(u, o): return ar(112+16*u+o, 4) if u < 9 else vr(176+16*(u-9)+o, 4)
def h_loads(u):
    s = S()
    for T in range(2):
        for mt in range(2):
            s(f"buffer_load_dwordx4 {hreg(u, 8*T+4*mt)}, v{vH1 if mt == 0 else vH2}, {sr(rWS,4)}, s{sHld} offen offset:{1024*T} sc1")
    if u != 13: s(f"s_add_u32 s{sHld}, s{sHld}, {2048 if u != 6 else (56-12)*1024}")
    return s

def f_read(t):
    b = vWf + 4*(t % 4)
    return f"ds_read_b64_tr_b16 {vr(b,2)}, v{vFr} offset:{256*t}\nds_read_b64_tr_b16 {vr(b+2,2)}, v{vFr} offset:{256*t+32}"
def g_read(e):
    return f"ds_read_b64_tr_b16 {vr(ACC2+4*e,2)}, v{vGr} offset:{256*e+32}\nds_read_b64_tr_b16 {vr(ACC2+4*e+2,2)}, v{vGr} offset:{256*e}"

def pairup(g):
    return [S(g[k]).add(g[k+1] if k+1 < len(g) else []) for k in range(0, len(g), 2)]

def stageTail():
    s = S()
    s(f"s_add_u32 s{sHst}, s{sHst}, {56*1024}")
    g = list(stageB.ut)
    for u in range(8, 8+OPT['ntail']):
        g += pairup(wd_item(u))
        if u < 10: g.append(wd_move(u-3))
    t = S(); t.wait_vm("h1"); t(flag(sF2w)); t(f"s_add_u32 s{sF2w}, s{sF2w}, {128*FS}")
    g.insert(min(len(g), len(stageB.ut) + OPT['f2a']), t)
    s.add(sprinkle(gelu(ACC2, 2, True, OPT['cl2']), g, 0.0, 0.95))
    return s

def stageSSM():
    a2, ex = stageA()
    s = S()
    iss, chk = poll(7, sWs, f"s{sF2r}")
    a2 = sprinkle(a2, [iss], OPT['p2a']/100, 1.0)
    hl = S().add(chk)
    for u in range(OPT['nha']): hl.add(h_loads(u))
    s.add(sprinkle(a2, split_vm(hl), OPT['c2a']/100, 1.0))
    stamp(s, "A2")
    t = S(); t.wait_vm("h2"); t(flag(sF2w)); t(f"s_add_u32 s{sF2r}, s{sF2r}, {128*FS}")
    hq = OPT['nha']; hl = S()
    for u in range(hq, hq+OPT['nhx']): hl.add(h_loads(u))
    hq += OPT['nhx']
    if OPT['wh2'] <= 100: s.add(sprinkle(ex, [t] + pairup(split_vm(hl)), OPT['wh2']/100, 1.0)); th2 = []
    else: s.add(sprinkle(ex, pairup(split_vm(hl)), 0.5, 1.0)); th2 = [t]
    stamp(s, "exp")
    main = S()
    for t in range(3): main(f_read(t))
    def flush(c):
        d = ACC1 + 4*c; t = S()
        for j in (2, 1, 0):
            t(f"v_add_f32_dpp v{d+j}, v{d+j+1}, v{d+j} wave_shr:1 row_mask:0xf bank_mask:0xf")
        if c:
            for j in (3, 2, 1):
                t(f"v_mov_b32_dpp v{d+j}, v{d-4+j} wave_shl:1 row_mask:0xf bank_mask:0xf")
        return t
    for t in range(16):
        blk = S()
        for c in range(t, 16):
            d = vr(ACC1 + 4*c, 4)
            blk(f"v_mfma_f32_16x16x32_bf16 {d}, {vr(vWf+4*(t%4),4)}, {vr(ACC2+4*(c-t),4)}, {d if t else 0}")
        e = S()
        if t == 0:
            g4 = S()
            for q in range(8, 16): g4(g_read(q))
            blk = weave(blk, g4, start=0, end=8)
        if t + 3 < 16: e(f_read(t+3))
        if 1 <= t <= 12: e.add(flush(t-1))
        main.add(weave(blk, e, start=(8 if t == 0 else 0)))
    g = []
    for u in range(hq, 7): g += split_vm(h_loads(u))
    iss, chk = poll(7, sWs, f"s{sF2r}")
    for u in range(8+OPT['ntail'], 14): g += wd_item(u)
    n1 = len(g)
    hl = S().add(chk)
    g += split_vm(hl.add(h_loads(7)).add(h_loads(8)))
    c0 = OPT['c0']
    main = place(main, g, [c0 + ((132-c0)*k)//len(g) for k in range(len(g))])
    main = place(main, th2, [OPT['wh2']-100])
    s.add(place(main, [iss], [c0 + ((132-c0)*n1)//len(g) - OPT['p2b']]))
    stamp(s, "C")
    f = S()
    for c in range(12, 16): f.add(flush(c))
    f(f"s_mov_b32 m0, s{sYw}")
    for c in range(16): f(f"ds_write_addtid_b32 v{ACC1+4*c} offset:{544*c}")
    f(f"ds_write_b128 v{vYk}, {vr(ACC1+60,4)}", "yw")
    f2 = S()
    f2.wait_lg("yw"); f2("s_barrier")
    Y = ACC1; UU = ACC1+24; O = ACC1+32
    for ch in range(2):
        f2(f"""ds_read_b128 {vr(Y+12*ch,4)}, v{vYr} offset:{YAS*ch}
        ds_read_b128 {vr(Y+12*ch+8,4)}, v{vYc+ch}
        ds_read_b128 {vr(UU+4*ch,4)}, v{vUw} offset:{UA+160+UAS*ch}
        ds_read_b128 {vr(Y+12*ch+4,4)}, v{vYr} offset:{YAS*ch+16}""")
    f2(f"""s_and_b32 s{sK0}, s{sDSv}, 0xffff
    s_lshl_b32 s{sK0+1}, s{sDSv}, 16
    s_lshr_b32 s{sK1}, s{sDSv}, 16
    s_and_b32 s{sK1+1}, s{sDSv}, 0xffff0000
    s_add_u32 s{sUTld}, s{sUTld}, {WS_AT-WS_UT}""")
    f3 = S()
    for ch in range(2):
        b = Y+12*ch
        for k in range(3): f3(f"v_add_f32 v{b+k}, v{b+k}, v{b+9+k}")
        for k in range(8):
            f3(f"v_dot2_f32_bf16 v{b+k}, v{UU+4*ch+k//2}, s{(sK0 if ch == 0 else sK1)+(k&1)}, v{b+k}")
        for k in range(4):
            f3(f"v_cvt_pk_bf16_f32 v{O+4*ch+k}, v{b+2*k}, v{b+2*k+1}")
        f3(f"buffer_store_dwordx4 {vr(O+4*ch,4)}, v{vUo}, {sr(rWS,4)}, s{sUTld} offen offset:{128*ch} sc1", "at")
    return s, (f, f2, f3)

def stageD(fin):
    def mf(u):
        r = S()
        for T in range(2):
            for mt in range(2):
                for dt in range(2):
                    d = vr(DACC + 16*(dt + 2*mt), 16)
                    r(f"v_mfma_f32_32x32x16_bf16 {d}, {ar(16*(u%7)+8*T+4*dt, 4)}, {hreg(u, 8*T+4*mt)}, {0 if u == 0 and T == 0 else d}")
        return r
    s = S()
    H2 = ACC1
    iss, chk = poll(16, sWs, f"s{sF3r}")
    hsched = [{1: 9, 2: 10, 3: 11, 7: 12, 8: 13}, {1: 9, 3: 10, 6: 11, 7: 12, 8: 13}, {1: 9, 2: 10, 4: 11, 6: 12, 7: 13}][OPT['hs']]
    for u in range(14):
        blk = mf(u)
        if 3 <= u < 10:
            r = wd_move(u+4)
            blk = place(blk, chunks(r, 4), [0, 2, 4, 6])
        ex = S()
        if u == OPT['f3']: ex.wait_vm("at"); ex(flag(sF3w))
        if u in hsched: ex.add(h_loads(hsched[u]))
        if u == OPT['p3']: ex.add(iss)
        if len(ex):
            gq = split_vm(ex); blk = place(blk, gq, [1, 3, 5, 7, 7][:len(gq)])
        if u == 0: blk = weave(blk, fin[0])
        if u == 1: blk = weave(blk, fin[1], start=2, end=5)
        if u == 2: blk = weave(blk, S(x for x in fin[2] if x.kind != 'vstore')).add(x for x in fin[2] if x.kind == 'vstore')
        if u == 5: blk = weave(blk, setup_E())
        s.add(blk)
        stamp(s, f'd{u}')
        if u == 6: stamp(s, "D1")
    stamp(s, "D2")
    G, GH, OMG = 8, 9, 10
    al = S().add(chk)
    for q in range(2):
        al(f"buffer_load_dwordx4 {vr(E0+4*q,4)}, v{AO}, {sr(rWS,4)}, s{sATld} offen offset:{2048*q} sc1")
    if OPT['c3'] == 0: s.add(al)
    for t in range(1, 4):
        for k in range(4):
            s(f"ds_write_b128 v{RW}, {vr(DACC+16*t+4*k,4)} offset:{(t-1)*SLOT+1024*k}")
        if OPT['c3'] == t: s.add(al)
    s.wait_lg(); s("s_barrier")
    stamp(s, 'e1')
    for k in range(4):
        for t in range(1, 4):
            s(f"ds_read_b128 {vr(H2+16*(t-1)+4*k,4)}, v{RR+t-1} offset:{(t-1)*SLOT+1024*k}")
    for k in range(4):
        for p in range(2):
            o = 4*k + 2*p
            s(f"""v_pk_add_f32 {vr(DACC+o,2)}, {vr(DACC+o,2)}, {vr(H2+o,2)}
            v_pk_add_f32 {vr(H2+16+o,2)}, {vr(H2+16+o,2)}, {vr(H2+32+o,2)}""")
        for p in range(2):
            o = 4*k + 2*p
            s(f"v_pk_add_f32 {vr(DACC+o,2)}, {vr(DACC+o,2)}, {vr(H2+16+o,2)}")
        for p in range(2):
            o = 4*k + 2*p
            s(f"v_pk_mul_f32 {vr(DACC+o,2)}, {vr(DACC+o,2)}, {vr(OMG,2)}")
    stamp(s, 'e2')
    for q in range(2):
        s(f"ds_write_b128 v{AW}, {vr(E0+4*q,4)} offset:{1024*q}")
    for k in range(4):
        s(f"ds_read_b64_tr_b16 {vr(E0+8+2*k,2)}, v{AR} offset:{512*k}")
    for k in range(4):
        for j in range(4):
            s(f"v_dot2_f32_bf16 v{DACC+4*k+j}, v{E0+8+2*k+j//2}, v{G if j % 2 == 0 else GH}, v{DACC+4*k+j}")
        s(f"""v_cvt_pk_bf16_f32 v{E0+2*k}, v{DACC+4*k}, v{DACC+4*k+1}
        v_cvt_pk_bf16_f32 v{E0+2*k+1}, v{DACC+4*k+2}, v{DACC+4*k+3}""")
    for k in range(4):
        s(f"ds_write_b64 v{OW}, {vr(E0+2*k,2)} offset:{3*SLOT+16*k}")
    for q in range(2):
        s(f"ds_read_b128 {vr(H2+4*q,4)}, v{OR_} offset:{3*SLOT+16*80*q}")
    sc = " sc1" if OPT['outsc'] else ""
    s(f"s_add_u32 s{sT0}, s{sOst}, {16*896}")
    s(f"buffer_store_dwordx4 {vr(H2,4)}, v{OO}, {sr(rO,4)}, s{sOst} offen{sc}")
    s(f"buffer_store_dwordx4 {vr(H2+4,4)}, v{OO}, {sr(rO,4)}, s{sT0} offen{sc}")
    return s

def helper():
    s = S()
    GWL = 57344; TS = 59392
    s(f"""
    v_lshrrev_b32 v3, 6, v0
    v_and_b32 v2, 63, v0
    v_readfirstlane_b32 s3, v3
    v_lshlrev_b32 v1, 4, v2
    s_mul_i32 s6, s2, 57344
    s_mul_i32 s7, s3, 14336
    s_add_u32 s8, s6, s7
    {srd(rX, sU, 2048*896)}
    {srd(rW, sGw, 896)}
    {srd(rWS, sWs, WS_END)}
    {srd(rO, sDbg, 256)}
    v_mov_b32 v8, 0
    v_mov_b32 v9, 0
    v_mov_b32 v10, 0
    v_mov_b32 v11, 0
    v_cmp_gt_u32 vcc, 40, v0
    v_mov_b32 v4, 0x80000000
    v_lshrrev_b32 v5, 2, v0
    v_mul_u32_u24 v5, {FS-64}, v5
    v_add_u32 v5, v5, v1
    v_cndmask_b32 v5, v4, v5, vcc
    s_mul_i32 s9, s2, {10*FS}
    s_add_u32 s9, s9, {WS_F2}
    buffer_store_dwordx4 v[8:11], v5, {sr(rWS,4)}, s9 offen sc1
    """)
    for k in range(14):
        if k % 4 == 0: s(f"s_add_u32 m0, s7, {1024*k}\ns_add_u32 s9, s8, {1024*k}")
        s(f"buffer_load_dwordx4 v1, {sr(rX,4)}, s9 offen offset:{1024*(k%4)} lds", "x")
    s(f"s_mov_b32 m0, {GWL}\nbuffer_load_dwordx4 v1, {sr(rW,4)}, 0 offen lds", "x")
    s(f"""
    v_min_u32 v24, 195, v0
    v_mul_u32_u24 v25, 4682, v24
    v_lshrrev_b32 v25, 16, v25
    v_mul_u32_u24 v25, {3584-14*128}, v25
    v_lshlrev_b32 v24, 7, v24
    s_mul_i32 s14, s2, {14*3584}
    v_add3_u32 v25, v25, v24, s14
    v_add_u32 v24, s14, v24
    v_add_u32 v26, {196*128}, v24
    v_min_u32 v31, 1, v0
    v_lshlrev_b32 v31, 31, v31
    v_mov_b32 v9, 1
    s_lshl_b32 s15, s2, 2""")
    if OPT['hpf'] & 1: s(f"global_load_dword v27, v25, {sr(sWg,2)} offset:1792\nglobal_load_dword v28, v25, {sr(sWu,2)} offset:1792")
    if OPT['hpf'] & 4: s(f"global_load_dword v29, v24, {sr(sWdn,2)}\nglobal_load_dword v30, v26, {sr(sWdn,2)}")
    s(f"""
    v_lshrrev_b32 v6, 4, v2
    v_bfe_u32 v7, v2, 2, 2
    v_lshl_add_u32 v7, v6, 3, v7
    v_mul_u32_u24 v7, 896, v7
    v_and_b32 v12, 3, v2
    s_mul_i32 s9, s3, 224
    v_lshl_add_u32 v12, v12, 3, s9
    v_add_u32 v12, v12, v7
    s_mul_i32 s10, s3, {7*2304}
    s_add_u32 s10, s10, {TS}
    v_and_b32 v13, 15, v2
    v_mul_u32_u24 v14, 144, v13
    v_lshl_add_u32 v14, v6, 4, v14
    v_add_u32 v14, s10, v14
    v_lshrrev_b32 v15, 3, v2
    v_lshl_add_u32 v15, v15, 4, v1
    v_add_u32 v15, s10, v15
    v_mul_u32_u24 v16, 896, v13
    v_lshl_add_u32 v16, v6, 4, v16
    v_add_u32 v16, s7, v16
    v_lshlrev_b32 v17, 4, v6
    v_cmp_gt_u32 vcc, 16, v2
    v_lshlrev_b32 v18, 2, v2
    v_cndmask_b32 v18, v4, v18, vcc
    s_add_u32 s11, s8, {WS_UT}
    s_lshl2_add_u32 s13, s2, s3
    s_lshl_b32 s13, s13, 6
    s_add_u32 s13, s13, {WS_G}
    """)
    s.wait_vm("x"); s("s_barrier")
    for cg in range(7):
        for t in range(2):
            for h in range(2):
                s(f"ds_read_b64_tr_b16 {vr(128+8*cg+4*t+2*h,2)}, v12 offset:{(32*t+4*h)*896+32*cg}")
    for cg in range(7):
        for t in range(2): s(f"ds_write_b128 v14, {vr(128+8*cg+4*t,4)} offset:{2304*cg+64*t}")
        for t in range(2): s(f"ds_read_b128 {vr(192+8*cg+4*t,4)}, v15 offset:{2304*cg+8*144*t}")
    for cg in range(7):
        for t in range(2): s(f"buffer_store_dwordx4 {vr(192+8*cg+4*t,4)}, v1, {sr(rWS,4)}, s11 offen offset:{1024*t} sc1")
        s(f"s_add_u32 s11, s11, 2048")
    if OPT['hpf'] & 2: s(f"global_load_dword v29, v24, {sr(sWdn,2)}\nglobal_load_dword v30, v26, {sr(sWdn,2)}")
    for ks in range(14):
        r = 64 + 8*(ks % 4)
        s(f"""ds_read_b128 {vr(r,4)}, v17 offset:{GWL+64*ks}
        ds_read_b128 {vr(r+4,4)}, v16 offset:{64*ks}
        v_mfma_f32_16x16x32_bf16 v[20:23], {vr(r,4)}, {vr(r+4,4)}, {'v[20:23]' if ks else 0}""")
    s(f"""v_cvt_pk_bf16_f32 v20, 0, v20
    v_mul_f32 v20, {hx(fbits(-LOG2E))}, v20
    v_exp_f32 v20, v20
    v_add_f32 v20, 1.0, v20
    v_rcp_f32 v20, v20
    v_cvt_pk_bf16_f32 v21, 0, v20
    v_sub_f32 v22, 1.0, v21
    v_cvt_pk_bf16_f32 v20, v21, v22
    buffer_store_dword v20, v18, {sr(rWS,4)}, s13 offen sc1""")
    s.wait_vm('*'); s("s_barrier")
    s(f"buffer_atomic_add v9, v31, {sr(rO,4)}, 0 offen sc1")
    if OPT['stamp']:
        s(f"""s_mov_b32 s6, s100
        s_memtime s[100:101]
        s_waitcnt lgkmcnt(0)
        s_sub_u32 s6, s100, s6
        v_mov_b32 v8, s6
        s_add_u32 s15, s15, {WS_ST+224*512}
        buffer_store_dword v8, v31, {sr(rWS,4)}, s15 offen""")
    s("s_endpgm")
    fin, _ = finalize(schedule(s))
    return f"""L_helper:
    s_getpc_b64 s[4:5]
L_pc:
    s_sub_u32 s4, s4, L_pc-{NAME}_kernel
    s_subb_u32 s5, s5, 0
    v_lshlrev_b32 v1, 7, v0
    v_min_u32 v1, L_last-{NAME}_kernel, v1
    global_load_dword v19, v1, s[4:5]
    s_waitcnt lgkmcnt(0)
""" + text(fin) + "\nL_last:\n    s_endpgm"

def build():
    s = S()
    if OPT['x_sync']:
        s("""s_memrealtime s[100:101]
        s_waitcnt lgkmcnt(0)
        s_or_b32 s4, s100, 0x3ff
        L_sync:
        s_memrealtime s[100:101]
        s_waitcnt lgkmcnt(0)
        s_cmp_lt_u32 s100, s4
        s_cbranch_scc1 L_sync""")
    if OPT['stamp']:
        s(f"v_mov_b32 v47, 0\ns_memrealtime s[100:101]\ns_waitcnt lgkmcnt(0)\nv_writelane_b32 v47, s100, 30")
    stamp(s, "start")
    s(f"""s_load_dwordx16 s[16:31], s[0:1], 0
    s_load_dwordx16 s[32:47], s[0:1], 64
    s_load_dwordx2 s[48:49], s[0:1], 128
    s_cmp_ge_u32 s2, {NHELP+NMAIN}
    s_cbranch_scc1 L_end
    s_cmp_lt_u32 s2, {NHELP}
    s_cbranch_scc1 L_helper""")
    s.add(setup_early()).add(setup_scalar())
    s("s_waitcnt lgkmcnt(0)")
    stamp(s, "karg")
    s.add(first_loads())
    g0 = []
    for n in range(OPT['npre']): g0 += split_vm(item(n))
    s.add(sprinkle(setup_AB().add(setup_start2()), g0[:8], 0.0, 0.3))
    stamp(s, "setup")
    ka, kw, kb, mv = krows()
    s.add(sprinkle(ka, g0[8:16] + ([touches()] if OPT['mpf'] else []), 0.1, 1.0))
    s.add(kw)
    stamp(s, "ka")
    s.add(sprinkle(kb, g0[16:], 0.0, 1.0))
    stamp(s, "kb")
    s.add(stageB(mv))
    stamp(s, "B2")
    s.add(stageTail())
    stamp(s, "tail")
    if OPT['x_ack']: s("s_waitcnt vmcnt(0)"); stamp(s, "ack")
    ssm, fin = stageSSM()
    s.add(ssm)
    s.add(stageD(fin))
    stamp(s, "E")
    if OPT['stamp']:
        s(f"""s_waitcnt vmcnt(0)
        {'s_memtime' if OPT['stamp'] == 1 else 's_memrealtime'} s[100:101]
        s_waitcnt lgkmcnt(0)
        v_writelane_b32 v47, s100, {len(stamps)}
        {chr(10).join(f'v_writelane_b32 v47, s{18+2*j}, {k}' for j, k in enumerate(asyncst))}
        s_memrealtime s[100:101]
        s_waitcnt lgkmcnt(0)
        v_writelane_b32 v47, s100, 31
        s_lshl2_add_u32 s{sT0}, s{sC}, s{sW}
        s_lshl_b32 s{sT0}, s{sT0}, 7
        s_add_u32 s{sT0}, s{sT0}, {WS_ST}
        v_and_b32 v3, 31, v{vLane}
        v_lshlrev_b32 v3, 2, v3
        s_mov_b64 exec, 0xffffffff
        buffer_store_dword v47, v3, {sr(rWS,4)}, s{sT0} offen""")
        stamps.append("end")
    if PROBE:
        s('s_waitcnt vmcnt(0)'); stamp(s, 'fin')
        s(f"""s_waitcnt lgkmcnt(0)
        s_sub_u32 s12, s20, s100
        s_max_i32 s12, s12, 0
        s_mul_i32 s12, s12, 10
        s_memrealtime s[100:101]
        s_waitcnt lgkmcnt(0)
        s_mov_b32 s8, s100
        L_probe:
        s_memrealtime s[100:101]
        s_waitcnt lgkmcnt(0)
        s_sub_u32 s100, s100, s8
        s_cmp_lt_u32 s100, s12
        s_cbranch_scc1 L_probe""")
    if OPT['x_strip'] == 1:
        s = S(x for x in s if not (x.kind in ('mfma', 'ds', 'trans') or (x.kind == 'valu' and ('f32' in x.op or 'accvgpr' in x.op or x.dpp)) or (x.kind == 'mark' and x.lg is not None)))
        t = S()
        for x in s:
            t.append(x)
            if x.kind == 'vload' and 'x4' in x.op: t("s_waitcnt vmcnt(24)")
        s = t
    if OPT['x_strip'] == 2:
        s = S(x for x in s if not ((x.kind in VM_KINDS and 'v47' not in x.text) or (x.kind == 'mark' and x.vm is not None) or 'L_slow' in x.text))
    if OPT['sched']: s = schedule(s)
    fin, nn = finalize(s)
    info = ''
    if OPT['align']:
        fin, nw, na, nb = align_pass(fin); info = f"widened {nw} alignnops {na} bytes {nb}"
    open(sys.argv[1]+'.names', 'w').write(','.join(stamps))
    sys.stderr.write(f"instrs {len(fin)} nops {nn} est {estimate(fin)} {info}\n")
    hdr = open('cdna_kernels/' + NAME + '.s.ref').read().split('; Override launch')[0]
    return hdr + f"""; One fused launch. Workgroups 0..{NHELP-1}: transpose of u, gate, flag init. Workgroups {NHELP}..{NHELP+NMAIN-1}: S4 kernel
; generation, gate/up GEMM + GELU, causal convolution, down GEMM and the final mix.
; @launch grid=({NHELP+NMAIN},1,1) block=(256,1,1) lds={LDS_SIZE}
.amdgcn_target "amdgcn-amd-amdhsa--gfx950"
.text
.globl {NAME}_kernel
.p2align 8
.type {NAME}_kernel,@function
{NAME}_kernel:
{text(fin)}
L_end:
    s_endpgm
""" + "\n".join(slow) + "\n" + helper() + f"""
.section .rodata,"a"
.p2align 6
.amdhsa_kernel {NAME}_kernel
  .amdhsa_next_free_vgpr 512
  .amdhsa_next_free_sgpr 102
  .amdhsa_accum_offset 256
  .amdhsa_group_segment_fixed_size 0
  .amdhsa_kernarg_size 136
  .amdhsa_user_sgpr_count 2
  .amdhsa_user_sgpr_kernarg_segment_ptr 1
  .amdhsa_system_sgpr_workgroup_id_x 1
.end_amdhsa_kernel
"""

if __name__ == "__main__":
    open(sys.argv[1], 'w').write(build())
```

```python
import sys, math, struct
from asmlib import *
import asmlib

NAME = "gated_mix__ssm_conv_s4__geglu_ffn__prompt"
OPT = dict(x_sync=0, x_strip=0, stamp=0, cl2=1, nst=6, sched=1, align=1, outsc=1, kbw=32, n0=8, n1=16, tp=16, kalo=10, kahi=100, tm=3, ap=1, margin=6, npre=5, fstr=128, rx=2, hpf=5, mpf=0, cl1=0, tlb=0, stlb=1, x_ack=0, x_pre=0, pafter=0, ra=0, rb=0, rc=0, wat=0, hs=0,
           slp=2, agw=1, f1=12, ntail=3, f2a=1, p2a=20, c2a=70, nha=1, nhx=2, wh2=105, c0=10, p2b=45, f3=7, p3=11, c3=0)
PROBE = None
STSEL = 'start,karg,setup,ka,kb,B0,B1,B2,tail,A2,exp,C,D1,D2,E'.split(',')
for a in sys.argv[2:]:
    k, v = a.split('=')
    if k == 'probe': PROBE = v.split(',')
    elif k == 'st': STSEL = v.split(',')
    else:
        assert k in OPT, k
        OPT[k] = int(v)
asmlib.MARGIN = OPT['margin']

def fbits(x): return struct.unpack('<I', struct.pack('<f', x))[0]
def hx(x): return hex(x & 0xffffffff)
vr = lambda a, n: f"v[{a}:{a+n-1}]" if n > 1 else f"v{a}"
ar = lambda a, n: f"a[{a}:{a+n-1}]" if n > 1 else f"a{a}"
sr = lambda a, n: f"s[{a}:{a+n-1}]" if n > 1 else f"s{a}"
LOG2E = math.log2(math.e)

ROT = OPT['ra'] or OPT['rb'] or OPT['rc']
NHELP = 32; NMAIN = 224
FS = OPT['fstr']; WS_F2 = 0xB00000; WS_F3 = WS_F2 + 256*FS
WS_G = 0x4000; WS_ST = 0x18000; WS_UT = 0x40000; WS_AT = 0x200000; WS_H = 0x400000; WS_END = 0xD00000
SLOT = 16384; NSLOT = 7
RING = 49152
SCR = 0; SCRW = 4352; SCRH = 4*SCRW
YA = 0; YAS = 8704
KFS = 4224; KF = SCRH
UTS = KF + 2*KFS; UTSW = 2048
UA = 2*SCRH; UAS = 4288
LDS_SIZE = 163840
assert UTS + 4*UTSW <= UA and UA + 2*UAS <= RING and RING + NSLOT*SLOT <= LDS_SIZE

sU, sAre, sAim, sBre, sBim, sCre, sCim, sLdt = 16, 18, 20, 22, 24, 26, 28, 30
sDsk, sBx, sWg, sWu, sWdn, sGw, sOut, sDbg, sWs = 32, 34, 36, 38, 40, 42, 44, 46, 48
rX, rW, rD, rWS, rO = 52, 56, 60, 64, 68
sW, sC, sXo, sWo, sDo = 3, 4, 5, 6, 7
sM0x, sM0w = 9, 10
sW1, sW2 = 11, 13
sT0, sT1 = 14, 15
sTmp = 16
sHst, sHld = 72, 73
sF2w, sF3w, sF2r, sF3r = 74, 75, 76, 77
sUTld, sATld, sGld, sOst = 78, 79, 80, 81
sLDv, sDSv = 82, 83
sScr = 84
sX_, sJ_, sMI, sII, sMB, sFC, sRB = 85, 86, 87, 88, 89, 90, 91
sK0, sK1 = 92, 94
sSpin = 96
sXe, sWe, sDe, sHe = 97, 98, 99, 51
sKb = 50
sOne, sPoll = 51, 99

vL16, vLane, vPoll, vZero, vG, vHs = 1, 2, 4, 5, 6, 7
vWd, vWr, vXd, vXr = 8, 12, 16, 20
vDd = 16
vDr, vUo, vUw, vH1, vH2 = 28, 32, 33, 34, 35
vTr, vK, vK1 = 42, 43, 82
vI, vKw, vKp = 20, 84, 85
vFr, vGr, vYk, vYr, vYc = 36, 37, 38, 39, 40
AW, AR, AO, RW, RR, OW, OR_, OO = 42, 43, 20, 21, 22, 25, 26, 27
vWf = 48
vGt = 72; vC1 = 80
PARK = list(range(86, 128))
ACC1 = 128; ACC2 = 192
aU = 112
vS = 240
vPar = 83
DACC = 64; E0 = 48
sYw = 8

stamps = []; asyncst = []
def stamp(s, name):
    if PROBE and name in PROBE:
        if name == 'karg': s(f"s_memrealtime {sr(100,2)}\ns_waitcnt lgkmcnt(0)")
        else: s(f"s_memrealtime {sr(20 if name == PROBE[1] else 100,2)}", "async")
    if OPT['stamp'] and name in STSEL:
        k = len(stamps); stamps.append(name)
        op = 's_memtime' if OPT['stamp'] == 1 else 's_memrealtime'
        if name in ('start', 'karg', 'setup'): s(f"{op} {sr(100,2)}\ns_waitcnt lgkmcnt(0)\nv_writelane_b32 v47, s100, {k}")
        else:
            asyncst.append(k); assert len(asyncst) <= 14
            s(f"{op} {sr(16+2*len(asyncst),2)}", "async")

slow = []
def poll(thr, base, off):
    k = len(slow)
    iss = S(); iss(f"s_mov_b32 s{sPoll}, 0"); iss(f"s_load_dword s{sPoll}, {sr(base,2)}, {off}", "async")
    chk = S(); chk(f"s_cmp_lt_u32 s{sPoll}, {thr}\ns_cbranch_scc1 L_slow{k}\nL_back{k}:"); chk[0].kind = 'branch'
    if OPT['ap'] and base == sWs:
        rd = f"s_mov_b32 s{sPoll}, 0\n    s_atomic_add s{sPoll}, {sr(base,2)}, {off} glc\n    s_waitcnt lgkmcnt(0)"
    else:
        rd = f"global_load_dword v{vPoll}, v{vZero}, {sr(base,2)} sc1\n    s_waitcnt vmcnt(0)\n    v_readfirstlane_b32 s{sPoll}, v{vPoll}\n    s_nop 0"
    back = f"L_out{k}" if OPT['stamp'] else f"L_back{k}"
    slow.append(f"""L_slow{k}:
    {'s_memtime s[100:101]' if OPT['stamp'] else ''}
    s_mov_b32 s{sKb}, 0
    s_waitcnt lgkmcnt(0)
    s_cmp_ge_u32 s{sPoll}, {thr}
    s_cbranch_scc1 {back}
    v_mov_b32 v{vZero}, {off}
L_spin{k}:
    s_add_u32 s{sKb}, s{sKb}, 1
    s_cmp_gt_u32 s{sKb}, 0x40000
    s_cbranch_scc1 {back}
    {rd}
    s_cmp_ge_u32 s{sPoll}, {thr}
    s_cbranch_scc1 {back}
    s_sleep {OPT['slp'] if base == sWs else 8}
    s_branch L_spin{k}""" + (f"""
L_out{k}:
    s_mov_b32 s12, s100
    s_memtime s[100:101]
    s_waitcnt lgkmcnt(0)
    s_sub_u32 s12, s100, s12
    v_writelane_b32 v47, s12, {20+k}
    v_writelane_b32 v47, s{sKb}, {25+k}
    s_branch L_back{k}""" if OPT['stamp'] else ""))
    return iss, chk
def flag(soff): return f"s_atomic_add s{sOne}, {sr(sWs,2)}, s{soff}"
def srd(r, p, n): return f"s_mov_b32 s{r}, s{p}\ns_mov_b32 s{r+1}, s{p+1}\ns_mov_b32 s{r+2}, {n}\ns_mov_b32 s{r+3}, 0x20000"

def setup_early():
    s = S(); a, b, c, d, e, f = range(vS, vS+6)
    s(f"""
    v_lshrrev_b32 v{a}, 6, v0
    s_sub_u32 s{sC}, s2, {NHELP}
    v_bfe_u32 v{e}, v0, 3, 3
    v_readfirstlane_b32 s{sW}, v{a}
    s_lshl_b32 s{sT0}, s{sC}, 10
    v_lshl_add_u32 v{vPar}, v0, 2, s{sT0}
    v_and_b32 v{b}, 7, v0
    v_lshrrev_b32 v{c}, 1, v{e}
    v_mul_u32_u24 v{e}, 896, v{e}
    s_bfe_u32 s{sMI}, s{sC}, 0x20003
    s_and_b32 s{sKb}, s{sC}, 6
    s_lshl1_add_u32 s{sMB}, s{sKb}, s{sMI}
    v_xor_b32 v{d}, v{b}, v{c}
    s_lshl2_add_u32 s{sT0}, s{sMB}, s{sW}
    s_mulk_i32 s{sT0}, {32*896}
    v_lshl_add_u32 v{vXd}, v{d}, 4, v{e}
    s_lshl_b32 s{sT1}, s{sKb}, 7
    s_add_u32 s{sXo}, s{sT0}, s{sT1}
    s_movk_i32 s{sT1}, {8*896-1024}
    v_xad_u32 v{vXd+1}, v{vXd}, 64, s{sT1}
    s_add_u32 s{sM0x}, s{sW}, {RING//4096}
    s_lshl_b32 s{sM0x}, s{sM0x}, 12
    s_lshl_b32 s{sT1}, s{sT1}, 1
    v_add_u32 v{vXd+2}, s{sT1}, v{vXd}
    v_add_u32 v{vXd+3}, s{sT1}, v{vXd+1}
    s_mov_b32 s{rX+2}, {2048*896}
    s_mov_b32 s{rX+3}, 0x20000
    """)
    t = S()
    t(f"""
    s_and_b32 s{sW1}, s{sW}, 1
    s_lshr_b32 s{sW2}, s{sW}, 1
    s_lshr_b32 s{sII}, s{sC}, 5
    s_and_b32 s{sFC}, s{sC}, 1
    s_mulk_i32 s{sFC}, 7
    s_add_u32 s{sFC}, s{sFC}, s{sII}
    s_lshl1_add_u32 s{sWo}, s{sKb}, s{sW2}
    s_mulk_i32 s{sWo}, 896
    s_add_u32 s{sWo}, s{sWo}, s{sFC}
    s_lshl_b32 s{sWo}, s{sWo}, 7
    s_lshl1_add_u32 s{sM0w}, s{sW1}, s{sW2}
    s_add_u32 s{sM0w}, s{sM0w}, {RING//4096}
    s_lshl_b32 s{sM0w}, s{sM0w}, 12
    s_lshl_b32 s{sT1}, s{sW1}, 1
    v_and_or_b32 v{c}, v{c}, 1, s{sT1}
    v_lshlrev_b32 v{c}, 1, v{c}
    v_xor_b32 v{f}, v{b}, v{c}
    v_lshl_add_u32 v{f}, v{f}, 2, v{e}
    v_lshlrev_b32 v{vWd}, 2, v{f}
    s_movk_i32 s{sT1}, {8*3584-1024}
    v_add_u32 v{vWd+1}, s{sT1}, v{vWd}
    v_add_u32 v{vWd+2}, s{sT1}, v{vWd+1}
    v_add_u32 v{vWd+3}, s{sT1}, v{vWd+2}
    s_mov_b32 s{rW+2}, {448*3584}
    s_mov_b32 s{rW+3}, s{rX+3}
    """)
    u = S()
    u(f"""
    s_add_u32 s{sXe}, s{sT0}, 896
    s_sub_u32 s{sT1}, 7, s{sKb}
    s_mul_i32 s{sT1}, s{sT1}, {64*3584}
    s_add_u32 s{sWe}, s{sWo}, s{sT1}
    v_and_b32 v{vLane}, 63, v0
    v_lshlrev_b32 v{vL16}, 4, v{vLane}
    s_and_b32 s{sX_}, s{sC}, 7
    s_lshl2_add_u32 s{sRB}, s{sX_}, s{sMI}
    """)
    return s, t, u

def setup_scalar():
    s = S()
    s(f"""
    s_mul_i32 s{sScr}, s{sW}, {SCRW}
    ; h store / F2 write
    s_lshl1_add_u32 s{sT0}, s{sMB}, s{sW2}
    s_lshl1_add_u32 s{sT1}, s{sFC}, s{sW1}
    s_mul_i32 s{sHst}, s{sT0}, 112
    s_add_u32 s{sHst}, s{sHst}, s{sT1}
    s_lshl_b32 s{sHst}, s{sHst}, 11
    s_add_u32 s{sHst}, s{sHst}, {WS_H}
    s_mul_i32 s{sSpin}, s{sT1}, 37
    s_lshr_b32 s{sSpin}, s{sSpin}, 8
    s_lshl2_add_u32 s{sT0}, s{sT0}, s{sSpin}
    s_mul_i32 s{sT0}, s{sT0}, {FS}
    s_add_u32 s{sF2w}, s{sT0}, {WS_F2}
    s_mov_b32 s{sOne}, 1
    s_mul_i32 s{sT0}, s{sW}, 7
    s_mul_i32 s{sHld}, s{sRB}, 112
    s_add_u32 s{sHld}, s{sHld}, s{sT0}
    s_lshl_b32 s{sHld}, s{sHld}, 11
    s_add_u32 s{sHld}, s{sHld}, {WS_H}
    s_lshl2_add_u32 s{sT1}, s{sRB}, s{sW}
    s_mul_i32 s{sF2r}, s{sT1}, {FS}
    s_add_u32 s{sF2r}, s{sF2r}, {WS_F2}
    s_mul_i32 s{sDo}, s{sW}, {224*896}
    s_lshl_b32 s{sT1}, s{sII}, 7
    s_add_u32 s{sDo}, s{sDo}, s{sT1}
    ; uT load / aT store
    s_mul_i32 s{sUTld}, s{sW}, {8*57344}
    s_lshl_b32 s{sT1}, s{sC}, 8
    s_add_u32 s{sUTld}, s{sUTld}, s{sT1}
    s_add_u32 s{sUTld}, s{sUTld}, {WS_UT}
    s_lshr_b32 s{sT0}, s{sC}, 5
    s_lshl2_add_u32 s{sT0}, s{sT0}, s{sW}
    s_bfe_u32 s{sT1}, s{sC}, 0x10004
    s_lshl1_add_u32 s{sT0}, s{sT0}, s{sT1}
    s_mul_i32 s{sT0}, s{sT0}, {FS}
    s_add_u32 s{sF3w}, s{sT0}, {WS_F3}
    s_lshr_b32 s{sT0}, s{sRB}, 3
    s_lshl2_add_u32 s{sT0}, s{sII}, s{sT0}
    s_lshl1_add_u32 s{sT0}, s{sT0}, s{sW1}
    s_mul_i32 s{sF3r}, s{sT0}, {FS}
    s_add_u32 s{sF3r}, s{sF3r}, {WS_F3}
    ; aT load, out store, g load
    s_lshl1_add_u32 s{sT0}, s{sII}, s{sW1}
    s_mul_i32 s{sT1}, s{sRB}, 57344
    s_lshl_b32 s{sATld}, s{sT0}, 6
    s_add_u32 s{sOst}, s{sATld}, s{sT1}
    s_add_u32 s{sATld}, s{sATld}, s{sW2}
    s_lshl_b32 s{sATld}, s{sATld}, 6
    s_add_u32 s{sATld}, s{sATld}, s{sT1}
    s_add_u32 s{sATld}, s{sATld}, {WS_AT}
    s_mul_i32 s{sT0}, s{sW2}, {32*896}
    s_add_u32 s{sOst}, s{sOst}, s{sT0}
    s_lshl1_add_u32 s{sT0}, s{sRB}, s{sW2}
    s_lshl_b32 s{sGld}, s{sT0}, 7
    s_add_u32 s{sGld}, s{sGld}, {WS_G}
    """)
    return s

P_RAW = 232
def first_loads():
    s = S()
    for k, p in enumerate((sAre, sAim, sBre, sBim, sCre, sCim)):
        s(f"global_load_dword v{P_RAW+k}, v{vPar}, {sr(p,2)}", f"par{k}")
        if k == 0: s("L_par0:")
    s(f"""s_mov_b64 {sr(rX,2)}, {sr(sU,2)}
    s_cmp_eq_u32 s{sW1}, 1
    s_cselect_b64 {sr(rW,2)}, {sr(sWu,2)}, {sr(sWg,2)}""")
    t = S()
    t(f"""s_lshl_b32 s{sLDv}, s{sC}, 2
    s_load_dword s{sDSv}, {sr(sDsk,2)}, s{sLDv}
    s_load_dword s{sLDv}, {sr(sLdt,2)}, s{sLDv}""")
    return s, t

def setup_AB():
    s = S(); a, b, c, d, e, f, g, h = range(vS, vS+8)
    s(f"""
    {srd(rWS, sWs, WS_END)}
    {srd(rO, sOut, 2048*896)}
    v_and_b32 v{a}, 31, v{vLane}
    s_lshl_b32 s{sT0}, s{sW2}, 13
    s_add_u32 s{sT0}, s{sT0}, {RING}
    v_lshl_add_u32 v{a}, v{a}, 7, s{sT0}
    v_bfe_u32 v{g}, v{vLane}, 1, 3
    v_lshrrev_b32 v{h}, 5, v{vLane}
    v_xor_b32 v{g}, v{g}, v{h}
    v_lshl_add_u32 v{vXr}, v{g}, 4, v{a}
    v_xor_b32 v{vXr+1}, 32, v{vXr}
    v_xor_b32 v{vXr+2}, 64, v{vXr}
    v_xor_b32 v{vXr+3}, 96, v{vXr}
    v_add_u32 v{vXr+4}, 0x10000, v{vXr}
    v_add_u32 v{vXr+5}, 0x10000, v{vXr+1}
    v_add_u32 v{vXr+6}, 0x10000, v{vXr+2}
    v_add_u32 v{vXr+7}, 0x10000, v{vXr+3}
    v_bfe_u32 v{a}, v{vLane}, 2, 2
    v_and_b32 v{b}, 3, v{vLane}
    v_bfe_u32 v{d}, v{vLane}, 4, 1
    v_bfe_u32 v{e}, v{vLane}, 3, 2
    s_lshl_b32 s{sT0}, s{sW1}, 1
    v_xor_b32 v{e}, s{sT0}, v{e}
    s_mov_b32 s{sT1}, {RING}
    v_lshl_add_u32 v{b}, v{b}, 3, s{sT1}
    v_lshl_add_u32 v{a}, v{h}, 3, v{a}
    v_lshl_add_u32 v{e}, v{e}, 5, v{b}
    v_lshl_add_u32 v{a}, v{d}, 6, v{a}
    v_lshl_add_u32 v{vWr}, v{a}, 7, v{e}
    v_xor_b32 v{vWr+1}, 32, v{vWr}
    v_add_u32 v{vWr+2}, 0x10000, v{vWr}
    v_add_u32 v{vWr+3}, 0x10000, v{vWr+1}
    """)
    return s

def setup_start2():
    s = S(); a, b, c, d, e, f, g, h = range(vS, vS+8)
    c0 = -2*math.sqrt(2/math.pi)*LOG2E
    s(f"""
    v_and_b32 v{a}, 15, v{vLane}
    v_lshrrev_b32 v{b}, 4, v{vLane}
    v_bfe_u32 v{e}, v{vLane}, 3, 1
    v_mul_u32_u24 v{c}, 544, v{a}
    v_lshl_add_u32 v{d}, v{b}, 4, s{sScr}
    v_mul_u32_u24 v{e}, {SCRH-8*544}, v{e}
    v_add3_u32 v{vTr}, v{c}, v{d}, v{e}
    v_lshl_add_u32 v{c}, v{b}, 7, v{a}
    s_add_u32 s{sT0}, s{sScr}, 2048
    v_lshl_add_u32 v{vK1}, v{c}, 2, s{sT0}
    v_max_u32 v{c}, 1, v{b}
    v_sub_u32 v{c}, 6, v{c}
    v_lshlrev_b32 v{e}, v{c}, v{a}
    v_cmp_gt_u32 vcc, 2, v{b}
    v_lshl_add_u32 v{f}, v{b}, 9, s{sScr}
    v_cndmask_b32 v{f}, v{f}, v{d}, vcc
    v_add_u32 v{vK}, v{f}, v{e}
    v_cmp_eq_u32 vcc, 3, v{b}
    v_mov_b32 v{e}, 256
    v_lshlrev_b32 v{c}, v{c}, 16
    v_cndmask_b32 v{e}, 8, v{e}, vcc
    v_add_u32 v{vK+2}, v{vK}, v{c}
    v_add_u32 v{vK+1}, v{vK}, v{e}
    v_add_u32 v{vK+3}, v{vK+2}, v{e}
    s_mov_b32 s{sK0}, {hx(fbits(c0))}
    s_mov_b32 s{sK0+1}, {hx(fbits(c0))}
    s_mov_b32 s{sK1}, 1.0
    s_mov_b32 s{sK1+1}, 1.0
    v_mov_b32 v{vC1}, {hx(fbits(c0*0.044715))}
    v_mov_b32 v{vC1+1}, {hx(fbits(c0*0.044715))}
    v_add_u32 v{vHs}, {112*1024}, v{vL16}
    v_lshrrev_b32 v{a}, 3, v{vLane}
    v_and_b32 v{b}, 7, v{vLane}
    v_mul_u32_u24 v{a}, 57344, v{a}
    v_lshlrev_b32 v{vUw}, 4, v0
    v_lshl_add_u32 v{vUo}, v{b}, 4, v{a}
    v_mov_b32 v{c}, 0
    v_min_u32 v{d}, 39, v{vLane}
    v_lshlrev_b32 v{d}, 2, v{d}
    ds_write_b32 v{d}, v{c} offset:{UA}
    ds_write_b32 v{d}, v{c} offset:{UA+UAS}
    v_bfe_u32 v{a}, v{vLane}, 2, 2
    v_and_b32 v{b}, 3, v{vLane}
    v_lshrrev_b32 v{g}, 5, v{vLane}
    v_bfe_u32 v{h}, v{vLane}, 4, 1
    v_and_or_b32 v{e}, v{a}, 2, v{h}
    s_lshl_b32 s{sT0}, s{sW1}, 1
    v_lshl_add_u32 v{f}, v{g}, 2, v{a}
    v_xor_b32 v{e}, s{sT0}, v{e}
    v_lshl_add_u32 v{g}, v{b}, 3, s{sM0x}
    v_lshl_add_u32 v{g}, v{f}, 7, v{g}
    v_lshl_add_u32 v{vDr}, v{e}, 5, v{g}
    v_xor_b32 v{vDr+1}, 64, v{vDr}
    v_add_u32 v{vDr+2}, 0x10000, v{vDr}
    v_add_u32 v{vDr+3}, 0x10000, v{vDr+1}
    s_mul_i32 s{sT0}, s{sW2}, {112*1024}
    v_add_u32 v{vH1}, s{sT0}, v{vL16}
    v_subrev_u32 v{vH2}, s{sT0}, v{vHs}
    v_and_b32 v{vG}, 31, v{vLane}
    v_lshlrev_b32 v{vG}, 2, v{vG}
    """)
    return s

def touches():
    s = S()
    sT0, sT1 = sMI, sX_
    s(f"""s_lshl2_add_u32 s{sT0}, s{sC}, s{sW}
    s_lshr_b32 s{sT1}, s{sT0}, 1
    s_mul_i32 s{sT0}, s{sT0}, {14*128}
    s_mul_i32 s{sT1}, s{sT1}, 3584
    v_min_u32 v{vPoll}, 13, v{vLane}
    v_lshlrev_b32 v{vPoll}, 7, v{vPoll}""")
    if OPT['tlb']:
        s(f"""v_mov_b32 v{vS}, 0
        buffer_load_dword v{vS+1}, v{vS}, {sr(rWS,4)}, s{sHst} offen sc1
        buffer_load_dword v{vS+2}, v{vS}, {sr(rO,4)}, s{sOst} offen sc1
        v_min_u32 v{vS+3}, 6, v{vLane}
        v_lshlrev_b32 v{vS+3}, 21, v{vS+3}
        buffer_load_dword v{vS+4}, v{vS+3}, {sr(rWS,4)}, 0 offen offset:0 sc1""")
    if OPT['mpf'] & 4: s(f"buffer_load_dword v{vS+5}, v{vPoll}, {sr(rW,4)}, s{sT1} offen")
    if OPT['mpf'] & 2: s(f"buffer_load_dword v3, v{vPoll}, {sr(rW,4)}, s{sT1} offen offset:1792")
    if OPT['mpf'] & 1: s(f"buffer_load_dword v{vZero}, v{vPoll}, {sr(rD,4)}, s{sT0} offen")
    return s

def setup_dd():
    s = S(); a, b, c = range(vS, vS+3)
    s(f"""
    v_lshrrev_b32 v{a}, 3, v{vLane}
    v_and_b32 v{b}, 7, v{vLane}
    v_bfe_u32 v{c}, v{vLane}, 4, 1
    v_mul_u32_u24 v{a}, 896, v{a}
    v_lshlrev_b32 v{c}, 2, v{c}
    v_xor_b32 v{b}, v{b}, v{c}
    v_lshl_add_u32 v{vDd}, v{b}, 4, v{a}
    v_add_u32 v{vDd+1}, {1*(8*896-1024)}, v{vDd}
    v_add_u32 v{vDd+2}, {2*(8*896-1024)}, v{vDd}
    v_add_u32 v{vDd+3}, {3*(8*896-1024)}, v{vDd}""")
    return s

def setup_exp():
    s = S(); a, b, c, d, e, f, g, h = range(vS+4, vS+12)
    s(f"""v_lshlrev_b32 v{vKw}, 2, v0
    v_cvt_f32_u32 v{a}, v0
    s_mov_b32 s{sT0}, {hx(SCR - 4*17024)}
    v_add_f32 v{a}, v{a}, v{a}""")
    for e_ in range(4):
        p, q = (b, c) if e_ % 2 == 0 else (d, e)
        s(f"""v_add_f32 v{p}, {hx(fbits(512.0*e_))}, v{a}
        v_add_f32 v{q}, {hx(fbits(512.0*e_+1))}, v{a}
        v_cvt_pk_bf16_f32 v{p}, v{p}, v{q}
        v_lshrrev_b32 v{q}, 16, v{p}
        v_and_b32 v{p}, 0xffff, v{p}
        v_lshl_add_u32 v{vI+2*e_+1}, v{q}, 2, s{sT0}
        v_lshl_add_u32 v{vI+2*e_}, v{p}, 2, s{sT0}""")
    s(f"""v_cmp_gt_u32 vcc, 64, v0
    v_lshlrev_b32 v{f}, 3, v0
    v_add_u32 v{g}, 4, v{f}
    v_cndmask_b32 v{vI}, v{vI}, v{f}, vcc
    v_cndmask_b32 v{vI+1}, v{vI+1}, v{g}, vcc
    v_mov_b32 v{vPar}, 0
    v_min_u32 v{vKp}, 23, v{vLane}
    v_lshlrev_b32 v{vKp}, 2, v{vKp}""")
    return s

def setup_conv():
    s = S(); a, b, c, d, e, f, g, h = range(vS, vS+8)
    s(f"""
    v_lshrrev_b32 v{a}, 3, v0
    v_and_b32 v{b}, 7, v0
    v_mul_u32_u24 v{e}, 272, v{a}
    v_cmp_eq_u32 vcc, 0, v{b}
    v_cmp_ne_u32 {sr(sTmp,2)}, 0, v{a}
    v_lshl_add_u32 v{vYr}, v{b}, 5, v{e}
    s_and_b64 vcc, vcc, {sr(sTmp,2)}
    v_mov_b32 v{f}, {UA}
    v_add_u32 v{g}, {YAS-16}, v{e}
    v_add_u32 v{e}, -16, v{e}
    v_cndmask_b32 v{vYc+1}, v{f}, v{g}, vcc
    v_cndmask_b32 v{vYc}, v{f}, v{e}, vcc
    v_bfe_u32 v{a}, v{vLane}, 2, 2
    v_and_b32 v{b}, 3, v{vLane}
    v_lshrrev_b32 v{c}, 4, v{vLane}
    v_lshl_add_u32 v{c}, v{c}, 3, v{a}
    v_lshlrev_b32 v{c}, 3, v{c}
    s_mul_i32 s{sT0}, s{sW2}, {KFS}
    s_add_u32 s{sT0}, s{sT0}, {KF}
    v_lshl_add_u32 v{d}, v{b}, 5, s{sT0}
    v_add_u32 v{vFr}, v{d}, v{c}
    s_mul_i32 s{sT0}, s{sW2}, {UAS}
    s_lshl_b32 s{sT1}, s{sW1}, 7
    s_add_u32 s{sT0}, s{sT0}, s{sT1}
    s_add_u32 s{sT0}, s{sT0}, {UA+160+96-32}
    v_lshl_add_u32 v{h}, v{b}, 3, s{sT0}
    v_sub_u32 v{vGr}, v{h}, v{c}
    s_mul_i32 s{sT0}, s{sW2}, {YAS}
    s_mul_i32 s{sT1}, s{sW1}, 272
    s_add_u32 s{sYw}, s{sT0}, s{sT1}
    s_add_u32 s{sT0}, s{sYw}, {hx(256-48*544)}
    v_mov_b32 v{e}, 544
    v_add_u32 v{g}, {UTS}, v{vL16}
    v_cmp_lt_u32 vcc, 47, v{vLane}
    v_mad_u32_u24 v{e}, v{e}, v{vLane}, s{sT0}
    v_cndmask_b32 v{vYk}, v{g}, v{e}, vcc
    """)
    return s

def setup_E():
    t = S(); a, b, c, d = 12, 13, 14, 15
    t(f"""
    v_lshrrev_b32 v{a}, 2, v{vLane}
    v_and_b32 v{b}, 3, v{vLane}
    s_lshl_b32 s{sT1}, s{sW}, 11
    s_add_u32 s{sT1}, s{sT1}, {UTS}
    v_lshl_add_u32 v{c}, v{b}, 3, s{sT1}
    v_add_u32 v{AW}, s{sT1}, v{vL16}
    v_lshlrev_b32 v{b}, 4, v{b}
    v_mul_u32_u24 v{OO}, 896, v{a}
    v_mul_u32_u24 v{OR_}, 80, v{a}
    v_lshl_add_u32 v{AO}, v{a}, 7, v{b}
    v_add_u32 v{OO}, v{OO}, v{b}
    v_add3_u32 v{OR_}, v{OR_}, v{b}, s{sM0x}
    v_and_b32 v{a}, 3, v{a}
    v_bfe_u32 v{d}, v{vLane}, 4, 1
    v_lshl_add_u32 v{c}, v{a}, 6, v{c}
    v_lshrrev_b32 v{b}, 5, v{vLane}
    v_lshl_add_u32 v{c}, v{d}, 5, v{c}
    v_add_u32 v{RW}, s{sM0x}, v{vL16}
    v_lshl_add_u32 v{AR}, v{b}, 8, v{c}
    v_and_b32 v{a}, 31, v{vLane}
    v_xor_b32 v{RR}, 0x1000, v{RW}
    v_xor_b32 v{RR+1}, 0x2000, v{RW}
    v_xor_b32 v{RR+2}, 0x3000, v{RW}
    v_mul_u32_u24 v{a}, 80, v{a}
    v_lshl_add_u32 v{b}, v{b}, 3, s{sM0x}
    v_add_u32 v{OW}, v{a}, v{b}
    v_and_b32 v8, 0xffff, v{vG}
    v_lshlrev_b32 v9, 16, v{vG}
    v_and_b32 v10, 0xffff0000, v{vG}
    v_and_b32 v11, 0xffff0000, v{vG}
    """)
    return t

USLOT = [0, 1, 2, 0, 3, 1, 4, 2, 5, 0, 3, 6, 1, 4]
def adv(s, so, step, en, span, extra):
    s(f"""s_add_u32 s{so}, s{so}, {step}
    s_cmp_eq_u32 s{so}, s{en}
    s_cselect_b32 s{sSpin}, {span}, 0
    s_sub_u32 s{so}, s{so}, s{sSpin}""")
    if extra: s(f"s_add_u32 s{so}, s{so}, {extra}\ns_add_u32 s{en}, s{en}, {extra}")

def item(n):
    if n < 14 and n % 2 == 0: m0, va, rs, so, step, en, ex = sM0x, vXd, rX, sXo, 128, sXe, 0
    elif n < 21: m0, va, rs, so, step, en, ex = sM0w, vWd, rW, sWo, 64*3584, sWe, (1792 if n == 13 else 0)
    else: m0, va, rs, so, step, en, ex = sM0x, vDd, rD, sDo, 32*896, sDe, (896*896 if n == 27 else 0)
    s = S()
    s(f"s_add_u32 m0, s{m0}, {(n % NSLOT if n < 21 else USLOT[n-21])*SLOT}")
    for q in range(4):
        s(f"buffer_load_dwordx4 v{va+q}, {sr(rs,4)}, s{so} offen offset:{1024*q} lds", f"it{n}")
    if n >= 21:
        if n != 34: s(f"s_add_u32 s{so}, s{so}, {step if n != 27 else (896-6*32)*896}")
    elif n not in (12, 20): adv(s, so, step, en, 7*step, ex)
    return s

def split_vm(st):
    grp = []
    for x in st:
        if not grp or (x.kind in VM_KINDS and any(y.kind in VM_KINDS for y in grp[-1])): grp.append(S())
        grp[-1].append(x)
    return grp

def sprinkle(main, groups, lo=0.0, hi=1.0):
    out = S(); n = len(main); g = 0
    pos = [int(n*(lo + (hi-lo)*k/max(1, len(groups)))) for k in range(len(groups))]
    for i, x in enumerate(main):
        while g < len(groups) and pos[g] <= i and not glued(x):
            out.add(groups[g]); g += 1
        out.append(x)
    while g < len(groups): out.add(groups[g]); g += 1
    return out

NEG = "neg_lo:[1,0,0] neg_hi:[1,0,0]"
def cmul(s, d, x, z, pk):
    assert d != x and d != z
    if pk:
        s(f"""v_pk_mul_f32 {vr(d,2)}, {vr(x,2)}, {vr(z,2)}
        v_pk_mul_f32 {vr(d+2,2)}, {vr(x,2)}, {vr(z+2,2)}
        v_pk_fma_f32 {vr(d,2)}, {vr(x+2,2)}, {vr(z+2,2)}, {vr(d,2)} {NEG}
        v_pk_fma_f32 {vr(d+2,2)}, {vr(x+2,2)}, {vr(z,2)}, {vr(d+2,2)}""")
    else:
        for k in range(2): s(f"v_mul_f32 v{d+k}, v{x+k}, v{z+k}")
        for k in range(2): s(f"v_mul_f32 v{d+2+k}, v{x+k}, v{z+2+k}")
        for k in range(2): s(f"v_fma_f32 v{d+k}, -v{x+2+k}, v{z+2+k}, v{d+k}")
        for k in range(2): s(f"v_fmac_f32 v{d+2+k}, v{x+2+k}, v{z+k}")

def tile_w(t, regs, n):
    for r in range(n):
        for h in range(2):
            t(f"ds_write_addtid_b32 {regs(2*r+h)} offset:{(r&7)*544+(r>>3)*SCRH+256*h}")

FR = {0: ACC2, 1: ACC1, 2: ACC1+32, 3: ACC2+32}
def tile_r(t, k):
    for ks in range(8): t(f"ds_read_b128 {vr(FR[k]+4*ks,4)}, v{vTr} offset:{64*ks}")

def krows():
    s = S()
    R = ACC1
    A_, B_, C_, Dt, T = R, R+4, R+8, R+12, R+16
    Z8, Z16 = vGt, vGt+4
    Z1, Z256, W, Z2, Z512 = [R+28+4*k for k in range(5)]
    E = [R, R+4, R+8, R+12]; V = [R+16, R+20, R+24, R+56, R+60]
    for k in range(6):
        s(f"v_lshlrev_b32 v{R+2*k}, 16, v{P_RAW+k}\nv_and_b32 v{R+2*k+1}, 0xffff0000, v{P_RAW+k}")
    s(f"""
    s_lshl_b32 s{sT1}, s{sW2}, 4
    s_lshr_b32 s{sT1}, s{sLDv}, s{sT1}
    s_lshl_b32 s{sT1}, s{sT1}, 16
    v_mov_b32 v{Dt}, {hx(fbits(LOG2E))}
    v_mul_f32 v{Dt}, s{sT1}, v{Dt}
    v_exp_f32 v{Dt}, v{Dt}
    v_cvt_pk_bf16_f32 v{Dt}, 0, v{Dt}
    v_mov_b32 v{Dt+1}, v{Dt}
    """)
    for k in (A_, A_+2, B_, B_+2): s(f"v_pk_mul_f32 {vr(k,2)}, {vr(k,2)}, {vr(Dt,2)}")
    def prim(p, z, t):
        c1 = hx(fbits(p*LOG2E)); c2 = hx(fbits(p/(2*math.pi)))
        for k in range(2): s(f"v_mul_f32 v{t+k}, {c1}, v{A_+k}\nv_mul_f32 v{t+2+k}, {c2}, v{A_+2+k}")
        for k in range(2): s(f"v_exp_f32 v{t+k}, v{t+k}\nv_fract_f32 v{t+2+k}, v{t+2+k}")
        for k in range(2): s(f"v_cos_f32 v{z+k}, v{t+2+k}\nv_sin_f32 v{z+2+k}, v{t+2+k}")
        s(f"v_pk_mul_f32 {vr(z,2)}, {vr(z,2)}, {vr(t,2)}\nv_pk_mul_f32 {vr(z+2,2)}, {vr(z+2,2)}, {vr(t,2)}")
    prim(1, Z1, T); prim(256, Z256, T+4); prim(8, Z8, T+8)
    cmul(s, W, C_, B_, 1)
    def row(t, o0, o1, x, neg):
        m = '-' if neg else ''
        t(f"v_cvt_pk_bf16_f32 v{o0}, v{x}, v{x+1}\nv_cvt_pk_bf16_f32 v{o1}, {m}v{x+2}, {m}v{x+3}")
    cmul(s, Z2, Z1, Z1, 1); cmul(s, Z512, Z256, Z256, 1); cmul(s, Z16, Z8, Z8, 1)
    S0, S1 = V[3], V[4]
    ops = [(None, W, None, 0), (V[0], W, Z1, 1),
           (V[1], W, Z2, 2), (Z1, V[0], Z2, 3),
           (V[2], W, Z256, 8), (V[0], V[1], Z256, 9),
           (S0, W, Z512, 12), (S1, V[2], Z512, 14),
           (W, V[1], Z2, 4), (V[0], Z1, Z2, 5),
           (V[1], W, Z2, 6), (Z1, V[0], Z2, 7),
           (V[2], W, Z256, 10), (V[0], V[1], Z256, 11),
           (Z1, W, Z512, 13), (V[1], V[2], Z512, 15),
           (V[0], S0, Z512, 16), (V[2], S1, Z512, 17), (S0, V[0], Z512, 18), (S1, V[2], Z512, 19), (V[0], S0, Z512, 20)]
    for d, x, z, r in ops:
        if d is not None: cmul(s, d, x, z, 1)
        o = (ACC2+2*r, ACC2+2*r+1) if r < 16 else (PARK[2*r], PARK[2*r+1])
        row(s, o[0], o[1], x if d is None else d, 1)
    w = S()
    w(f"s_mov_b32 m0, s{sScr}")
    tile_w(w, lambda k: f"v{ACC2+k}", 16)
    b = S(); mv = S()
    b(f"v_mov_b32 v{PARK[0]}, 0x3f803f80\nv_mov_b32 v{PARK[1]}, 0")
    row(b, PARK[2], PARK[3], Z8, 0); row(b, PARK[4], PARK[5], Z16, 0)
    cur = {0: Z16, 1: Z8}
    E = [ACC2+4*k for k in range(4)]
    for i in range(3, 32):
        nx = E[i % 4]; t = b if i < OPT['kbw'] else mv
        cmul(t, nx, cur[i % 2], Z16, i < OPT['kbw'])
        if i < 16: row(t, PARK[2*i], PARK[2*i+1], nx, 0)
        else:
            o = ACC2 + 16 + 2*(i % 4)
            row(t, o, o+1, nx, 0)
            t(f"v_accvgpr_write_b32 a{192+2*i}, v{o}\nv_accvgpr_write_b32 a{193+2*i}, v{o+1}")
        cur[i % 2] = nx
    return s, w, b, mv

def stageA():
    p = S()
    rd = tile_r; fr = FR
    D = [48, 52, 56, 60]
    def mm(at, bt):
        t = S()
        for ks in range(8):
            d = vr(D[2*at+bt], 4)
            t(f"v_mfma_f32_16x16x32_bf16 {d}, {vr(fr[2+at]+4*ks,4)}, {vr(fr[bt]+4*ks,4)}, {d if ks else 0}")
        return t
    p(f"s_mov_b32 m0, s{sScr}")
    p(f"ds_write_b128 v{vUw}, {ar(aU,4)} offset:{UA+160}\nds_write_b128 v{vUw}, {ar(aU+4,4)} offset:{UA+160+UAS}")
    tile_w(p, lambda k: f"v{PARK[32+k]}", 5); rd(p, 3)
    tile_w(p, lambda k: f"v{PARK[k]}", 16); rd(p, 0)
    t = S(); tile_w(t, lambda k: f"v{ACC1+k}", 16); rd(t, 1)
    p.add(t[:8]).add(weave(mm(0, 0).add(mm(1, 0)), S(t[8:])))
    def pl0(bt): return f"ds_write_b64 v{vK+2*bt}, {vr(D[bt],2)}\nds_write_b64 v{vK+2*bt+1}, {vr(D[bt]+2,2)}"
    def pl1(bt): return "\n".join(f"ds_write2_b32 v{vK1}, v{D[2+bt]+jj}, v{D[2+bt]+jj+1} offset0:{16*bt+32*jj} offset1:{16*bt+32*jj+32}" for jj in (0, 2))
    p(pl0(0))
    p.add(weave(mm(0, 1), S()(pl1(0)), start=2)).add(weave(mm(1, 1), S()(pl0(1)), start=4))
    p(pl1(1))
    x = S()
    X = 92
    x.wait_lg(); x("s_barrier")
    for k in range(8):
        x(f"ds_read2st64_b32 {vr(X+4*k,2)}, v{vI+k} offset0:0 offset1:34\nds_read2st64_b32 {vr(X+4*k+2,2)}, v{vI+k} offset0:17 offset1:51")
    x(f"ds_write_b32 v{vKp}, v{vPar} offset:{KF}\nds_write_b32 v{vKp}, v{vPar} offset:{KF+KFS}")
    for e in range(0, 4): x(g_read(e))
    for e_ in range(4):
        k0, k1 = X+8*e_, X+8*e_+4
        x(f"""v_pk_add_f32 {vr(k0,2)}, {vr(k0,2)}, {vr(k0+2,2)}
        v_pk_add_f32 {vr(k1,2)}, {vr(k1,2)}, {vr(k1+2,2)}
        v_cvt_pk_bf16_f32 v{k0+2}, v{k0}, v{k1}
        v_cvt_pk_bf16_f32 v{k0+3}, v{k0+1}, v{k1+1}""")
    for e_ in range(4):
        k0 = X+8*e_
        x(f"ds_write_b32 v{vKw}, v{k0+2} offset:{KF+96+1024*e_}\nds_write_b32 v{vKw}, v{k0+3} offset:{KF+96+KFS+1024*e_}")
    x[-1].tok = "kf"
    for e in range(4, 8): x(g_read(e))
    x.wait_lg("kf"); x("s_barrier")
    return p, x

def lds_addr(base_lo, nset, k, slot, off):
    hi = slot >= 4
    return f"v{base_lo + k + (nset if hi else 0)}", (slot - (4 if hi else 0))*SLOT + off

def b_reads(i):
    s_, ks = divmod(i, 4)
    wslot = (2*s_+1) % NSLOT if s_ < 7 else (7+s_) % NSLOT
    buf = vWf + 8*(i % 3)
    wr = []
    for T in range(2):
        for h in range(2):
            a, o = lds_addr(vWr, 2, T, wslot, ks*2048 + h*512)
            wr.append(f"ds_read_b64_tr_b16 {vr(buf+4*T+2*h,2)}, {a} offset:{o}")
    if s_ < 7:
        xr = []
        for mt in range(2):
            a, o = lds_addr(vXr, 4, ks, (2*s_) % NSLOT, mt*4096)
            xr.append(f"ds_read_b128 {ar(8*i+4*mt,4)}, {a} offset:{o}")
        return [xr[0], wr[0], wr[1], xr[1], wr[2], wr[3]]
    return wr

def b_mfmas(i):
    acc = ACC1 if i < 28 else ACC2
    buf = vWf + 8*(i % 3)
    r = []
    for T in range(2):
        for mt in range(2):
            d = vr(acc + 32*T + 16*mt, 16)
            r.append(f"v_mfma_f32_32x32x16_bf16 {d}, {vr(buf+4*T,4)}, {ar(8*(i%28)+4*mt,4)}, {0 if i % 28 == 0 else d}")
    return r

def gelu(acc, half, pk, cluster=0):
    s = S(); st = S()
    for T in range(2):
        for mt in range(2):
            b = acc + 32*T + 16*mt
            o = b
            for jp in range(0, 8, 2):
                t = vGt + jp
                g0, u0 = b+jp, b+8+jp
                if pk:
                    s(f"""v_pk_mul_f32 {vr(t,2)}, {vr(g0,2)}, {vr(g0,2)}
                    v_pk_mul_f32 {vr(u0,2)}, {vr(u0,2)}, {vr(g0,2)}
                    v_pk_fma_f32 {vr(t,2)}, {vr(t,2)}, {vr(vC1,2)}, {sr(sK0,2)}
                    v_pk_mul_f32 {vr(t,2)}, {vr(t,2)}, {vr(g0,2)}
                    v_exp_f32 v{t}, v{t}
                    v_exp_f32 v{t+1}, v{t+1}
                    v_pk_add_f32 {vr(t,2)}, {vr(t,2)}, {sr(sK1,2)}
                    v_rcp_f32 v{t}, v{t}
                    v_rcp_f32 v{t+1}, v{t+1}
                    v_pk_mul_f32 {vr(t,2)}, {vr(t,2)}, {vr(u0,2)}
                    v_cvt_pk_bf16_f32 v{o+jp//2}, v{t}, v{t+1}""")
                else:
                    s(f"""v_mul_f32 v{t}, v{g0}, v{g0}
                    v_mul_f32 v{t+1}, v{g0+1}, v{g0+1}
                    v_mul_f32 v{u0}, v{u0}, v{g0}
                    v_fma_f32 v{t}, v{t}, v{vC1}, s{sK0}
                    v_fma_f32 v{t+1}, v{t+1}, v{vC1}, s{sK0}
                    v_mul_f32 v{u0+1}, v{u0+1}, v{g0+1}
                    v_mul_f32 v{t}, v{t}, v{g0}
                    v_mul_f32 v{t+1}, v{t+1}, v{g0+1}
                    v_exp_f32 v{t}, v{t}
                    v_exp_f32 v{t+1}, v{t+1}
                    v_add_f32 v{t}, 1.0, v{t}
                    v_add_f32 v{t+1}, 1.0, v{t+1}
                    v_rcp_f32 v{t}, v{t}
                    v_rcp_f32 v{t+1}, v{t+1}
                    v_mul_f32 v{t}, v{t}, v{u0}
                    v_mul_f32 v{t+1}, v{t+1}, v{u0+1}
                    v_cvt_pk_bf16_f32 v{o+jp//2}, v{t}, v{t+1}""")
            (st if cluster else s)(f"buffer_store_dwordx4 {vr(o,4)}, v{vL16 if mt == 0 else vHs}, {sr(rWS,4)}, s{sHst} offen offset:{1024*T} sc1", f"h{half}")
    return s.add(st)

def chunks(st, n):
    m = len(st); c = [m*k//n for k in range(n+1)]
    for k in range(1, n):
        while c[k] < m and glued(st[c[k]]): c[k] += 1
    return [S(st[c[k]:c[k+1]]) for k in range(n)]

def wd_move(q):
    t = S(); t.wait_vm(f"it{21+q}"); t.add(wd_reads(q)); return t
def wd_item(u):
    t = S()
    prev = [p for p in range(u) if USLOT[p] == USLOT[u]]
    if prev: t.wait_lg(f"wd{prev[-1]}")
    return split_vm(t.add(item(21+u)))

def stageB(mv):
    side = {k: [] for k in range(14)}
    for k, c in enumerate(chunks(mv, 6)): side[k].append((c, 0, 16))
    side[6].append((setup_dd(), 0, 7))
    side[6].append((setup_exp(), 7, 16))
    t = S()
    for k in range(32): t(f"v_accvgpr_read_b32 v{ACC1+k}, a{224+k}")
    side[13].append((t, 0, 16))
    t = S(); tile_r(t, 2); side[13].append((t, 10, 16))
    allg = []
    for n in range(OPT['npre'], 21): allg += split_vm(item(n))
    for u in range(8): allg += wd_item(u)
    cnt = [4*(7-OPT['npre'])] + [8]*6 + [6, 6, 4, 6, 6, 6, 6]
    assert sum(cnt) == len(allg)
    vm = {}; p = 0
    for k in range(14): vm[k] = allg[p:p+cnt[k]]; p += cnt[k]
    for q, st in enumerate((10, 11, 12, 13, 13)): side[st].append((wd_move(q), 0 if q != 4 else 8, 8 if q != 4 else 16))
    iss, chk = poll(NHELP, sDbg, 0)
    f1 = OPT['f1']
    vm[f1][0] = iss.add(vm[f1][0])
    chk(f"""buffer_load_dwordx4 {ar(aU,4)}, v{vUo}, {sr(rWS,4)}, s{sUTld} offen sc1
    buffer_load_dwordx4 {ar(aU+4,4)}, v{vUo}, {sr(rWS,4)}, s{sUTld} offen offset:128 sc1
    buffer_load_dword v{vG}, v{vG}, {sr(rWS,4)}, s{sGld} offen sc1""")
    if f1 + 2 < 14: vm[f1+2] = split_vm(chk) + vm[f1+2]; stageB.ut = []
    else: stageB.ut = [chk]
    for k, c in enumerate(chunks(gelu(ACC1, 1, False, OPT['cl1']), OPT['nst'])): side[7+k].insert(0, (c, 2 if k == 0 else 0, 16))
    out = S()
    out.wait_vm(("it0", "it1")); out.wait_lg(); out("s_barrier")
    stamp(out, "B0")
    for i in range(2):
        for r in b_reads(i): out(r, f"br{i}")
    for s_ in range(14):
        base = S()
        for ks in range(4):
            i = 4*s_ + ks
            m = b_mfmas(i)
            rd = b_reads(i+2) if i < 54 else []
            n = len(rd)
            dist = {1: [2, 2, 2, 0], 2: [0, 2, 2, 2]}.get(ks, [2, 1, 2, 1]) if n == 6 else {1: [2, 1, 1, 0], 2: [0, 2, 1, 1]}.get(ks, [1, 1, 1, 1])
            p = 0
            for q in range(4):
                base(m[q])
                if ks == 2 and q == 1:
                    nxt = s_ + 1
                    toks = (f"it{2*nxt}", f"it{2*nxt+1}") if nxt < 7 else (f"it{7+nxt}",) if nxt < 14 else None
                    if toks: base.wait_vm(toks)
                    base.wait_lg((f"br{i+1}", "pub")); base("s_barrier")
                elif q == 3 and ks != 2 and i < 55: base.wait_lg(f"br{i+1}")
                for r in rd[p:p+dist[q]]: base(r, f"br{i+2}")
                p += dist[q]
        grp = vm[s_]
        sl = {0: [], 5: [1, 3, 7, 11, 15], 4: [3, 7, 11, 15], 6: [1, 3, 7, 8, 12, 15], 7: [1, 3, 5, 7, 8, 12, 15], 8: [1, 3, 5, 7, 8, 11, 13, 15],
              9: [0, 1, 3, 5, 7, 8, 11, 13, 15], 12: [0, 1, 2, 3, 4, 5, 7, 8, 11, 13, 14, 15]}[len(grp)]
        st = place(base, grp, sl)
        for sd, a, b in sorted(side[s_], key=lambda e: any(x.kind == 'mfma' for x in e[0])):
            if len(sd): st = weave(st, sd, start=a, end=b)
        out.add(st)
        stamp(out, f's{s_}')
        if s_ == 6: stamp(out, "B1")
    return out

def wd_reads(u):
    s = S()
    for T in range(2):
        for dt in range(2):
            for h in range(2):
                a, o = lds_addr(vDr, 2, dt, USLOT[u], T*2048 + h*1024)
                s(f"ds_read_b64_tr_b16 {ar(16*(u%7)+8*T+4*dt+2*h, 2)}, {a} offset:{o}", f"wd{u}")
    return s

def hreg(u, o): return ar(112+16*u+o, 4) if u < 9 else vr(176+16*(u-9)+o, 4)
def h_loads(u):
    s = S()
    for T in range(2):
        for mt in range(2):
            s(f"buffer_load_dwordx4 {hreg(u, 8*T+4*mt)}, v{vH1 if mt == 0 else vH2}, {sr(rWS,4)}, s{sHld} offen offset:{1024*T} sc1")
    if u != 13: s(f"s_add_u32 s{sHld}, s{sHld}, {2048 if u != 6 else (56-12)*1024}")
    return s

def f_read(t):
    b = vWf + 4*(t % 4)
    return f"ds_read_b64_tr_b16 {vr(b,2)}, v{vFr} offset:{256*t}\nds_read_b64_tr_b16 {vr(b+2,2)}, v{vFr} offset:{256*t+32}"
def g_read(e):
    return f"ds_read_b64_tr_b16 {vr(ACC2+4*e,2)}, v{vGr} offset:{256*e+32}\nds_read_b64_tr_b16 {vr(ACC2+4*e+2,2)}, v{vGr} offset:{256*e}"

def pairup(g):
    return [S(g[k]).add(g[k+1] if k+1 < len(g) else []) for k in range(0, len(g), 2)]

def stageTail():
    s = S()
    s(f"s_add_u32 s{sHst}, s{sHst}, {56*1024}")
    g = list(stageB.ut)
    for u in range(8, 8+OPT['ntail']):
        g += pairup(wd_item(u))
        if u < 10: g.append(wd_move(u-3))
    t = S(); t.wait_vm("h1"); t(flag(sF2w)); t(f"s_add_u32 s{sF2w}, s{sF2w}, {128*FS}")
    g.insert(min(len(g), len(stageB.ut) + OPT['f2a']), t)
    s.add(sprinkle(gelu(ACC2, 2, True, OPT['cl2']), g, 0.0, 0.95))
    return s

def stageSSM():
    a2, ex = stageA()
    s = S()
    iss, chk = poll(7, sWs, f"s{sF2r}")
    a2 = sprinkle(a2, [iss], OPT['p2a']/100, 1.0)
    hl = S().add(chk)
    for u in range(OPT['nha']): hl.add(h_loads(u))
    s.add(sprinkle(a2, split_vm(hl), OPT['c2a']/100, 1.0))
    stamp(s, "A2")
    t = S(); t.wait_vm("h2"); t(flag(sF2w)); t(f"s_add_u32 s{sF2r}, s{sF2r}, {128*FS}")
    hq = OPT['nha']; hl = S()
    for u in range(hq, hq+OPT['nhx']): hl.add(h_loads(u))
    hq += OPT['nhx']
    if OPT['wh2'] <= 100: s.add(sprinkle(ex, [t] + pairup(split_vm(hl)), OPT['wh2']/100, 1.0)); th2 = []
    else: s.add(sprinkle(ex, pairup(split_vm(hl)), 0.5, 1.0)); th2 = [t]
    stamp(s, "exp")
    main = S()
    for t in range(3): main(f_read(t))
    def flush(c):
        d = ACC1 + 4*c; t = S()
        for j in (2, 1, 0):
            t(f"v_add_f32_dpp v{d+j}, v{d+j+1}, v{d+j} wave_shr:1 row_mask:0xf bank_mask:0xf")
        if c:
            for j in (3, 2, 1):
                t(f"v_mov_b32_dpp v{d+j}, v{d-4+j} wave_shl:1 row_mask:0xf bank_mask:0xf")
        return t
    for t in range(16):
        blk = S()
        for c in range(t, 16):
            d = vr(ACC1 + 4*c, 4)
            blk(f"v_mfma_f32_16x16x32_bf16 {d}, {vr(vWf+4*(t%4),4)}, {vr(ACC2+4*(c-t),4)}, {d if t else 0}")
        e = S()
        if t == 0:
            g4 = S()
            for q in range(8, 16): g4(g_read(q))
            blk = weave(blk, g4, start=0, end=8)
        if t + 3 < 16: e(f_read(t+3))
        if 1 <= t <= 12: e.add(flush(t-1))
        main.add(weave(blk, e, start=(8 if t == 0 else 0)))
    g = []
    for u in range(hq, 7): g += split_vm(h_loads(u))
    iss, chk = poll(7, sWs, f"s{sF2r}")
    for u in range(8+OPT['ntail'], 14): g += wd_item(u)
    n1 = len(g)
    hl = S().add(chk)
    g += split_vm(hl.add(h_loads(7)).add(h_loads(8)))
    c0 = OPT['c0']
    main = place(main, g, [c0 + ((132-c0)*k)//len(g) for k in range(len(g))])
    main = place(main, th2, [OPT['wh2']-100])
    s.add(place(main, [iss], [c0 + ((132-c0)*n1)//len(g) - OPT['p2b']]))
    stamp(s, "C")
    f = S()
    for c in range(12, 16): f.add(flush(c))
    f(f"s_mov_b32 m0, s{sYw}")
    for c in range(16): f(f"ds_write_addtid_b32 v{ACC1+4*c} offset:{544*c}")
    f(f"ds_write_b128 v{vYk}, {vr(ACC1+60,4)}", "yw")
    f2 = S()
    f2.wait_lg("yw"); f2("s_barrier")
    Y = ACC1; UU = ACC1+24; O = ACC1+32
    for ch in range(2):
        f2(f"""ds_read_b128 {vr(Y+12*ch,4)}, v{vYr} offset:{YAS*ch}
        ds_read_b128 {vr(Y+12*ch+8,4)}, v{vYc+ch}
        ds_read_b128 {vr(UU+4*ch,4)}, v{vUw} offset:{UA+160+UAS*ch}
        ds_read_b128 {vr(Y+12*ch+4,4)}, v{vYr} offset:{YAS*ch+16}""")
    f2(f"""s_and_b32 s{sK0}, s{sDSv}, 0xffff
    s_lshl_b32 s{sK0+1}, s{sDSv}, 16
    s_lshr_b32 s{sK1}, s{sDSv}, 16
    s_and_b32 s{sK1+1}, s{sDSv}, 0xffff0000
    s_add_u32 s{sUTld}, s{sUTld}, {WS_AT-WS_UT}""")
    f3 = S()
    for ch in range(2):
        b = Y+12*ch
        for k in range(3): f3(f"v_add_f32 v{b+k}, v{b+k}, v{b+9+k}")
        for k in range(8):
            f3(f"v_dot2_f32_bf16 v{b+k}, v{UU+4*ch+k//2}, s{(sK0 if ch == 0 else sK1)+(k&1)}, v{b+k}")
        for k in range(4):
            f3(f"v_cvt_pk_bf16_f32 v{O+4*ch+k}, v{b+2*k}, v{b+2*k+1}")
        f3(f"buffer_store_dwordx4 {vr(O+4*ch,4)}, v{vUo}, {sr(rWS,4)}, s{sUTld} offen offset:{128*ch} sc1", "at")
    return s, (f, f2, f3)

def stageD(fin):
    def mf(u):
        r = S()
        for T in range(2):
            for mt in range(2):
                for dt in range(2):
                    d = vr(DACC + 16*(dt + 2*mt), 16)
                    r(f"v_mfma_f32_32x32x16_bf16 {d}, {ar(16*(u%7)+8*T+4*dt, 4)}, {hreg(u, 8*T+4*mt)}, {0 if u == 0 and T == 0 else d}")
        return r
    s = S()
    H2 = ACC1
    iss, chk = poll(16, sWs, f"s{sF3r}")
    hsched = [{1: 9, 2: 10, 3: 11, 7: 12, 8: 13}, {1: 9, 3: 10, 6: 11, 7: 12, 8: 13}, {1: 9, 2: 10, 4: 11, 6: 12, 7: 13}][OPT['hs']]
    TM = OPT['tm']
    def redw(t):
        r = S()
        for k in range(4): r(f"ds_write_b128 v{RW}, {vr(DACC+16*t+4*k,4)} offset:{(t-1)*SLOT+1024*k}")
        return r
    al = S().add(chk)
    for q in range(2):
        al(f"buffer_load_dwordx4 {vr(E0+4*q,4)}, v{AO}, {sr(rWS,4)}, s{sATld} offen offset:{2048*q} sc1")
    for u in range(14 - TM):
        blk = mf(u)
        if 3 <= u < 10:
            r = wd_move(u+4)
            blk = place(blk, chunks(r, 4), [0, 2, 4, 6])
        ex = S()
        if u == OPT['f3']: ex.wait_vm("at"); ex(flag(sF3w))
        if u in hsched: ex.add(h_loads(hsched[u]))
        if u == OPT['p3']: ex.add(iss)
        if len(ex):
            gq = split_vm(ex); blk = place(blk, gq, [1, 3, 5, 7, 7][:len(gq)])
        if u == 0: blk = weave(blk, fin[0])
        if u == 1: blk = weave(blk, fin[1], start=2, end=5)
        if u == 2: blk = weave(blk, S(x for x in fin[2] if x.kind != 'vstore')).add(x for x in fin[2] if x.kind == 'vstore')
        if u == 5: blk = weave(blk, setup_E())
        s.add(blk)
        stamp(s, f'd{u}')
        if u == 6: stamp(s, "D1")
    last = S()
    for u in range(14 - TM, 14): last.add(mf(u))
    tl = S(); n = 2*TM
    for t in (1, 2, 3, 0): tl.add(x for x in last if ('v', DACC+16*t) in x.wr)
    if TM:
        wr = []; sl = []
        for j, t in enumerate((1, 2, 3)):
            for k, x in enumerate(redw(t)): wr.append(S([x])); sl.append(n*(j+1) + 1 + (k*n)//4)
        tl = place(tl, wr, sl)
        if OPT['p3'] >= 14 - TM: tl = place(tl, [iss], [8*(OPT['p3']-14+TM)])
        if OPT['c3'] < 0: tl = place(tl, [al], [4*n + OPT['c3']])
    s.add(tl)
    stamp(s, "D2")
    G, GH, OMG = 8, 9, 10
    if OPT['c3'] == 0: s.add(al)
    if not TM:
        for t in range(1, 4): s.add(redw(t))
    s.wait_lg(); s("s_barrier")
    stamp(s, 'e1')
    for k in range(4):
        for t in range(1, 4):
            s(f"ds_read_b128 {vr(H2+16*(t-1)+4*k,4)}, v{RR+t-1} offset:{(t-1)*SLOT+1024*k}")
    for k in range(4):
        for p in range(2):
            o = 4*k + 2*p
            s(f"""v_pk_add_f32 {vr(DACC+o,2)}, {vr(DACC+o,2)}, {vr(H2+o,2)}
            v_pk_add_f32 {vr(H2+16+o,2)}, {vr(H2+16+o,2)}, {vr(H2+32+o,2)}""")
        for p in range(2):
            o = 4*k + 2*p
            s(f"v_pk_add_f32 {vr(DACC+o,2)}, {vr(DACC+o,2)}, {vr(H2+16+o,2)}")
        for p in range(2):
            o = 4*k + 2*p
            s(f"v_pk_mul_f32 {vr(DACC+o,2)}, {vr(DACC+o,2)}, {vr(OMG,2)}")
    stamp(s, 'e2')
    for q in range(2):
        s(f"ds_write_b128 v{AW}, {vr(E0+4*q,4)} offset:{1024*q}")
    for k in range(4):
        s(f"ds_read_b64_tr_b16 {vr(E0+8+2*k,2)}, v{AR} offset:{512*k}")
    for k in range(4):
        for j in range(4):
            s(f"v_dot2_f32_bf16 v{DACC+4*k+j}, v{E0+8+2*k+j//2}, v{G if j % 2 == 0 else GH}, v{DACC+4*k+j}")
        s(f"""v_cvt_pk_bf16_f32 v{E0+2*k}, v{DACC+4*k}, v{DACC+4*k+1}
        v_cvt_pk_bf16_f32 v{E0+2*k+1}, v{DACC+4*k+2}, v{DACC+4*k+3}""")
    for k in range(4):
        s(f"ds_write_b64 v{OW}, {vr(E0+2*k,2)} offset:{3*SLOT+16*k}")
    for q in range(2):
        s(f"ds_read_b128 {vr(H2+4*q,4)}, v{OR_} offset:{3*SLOT+16*80*q}")
    sc = " sc1" if OPT['outsc'] else ""
    s(f"s_add_u32 s{sT0}, s{sOst}, {16*896}")
    s(f"buffer_store_dwordx4 {vr(H2,4)}, v{OO}, {sr(rO,4)}, s{sOst} offen{sc}")
    s(f"buffer_store_dwordx4 {vr(H2+4,4)}, v{OO}, {sr(rO,4)}, s{sT0} offen{sc}")
    return s

def helper():
    s = S()
    GWL = 57344; TS = 59392
    s(f"""
    v_lshrrev_b32 v3, 6, v0
    v_and_b32 v2, 63, v0
    v_readfirstlane_b32 s3, v3
    v_lshlrev_b32 v1, 4, v2
    s_mul_i32 s6, s2, 57344
    s_mul_i32 s7, s3, 14336
    s_add_u32 s8, s6, s7
    {srd(rX, sU, 2048*896)}
    {srd(rW, sGw, 896)}
    {srd(rWS, sWs, WS_END)}
    {srd(rO, sDbg, 256)}
    v_mov_b32 v8, 0
    v_mov_b32 v9, 0
    v_mov_b32 v10, 0
    v_mov_b32 v11, 0
    v_cmp_gt_u32 vcc, 40, v0
    v_mov_b32 v4, 0x80000000
    v_lshrrev_b32 v5, 2, v0
    v_mul_u32_u24 v5, {FS-64}, v5
    v_add_u32 v5, v5, v1
    v_cndmask_b32 v5, v4, v5, vcc
    s_mul_i32 s9, s2, {10*FS}
    s_add_u32 s9, s9, {WS_F2}
    buffer_store_dwordx4 v[8:11], v5, {sr(rWS,4)}, s9 offen sc1
    """)
    for k in range(14):
        if k % 4 == 0: s(f"s_add_u32 m0, s7, {1024*k}\ns_add_u32 s9, s8, {1024*k}")
        s(f"buffer_load_dwordx4 v1, {sr(rX,4)}, s9 offen offset:{1024*(k%4)} lds", "x")
    s(f"s_mov_b32 m0, {GWL}\nbuffer_load_dwordx4 v1, {sr(rW,4)}, 0 offen lds", "x")
    s(f"""
    v_min_u32 v24, 195, v0
    v_mul_u32_u24 v25, 4682, v24
    v_lshrrev_b32 v25, 16, v25
    v_mul_u32_u24 v25, {3584-14*128}, v25
    v_lshlrev_b32 v24, 7, v24
    s_mul_i32 s14, s2, {14*3584}
    v_add3_u32 v25, v25, v24, s14
    v_add_u32 v24, s14, v24
    v_add_u32 v26, {196*128}, v24
    v_min_u32 v31, 1, v0
    v_lshlrev_b32 v31, 31, v31
    v_mov_b32 v9, 1
    s_lshl_b32 s15, s2, 2""")
    if OPT['hpf'] & 1: s(f"global_load_dword v27, v25, {sr(sWg,2)} offset:1792\nglobal_load_dword v28, v25, {sr(sWu,2)} offset:1792")
    if OPT['hpf'] & 4: s(f"global_load_dword v29, v24, {sr(sWdn,2)}\nglobal_load_dword v30, v26, {sr(sWdn,2)}")
    s(f"""
    v_lshrrev_b32 v6, 4, v2
    v_bfe_u32 v7, v2, 2, 2
    v_lshl_add_u32 v7, v6, 3, v7
    v_mul_u32_u24 v7, 896, v7
    v_and_b32 v12, 3, v2
    s_mul_i32 s9, s3, 224
    v_lshl_add_u32 v12, v12, 3, s9
    v_add_u32 v12, v12, v7
    s_mul_i32 s10, s3, {7*2304}
    s_add_u32 s10, s10, {TS}
    v_and_b32 v13, 15, v2
    v_mul_u32_u24 v14, 144, v13
    v_lshl_add_u32 v14, v6, 4, v14
    v_add_u32 v14, s10, v14
    v_lshrrev_b32 v15, 3, v2
    v_lshl_add_u32 v15, v15, 4, v1
    v_add_u32 v15, s10, v15
    v_mul_u32_u24 v16, 896, v13
    v_lshl_add_u32 v16, v6, 4, v16
    v_add_u32 v16, s7, v16
    v_lshlrev_b32 v17, 4, v6
    v_cmp_gt_u32 vcc, 16, v2
    v_lshlrev_b32 v18, 2, v2
    v_cndmask_b32 v18, v4, v18, vcc
    s_add_u32 s11, s8, {WS_UT}
    s_lshl2_add_u32 s13, s2, s3
    s_lshl_b32 s13, s13, 6
    s_add_u32 s13, s13, {WS_G}
    """)
    s.wait_vm("x"); s("s_barrier")
    for cg in range(7):
        for t in range(2):
            for h in range(2):
                s(f"ds_read_b64_tr_b16 {vr(128+8*cg+4*t+2*h,2)}, v12 offset:{(32*t+4*h)*896+32*cg}")
    for cg in range(7):
        for t in range(2): s(f"ds_write_b128 v14, {vr(128+8*cg+4*t,4)} offset:{2304*cg+64*t}")
        for t in range(2): s(f"ds_read_b128 {vr(192+8*cg+4*t,4)}, v15 offset:{2304*cg+8*144*t}")
    for cg in range(7):
        for t in range(2): s(f"buffer_store_dwordx4 {vr(192+8*cg+4*t,4)}, v1, {sr(rWS,4)}, s11 offen offset:{1024*t} sc1")
        s(f"s_add_u32 s11, s11, 2048")
    if OPT['hpf'] & 2: s(f"global_load_dword v29, v24, {sr(sWdn,2)}\nglobal_load_dword v30, v26, {sr(sWdn,2)}")
    for ks in range(14):
        r = 64 + 8*(ks % 4)
        s(f"""ds_read_b128 {vr(r,4)}, v17 offset:{GWL+64*ks}
        ds_read_b128 {vr(r+4,4)}, v16 offset:{64*ks}
        v_mfma_f32_16x16x32_bf16 v[20:23], {vr(r,4)}, {vr(r+4,4)}, {'v[20:23]' if ks else 0}""")
    s(f"""v_cvt_pk_bf16_f32 v20, 0, v20
    v_mul_f32 v20, {hx(fbits(-LOG2E))}, v20
    v_exp_f32 v20, v20
    v_add_f32 v20, 1.0, v20
    v_rcp_f32 v20, v20
    v_cvt_pk_bf16_f32 v21, 0, v20
    v_sub_f32 v22, 1.0, v21
    v_cvt_pk_bf16_f32 v20, v21, v22
    buffer_store_dword v20, v18, {sr(rWS,4)}, s13 offen sc1""")
    s.wait_vm('*'); s("s_barrier")
    s(f"buffer_atomic_add v9, v31, {sr(rO,4)}, 0 offen sc1")
    if OPT['stamp']:
        s(f"""s_mov_b32 s6, s100
        s_memtime s[100:101]
        s_waitcnt lgkmcnt(0)
        s_sub_u32 s6, s100, s6
        v_mov_b32 v8, s6
        s_add_u32 s15, s15, {WS_ST+224*512}
        buffer_store_dword v8, v31, {sr(rWS,4)}, s15 offen""")
    s("s_endpgm")
    fin, _ = finalize(schedule(s))
    return f"""L_helper:
    s_waitcnt lgkmcnt(0)
""" + text(fin) + "\nL_last:\n    s_endpgm"

def build():
    s = S()
    if OPT['x_sync']:
        s("""s_memrealtime s[100:101]
        s_waitcnt lgkmcnt(0)
        s_or_b32 s4, s100, 0x3ff
        L_sync:
        s_memrealtime s[100:101]
        s_waitcnt lgkmcnt(0)
        s_cmp_lt_u32 s100, s4
        s_cbranch_scc1 L_sync""")
    if OPT['stamp']:
        s(f"v_mov_b32 v47, 0\ns_memrealtime s[100:101]\ns_waitcnt lgkmcnt(0)\nv_writelane_b32 v47, s100, 30")
    stamp(s, "start")
    hot = S()
    hot(f"""s_load_dwordx16 s[16:31], s[0:1], 0
    s_load_dwordx16 s[32:47], s[0:1], 64
    s_load_dwordx2 s[48:49], s[0:1], 128
    s_cmpk_ge_u32 s2, {NHELP+NMAIN}
    s_cbranch_scc1 L_end
    s_cmp_ge_u32 s2, {NHELP}
    s_cbranch_scc1 L_main
    s_getpc_b64 s[4:5]
    v_lshlrev_b32 v1, 7, v0
    v_min_u32 v1, CODE_BYTES, v1
    global_load_dword v19, v1, s[4:5]
    s_branch L_helper
    L_main:""")
    hot[10].kind = 'branch'
    e0, e1, e2 = setup_early(); f0, f1 = first_loads()
    hot.add(e0).add(e1)
    hot("L_karg:\ns_waitcnt lgkmcnt(0)\nL_karg2:")
    stamp(hot, "karg")
    hot.add(f0)
    g0 = []
    for n in range(OPT['npre']): g0 += split_vm(item(n))
    if not OPT['x_pre']:
        it0, it1 = item(0), item(1)
        hot.add(it0[:5]).add(it1[:5])
        hot("L_hotend:")
        s.add(hot).add(f1).add(e2).add(it0[5:]).add(it1[5:])
        for k in range(8): g0[k] = S()
    else:
        s.add(hot).add(f1).add(e2)
    s.add(setup_scalar())
    if OPT['x_pre']:
        s(srd(rD, sWdn, 1792*896)); s(srd(rWS, sWs, WS_END))
        L = OPT['x_pre']
        if OPT['mpf'] and OPT['tp'] == 0: s.add(touches())
        for n in range(L):
            s.add(item(n))
            if OPT['mpf'] and OPT['tp'] == 4*(n+1): s.add(touches())
        if not OPT['pafter']:
            for k in range(6): s.wait_vm(f'par{k}'); stamp(s, f'p{k}')
        for n in range(18):
            s.wait_vm(f'it{n}'); stamp(s, f'i{n}')
            if n + L < 21: s.add(item(n+L))
    else:
        n0, n1, tp = OPT['n0'], OPT['n1'], OPT['tp']
        if OPT['mpf'] and tp: g0[tp-1].add(touches())
        elif OPT['mpf']: g0[0] = touches().add(g0[0])
        pre = S(); pre(srd(rD, sWdn, 1792*896))
        s.add(pre).add(sprinkle(setup_AB().add(setup_start2()).add(setup_conv()), g0[:n0], 0.0, 0.3*n0/8))
        stamp(s, "setup")
        ka, kw, kb, mv = krows()
        s.add(sprinkle(ka, g0[n0:n1], OPT['kalo']/100, OPT['kahi']/100))
        s.add(kw)
        stamp(s, "ka")
        s.add(sprinkle(kb, g0[n1:], 0.0, 1.0))
        stamp(s, "kb")
        s.add(stageB(mv))
        stamp(s, "B2")
        s.add(stageTail())
        stamp(s, "tail")
        if OPT['x_ack']: s("s_waitcnt vmcnt(0)"); stamp(s, "ack")
        ssm, fin = stageSSM()
        s.add(ssm)
        s.add(stageD(fin))
        stamp(s, "E")
    if OPT['stamp']:
        s(f"""s_waitcnt vmcnt(0)
        {'s_memtime' if OPT['stamp'] == 1 else 's_memrealtime'} s[100:101]
        s_waitcnt lgkmcnt(0)
        v_writelane_b32 v47, s100, {len(stamps)}
        {chr(10).join(f'v_writelane_b32 v47, s{18+2*j}, {k}' for j, k in enumerate(asyncst))}
        s_memrealtime s[100:101]
        s_waitcnt lgkmcnt(0)
        v_writelane_b32 v47, s100, 31
        s_lshl2_add_u32 s{sT0}, s{sC}, s{sW}
        s_lshl_b32 s{sT0}, s{sT0}, 7
        s_add_u32 s{sT0}, s{sT0}, {WS_ST}
        v_and_b32 v3, 31, v{vLane}
        v_lshlrev_b32 v3, 2, v3
        s_mov_b64 exec, 0xffffffff
        buffer_store_dword v47, v3, {sr(rWS,4)}, s{sT0} offen""")
        stamps.append("end")
    if PROBE:
        s('s_waitcnt vmcnt(0)'); stamp(s, 'fin')
        s(f"""s_waitcnt lgkmcnt(0)
        s_sub_u32 s12, s20, s100
        s_max_i32 s12, s12, 0
        s_mul_i32 s12, s12, 10
        s_memrealtime s[100:101]
        s_waitcnt lgkmcnt(0)
        s_mov_b32 s8, s100
        L_probe:
        s_memrealtime s[100:101]
        s_waitcnt lgkmcnt(0)
        s_sub_u32 s100, s100, s8
        s_cmp_lt_u32 s100, s12
        s_cbranch_scc1 L_probe""")
    if OPT['x_strip'] == 1:
        s = S(x for x in s if not (x.kind in ('mfma', 'ds', 'trans') or (x.kind == 'valu' and ('f32' in x.op or 'accvgpr' in x.op or x.dpp)) or (x.kind == 'mark' and x.lg is not None)))
        t = S()
        for x in s:
            t.append(x)
            if x.kind == 'vload' and 'x4' in x.op: t("s_waitcnt vmcnt(24)")
        s = t
    if OPT['x_strip'] == 2:
        s = S(x for x in s if not ((x.kind in VM_KINDS and 'v47' not in x.text) or (x.kind == 'mark' and x.vm is not None) or 'L_slow' in x.text))
    if OPT['sched']: s = schedule(s)
    fin, nn = finalize(s)
    info = ''
    if OPT['align']:
        fin, nw, na, nb = align_pass(fin); info = f"widened {nw} alignnops {na} bytes {nb}"
    open(sys.argv[1]+'.names', 'w').write(','.join(stamps))
    sys.stderr.write(f"instrs {len(fin)} nops {nn} est {estimate(fin)} {info}\n")
    hdr = open('cdna_kernels/' + NAME + '.s.ref').read().split('; Override launch')[0]
    return hdr + f"""; One fused launch. Workgroups 0..{NHELP-1}: transpose of u, gate, flag init. Workgroups {NHELP}..{NHELP+NMAIN-1}: S4 kernel
; generation, gate/up GEMM + GELU, causal convolution, down GEMM and the final mix.
; @launch grid=({NHELP+NMAIN},1,1) block=(256,1,1) lds={LDS_SIZE}
.amdgcn_target "amdgcn-amd-amdhsa--gfx950"
.text
.globl {NAME}_kernel
.p2align 8
.type {NAME}_kernel,@function
{NAME}_kernel:
{text(fin).replace('CODE_BYTES', 'L_last-L_main')}
L_end:
    s_endpgm
""" + "\n".join(slow) + "\n" + helper() + f"""
.section .rodata,"a"
.p2align 6
.amdhsa_kernel {NAME}_kernel
  .amdhsa_next_free_vgpr 512
  .amdhsa_next_free_sgpr 102
  .amdhsa_accum_offset 256
  .amdhsa_group_segment_fixed_size 0
  .amdhsa_kernarg_size 136
  .amdhsa_user_sgpr_count 2
  .amdhsa_user_sgpr_kernarg_segment_ptr 1
  .amdhsa_system_sgpr_workgroup_id_x 1
.end_amdhsa_kernel
"""

if __name__ == "__main__":
    open(sys.argv[1], 'w').write(build())
```

```python
import re

REG_RE = re.compile(r'^(-|\|)?(abs\()?([vas])(\d+|\[(\d+):(\d+)\])\)?\|?$')

def parse_reg(op):
    op = op.strip()
    if op == 'vcc': return [('s', 106), ('s', 107)]
    if op == 'vcc_lo': return [('s', 106)]
    if op == 'vcc_hi': return [('s', 107)]
    if op == 'exec': return [('s', 126), ('s', 127)]
    if op == 'm0': return [('s', 124)]
    m = REG_RE.match(op)
    if not m: return []
    t = m.group(3)
    if m.group(5) is not None:
        return [(t, i) for i in range(int(m.group(5)), int(m.group(6)) + 1)]
    return [(t, int(m.group(4)))]

TRANS = ('v_exp_f32', 'v_log_f32', 'v_rcp_f32', 'v_rsq_f32', 'v_sqrt_f32', 'v_sin_f32', 'v_cos_f32')
EXEC = [('s', 126), ('s', 127)]
VCC = [('s', 106), ('s', 107)]
M0 = [('s', 124)]

class I:
    __slots__ = ('text', 'op', 'kind', 'rd', 'wr', 'passes', 'srcA', 'srcB', 'srcC', 'tok', 'wide', 'data', 'dpp', 'note')
    def __init__(self, text, tok=None):
        self.text = text; self.tok = tok; self.note = None
        self.passes = 0; self.srcA = self.srcB = self.srcC = (); self.wide = False; self.data = (); self.dpp = False
        t = text.split(';')[0].strip()
        if t.endswith(':') or t.startswith('.') or not t:
            self.op = ''; self.kind = 'label' if t.endswith(':') else 'dir'; self.rd = set(); self.wr = set(); return
        parts = t.split(None, 1)
        op = parts[0]
        for suf in ('_e32', '_e64', '_dpp', '_sdwa'):
            if op.endswith(suf):
                if suf == '_dpp': self.dpp = True
                op = op[:-len(suf)]
        self.op = op
        rest = parts[1] if len(parts) > 1 else ''
        ops = []; depth = 0; cur = ''
        for ch in rest:
            if ch == '[': depth += 1
            if ch == ']': depth -= 1
            if ch == ',' and depth == 0: ops.append(cur.strip()); cur = ''
            else: cur += ch
        if cur.strip(): ops.append(cur.strip())
        mods = ''
        if ops:
            last = ops[-1].split(None, 1)
            ops[-1] = last[0]
            mods = last[1] if len(last) > 1 else ''
        R = [parse_reg(o) for o in ops]
        allr = lambda lst: set(x for l in lst for x in l)
        rd = set(); wr = set()
        if op.startswith('v_mfma'):
            self.kind = 'mfma'
            self.passes = 8 if '32x32x16' in op else 4 if '16x16x32' in op else None
            assert self.passes, op
            wr = set(R[0]); self.srcA = set(R[1]); self.srcB = set(R[2]); self.srcC = set(R[3]); rd = allr(R[1:])
        elif op.startswith('ds_'):
            self.kind = 'ds'
            if op.startswith('ds_read') or op.startswith('ds_bpermute') or op.startswith('ds_swizzle'):
                wr = set(R[0]); rd = allr(R[1:])
                if 'd16' in op: rd |= wr
            else:
                rd = allr(R)
            if 'addtid' in op: rd |= set(M0)
        elif op.startswith('buffer_load') or op.startswith('global_load'):
            if ' lds' in (' ' + mods) or '_lds_' in op:
                self.kind = 'dma'; rd = allr(R) | set(M0)
            else:
                self.kind = 'vload'; wr = set(R[0]); rd = allr(R[1:])
                if 'd16' in op: rd |= wr
        elif op.startswith('buffer_store') or op.startswith('global_store'):
            self.kind = 'vstore'; rd = allr(R)
            self.data = set(R[0] if op.startswith('buffer') else R[1])
            self.wide = 'x4' in op or 'x3' in op
        elif op.startswith('buffer_') or op.startswith('global_'):
            self.kind = 'vstore'; rd = allr(R)
        elif op.startswith('s_atomic') or tok == 'async':
            self.kind = 'asmem'; rd = allr(R); self.tok = None
            if not op.startswith('s_atomic'): wr = set(R[0]); rd = allr(R[1:])
        elif op.startswith('s_load') or op in ('s_memtime', 's_memrealtime'):
            self.kind = 'smem'; wr = set(R[0]); rd = allr(R[1:])
        elif op == 's_waitcnt': self.kind = 'wait'
        elif op == 's_barrier': self.kind = 'barrier'
        elif op == 's_nop': self.kind = 'nop'
        elif op in ('s_branch', 's_endpgm', 's_setprio', 's_sleep') or op.startswith('s_cbranch'):
            self.kind = 'branch'
            if 'vcc' in op: rd = set(VCC)
            if 'exec' in op: rd = set(EXEC)
        elif op.startswith('s_cmp') or op.startswith('s_bitcmp'):
            self.kind = 'salu'; rd = allr(R)
        elif op.startswith('s_'):
            self.kind = 'salu'; wr = set(R[0]); rd = allr(R[1:])
            if 'saveexec' in op: wr |= set(EXEC); rd |= set(EXEC)
            if op in ('s_addk_i32', 's_mulk_i32'): rd |= wr
        elif op.startswith('v_'):
            self.kind = 'trans' if op in TRANS else 'valu'
            if op.startswith('v_permlane'):
                wr = allr(R); rd = allr(R)
            else:
                wr = set(R[0]); rd = allr(R[1:])
                if op.startswith('v_fmac') or op.startswith('v_dot2c') or op.startswith('v_pk_fmac') or op.startswith('v_writelane') or 'mixlo' in op or 'mixhi' in op or self.dpp:
                    rd |= wr
                if op.startswith('v_add_co') or op.startswith('v_sub_co') or op.startswith('v_addc_co'):
                    wr |= set(R[1]); rd = allr(R[2:])
                if op.startswith('v_cmpx'): wr |= set(EXEC)
                if op.startswith('v_cndmask') and len(R) == 3: rd |= set(VCC)
        else:
            raise ValueError('unknown op: ' + text)
        self.rd = rd; self.wr = wr

    def cost(self):
        k = self.kind
        if k in ('label', 'dir', 'mark'): return 0
        if k == 'trans': return 8
        if k == 'nop': return 4 * (int(self.text.split()[1]) + 1)
        if k == 'ds': return 4 * max(1, sum(1 for r in self.rd if r[0] in 'va' and r not in self.wr))
        if k in ('vload', 'dma'): return 16
        if k == 'vstore': return 16 + 8 * len(self.data)
        return 4

class Mark(I):
    __slots__ = ('vm', 'lg')
    def __init__(self, vm=None, lg=None):
        self.text = ''; self.op = ''; self.kind = 'mark'; self.rd = set(); self.wr = set(); self.tok = None
        self.vm = vm; self.lg = lg; self.note = None
        self.passes = 0; self.srcA = self.srcB = self.srcC = (); self.wide = False; self.data = (); self.dpp = False

class S(list):
    cycles = 0
    def __call__(self, text, tok=None):
        for line in text.split('\n'):
            line = line.strip()
            if line and not line.startswith(';'):
                self.append(I(line, tok))
        return self
    def wait_vm(self, tok):
        self.append(Mark(vm=tok)); return self
    def wait_lg(self, tok='*'):
        self.append(Mark(lg=tok)); return self
    def add(self, other):
        self.extend(other); return self

VM_KINDS = ('vload', 'vstore', 'dma')
ASYNC_WINDOW = 200
DUMMY = 'ds_read_b32 v3, v1'

def insert_waits(ins):
    out = []; vq = []; lq = []; seen = set(); waited = set(); asy = []
    for x in ins:
        nv = None; nl = None
        if x.kind == 'mark':
            for t in (x.vm, x.lg):
                for q in (t if isinstance(t, (tuple, list, set)) else (t,)):
                    assert q in (None, '*', 'pub') or q in seen, f"wait on token {q} never issued"
                    waited.add(q)
        elif x.tok:
            assert x.tok == 'pub' or x.tok not in waited, f"token {x.tok} issued after its wait"
            seen.add(x.tok)
        if x.kind == 'wait':
            m = re.search(r'vmcnt\((\d+)\)', x.text)
            if m: vq = vq[len(vq) - min(len(vq), int(m.group(1))):]
            m = re.search(r'lgkmcnt\((\d+)\)', x.text)
            if m:
                n = int(m.group(1)); assert n == 0 or not any(e.kind == 'smem' for e in lq)
                lq = lq[len(lq) - min(len(lq), n):]
            out.append(x); continue
        touched = x.rd | x.wr
        vm_t = x.vm if x.kind == 'mark' else None
        lg_t = x.lg if x.kind == 'mark' else None
        def match(e, t):
            if t is None: return False
            if t == '*': return True
            return e.tok in t if isinstance(t, (tuple, list, set)) else e.tok == t
        for idx in range(len(vq) - 1, -1, -1):
            e = vq[idx]
            if (e.wr & touched) or match(e, vm_t):
                nv = len(vq) - 1 - idx; break
        for idx in range(len(lq) - 1, -1, -1):
            e = lq[idx]
            same_q = x.kind == 'ds' and e.kind == 'ds' and not (e.wr & x.rd)
            if ((e.wr & touched) and not same_q) or match(e, lg_t):
                nl = len(lq) - 1 - idx; break
        if nl is not None and any(e.kind == 'smem' for e in lq): nl = 0
        elif nl is not None:
            k = sum(1 for p in asy if len(out) - p < ASYNC_WINDOW)
            while nl < k:
                d = I(DUMMY); d.note = 'dummy'; out.append(d); lq.append(I('ds_nop')); nl += 1
        if nv is not None or nl is not None:
            t = 's_waitcnt'
            if nv is not None:
                nv = min(nv, 62); t += f' vmcnt({nv})'; vq = vq[len(vq) - nv:] if nv else []
            if nl is not None:
                nl = min(nl, 14); t += f' lgkmcnt({nl})'; lq = lq[len(lq) - nl:] if nl else []
            if out and out[-1].kind == 'wait' and out[-1].note == 'auto':
                p = out.pop().text
                mv = re.search(r'vmcnt\((\d+)\)', p); ml = re.search(r'lgkmcnt\((\d+)\)', p)
                if mv: nv = int(mv.group(1)) if nv is None else min(nv, int(mv.group(1)))
                if ml: nl = int(ml.group(1)) if nl is None else min(nl, int(ml.group(1)))
                t = 's_waitcnt' + (f' vmcnt({nv})' if nv is not None else '') + (f' lgkmcnt({nl})' if nl is not None else '')
            w = I(t); w.note = 'auto'; out.append(w)
        if x.kind == 'mark': continue
        if x.kind == 'asmem' and 'time' not in x.op: asy.append(len(out))
        if x.kind in VM_KINDS: vq.append(x)
        if x.kind in ('ds', 'smem'): lq.append(x)
        out.append(x)
    return out

def need_states(p, c):
    n = 0
    pk, ck = p.kind, c.kind
    vwr = {r for r in p.wr if r[0] in 'va'}
    swr = {r for r in p.wr if r[0] == 's'}
    isvalu = lambda k: k in ('valu', 'trans')
    if pk == 'mfma':
        big = 12 if p.passes == 8 else 8
        if ck == 'mfma':
            if p.wr & (c.srcA | c.srcB): n = max(n, big)
            if p.wr & c.srcC and not (p.wr == c.srcC and p.passes == c.passes): n = max(n, 10 if p.passes == 8 else 6)
            if p.wr & c.wr and not (p.wr == c.wr and p.wr == c.srcC and p.passes == c.passes) and not (p.wr & c.srcC):
                n = max(n, big)
        elif isvalu(ck) or ck in ('ds', 'vload', 'vstore', 'dma'):
            if p.wr & (c.rd | c.wr): n = max(n, big)
            if p.srcC & c.wr: n = max(n, 7 if p.passes == 8 else 3)
    if isvalu(pk):
        if ck == 'mfma' and vwr & c.rd: n = max(n, 2)
        if ck == 'mfma' and swr & set(EXEC): n = max(n, 4)
        if ck in VM_KINDS and swr & c.rd: n = max(n, 5)
        if isvalu(ck):
            if c.dpp and vwr & c.rd: n = max(n, 2)
            if c.dpp and swr & set(EXEC): n = max(n, 5)
            if c.op.startswith('v_permlane') and vwr & c.rd: n = max(n, 2)
            if c.op in ('v_readfirstlane_b32', 'v_readlane_b32') and vwr & c.rd: n = max(n, 1)
            if c.op in ('v_readlane_b32', 'v_writelane_b32') and swr & c.rd: n = max(n, 4)
            if swr & c.rd: n = max(n, 2)
            if pk == 'trans' and vwr & c.rd: n = max(n, 1)
            if p.op.startswith('v_dot2') and vwr & (c.rd | c.wr) and c.op != p.op: n = max(n, 3)
            if p.op.startswith('v_dot2') and vwr & c.rd and c.op == p.op: n = max(n, 3)
            if ('sdwa' in p.text or 'op_sel' in p.text and not p.op.startswith('v_pk')) and vwr & (c.rd | c.wr): n = max(n, 1)
        if p.op.startswith('v_dot2') and ck in ('ds', 'vstore', 'vload', 'mfma') and vwr & c.rd: n = max(n, 3)
        if pk == 'trans' and ck in ('ds', 'vstore', 'vload') and vwr & c.rd: n = max(n, 1)
        if ck in ('salu', 'branch', 'smem', 'asmem') and swr & c.rd: n = max(n, 1)
    if pk == 'vstore' and p.wide and p.data & c.wr: n = max(n, 2)
    if pk == 'salu' and set(M0) & p.wr and set(M0) & c.rd and ck in ('dma', 'ds'): n = max(n, 1)
    return n

def states_of(x):
    if x.kind in ('label', 'dir', 'mark'): return 0
    if x.kind == 'nop': return int(x.text.split()[1]) + 1
    return 1

def insert_nops(ins, verbose=False):
    out = []; added = 0
    for c in ins:
        if c.kind not in ('label', 'dir', 'nop', 'wait', 'barrier'):
            dist = 0; need = 0
            for p in reversed(out):
                if dist >= 12: break
                r = need_states(p, c) - dist
                if r > need: need = r
                dist += states_of(p)
            if need > 0:
                added += need
                if verbose: print('nop', need, 'before', c.text)
                x = I(f's_nop {need-1}'); x.note = 'auto'; out.append(x)
        out.append(c)
    return out, added

class Pipe:
    def __init__(s): s.t = 0; s.mf = 0; s.tv = -99; s.tm = -99
    def earliest(s, x):
        k = x.kind
        if k in ('valu', 'trans'):
            e = max(s.t, s.tm + 8)
            if x.op.startswith('v_pk_') and x.op.endswith('f32'): e = max(e, s.mf)
            return e
        if k == 'mfma': return max(s.t, s.mf)
        if k == 'ds' or k in VM_KINDS: return max(s.t, s.tv + 8, s.tm + 8)
        return s.t
    def issue(s, x, at):
        at = max(at, s.earliest(x))
        s.t = at + x.cost()
        if x.kind == 'mfma': s.mf = at + 4 * x.passes; s.tm = at
        if x.kind in ('valu', 'trans'): s.tv = s.t
        return at

def estimate(ins):
    p = Pipe(); lastw = {}
    for x in ins:
        r = 0
        for q in x.rd:
            if q in lastw and lastw[q][1].kind in ('valu', 'trans', 'ds'): r = max(r, lastw[q][0] + lat(lastw[q][1], x))
        at = p.issue(x, r)
        for q in x.wr: lastw[q] = (at, x)
    return max(p.t, p.mf)

def glued(x):
    return x.kind == 'label' or x.op.startswith('s_cselect') or x.op.startswith('s_cbranch') or x.op in ('s_addc_u32', 's_subb_u32')

def weave(main, side, budget=None, start=0, end=None):
    mf = [i for i, x in enumerate(main) if x.kind == 'mfma']
    end = len(mf) if end is None else end
    slots = mf[start:end]
    total = sum(x.cost() for x in side)
    out = S(); si = 0; acc = 0.0; done = 0
    per = total / max(1, len(slots))
    slotset = {p: k for k, p in enumerate(slots)}
    for i, x in enumerate(main):
        out.append(x)
        if i in slotset:
            acc += per
            last = slotset[i] == len(slots) - 1
            while si < len(side) and (last or glued(side[si]) or done + side[si].cost() / 2 <= acc):
                out.append(side[si]); done += side[si].cost(); si += 1
    assert si == len(side)
    return out

def shadow_waits(ins, age=3):
    out = []; lastw = {}; nm = 0
    idx = [i for i, x in enumerate(ins) if x.kind == 'mfma']
    nxt = {a: b for a, b in zip(idx, idx[1:])}
    for i, x in enumerate(ins):
        out.append(x)
        if x.kind in ('ds', 'vload'):
            for r in x.wr: lastw[r] = nm
        if x.kind == 'mfma':
            nm += 1
            j = nxt.get(i)
            if j is None or j - i > 8 or j == i + 1: continue
            if any(y.kind in ('branch', 'label') for y in ins[i+1:j]): continue
            need = ins[j].srcA | ins[j].srcB
            if any(y.wr & need for y in ins[i+1:j]): continue
            if all(nm - lastw.get(r, -99) >= age * (2 if x.passes == 4 else 1) for r in need):
                m = Mark(); m.rd = set(need); out.append(m)
    return out

SHADOW = 1
def finalize(ins, verbose=False):
    a = insert_waits(shadow_waits(ins) if SHADOW else ins)
    b, n = insert_nops(a, verbose)
    return b, n

def text(ins):
    return '\n'.join(('' if x.kind == 'label' else '    ') + x.text for x in ins if x.kind != 'mark')


def lat(p, c):
    k = p.kind
    if k == 'valu': return 10
    if k == 'trans': return 14
    if k == 'salu': return 4
    if k == 'ds': return 110
    if k == 'vload': return 400
    if k == 'smem': return 200
    if k == 'mfma':
        if c.kind == 'mfma' and p.wr == c.srcC and not (p.wr & (c.srcA | c.srcB)): return 0
        return 4 * p.passes + 20
    return 4

MARGIN = 6
LIM = {'mark': 1, 'barrier': 1, 'wait': 1, 'dma': 8, 'vload': 8, 'vstore': 8, 'mfma': 14, 'ds': 16, 'asmem': 4}
def schedule(ins, window=32):
    n = len(ins)
    cls = []
    for x in ins:
        k = x.kind
        if k in ('branch', 'label', 'dir', 'nop'): c = ('fence',)
        elif k in ('mark', 'barrier', 'wait'): c = ('ds', 'vm', 'smem')
        elif k in VM_KINDS: c = ('vm',)
        elif k == 'asmem': c = ('smem', 'salu', 'vm')
        elif k == 'smem': c = ('smem', 'salu') if x.op.startswith('s_load') else ('fence',)
        elif k in ('ds', 'salu', 'mfma'): c = (k,)
        else: c = ()
        if set(EXEC) & x.wr: c = ('fence',)
        cls.append(c)
    preds = [[] for _ in range(n)]
    lastw = {}; readers = {}; lastc = {}; fence = -1; since = []
    for i, x in enumerate(ins):
        P = {}
        def add(j, l):
            if j is not None and j >= 0: P[j] = max(P.get(j, 0), l)
        for r in x.rd:
            j = lastw.get(r)
            if j is not None: add(j, lat(ins[j], x))
        for r in x.wr:
            j = lastw.get(r)
            if j is not None: add(j, lat(ins[j], x) if ins[j].kind in ('mfma',) and x.kind != 'mfma' else 0)
            for j in readers.get(r, ()): add(j, 4 * ins[j].passes if ins[j].kind == 'mfma' and x.kind in ('ds', 'vload') else 0)
        if 'fence' in cls[i]:
            for j in since: add(j, 0)
            add(fence, 0); fence = i; since = []
        else:
            add(fence, 0); since.append(i)
            if x.kind in ('ds', 'mark', 'barrier', 'wait', 'asmem') or x.kind in VM_KINDS: add(lastc.get('mfma'), 0)
            for c in cls[i]:
                j = lastc.get(c)
                add(j, 100 if (x.kind == 'mark' and x.lg == '*' and j is not None and ins[j].kind == 'ds') else 0); lastc[c] = i
        for r in x.rd: readers.setdefault(r, []).append(i)
        for r in x.wr: lastw[r] = i; readers[r] = []
        P.pop(i, None)
        preds[i] = list(P.items())
    issued = [None] * n
    out = S(); p = Pipe(); head = 0
    while head < n:
        cand = []; seen = 0; i = head; nextm = None
        while i < n and seen < window:
            if issued[i] is None:
                seen += 1
                x = ins[i]
                ok = True; rdy = 0
                for j, l in preds[i]:
                    if issued[j] is None: ok = False; break
                    rdy = max(rdy, issued[j] + l)
                lim = LIM.get(x.kind, window)
                if x.kind in ('mark', 'barrier'): lim = 10
                if ok and seen > lim: ok = False
                if x.kind == 'mfma' and nextm is None: nextm = (i, max(rdy, p.earliest(x)) if ok else None)
                if ok: cand.append((i, max(rdy, p.earliest(x))))
            i += 1
        t = p.t; best = None; bestkey = None
        for i, e in cand:
            x = ins[i]; k = x.kind
            fits = nextm is None or nextm[1] is None or i <= nextm[0] or e + x.cost() <= nextm[1] - MARGIN
            if k == 'mfma': key = (0, i) if e <= t + 3 else (6, e, i)
            elif not fits: key = (7, e, i)
            elif k in ('mark', 'label', 'dir'): key = (1, i) if e <= t else (6, e, i)
            elif k in ('salu', 'wait', 'barrier', 'branch', 'smem', 'asmem', 'nop'):
                key = ((2, i) if t < p.tm + 8 else (4, i)) if e <= t else (6, e, i)
            elif k == 'ds' or k in VM_KINDS:
                key = (3, i) if e <= max(t, p.tm + 8) else (6, e, i)
            else:
                key = (4, i) if e <= max(t, p.tm + 8) else (6, e, i)
            if bestkey is None or key < bestkey: best, bestkey, be = i, key, e
        x = ins[best]
        issued[best] = p.issue(x, be)
        out.append(x)
        while head < n and issued[head] is not None: head += 1
    out.cycles = max(p.t, p.mf)
    return out

import subprocess
def sizes(ins):
    real = [x for x in ins if x.kind not in ('label', 'dir', 'mark')]
    src = '\n'.join(re.sub(r'L_\w+', '0', x.text) if x.kind == 'branch' else x.text.replace('CODE_BYTES', '0x12345') for x in real)
    r = subprocess.run(['llvm-mc', '-triple=amdgcn-amd-amdhsa', '-mcpu=gfx950', '-show-encoding'], input=src, capture_output=True, text=True)
    enc = re.findall(r'encoding: \[([^\]]*)\]', r.stdout)
    assert len(enc) == len(real), (len(enc), len(real), r.stderr[:2000])
    return {id(x): len(e.split(',')) for x, e in zip(real, enc)}

NOWIDE = ('v_readfirstlane_b32', 'v_fmaak_f32', 'v_fmamk_f32', 'v_nop')
def align_pass(ins, start=0, stubs=False, align=True):
    sz = sizes(ins)
    out = []; off = start; nw = nn = 0; nst = 0
    cand = None
    for x in ins:
        if x.kind in ('label', 'dir', 'mark'): out.append(x); continue
        s = sz[id(x)]
        if stubs and off // 4096 > nst and (off % 4096 >= 40 or (out[-1].kind == 'mfma' and x.kind not in SCAL)) and not glued(x):
            nst += 1
            z = I(f's_cbranch_execz L_stn{nst}'); sz[id(z)] = 4
            out.append(I(f'L_st{nst}:')); out.append(z); off += 4
            if off % 32 == 0: cand = None
        if align and s == 8 and off % 32 == 28:
            if cand is not None:
                y = out[cand]; parts = y.text.split(None, 1)
                z = I(parts[0].replace('_e32', '') + '_e64 ' + parts[1], y.tok); out[cand] = z; nw += 1
            elif any(y.kind == 'mfma' for y in out[-12:]):
                off -= 4
            else:
                z = I('s_nop 0'); z.note = 'align'
                k = len(out); o2 = off; pos = None
                while k > 0 and o2 % 32 != 0:
                    k -= 1
                    if out[k].kind in ('label', 'dir', 'mark'): continue
                    if out[k].kind == 'mfma' and (k + 1 == len(out) or out[k+1].kind not in ('salu', 'wait', 'nop', 'barrier')): pos = k + 1; break
                    o2 -= sz.get(id(out[k]), 4 if out[k].kind == 'nop' else 8)
                out.insert(len(out) if pos is None else pos, z); nn += 1
            off += 4; cand = None
        if off % 32 == 0: cand = None
        if s == 4 and x.kind in ('valu', 'trans') and x.op not in NOWIDE: cand = len(out)
        out.append(x); off += s
    align_pass.nst = nst
    return out, nw, nn, off

def place(main, groups, slots):
    out = S(); k = 0; m = -1
    for x in main:
        if x.kind == 'mfma':
            while k < len(groups) and slots[k] <= m: out.add(groups[k]); k += 1
            m += 1
        out.append(x)
    while k < len(groups): out.add(groups[k]); k += 1
    return out

SCAL = ('salu', 'wait', 'barrier', 'asmem', 'branch')
def pour(main, side, start=0, end=None):
    mf = [i for i, x in enumerate(main) if x.kind == 'mfma']
    end = len(mf) if end is None else min(end, len(mf))
    bounds = mf + [len(main)]
    def used(items):
        u = 0; sh = False
        for x in items:
            if (x.kind in SCAL or x.kind == 'mark') and not sh: sh = True; continue
            u += x.cost()
        return u, sh
    base = [used(main[bounds[g]+1:bounds[g+1]]) for g in range(start, end)]
    nsc = sum(1 for x in side if x.kind in SCAL)
    def attempt(L, pace):
        res = [[] for _ in base]; k = 0; n = len(side)
        cap = [max(0, L - u) for u, _ in base]; tot = sum(cap) or 1; acc = 0
        need = sum(x.cost() for x in side if x.kind not in SCAL); done = 0
        for g, (u, sh) in enumerate(base):
            acc += cap[g]
            while k < n:
                x = side[k]
                if glued(x) or x.kind == 'mark': pass
                elif x.kind in SCAL and not sh:
                    if pace and k > n * (g + 1) / len(base) + 2: break
                    sh = True; res[g].append(x); k += 1; continue
                elif u + x.cost() > L: break
                elif pace and x.kind not in SCAL and done > need * acc / tot: break
                u += x.cost()
                if x.kind not in SCAL: done += x.cost()
                res[g].append(x); k += 1
        return res if k == n else None
    L = 0; res = None
    while res is None:
        L += 4
        res = attempt(L, True) or attempt(L, False)
    out = S(); g = -1
    for i, x in enumerate(main):
        if x.kind == 'mfma':
            if start <= g < end: out.add(res[g-start])
            g += 1
        out.append(x)
    if start <= g < end: out.add(res[g-start])
    return out
```

```python
import sys, math, struct
from asmlib import *
import asmlib

NAME = "gated_mix__ssm_conv_s4__geglu_ffn__prompt"
OPT = dict(x_sync=0, x_strip=0, stamp=0, cl2=1, nst=6, sched=1, align=1, outsc=1, kbw=32, n0=8, n1=16, tp=16, kalo=0, kahi=60, tm=3, ap=1, margin=4, npre=6, fstr=128, rx=2, hpf=5, mpf=0, cl1=0, tlb=0, stlb=1, x_ack=0, x_pre=0, pafter=0, ra=0, rb=0, rc=0, wat=0, nc=8, ord=1, xlo=70, mvd=3, mvl=14, mvt=1, snt=1, al=150, ast=222, dk=1, f3e=8, pour=1, hop=1, eoff=768, xo=0, dblk=3,
           slp=2, agw=1, f1=13, ntail=3, f2a=1, p2a=40, c2a=90, nha=1, nhx=1, wh2=60, c0=20, p2b=45, f3=7, p3=12, c3=0)
PROBE = None
DPOS = [0, 1, 2, 3, 5, 6, 7, 8]
CNT = [int(c, 16) for c in '68888884444666']
STSEL = 'start,karg,setup,ka,kb,B0,B1,B2,tail,A2,exp,C,D1,D2,E'.split(',')
for a in sys.argv[2:]:
    k, v = a.split('=')
    if k == 'probe': PROBE = v.split(',')
    elif k == 'st': STSEL = v.split(',')
    elif k == 'dpos': DPOS = [int(c, 16) for c in v]
    elif k == 'cnt': CNT = [int(c, 16) for c in v]
    else:
        assert k in OPT, k
        OPT[k] = int(v)
asmlib.MARGIN = OPT['margin']

def fbits(x): return struct.unpack('<I', struct.pack('<f', x))[0]
def hx(x): return hex(x & 0xffffffff)
vr = lambda a, n: f"v[{a}:{a+n-1}]" if n > 1 else f"v{a}"
ar = lambda a, n: f"a[{a}:{a+n-1}]" if n > 1 else f"a{a}"
sr = lambda a, n: f"s[{a}:{a+n-1}]" if n > 1 else f"s{a}"
LOG2E = math.log2(math.e)

ROT = OPT['ra'] or OPT['rb'] or OPT['rc']
NHELP = 32; NMAIN = 224
FS = OPT['fstr']; WS_F2 = 0xB00000; WS_F3 = WS_F2 + 256*FS
WS_G = 0x4000; WS_ST = 0x18000; WS_UT = 0x40000; WS_AT = 0x200000; WS_H = 0x400000; WS_END = 0xD00000
SLOT = 16384; NSLOT = 7
RING = 49152
SCR = 0; SCRW = 4352; SCRH = 4*SCRW
YA = 0; YAS = 8704
KFS = 4224; KF = SCRH
UTS = KF + 2*KFS; UTSW = 2048
UA = 2*SCRH; UAS = 4288
LDS_SIZE = 163840
assert UTS + 4*UTSW <= UA and UA + 2*UAS <= RING and RING + NSLOT*SLOT <= LDS_SIZE

sU, sAre, sAim, sBre, sBim, sCre, sCim, sLdt = 16, 18, 20, 22, 24, 26, 28, 30
sDsk, sBx, sWg, sWu, sWdn, sGw, sOut, sDbg, sWs = 32, 34, 36, 38, 40, 42, 44, 46, 48
rX, rW, rD, rWS, rO = 52, 56, 60, 64, 68
sW, sC, sXo, sWo, sDo = 3, 4, 5, 6, 7
sM0x, sM0w = 9, 10
sW1, sW2 = 11, 13
sT0, sT1 = 14, 15
sTmp = 16
sHst, sHld = 72, 73
sF2w, sF3w, sF2r, sF3r = 74, 75, 76, 77
sUTld, sATld, sGld, sOst = 78, 79, 80, 81
sLDv, sDSv = 82, 83
sScr = 84
sX_, sJ_, sMI, sII, sMB, sFC, sRB = 85, 86, 87, 88, 89, 90, 91
sK0, sK1 = 92, 94
sSpin = 96
sXe, sWe, sDe, sHe = 97, 98, 99, 51
sKb = 50
sOne, sPoll = 51, 99

vL16, vLane, vPoll, vZero, vG = 1, 2, 4, 5, 6
vWd, vWr, vXd, vXr = 8, 12, 16, 20
vDd = 16
vDr, vUo, vUw, vH1, vH2 = 24, 32, 33, 34, 35
vTr, vK, vK1 = 42, 43, 82
VI = [20, 21, 22, 23, 8, 9, 10, 11]; vKw, vKp = 84, 85
vFr, vGr, vYk, vYr, vYc = 36, 37, 38, 39, 40
AW, AR, AO, RW, RR, OW, OR_, OO = 42, 43, 44, 20, 21, 45, 46, 36
vWf = 48
vGt = 72; vC1 = 80
PARK = list(range(86, 128))
ACC1 = 128; ACC2 = 192
aU = 112
vS = 240
vPar = 83
vDk = 7
DACC = 64; E0 = 48
sYw = 8

stamps = []; asyncst = []
def stamp(s, name):
    if PROBE and name in PROBE:
        if name == 'karg': s(f"s_memrealtime {sr(100,2)}\ns_waitcnt lgkmcnt(0)")
        else: s(f"s_memrealtime {sr(20 if name == PROBE[1] else 100,2)}", "async")
    if OPT['stamp'] and name in STSEL:
        k = len(stamps); stamps.append(name)
        op = 's_memtime' if OPT['stamp'] == 1 else 's_memrealtime'
        if name in ('start', 'karg', 'setup'): s(f"{op} {sr(100,2)}\ns_waitcnt lgkmcnt(0)\nv_writelane_b32 v47, s100, {k}")
        else:
            asyncst.append(k); assert len(asyncst) <= 14
            s(f"{op} {sr(16+2*len(asyncst),2)}", "async")

slow = []
def poll(thr, base, off, sPoll=sPoll):
    k = len(slow)
    iss = S(); iss(f"s_mov_b32 s{sPoll}, 0"); iss(f"s_load_dword s{sPoll}, {sr(base,2)}, {off}", "async")
    chk = S(); chk(f"s_cmp_lt_u32 s{sPoll}, {thr}\ns_cbranch_scc1 L_slow{k}\nL_back{k}:"); chk[0].kind = 'branch'
    if OPT['ap'] and base == sWs:
        rd = f"s_mov_b32 s{sPoll}, 0\n    s_atomic_add s{sPoll}, {sr(base,2)}, {off} glc\n    s_waitcnt lgkmcnt(0)"
    else:
        rd = f"global_load_dword v{vPoll}, v{vZero}, {sr(base,2)} sc1\n    s_waitcnt vmcnt(0)\n    v_readfirstlane_b32 s{sPoll}, v{vPoll}\n    s_nop 0"
    back = f"L_out{k}" if OPT['stamp'] else f"L_back{k}"
    slow.append(f"""L_slow{k}:
    {'s_memtime s[100:101]' if OPT['stamp'] else ''}
    s_mov_b32 s{sKb}, 0
    s_waitcnt lgkmcnt(0)
    s_cmp_ge_u32 s{sPoll}, {thr}
    s_cbranch_scc1 {back}
    v_mov_b32 v{vZero}, {off}
L_spin{k}:
    s_add_u32 s{sKb}, s{sKb}, 1
    s_cmp_gt_u32 s{sKb}, 0x40000
    s_cbranch_scc1 {back}
    {rd}
    s_cmp_ge_u32 s{sPoll}, {thr}
    s_cbranch_scc1 {back}
    s_sleep {OPT['slp'] if base == sWs else 8}
    s_branch L_spin{k}""" + (f"""
L_out{k}:
    s_mov_b32 s12, s100
    s_memtime s[100:101]
    s_waitcnt lgkmcnt(0)
    s_sub_u32 s12, s100, s12
    v_writelane_b32 v47, s12, {20+k}
    v_writelane_b32 v47, s{sKb}, {25+k}
    s_branch L_back{k}""" if OPT['stamp'] else ""))
    return iss, chk
def flag(soff): return f"s_atomic_add s{sOne}, {sr(sWs,2)}, s{soff}"
def srd(r, p, n): return f"s_mov_b32 s{r}, s{p}\ns_mov_b32 s{r+1}, s{p+1}\ns_mov_b32 s{r+2}, {n}\ns_mov_b32 s{r+3}, 0x20000"

def setup_early():
    s = S(); a, b, c, d, e, f = range(vS, vS+6)
    s(f"""
    v_lshrrev_b32 v{a}, 6, v0
    s_sub_u32 s{sC}, s2, {NHELP}
    v_bfe_u32 v{e}, v0, 3, 3
    v_readfirstlane_b32 s{sW}, v{a}
    s_lshl_b32 s{sT0}, s{sC}, 10
    v_lshl_add_u32 v{vPar}, v0, 2, s{sT0}
    v_and_b32 v{b}, 7, v0
    v_lshrrev_b32 v{c}, 1, v{e}
    v_mul_u32_u24 v{e}, 896, v{e}
    s_bfe_u32 s{sMI}, s{sC}, 0x20003
    s_and_b32 s{sKb}, s{sC}, 6
    s_lshl1_add_u32 s{sMB}, s{sKb}, s{sMI}
    v_xor_b32 v{d}, v{b}, v{c}
    s_lshl2_add_u32 s{sT0}, s{sMB}, s{sW}
    s_mulk_i32 s{sT0}, {32*896}
    v_lshl_add_u32 v{vXd}, v{d}, 4, v{e}
    s_lshl_b32 s{sT1}, s{sKb}, 7
    s_add_u32 s{sXo}, s{sT0}, s{sT1}
    s_movk_i32 s{sT1}, {8*896-1024}
    v_xad_u32 v{vXd+1}, v{vXd}, 64, s{sT1}
    s_add_u32 s{sM0x}, s{sW}, {RING//4096}
    s_lshl_b32 s{sM0x}, s{sM0x}, 12
    s_lshl_b32 s{sT1}, s{sT1}, 1
    v_add_u32 v{vXd+2}, s{sT1}, v{vXd}
    v_add_u32 v{vXd+3}, s{sT1}, v{vXd+1}
    s_mov_b32 s{rX+2}, {2048*896}
    s_mov_b32 s{rX+3}, 0x20000
    """)
    t = S()
    t(f"""
    s_and_b32 s{sW1}, s{sW}, 1
    s_lshr_b32 s{sW2}, s{sW}, 1
    s_lshr_b32 s{sII}, s{sC}, 5
    s_and_b32 s{sFC}, s{sC}, 1
    s_mulk_i32 s{sFC}, 7
    s_add_u32 s{sFC}, s{sFC}, s{sII}
    s_lshl1_add_u32 s{sWo}, s{sKb}, s{sW2}
    s_mulk_i32 s{sWo}, 896
    s_add_u32 s{sWo}, s{sWo}, s{sFC}
    s_lshl_b32 s{sWo}, s{sWo}, 7
    s_lshl1_add_u32 s{sM0w}, s{sW1}, s{sW2}
    s_add_u32 s{sM0w}, s{sM0w}, {RING//4096}
    s_lshl_b32 s{sM0w}, s{sM0w}, 12
    v_and_b32 v{c}, 1, v{c}
    v_lshlrev_b32 v{c}, 1, v{c}
    v_xor_b32 v{f}, v{b}, v{c}
    v_lshl_add_u32 v{f}, v{f}, 2, v{e}
    v_lshlrev_b32 v{vWd}, 2, v{f}
    s_movk_i32 s{sT1}, {8*3584-1024}
    v_xad_u32 v{vWd+1}, v{vWd}, 64, s{sT1}
    s_lshl_b32 s{sT1}, s{sT1}, 1
    v_add_u32 v{vWd+2}, s{sT1}, v{vWd}
    v_add_u32 v{vWd+3}, s{sT1}, v{vWd+1}
    s_mov_b32 s{rW+2}, {448*3584}
    s_mov_b32 s{rW+3}, s{rX+3}
    """)
    u = S()
    u(f"""
    s_add_u32 s{sXe}, s{sT0}, 896
    s_sub_u32 s{sT1}, 7, s{sKb}
    s_mul_i32 s{sT1}, s{sT1}, {64*3584}
    s_add_u32 s{sWe}, s{sWo}, s{sT1}
    v_and_b32 v{vLane}, 63, v0
    v_lshlrev_b32 v{vL16}, 4, v{vLane}
    s_and_b32 s{sX_}, s{sC}, 7
    s_lshl2_add_u32 s{sRB}, s{sX_}, s{sMI}
    """)
    return s, t, u

def setup_scalar():
    s = S(); sT0, sT1, sSpin = 0, 1, 2
    s(f"""
    ; h store / F2 write
    s_lshl1_add_u32 s{sT0}, s{sMB}, s{sW2}
    s_lshl1_add_u32 s{sT1}, s{sFC}, s{sW1}
    s_mul_i32 s{sHst}, s{sT0}, 56
    s_add_u32 s{sHst}, s{sHst}, s{sT1}
    s_lshl_b32 s{sHst}, s{sHst}, 12
    s_add_u32 s{sHst}, s{sHst}, {WS_H}
    s_mul_i32 s{sSpin}, s{sT1}, 37
    s_lshr_b32 s{sSpin}, s{sSpin}, 8
    s_lshl2_add_u32 s{sT0}, s{sT0}, s{sSpin}
    s_mul_i32 s{sT0}, s{sT0}, {FS}
    s_add_u32 s{sF2w}, s{sT0}, {WS_F2}
    s_mov_b32 s{sOne}, 1
    s_mul_i32 s{sT0}, s{sW}, 7
    s_mul_i32 s{sHld}, s{sRB}, 56
    s_add_u32 s{sHld}, s{sHld}, s{sT0}
    s_lshl_b32 s{sHld}, s{sHld}, 12
    s_add_u32 s{sHld}, s{sHld}, {WS_H}
    s_lshl2_add_u32 s{sT1}, s{sRB}, s{sW}
    s_mul_i32 s{sF2r}, s{sT1}, {FS}
    s_add_u32 s{sF2r}, s{sF2r}, {WS_F2}
    s_mul_i32 s{sDo}, s{sW}, {224*896}
    s_lshl_b32 s{sT1}, s{sII}, 7
    s_add_u32 s{sDo}, s{sDo}, s{sT1}
    ; uT load / aT store
    s_mul_i32 s{sUTld}, s{sW}, {8*57344}
    s_lshl_b32 s{sT1}, s{sC}, 8
    s_add_u32 s{sUTld}, s{sUTld}, s{sT1}
    s_add_u32 s{sUTld}, s{sUTld}, {WS_UT}
    """)
    if not OPT['snt']: s(f"""
    s_lshr_b32 s{sT0}, s{sC}, 5
    s_lshl2_add_u32 s{sT0}, s{sT0}, s{sW}
    s_bfe_u32 s{sT1}, s{sC}, 0x10004
    s_lshl1_add_u32 s{sT0}, s{sT0}, s{sT1}
    s_mul_i32 s{sT0}, s{sT0}, {FS}
    s_add_u32 s{sF3w}, s{sT0}, {WS_F3}
    s_lshr_b32 s{sT0}, s{sRB}, 3
    s_lshl2_add_u32 s{sT0}, s{sII}, s{sT0}
    s_lshl1_add_u32 s{sT0}, s{sT0}, s{sW1}
    s_mul_i32 s{sF3r}, s{sT0}, {FS}
    s_add_u32 s{sF3r}, s{sF3r}, {WS_F3}
    """)
    s(f"""
    ; aT load, out store, g load
    s_lshl1_add_u32 s{sT0}, s{sII}, s{sW1}
    s_mul_i32 s{sT1}, s{sRB}, 57344
    s_lshl_b32 s{sATld}, s{sT0}, 6
    s_add_u32 s{sOst}, s{sATld}, s{sT1}
    s_add_u32 s{sATld}, s{sATld}, s{sW2}
    s_lshl_b32 s{sATld}, s{sATld}, 6
    s_add_u32 s{sATld}, s{sATld}, s{sT1}
    s_add_u32 s{sATld}, s{sATld}, {WS_AT}
    s_mul_i32 s{sT0}, s{sW2}, {32*896}
    s_add_u32 s{sOst}, s{sOst}, s{sT0}
    s_lshl1_add_u32 s{sT0}, s{sRB}, s{sW2}
    s_lshl_b32 s{sGld}, s{sT0}, 7
    s_add_u32 s{sGld}, s{sGld}, {WS_G}
    """)
    return s

P_RAW = 232
def first_loads():
    s = S()
    for k, p in enumerate((sAre, sAim, sBre, sBim, sCre, sCim)):
        s(f"global_load_dword v{P_RAW+k}, v{vPar}, {sr(p,2)}", f"par{k}")
        if k == 0: s("L_par0:")
    s(f"""s_mov_b64 {sr(rX,2)}, {sr(sU,2)}
    s_cmp_eq_u32 s{sW1}, 1
    s_cselect_b64 {sr(rW,2)}, {sr(sWu,2)}, {sr(sWg,2)}""")
    t = S()
    t(f"""s_lshl_b32 s{sLDv}, s{sC}, 2
    s_load_dword s{sDSv}, {sr(sDsk,2)}, s{sLDv}
    s_load_dword s{sLDv}, {sr(sLdt,2)}, s{sLDv}""")
    return s, t

def setup_AB():
    s = S(); a, b, c, d, e, f, g, h = range(vS, vS+8)
    s(f"""
    {srd(rWS, sWs, WS_END)}
    {srd(rO, sOut, 2048*896)}
    v_mov_b32 v{c}, 0
    v_min_u32 v{f}, 39, v{vLane}
    v_lshlrev_b32 v{f}, 2, v{f}
    ds_write_b32 v{f}, v{c} offset:{UA}
    ds_write_b32 v{f}, v{c} offset:{UA+UAS}
    v_and_b32 v{a}, 15, v{vLane}
    s_lshl_b32 s{sT0}, s{sW2}, 13
    s_add_u32 s{sT0}, s{sT0}, {RING}
    v_lshl_add_u32 v{a}, v{a}, 7, s{sT0}
    v_bfe_u32 v{g}, v{vLane}, 1, 3
    v_lshrrev_b32 v{h}, 4, v{vLane}
    v_xor_b32 v{g}, v{g}, v{h}
    v_lshl_add_u32 v{vXr}, v{g}, 4, v{a}
    v_xor_b32 v{vXr+1}, 64, v{vXr}
    v_add_u32 v{vXr+2}, 0x10000, v{vXr}
    v_add_u32 v{vXr+3}, 0x10000, v{vXr+1}
    v_bfe_u32 v{a}, v{vLane}, 2, 2
    v_and_b32 v{b}, 3, v{vLane}
    v_bfe_u32 v{e}, v{vLane}, 3, 2
    s_lshl_b32 s{sT0}, s{sW1}, 1
    v_xor_b32 v{e}, s{sT0}, v{e}
    s_mov_b32 s{sT1}, {RING}
    v_lshl_add_u32 v{b}, v{b}, 3, s{sT1}
    v_lshl_add_u32 v{a}, v{h}, 3, v{a}
    v_lshl_add_u32 v{e}, v{e}, 5, v{b}
    v_lshl_add_u32 v{vWr}, v{a}, 7, v{e}
    v_xor_b32 v{vWr+1}, 32, v{vWr}
    v_add_u32 v{vWr+2}, 0x10000, v{vWr}
    v_add_u32 v{vWr+3}, 0x10000, v{vWr+1}
    """)
    return s

def setup_start2():
    s = S(); a, b, c, d, e, f, g, h = range(vS, vS+8)
    c0 = -2*math.sqrt(2/math.pi)*LOG2E
    s(f"""
    v_and_b32 v{a}, 15, v{vLane}
    v_lshrrev_b32 v{b}, 4, v{vLane}
    v_bfe_u32 v{e}, v{vLane}, 3, 1
    v_mul_u32_u24 v{c}, 544, v{a}
    v_lshl_add_u32 v{d}, v{b}, 4, s{sScr}
    v_mul_u32_u24 v{e}, {SCRH-8*544}, v{e}
    v_add3_u32 v{vTr}, v{c}, v{d}, v{e}
    v_lshl_add_u32 v{c}, v{b}, 7, v{a}
    s_add_u32 s{sT0}, s{sScr}, 2048
    v_lshl_add_u32 v{vK1}, v{c}, 2, s{sT0}
    v_max_u32 v{c}, 1, v{b}
    v_sub_u32 v{c}, 6, v{c}
    v_lshlrev_b32 v{e}, v{c}, v{a}
    v_cmp_gt_u32 vcc, 2, v{b}
    v_lshl_add_u32 v{f}, v{b}, 9, s{sScr}
    v_cndmask_b32 v{f}, v{f}, v{d}, vcc
    v_add_u32 v{vK}, v{f}, v{e}
    v_cmp_eq_u32 vcc, 3, v{b}
    v_mov_b32 v{e}, 256
    v_lshlrev_b32 v{c}, v{c}, 16
    v_cndmask_b32 v{e}, 8, v{e}, vcc
    v_add_u32 v{vK+2}, v{vK}, v{c}
    v_add_u32 v{vK+1}, v{vK}, v{e}
    v_add_u32 v{vK+3}, v{vK+2}, v{e}
    s_mov_b32 s{sK0}, {hx(fbits(c0))}
    s_mov_b32 s{sK0+1}, {hx(fbits(c0))}
    s_mov_b32 s{sK1}, 1.0
    s_mov_b32 s{sK1+1}, 1.0
    v_mov_b32 v{vC1}, {hx(fbits(c0*0.044715))}
    v_mov_b32 v{vC1+1}, {hx(fbits(c0*0.044715))}
    v_lshrrev_b32 v{a}, 3, v{vLane}
    v_and_b32 v{b}, 7, v{vLane}
    v_mul_u32_u24 v{a}, 57344, v{a}
    v_lshlrev_b32 v{vUw}, 4, v0
    v_lshl_add_u32 v{vUo}, v{b}, 4, v{a}
    v_and_b32 v{b}, 3, v{vLane}
    v_bfe_u32 v{e}, v{vLane}, 3, 2
    s_lshl_b32 s{sT0}, s{sW1}, 1
    v_lshrrev_b32 v{f}, 2, v{vLane}
    v_xor_b32 v{e}, s{sT0}, v{e}
    v_lshl_add_u32 v{g}, v{b}, 3, s{sM0x}
    v_lshl_add_u32 v{g}, v{f}, 7, v{g}
    v_lshl_add_u32 v{vDr}, v{e}, 5, v{g}
    v_xor_b32 v{vDr+1}, 32, v{vDr}
    v_xor_b32 v{vDr+2}, 64, v{vDr}
    v_xor_b32 v{vDr+3}, 96, v{vDr}
    v_add_u32 v{vDr+4}, 0x10000, v{vDr}
    v_add_u32 v{vDr+5}, 0x10000, v{vDr+1}
    v_add_u32 v{vDr+6}, 0x10000, v{vDr+2}
    v_add_u32 v{vDr+7}, 0x10000, v{vDr+3}
    s_lshl_b32 s{sT0}, s{sW2}, 11
    v_add_u32 v{vH1}, s{sT0}, v{vL16}
    v_xor_b32 v{vH2}, 0x800, v{vH1}
    v_and_b32 v{vG}, 15, v{vLane}
    v_lshlrev_b32 v{vG}, 2, v{vG}
    """)
    return s

def touches():
    s = S()
    sT0, sT1 = sMI, sX_
    s(f"""s_lshl2_add_u32 s{sT0}, s{sC}, s{sW}
    s_lshr_b32 s{sT1}, s{sT0}, 1
    s_mul_i32 s{sT0}, s{sT0}, {14*128}
    s_mul_i32 s{sT1}, s{sT1}, 3584
    v_min_u32 v{vPoll}, 13, v{vLane}
    v_lshlrev_b32 v{vPoll}, 7, v{vPoll}""")
    if OPT['tlb']:
        s(f"""v_mov_b32 v{vS}, 0
        buffer_load_dword v{vS+1}, v{vS}, {sr(rWS,4)}, s{sHst} offen sc1
        buffer_load_dword v{vS+2}, v{vS}, {sr(rO,4)}, s{sOst} offen sc1
        v_min_u32 v{vS+3}, 6, v{vLane}
        v_lshlrev_b32 v{vS+3}, 21, v{vS+3}
        buffer_load_dword v{vS+4}, v{vS+3}, {sr(rWS,4)}, 0 offen offset:0 sc1""")
    if OPT['mpf'] & 4: s(f"buffer_load_dword v{vS+5}, v{vPoll}, {sr(rW,4)}, s{sT1} offen")
    if OPT['mpf'] & 2: s(f"buffer_load_dword v3, v{vPoll}, {sr(rW,4)}, s{sT1} offen offset:1792")
    if OPT['mpf'] & 1: s(f"buffer_load_dword v{vZero}, v{vPoll}, {sr(rD,4)}, s{sT0} offen")
    return s

def setup_dd():
    s = S(); a, b, c = range(vS, vS+3)
    s(f"""
    v_lshrrev_b32 v{a}, 3, v{vLane}
    v_and_b32 v{b}, 7, v{vLane}
    v_lshrrev_b32 v{c}, 4, v{vLane}
    v_mul_u32_u24 v{a}, 896, v{a}
    v_lshlrev_b32 v{c}, 1, v{c}
    v_xor_b32 v{b}, v{b}, v{c}
    v_lshl_add_u32 v{vDd}, v{b}, 4, v{a}
    v_add_u32 v{vDd+1}, {1*(8*896-1024)}, v{vDd}
    v_add_u32 v{vDd+2}, {2*(8*896-1024)}, v{vDd}
    v_add_u32 v{vDd+3}, {3*(8*896-1024)}, v{vDd}""")
    return s

def setup_exp():
    s = S(); a, b, c, d, e, f, g, h = range(vS, vS+8); vI = vGt
    s(f"""v_lshlrev_b32 v{vKw}, 2, v0
    v_cvt_f32_u32 v{a}, v0
    s_mov_b32 s{sT0}, {hx(17024*0x10001)}
    v_add_f32 v{a}, v{a}, v{a}""")
    for e_ in range(4):
        p, q = (b, c) if e_ % 2 == 0 else (d, e)
        s(f"""v_add_f32 v{p}, {hx(fbits(512.0*e_))}, v{a}
        v_add_f32 v{q}, {hx(fbits(512.0*e_+1))}, v{a}
        v_cvt_pk_bf16_f32 v{p}, v{p}, v{q}
        v_subrev_u32 v{p}, s{sT0}, v{p}
        v_lshlrev_b32 v{vI+e_}, 2, v{p}""")
    s(f"""v_cmp_gt_u32 vcc, 64, v0
    v_mul_u32_u24 v{f}, 0x80008, v0
    v_add_u32 v{f}, 0x40000, v{f}
    v_cndmask_b32 v{vI}, v{vI}, v{f}, vcc
    v_mov_b32 v{vPar}, 0
    v_cmp_eq_u32 vcc, 0, v0
    v_mov_b32 v{g}, s{sDSv}
    v_cndmask_b32 v{vDk}, 0, v{g}, vcc
    v_min_u32 v{vKp}, 23, v{vLane}
    v_lshlrev_b32 v{vKp}, 2, v{vKp}""")
    return s

def setup_conv():
    s = S(); a, b, c, d, e, f, g, h = range(vS, vS+8)
    s(f"""
    v_lshrrev_b32 v{a}, 3, v0
    v_and_b32 v{b}, 7, v0
    v_mul_u32_u24 v{e}, 272, v{a}
    v_cmp_eq_u32 vcc, 0, v{b}
    v_cmp_ne_u32 {sr(sTmp,2)}, 0, v{a}
    v_lshl_add_u32 v{vYr}, v{b}, 5, v{e}
    s_and_b64 vcc, vcc, {sr(sTmp,2)}
    v_mov_b32 v{f}, {UA}
    v_add_u32 v{g}, {YAS-16}, v{e}
    v_add_u32 v{e}, -16, v{e}
    v_cndmask_b32 v{vYc+1}, v{f}, v{g}, vcc
    v_cndmask_b32 v{vYc}, v{f}, v{e}, vcc
    v_bfe_u32 v{a}, v{vLane}, 2, 2
    v_and_b32 v{b}, 3, v{vLane}
    v_lshrrev_b32 v{c}, 4, v{vLane}
    v_lshl_add_u32 v{c}, v{c}, 3, v{a}
    v_lshlrev_b32 v{c}, 3, v{c}
    s_mul_i32 s{sT0}, s{sW2}, {KFS}
    s_add_u32 s{sT0}, s{sT0}, {KF}
    v_lshl_add_u32 v{d}, v{b}, 5, s{sT0}
    v_add_u32 v{vFr}, v{d}, v{c}
    s_mul_i32 s{sT0}, s{sW2}, {UAS}
    s_lshl_b32 s{sT1}, s{sW1}, 7
    s_add_u32 s{sT0}, s{sT0}, s{sT1}
    s_add_u32 s{sT0}, s{sT0}, {UA+160+96-32}
    v_lshl_add_u32 v{h}, v{b}, 3, s{sT0}
    v_sub_u32 v{vGr}, v{h}, v{c}
    s_mul_i32 s{sT0}, s{sW2}, {YAS}
    s_mul_i32 s{sT1}, s{sW1}, 272
    s_add_u32 s{sYw}, s{sT0}, s{sT1}
    s_add_u32 s{sT0}, s{sYw}, {hx(256-48*544)}
    v_mov_b32 v{e}, 544
    v_add_u32 v{g}, {UTS}, v{vL16}
    v_cmp_lt_u32 vcc, 47, v{vLane}
    v_mad_u32_u24 v{e}, v{e}, v{vLane}, s{sT0}
    v_cndmask_b32 v{vYk}, v{g}, v{e}, vcc
    """)
    return s

def setup_E():
    t = S(); a, b, c, d = 56, 57, 58, 59
    t(f"""
    v_lshrrev_b32 v{a}, 2, v{vLane}
    v_and_b32 v{b}, 3, v{vLane}
    s_lshl_b32 s{sT1}, s{sW}, 11
    s_add_u32 s{sT1}, s{sT1}, {UTS}
    v_lshl_add_u32 v{c}, v{b}, 3, s{sT1}
    v_add_u32 v{AW}, s{sT1}, v{vL16}
    v_lshlrev_b32 v{b}, 4, v{b}
    v_mul_u32_u24 v{OO}, 896, v{a}
    v_mul_u32_u24 v{OR_}, 80, v{a}
    v_lshl_add_u32 v{AO}, v{a}, 7, v{b}
    v_lshl_add_u32 v{AR}, v{a}, 6, v{c}
    v_add_u32 v{OO}, v{OO}, v{b}
    v_add3_u32 v{OR_}, v{OR_}, v{b}, s{sM0x}
    v_add_u32 v{RW}, s{sM0x}, v{vL16}
    v_and_b32 v{a}, 15, v{vLane}
    v_lshrrev_b32 v{d}, 4, v{vLane}
    v_xor_b32 v{RR}, 0x1000, v{RW}
    v_xor_b32 v{RR+1}, 0x2000, v{RW}
    v_xor_b32 v{RR+2}, 0x3000, v{RW}
    v_mul_u32_u24 v{a}, 80, v{a}
    v_lshl_add_u32 v{d}, v{d}, 3, s{sM0x}
    v_add_u32 v{OW}, v{a}, v{d}
    """)
    for ml in range(2):
        t(f"""v_and_b32 v{8+4*ml}, 0xffff, v{vG+ml}
        v_lshlrev_b32 v{9+4*ml}, 16, v{vG+ml}
        v_and_b32 v{10+4*ml}, 0xffff0000, v{vG+ml}
        v_and_b32 v{11+4*ml}, 0xffff0000, v{vG+ml}""")
    return t

SLOTS = {0: [], 2: [13, 30], 4: [5, 13, 21, 30], 5: [2, 8, 14, 21, 30], 6: [2, 8, 13, 17, 24, 30], 7: [2, 5, 11, 14, 17, 24, 30],
         8: [2, 6, 10, 14, 17, 22, 26, 31]}
def plan_b():
    pos = [32*k + p for k in range(14) for p in SLOTS[CNT[k]]]
    nw = 4*(21 - OPT['npre'])
    assert (len(pos) - nw) % 4 == 0 and len(pos) >= nw
    for j in range(nw):
        n = OPT['npre'] + j//4
        if n >= 7: assert pos[j] >= 32*((n-7)//2) + 20, ('slot busy', n)
        need = n//2 if n < 14 else n - 7
        assert pos[j] < 32*(need-1) + 19, ('late', n)
    plan_b.lastw = pos[nw-1]
    nb = (len(pos) - nw)//4
    free = [(32*(7+q) + 20, q) for q in range(7)]
    slot = []; moves = {}; half = -1
    for u in range(14):
        first = pos[nw+4*u] if u < nb else 10**6
        free.sort()
        assert free[0][0] <= first, ('no slot for Wd unit', u)
        t, q = free.pop(0); slot.append(q)
        if u < 7:
            h = max(half + 1, (pos[nw+4*u+3] + 2*OPT['mvl'] + 15)//16, 14+u+1) if u < nb else 99
            if h < 28: moves[u] = h; half = h; free.append((16*h + 22, q))
            else: free.append((10000 + u, q))
    return nb, slot, moves
NB, USLOT, MOVES = plan_b()

def adv(s, so, step, en, span, extra):
    s(f"""s_add_u32 s{so}, s{so}, {step}
    s_cmp_eq_u32 s{so}, s{en}
    s_cselect_b32 s{sSpin}, {span}, 0
    s_sub_u32 s{so}, s{so}, s{sSpin}""")
    if extra: s(f"s_add_u32 s{so}, s{so}, {extra}\ns_add_u32 s{en}, s{en}, {extra}")

def item(n):
    if n < 14 and n % 2 == 0: m0, va, rs, so, step, en, ex = sM0x, vXd, rX, sXo, 128, sXe, 0
    elif n < 21: m0, va, rs, so, step, en, ex = sM0w, vWd, rW, sWo, 64*3584, sWe, (1792 if n == 13 else 0)
    else: m0, va, rs, so, step, en, ex = sM0x, vDd, rD, sDo, 32*896, sDe, (896*896 if n == 27 else 0)
    s = S()
    s(f"s_add_u32 m0, s{m0}, {(n % NSLOT if n < 21 else USLOT[n-21])*SLOT}")
    for q in range(4):
        s(f"buffer_load_dwordx4 v{va+q}, {sr(rs,4)}, s{so} offen offset:{1024*q} lds", f"it{n}")
    if n >= 21:
        if n != 34: s(f"s_add_u32 s{so}, s{so}, {step if n != 27 else (896-6*32)*896}")
    elif n not in (12, 20): adv(s, so, step, en, 7*step, ex)
    return s

def split_vm(st):
    grp = []
    for x in st:
        if not grp or (x.kind in VM_KINDS and any(y.kind in VM_KINDS for y in grp[-1])): grp.append(S())
        grp[-1].append(x)
    return grp

def sprinkle(main, groups, lo=0.0, hi=1.0):
    out = S(); n = len(main); g = 0
    pos = [int(n*(lo + (hi-lo)*k/max(1, len(groups)))) for k in range(len(groups))]
    for i, x in enumerate(main):
        while g < len(groups) and pos[g] <= i and not glued(x):
            out.add(groups[g]); g += 1
        out.append(x)
    while g < len(groups): out.add(groups[g]); g += 1
    return out

NEG = "neg_lo:[1,0,0] neg_hi:[1,0,0]"
def cmul(s, d, x, z, pk):
    assert d != x and d != z
    if pk:
        s(f"""v_pk_mul_f32 {vr(d,2)}, {vr(x,2)}, {vr(z,2)}
        v_pk_mul_f32 {vr(d+2,2)}, {vr(x,2)}, {vr(z+2,2)}
        v_pk_fma_f32 {vr(d,2)}, {vr(x+2,2)}, {vr(z+2,2)}, {vr(d,2)} {NEG}
        v_pk_fma_f32 {vr(d+2,2)}, {vr(x+2,2)}, {vr(z,2)}, {vr(d+2,2)}""")
    else:
        for k in range(2): s(f"v_mul_f32 v{d+k}, v{x+k}, v{z+k}")
        for k in range(2): s(f"v_mul_f32 v{d+2+k}, v{x+k}, v{z+2+k}")
        for k in range(2): s(f"v_fma_f32 v{d+k}, -v{x+2+k}, v{z+2+k}, v{d+k}")
        for k in range(2): s(f"v_fmac_f32 v{d+2+k}, v{x+2+k}, v{z+k}")

def tile_w(t, regs, n):
    for r in range(n):
        for h in range(2):
            t(f"ds_write_addtid_b32 {regs(2*r+h)} offset:{(r&7)*544+(r>>3)*SCRH+256*h}")

FR = {0: ACC2, 1: ACC1, 2: ACC1+32, 3: ACC2+32}
def tile_r(t, k):
    for ks in range(8): t(f"ds_read_b128 {vr(FR[k]+4*ks,4)}, v{vTr} offset:{64*ks}")

def krows():
    s = S()
    R = ACC1
    A_, B_, C_, Dt, T = R, R+4, R+8, R+12, R+16
    Z8, Z16 = vGt, vGt+4
    Z1, Z256, W, Z2, Z512 = [R+28+4*k for k in range(5)]
    E = [R, R+4, R+8, R+12]; V = [R+16, R+20, R+24, R+56, R+60]
    for k in range(6):
        s(f"v_lshlrev_b32 v{R+2*k}, 16, v{P_RAW+k}\nv_and_b32 v{R+2*k+1}, 0xffff0000, v{P_RAW+k}")
    s(f"""
    s_lshl_b32 s{sT1}, s{sW2}, 4
    s_lshr_b32 s{sT1}, s{sLDv}, s{sT1}
    s_lshl_b32 s{sT1}, s{sT1}, 16
    v_mov_b32 v{Dt}, {hx(fbits(LOG2E))}
    v_mul_f32 v{Dt}, s{sT1}, v{Dt}
    v_exp_f32 v{Dt}, v{Dt}
    v_cvt_pk_bf16_f32 v{Dt}, 0, v{Dt}
    v_mov_b32 v{Dt+1}, v{Dt}
    """)
    for k in (A_, A_+2, B_, B_+2): s(f"v_pk_mul_f32 {vr(k,2)}, {vr(k,2)}, {vr(Dt,2)}")
    def prim(p, z, t):
        c1 = hx(fbits(p*LOG2E)); c2 = hx(fbits(p/(2*math.pi)))
        for k in range(2): s(f"v_mul_f32 v{t+k}, {c1}, v{A_+k}\nv_mul_f32 v{t+2+k}, {c2}, v{A_+2+k}")
        for k in range(2): s(f"v_exp_f32 v{t+k}, v{t+k}\nv_fract_f32 v{t+2+k}, v{t+2+k}")
        for k in range(2): s(f"v_cos_f32 v{z+k}, v{t+2+k}\nv_sin_f32 v{z+2+k}, v{t+2+k}")
        s(f"v_pk_mul_f32 {vr(z,2)}, {vr(z,2)}, {vr(t,2)}\nv_pk_mul_f32 {vr(z+2,2)}, {vr(z+2,2)}, {vr(t,2)}")
    prim(1, Z1, T); prim(256, Z256, T+4); prim(8, Z8, T+8)
    cmul(s, W, C_, B_, 1)
    def row(t, o0, o1, x, neg):
        m = '-' if neg else ''
        t(f"v_cvt_pk_bf16_f32 v{o0}, v{x}, v{x+1}\nv_cvt_pk_bf16_f32 v{o1}, {m}v{x+2}, {m}v{x+3}")
    cmul(s, Z2, Z1, Z1, 1); cmul(s, Z512, Z256, Z256, 1); cmul(s, Z16, Z8, Z8, 1)
    S0, S1 = V[3], V[4]
    ops = [(None, W, None, 0), (V[0], W, Z1, 1),
           (V[1], W, Z2, 2), (Z1, V[0], Z2, 3),
           (V[2], W, Z256, 8), (V[0], V[1], Z256, 9),
           (S0, W, Z512, 12), (S1, V[2], Z512, 14),
           (W, V[1], Z2, 4), (V[0], Z1, Z2, 5),
           (V[1], W, Z2, 6), (Z1, V[0], Z2, 7),
           (V[2], W, Z256, 10), (V[0], V[1], Z256, 11),
           (Z1, W, Z512, 13), (V[1], V[2], Z512, 15),
           (V[0], S0, Z512, 16), (V[2], S1, Z512, 17), (S0, V[0], Z512, 18), (S1, V[2], Z512, 19), (V[0], S0, Z512, 20)]
    for d, x, z, r in ops:
        if d is not None: cmul(s, d, x, z, 1)
        o = (ACC2+2*r, ACC2+2*r+1) if r < 16 else (PARK[2*r], PARK[2*r+1])
        row(s, o[0], o[1], x if d is None else d, 1)
    w = S()
    w(f"s_mov_b32 m0, s{sScr}")
    tile_w(w, lambda k: f"v{ACC2+k}", 16)
    b = S(); mv = S()
    b(f"v_mov_b32 v{PARK[0]}, 0x3f803f80\nv_mov_b32 v{PARK[1]}, 0")
    row(b, PARK[2], PARK[3], Z8, 0); row(b, PARK[4], PARK[5], Z16, 0)
    cur = {0: Z16, 1: Z8}
    E = [ACC2+4*k for k in range(4)]
    for i in range(3, 32):
        nx = E[i % 4]; t = b if i < OPT['kbw'] else mv
        cmul(t, nx, cur[i % 2], Z16, i < OPT['kbw'])
        if i < 16: row(t, PARK[2*i], PARK[2*i+1], nx, 0)
        else:
            o = ACC2 + 16 + 2*(i % 4)
            row(t, o, o+1, nx, 0)
            t(f"v_accvgpr_write_b32 a{192+2*i}, v{o}\nv_accvgpr_write_b32 a{193+2*i}, v{o+1}")
        cur[i % 2] = nx
    return s, w, b, mv

def stageA():
    p = S()
    rd = tile_r; fr = FR
    D = [48, 52, 56, 60]
    def mm(at, bt):
        t = S()
        for ks in range(8):
            d = vr(D[2*at+bt], 4)
            t(f"v_mfma_f32_16x16x32_bf16 {d}, {vr(fr[2+at]+4*ks,4)}, {vr(fr[bt]+4*ks,4)}, {d if ks else 0}")
        return t
    p(f"s_mov_b32 m0, s{sScr}")
    p(f"ds_write_b128 v{vUw}, {ar(aU,4)} offset:{UA+160}\nds_write_b128 v{vUw}, {ar(aU+4,4)} offset:{UA+160+UAS}")
    tile_w(p, lambda k: f"v{PARK[32+k]}", 5); rd(p, 3)
    tile_w(p, lambda k: f"v{PARK[k]}", 16); rd(p, 0)
    t = S(); tile_w(t, lambda k: f"v{ACC1+k}", 16); rd(t, 1)
    p.add(t[:8]).add(weave(mm(0, 0).add(mm(1, 0)), S(t[8:])))
    def pl0(bt): return f"ds_write_b64 v{vK+2*bt}, {vr(D[bt],2)}\nds_write_b64 v{vK+2*bt+1}, {vr(D[bt]+2,2)}"
    def pl1(bt): return "\n".join(f"ds_write2_b32 v{vK1}, v{D[2+bt]+jj}, v{D[2+bt]+jj+1} offset0:{16*bt+32*jj} offset1:{16*bt+32*jj+32}" for jj in (0, 2))
    p(pl0(0))
    p.add(weave(mm(0, 1), S()(pl1(0)), start=2)).add(weave(mm(1, 1), S()(pl0(1)), start=4))
    p(pl1(1))
    x = S()
    X = 92
    x.wait_lg(); x("s_barrier")
    for k in range(8):
        x(f"ds_read2st64_b32 {vr(X+4*k,2)}, v{VI[k//2+4*(k&1)]} offset0:0 offset1:34\nds_read2st64_b32 {vr(X+4*k+2,2)}, v{VI[k//2+4*(k&1)]} offset0:17 offset1:51")
    x(f"ds_write_b32 v{vKp}, v{vPar} offset:{KF}\nds_write_b32 v{vKp}, v{vPar} offset:{KF+KFS}")
    for e in range(0, 4): x(g_read(e))
    for e_ in range(4):
        k0, k1 = X+8*e_, X+8*e_+4
        if e_ == 0 and OPT['dk']: x(f"v_pk_add_f32 {vr(k0+2,2)}, {vr(k0+2,2)}, v[12:13]")
        x(f"""v_pk_add_f32 {vr(k0,2)}, {vr(k0,2)}, {vr(k0+2,2)}
        v_pk_add_f32 {vr(k1,2)}, {vr(k1,2)}, {vr(k1+2,2)}
        v_cvt_pk_bf16_f32 v{k0+2}, v{k0}, v{k1}
        v_cvt_pk_bf16_f32 v{k0+3}, v{k0+1}, v{k1+1}""")
    for e_ in range(4):
        k0 = X+8*e_
        x(f"ds_write_b32 v{vKw}, v{k0+2} offset:{KF+96+1024*e_}\nds_write_b32 v{vKw}, v{k0+3} offset:{KF+96+KFS+1024*e_}")
    x[-1].tok = "kf"
    for e in range(4, 8): x(g_read(e))
    x.wait_lg("kf"); x("s_barrier")
    return p, x

def lds_addr(base_lo, nset, k, slot, off):
    hi = slot >= 4
    return f"v{base_lo + k + (nset if hi else 0)}", (slot - (4 if hi else 0))*SLOT + off

def b_reads(i):
    s_, ks = divmod(i, 2)
    wslot = (2*s_+1) % NSLOT if s_ < 7 else (7+s_) % NSLOT
    wr = []
    for t in range(4):
        n = 4*i + t
        for h in range(2):
            a, o = lds_addr(vWr, 2, t & 1, wslot, (t >> 1)*8192 + ks*4096 + h*512)
            wr.append((f"ds_read_b64_tr_b16 {vr(vWf+4*(n%6)+2*h,2)}, {a} offset:{o}", f"br{n}"))
    if s_ < 7:
        xr = []
        for mt in range(4):
            a, o = lds_addr(vXr, 2, ks, (2*s_) % NSLOT, mt*2048)
            xr.append((f"ds_read_b128 {ar(16*i+4*mt,4)}, {a} offset:{o}", f"br{4*i}"))
        return wr[:2] + xr + wr[2:] if not OPT['xo'] else [xr[0], wr[0], xr[1], wr[1], xr[2], wr[2], xr[3]] + wr[3:]
    return wr

def b_mfma(n, mt):
    i, t = divmod(n, 4)
    d = vr((ACC1 if i < 14 else ACC2) + 16*mt + 4*t, 4)
    return f"v_mfma_f32_16x16x32_bf16 {d}, {vr(vWf+4*(n%6),4)}, {ar(16*(i%14)+4*mt,4)}, {0 if i % 14 == 0 else d}"

def gelu(acc, half, pk, cluster=0):
    s = S(); st = S()
    for T in range(2):
        for mt in range(2):
            b = acc + 32*T + 16*mt
            o = b
            for jp in range(0, 8, 2):
                t = vGt + jp
                g0, u0 = b+jp, b+8+jp
                if pk:
                    s(f"""v_pk_mul_f32 {vr(t,2)}, {vr(g0,2)}, {vr(g0,2)}
                    v_pk_mul_f32 {vr(u0,2)}, {vr(u0,2)}, {vr(g0,2)}
                    v_pk_fma_f32 {vr(t,2)}, {vr(t,2)}, {vr(vC1,2)}, {sr(sK0,2)}
                    v_pk_mul_f32 {vr(t,2)}, {vr(t,2)}, {vr(g0,2)}
                    v_exp_f32 v{t}, v{t}
                    v_exp_f32 v{t+1}, v{t+1}
                    v_pk_add_f32 {vr(t,2)}, {vr(t,2)}, {sr(sK1,2)}
                    v_rcp_f32 v{t}, v{t}
                    v_rcp_f32 v{t+1}, v{t+1}
                    v_pk_mul_f32 {vr(t,2)}, {vr(t,2)}, {vr(u0,2)}
                    v_cvt_pk_bf16_f32 v{o+jp//2}, v{t}, v{t+1}""")
                else:
                    s(f"""v_mul_f32 v{t}, v{g0}, v{g0}
                    v_mul_f32 v{t+1}, v{g0+1}, v{g0+1}
                    v_mul_f32 v{u0}, v{u0}, v{g0}
                    v_fma_f32 v{t}, v{t}, v{vC1}, s{sK0}
                    v_fma_f32 v{t+1}, v{t+1}, v{vC1}, s{sK0}
                    v_mul_f32 v{u0+1}, v{u0+1}, v{g0+1}
                    v_mul_f32 v{t}, v{t}, v{g0}
                    v_mul_f32 v{t+1}, v{t+1}, v{g0+1}
                    v_exp_f32 v{t}, v{t}
                    v_exp_f32 v{t+1}, v{t+1}
                    v_add_f32 v{t}, 1.0, v{t}
                    v_add_f32 v{t+1}, 1.0, v{t+1}
                    v_rcp_f32 v{t}, v{t}
                    v_rcp_f32 v{t+1}, v{t+1}
                    v_mul_f32 v{t}, v{t}, v{u0}
                    v_mul_f32 v{t+1}, v{t+1}, v{u0+1}
                    v_cvt_pk_bf16_f32 v{o+jp//2}, v{t}, v{t+1}""")
            (st if cluster else s)(f"buffer_store_dwordx4 {vr(o,4)}, v{vL16}, {sr(rWS,4)}, s{sHst} offen offset:{1024*(2*T+mt)} sc1", f"h{half}")
    return s.add(st)

def chunks(st, n):
    m = len(st); c = [m*k//n for k in range(n+1)]
    for k in range(1, n):
        while c[k] < m and glued(st[c[k]]): c[k] += 1
    return [S(st[c[k]:c[k+1]]) for k in range(n)]

def wd_move(q):
    t = S(); t.wait_vm(f"it{21+q}"); t.add(wd_reads(q)); return t
def wd_item(u):
    t = S()
    prev = [p for p in range(u) if USLOT[p] == USLOT[u]]
    if prev: t.wait_lg(f"wd{prev[-1]}")
    return split_vm(t.add(item(21+u)))

def stageB(mv):
    side = {k: [] for k in range(14)}
    assert not len(mv)
    late = S() if (OPT['mpf'] or OPT['tlb']) else setup_scalar()
    for k, c in enumerate(chunks(late, 6)): side[k].append((c, 0, 32))
    for k, c in enumerate(chunks(setup_start2().add(setup_conv()).add(setup_exp()), 6)): side[k].append((c, 4 if k == 0 else 0, 32))
    side[6].append((setup_dd(), 0, 24))
    t = S()
    for k in range(4): t(f"v_mov_b32 v{VI[k]}, v{vGt+k}")
    side[6].append((t, 14, 32))
    assert plan_b.lastw < 32*13
    t = S()
    for k in range(4): t(f"v_lshrrev_b32 v{VI[4+k]}, 16, v{VI[k]}\nv_and_b32 v{VI[k]}, 0xffff, v{VI[k]}")
    if OPT['dk']: t(f"v_lshlrev_b32 v12, 16, v{vDk}\nv_and_b32 v13, 0xffff0000, v{vDk}")
    t2 = S(t[8:]); t = S(t[:8]); side[13].append((t2, 14, 32))
    for k in range(32): t(f"v_accvgpr_read_b32 v{ACC1+k}, a{224+k}")
    side[13].append((t, 0, 32))
    t = S(); tile_r(t, 2); side[13].append((t, 20, 32))
    allg = []
    for n in range(OPT['npre'], 21): allg += split_vm(item(n))
    for u in range(NB): allg += wd_item(u)
    vm = {}; p = 0
    for k in range(14): vm[k] = allg[p:p+CNT[k]]; p += CNT[k]
    for q, h in MOVES.items(): side[h//2].append((wd_move(q), 16*(h % 2), 16*(h % 2)+16))
    iss, chk = poll(NHELP, sDbg, 0)
    f1 = OPT['f1']
    side[f1].append((iss, 0, 1))
    chk(f"""buffer_load_dwordx4 {ar(aU,4)}, v{vUo}, {sr(rWS,4)}, s{sUTld} offen sc1
    buffer_load_dwordx4 {ar(aU+4,4)}, v{vUo}, {sr(rWS,4)}, s{sUTld} offen offset:128 sc1
    buffer_load_dword v{vG+1}, v{vG}, {sr(rWS,4)}, s{sGld} offen offset:64 sc1
    buffer_load_dword v{vG}, v{vG}, {sr(rWS,4)}, s{sGld} offen sc1""")
    stageB.ut = [chk]
    for k, c in enumerate(chunks(gelu(ACC1, 1, False, OPT['cl1']), OPT['nst'])): side[7+k].insert(0, (c, 2 if k == 0 else 0, 32))
    out = S()
    out.wait_vm(("it0", "it1")); out.wait_lg(); out("s_barrier")
    stamp(out, "B0")
    for r, tk in b_reads(0): out(r, tk)
    for s_ in range(14):
        base = S()
        at = {}
        for hf in range(2):
            i = 2*s_ + hf + 1
            rd = b_reads(i) if i < 28 else []
            gaps = list(range(12)) if len(rd) == 12 else [0, 1, 3, 4, 6, 7, 9, 10]
            for r, p in zip(rd, gaps): at[p + 19*hf] = r
        for idx in range(32):
            n = 8*s_ + idx//4
            base(b_mfma(n, idx % 4 if n % 2 == 0 else 3 - idx % 4))
            if idx == 19:
                nxt = s_ + 1
                toks = (f"it{2*nxt}", f"it{2*nxt+1}") if nxt < 7 else (f"it{7+nxt}",) if nxt < 14 else None
                if toks: base.wait_vm(toks)
                base.wait_lg(f"br{8*s_+7}"); base("s_barrier")
            elif idx % 4 == 3 and idx not in (23, 27) and n < 111: base.wait_lg(f"br{n+1}")
            if idx in at: base(*at[idx])
        grp = vm[s_]
        sl = SLOTS[len(grp)]
        st = place(base, grp, sl)
        for sd, a, b in sorted(side[s_], key=lambda e: -sum(x.kind == 'ds' for x in e[0])):
            if len(sd): st = (pour if OPT['pour'] else weave)(st, sd, start=a, end=b)
        out.add(st)
        stamp(out, f's{s_}')
        if s_ == 6: stamp(out, "B1")
    return out

def wd_reads(u):
    s = S()
    for dt in range(4):
        for h in range(2):
            a, o = lds_addr(vDr, 4, dt, USLOT[u], h*2048)
            s(f"ds_read_b64_tr_b16 {ar(16*(u%7)+4*dt+2*h, 2)}, {a} offset:{o}", f"wd{u}")
    return s

def hreg(u, o): return ar(112+16*u+o, 4) if u < 9 else vr(240-16*(u-9)+o, 4)
def h_loads(u):
    s = S()
    for mt in range(4):
        s(f"buffer_load_dwordx4 {hreg(u, 4*mt)}, v{vH1 if mt < 2 else vH2}, {sr(rWS,4)}, s{sHld} offen offset:{1024*(mt&1)} sc1")
    if u != 13: s(f"s_add_u32 s{sHld}, s{sHld}, {4096 if u != 6 else (28-6)*4096}")
    return s

def f_read(t):
    b = vWf + 4*(t % 4)
    return f"ds_read_b64_tr_b16 {vr(b,2)}, v{vFr} offset:{256*t}\nds_read_b64_tr_b16 {vr(b+2,2)}, v{vFr} offset:{256*t+32}"
def g_read(e):
    return f"ds_read_b64_tr_b16 {vr(ACC2+4*e,2)}, v{vGr} offset:{256*e+32}\nds_read_b64_tr_b16 {vr(ACC2+4*e+2,2)}, v{vGr} offset:{256*e}"

def pairup(g):
    return [S(g[k]).add(g[k+1] if k+1 < len(g) else []) for k in range(0, len(g), 2)]

def stageTail():
    s = S()
    s(f"s_add_u32 s{sHst}, s{sHst}, {28*4096}")
    g = list(stageB.ut)
    todo = [q for q in range(7) if q not in MOVES]
    for u in range(NB, NB+OPT['ntail']):
        prev = [p for p in range(u) if USLOT[p] == USLOT[u]]
        while prev and prev[-1] in todo: g.append(wd_move(todo.pop(0)))
        g += pairup(wd_item(u))
        if todo and todo[0] < NB and OPT['mvt']: g.append(wd_move(todo.pop(0)))
    stageTail.todo = todo
    t = S(); t.wait_vm("h1"); t(flag(sF2w)); t(f"s_add_u32 s{sF2w}, s{sF2w}, {128*FS}")
    g.insert(min(len(g), len(stageB.ut) + OPT['f2a']), t)
    s.add(sprinkle(gelu(ACC2, 2, True, OPT['cl2']), g, 0.0, 0.95))
    return s

def post_list():
    nt = NB + OPT['ntail']
    assert nt >= 7
    W = [('w', u) for u in range(nt, 14)]
    L = [('h', u) for u in range(7)]
    if OPT['ord'] == 0: L += W + [('h', u) for u in range(7, 14)]
    else:
        L += [('h', 7), ('h', 8)]
        for u in range(9, 14):
            L += [x for x in W if x[1] <= u + 1 and x not in L] + [('h', u)]
    return L
def unit_groups(x): return split_vm(h_loads(x[1])) if x[0] == 'h' else wd_item(x[1])

def stageSSM():
    a2, ex = stageA()
    s = S()
    iss, chk = poll(7, sWs, f"s{sF2r}")
    a2 = sprinkle(a2, [iss], OPT['p2a']/100, 1.0)
    hl = S().add(chk)
    for u in range(OPT['nha']): hl.add(h_loads(u))
    s.add(sprinkle(a2, split_vm(hl), OPT['c2a']/100, 1.0))
    stamp(s, "A2")
    t = S(); t.wait_vm("h2"); t(flag(sF2w)); t(f"s_add_u32 s{sF2r}, s{sF2r}, {128*FS}")
    hq = OPT['nha']; hl = S()
    for u in range(hq, hq+OPT['nhx']): hl.add(h_loads(u))
    hq += OPT['nhx']
    if OPT['wh2'] <= 100: s.add(sprinkle(ex, [t] + pairup(split_vm(hl)), OPT['wh2']/100, 1.0)); th2 = []
    else: s.add(sprinkle(ex, pairup(split_vm(hl)), OPT['xlo']/100, 1.0)); th2 = [t]
    stamp(s, "exp")
    main = S()
    for t in range(3): main(f_read(t))
    def flush(c):
        d = ACC1 + 4*c; t = S()
        for j in (2, 1, 0):
            t(f"v_add_f32_dpp v{d+j}, v{d+j+1}, v{d+j} wave_shr:1 row_mask:0xf bank_mask:0xf")
        if c:
            for j in (3, 2, 1):
                t(f"v_mov_b32_dpp v{d+j}, v{d-4+j} wave_shl:1 row_mask:0xf bank_mask:0xf")
        return t
    for t in range(16):
        blk = S()
        for c in range(t, 16):
            d = vr(ACC1 + 4*c, 4)
            blk(f"v_mfma_f32_16x16x32_bf16 {d}, {vr(vWf+4*(t%4),4)}, {vr(ACC2+4*(c-t),4)}, {d if t else 0}")
        e = S()
        if t == 0:
            g4 = S()
            for q in range(8, 16): g4(g_read(q))
            blk = weave(blk, g4, start=0, end=8)
        if t + 3 < 16: e(f_read(t+3))
        if 1 <= t <= 12: e.add(flush(t-1))
        main.add(weave(blk, e, start=(8 if t == 0 else 0)))
    mvs = S()
    for q in stageTail.todo: mvs.add(wd_move(q))
    if len(mvs): main = weave(main, mvs, start=16, end=16+10*len(stageTail.todo))
    L = post_list()[hq:]
    iss, chk = poll(7, sWs, f"s{sF2r}")
    c0 = OPT['c0']; nc = OPT['nc']
    g = []; sl = []; n1 = None
    for k, x in enumerate(L[:nc]):
        q = unit_groups(x)
        if x == ('h', 7): q[0] = S(chk).add(q[0]); n1 = len(g)
        for j, y in enumerate(q):
            p = c0 + ((132-c0)*(4*k+j))//(4*nc)
            if x[0] == 'h' and x[1] >= 9: p = max(p, {9: 60, 10: 102}[x[1]])
            g.append(y); sl.append(max(p, sl[-1] if sl else 0))
    main = place(main, g, sl)
    main = place(main, th2, [OPT['wh2']-100])
    chk0 = S()
    if OPT['snt']:
        iss0, chk0 = poll(NHELP, sDbg, 128, sJ_)
        main = place(main, [iss0], [110])
    s.add(place(main, [iss], [(sl[n1] if n1 is not None else 140) - OPT['p2b']]))
    stageSSM.rest = (L[nc:], chk, chk0)
    stamp(s, "C")
    f = S()
    for c in range(12, 16): f.add(flush(c))
    f(f"s_mov_b32 m0, s{sYw}")
    for c in range(16): f(f"ds_write_addtid_b32 v{ACC1+4*c} offset:{544*c}")
    f(f"ds_write_b128 v{vYk}, {vr(ACC1+60,4)}", "yw")
    f2 = S()
    f2.wait_lg("yw"); f2("s_barrier")
    Y = ACC1; UU = ACC1+24; O = ACC1+32
    for ch in range(2):
        f2(f"""ds_read_b128 {vr(Y+12*ch,4)}, v{vYr} offset:{YAS*ch}
        ds_read_b128 {vr(Y+12*ch+8,4)}, v{vYc+ch}
        {'' if OPT['dk'] else f'ds_read_b128 {vr(UU+4*ch,4)}, v{vUw} offset:{UA+160+UAS*ch}'}
        ds_read_b128 {vr(Y+12*ch+4,4)}, v{vYr} offset:{YAS*ch+16}""")
    if not OPT['dk']: f2(f"""s_and_b32 s{sK0}, s{sDSv}, 0xffff
    s_lshl_b32 s{sK0+1}, s{sDSv}, 16
    s_lshr_b32 s{sK1}, s{sDSv}, 16
    s_and_b32 s{sK1+1}, s{sDSv}, 0xffff0000""")
    f2(f"s_add_u32 s{sUTld}, s{sUTld}, {WS_AT-WS_UT}")
    f3 = S()
    for ch in range(2):
        b = Y+12*ch
        for k in range(3): f3(f"v_add_f32 v{b+k}, v{b+k}, v{b+9+k}")
        for k in range(0 if OPT['dk'] else 8):
            f3(f"v_dot2_f32_bf16 v{b+k}, v{UU+4*ch+k//2}, s{(sK0 if ch == 0 else sK1)+(k&1)}, v{b+k}")
        for k in range(4):
            f3(f"v_cvt_pk_bf16_f32 v{O+4*ch+k}, v{b+2*k}, v{b+2*k+1}")
        f3(f"buffer_store_dwordx4 {vr(O+4*ch,4)}, v{vUo}, {sr(rWS,4)}, s{sUTld} offen offset:{128*ch} sc1", "at")
    return s, (f, f2, f3)

def stageD(fin):
    def mf(u):
        r = S()
        for mt in range(4):
            for dt in (range(4) if mt % 2 == 0 else range(3, -1, -1)):
                d = vr(DACC + 16*((dt >> 1) + 2*(mt >> 1)) + 4*(2*(dt & 1) + (mt & 1)), 4)
                r(f"v_mfma_f32_16x16x32_bf16 {d}, {ar(16*(u%7)+4*dt, 4)}, {hreg(u, 4*mt)}, {0 if u == 0 else d}")
        return r
    s = S()
    H2 = ACC1
    rest, chk2, chk0 = stageSSM.rest
    if rest[0][0] == 'w' and DPOS[0] == 0:
        j = [x[0] for x in rest].index('h'); rest.insert(0, rest.pop(j))
    assert len(rest) <= len(DPOS), rest
    hsched = dict(zip(DPOS, rest))
    TM = OPT['tm']; SN = OPT['snt']
    def redw(t):
        r = S()
        for k in range(4): r(f"ds_write_b128 v{RW}, {vr(DACC+16*t+4*k,4)} offset:{(t-1)*SLOT+1024*k}")
        return r
    ald = "\n".join(f"buffer_load_dwordx4 {vr(E0+4*q,4)}, v{AO}, {sr(rWS,4)}, s{sATld} offen offset:{2048*q} sc1" for q in range(2))
    al = S(); ast = S()
    if SN:
        k = len(slow)
        tst = f"""v_max3_u32 v{vPoll}, v{E0}, v{E0+1}, v{E0+2}
    v_max3_u32 v{vZero}, v{E0+3}, v{E0+4}, v{E0+5}
    v_max3_u32 v{vPoll}, v{vPoll}, v{E0+6}, v{E0+7}
    v_max_u32 v{vPoll}, v{vPoll}, v{vZero}
    v_cmp_eq_u32 vcc, -1, v{vPoll}"""
        ast(tst); ast(f"s_cbranch_vccnz L_slow{k}\nL_back{k}:")
        back = f"L_out{k}" if OPT['stamp'] else f"L_back{k}"
        slow.append(f"""L_slow{k}:
    {'s_memtime s[100:101]' if OPT['stamp'] else ''}
    s_mov_b32 s{sKb}, 0
L_spin{k}:
    s_add_u32 s{sKb}, s{sKb}, 1
    s_cmp_gt_u32 s{sKb}, 0x8000
    s_cbranch_scc1 {back}
    {ald}
    s_waitcnt vmcnt(0)
    {tst}
    s_nop 1
    s_cbranch_vccnz L_spin{k}
    s_branch {back}""" + (f"""
L_out{k}:
    s_waitcnt lgkmcnt(0)
    s_mov_b32 s12, s100
    s_memtime s[100:101]
    s_waitcnt lgkmcnt(0)
    s_sub_u32 s12, s100, s12
    v_writelane_b32 v47, s12, 23
    v_writelane_b32 v47, s{sKb}, 28
    s_branch L_back{k}""" if OPT['stamp'] else ""))
    else:
        iss, chk = poll(16, sWs, f"s{sF3r}")
        al.add(chk)
    al(ald)
    for q in range(2):
        ast(f"ds_write_b128 v{AW}, {vr(E0+4*q,4)} offset:{1024*q}")
    for k in range(4):
        ast(f"ds_read_b64_tr_b16 {vr(E0+8+2*k,2)}, v{AR} offset:{1024*(k>>1)+32*(k&1)}")
    for u in range(14 - TM):
        blk = mf(u)
        if 7 <= u + OPT['mvd'] < 14:
            r = wd_move(u+OPT['mvd'])
            blk = place(blk, chunks(r, 8), [0, 1, 4, 5, 8, 9, 12, 13])
        ex = S()
        if u == OPT['f3'] and not SN: ex.wait_vm("at"); ex(flag(sF3w))
        if u in hsched:
            if hsched[u] == ('h', 7): ex.add(chk2)
            for y in unit_groups(hsched[u]): ex.add(y)
        if len(ex):
            gq = split_vm(ex); blk = place(blk, gq, [2, 6, 10, 14, 15][:len(gq)])
        if u == 0: blk = weave(blk, fin[0])
        if u == 1: blk = weave(blk, fin[1], start=4, end=12)
        if u == 2:
            e_ = OPT['f3e']
            blk = weave(blk, S(x for x in fin[2] if x.kind != 'vstore'), start=0, end=e_)
            blk = place(blk, split_vm(S(chk0).add(x for x in fin[2] if x.kind == 'vstore')), [e_, e_+2])
        if u == 4: blk = weave(blk, setup_E())
        s.add(blk)
        stamp(s, f'd{u}')
        if u == 6: stamp(s, "D1")
    last = S()
    for u in range(14 - TM, 14): last.add(mf(u))
    tl = S(); n = 4*TM
    for t in (1, 2, 3, 0): tl.add(x for x in last if min(x.wr)[1]//16 == DACC//16 + t)
    if TM:
        wr = []; sl = []
        for j, t in enumerate((1, 2, 3)):
            for k, x in enumerate(redw(t)): wr.append(S([x])); sl.append(n*(j+1) + 2 + (k*n)//4)
        tl = place(tl, wr, sl)
    s.add(tl)
    if SN:
        s = place(s, split_vm(al), [OPT['al'], OPT['al']+3])
        if OPT['ast'] <= 224: s = place(s, [ast], [OPT['ast']])
    else: s = place(s, [iss], [16*OPT['p3']]).add(al)
    stamp(s, "D2")
    G, GH, OMG = 8, 9, 10
    if not TM:
        for t in range(1, 4): s.add(redw(t))
    s.wait_lg(); s("s_barrier")
    stamp(s, 'e1')
    for k in range(4):
        for t in range(1, 4):
            s(f"ds_read_b128 {vr(H2+16*(t-1)+4*k,4)}, v{RR+t-1} offset:{(t-1)*SLOT+1024*k}")
    for k in range(4):
        for p in range(2):
            o = 4*k + 2*p
            s(f"""v_pk_add_f32 {vr(DACC+o,2)}, {vr(DACC+o,2)}, {vr(H2+o,2)}
            v_pk_add_f32 {vr(H2+16+o,2)}, {vr(H2+16+o,2)}, {vr(H2+32+o,2)}""")
        for p in range(2):
            o = 4*k + 2*p
            s(f"v_pk_add_f32 {vr(DACC+o,2)}, {vr(DACC+o,2)}, {vr(H2+16+o,2)}")
        for p in range(2):
            o = 4*k + 2*p
            s(f"v_pk_mul_f32 {vr(DACC+o,2)}, {vr(DACC+o,2)}, {vr(OMG+4*(k&1),2)}")
    stamp(s, 'e2')
    if not SN or OPT['ast'] > 224: s.add(ast)
    for k in range(4):
        for j in range(4):
            s(f"v_dot2_f32_bf16 v{DACC+4*k+j}, v{E0+8+2*k+j//2}, v{(G if j % 2 == 0 else GH)+4*(k&1)}, v{DACC+4*k+j}")
        s(f"""v_cvt_pk_bf16_f32 v{E0+2*k}, v{DACC+4*k}, v{DACC+4*k+1}
        v_cvt_pk_bf16_f32 v{E0+2*k+1}, v{DACC+4*k+2}, v{DACC+4*k+3}""")
    for k in range(4):
        s(f"ds_write_b64 v{OW}, {vr(E0+2*k,2)} offset:{3*SLOT+32*(k>>1)+16*80*(k&1)}")
    for q in range(2):
        s(f"ds_read_b128 {vr(H2+4*q,4)}, v{OR_} offset:{3*SLOT+16*80*q}")
    sc = " sc1" if OPT['outsc'] else ""
    s(f"s_add_u32 s{sT0}, s{sOst}, {16*896}")
    s(f"buffer_store_dwordx4 {vr(H2,4)}, v{OO}, {sr(rO,4)}, s{sOst} offen{sc}")
    s(f"buffer_store_dwordx4 {vr(H2+4,4)}, v{OO}, {sr(rO,4)}, s{sT0} offen{sc}")
    return s

def helper():
    s = S()
    GWL = 57344; TS = 59392
    s(f"""
    v_lshrrev_b32 v3, 6, v0
    v_and_b32 v2, 63, v0
    v_readfirstlane_b32 s3, v3
    v_lshlrev_b32 v1, 4, v2
    s_mul_i32 s6, s2, 57344
    s_mul_i32 s7, s3, 14336
    s_add_u32 s8, s6, s7
    {srd(rX, sU, 2048*896)}
    {srd(rW, sGw, 896)}
    {srd(rWS, sWs, WS_END)}
    {srd(rO, sDbg, 256)}
    v_mov_b32 v8, 0
    v_mov_b32 v9, 0
    v_mov_b32 v10, 0
    v_mov_b32 v11, 0
    v_cmp_gt_u32 vcc, 40, v0
    v_mov_b32 v4, 0x80000000
    v_lshrrev_b32 v5, 2, v0
    v_mul_u32_u24 v5, {FS-64}, v5
    v_add_u32 v5, v5, v1
    v_cndmask_b32 v5, v4, v5, vcc
    s_mul_i32 s9, s2, {10*FS}
    s_add_u32 s9, s9, {WS_F2}
    buffer_store_dwordx4 v[8:11], v5, {sr(rWS,4)}, s9 offen sc1
    """)
    for k in range(14):
        if k % 4 == 0: s(f"s_add_u32 m0, s7, {1024*k}\ns_add_u32 s9, s8, {1024*k}")
        s(f"buffer_load_dwordx4 v1, {sr(rX,4)}, s9 offen offset:{1024*(k%4)} lds", "x")
    s(f"s_mov_b32 m0, {GWL}\nbuffer_load_dwordx4 v1, {sr(rW,4)}, 0 offen lds", "x")
    s(f"""
    v_min_u32 v24, 195, v0
    v_mul_u32_u24 v25, 4682, v24
    v_lshrrev_b32 v25, 16, v25
    v_mul_u32_u24 v25, {3584-14*128}, v25
    v_lshlrev_b32 v24, 7, v24
    s_mul_i32 s14, s2, {14*3584}
    v_add3_u32 v25, v25, v24, s14
    v_add_u32 v24, s14, v24
    v_add_u32 v26, {196*128}, v24
    v_min_u32 v31, 1, v0
    v_lshlrev_b32 v31, 31, v31
    v_mov_b32 v9, 1
    s_lshl_b32 s15, s2, 2""")
    if OPT['hpf'] & 1: s(f"global_load_dword v27, v25, {sr(sWg,2)} offset:1792\nglobal_load_dword v28, v25, {sr(sWu,2)} offset:1792")
    if OPT['hpf'] & 4: s(f"global_load_dword v29, v24, {sr(sWdn,2)}\nglobal_load_dword v30, v26, {sr(sWdn,2)}")
    s(f"""
    v_lshrrev_b32 v6, 4, v2
    v_bfe_u32 v7, v2, 2, 2
    v_lshl_add_u32 v7, v6, 3, v7
    v_mul_u32_u24 v7, 896, v7
    v_and_b32 v12, 3, v2
    s_mul_i32 s9, s3, 224
    v_lshl_add_u32 v12, v12, 3, s9
    v_add_u32 v12, v12, v7
    s_mul_i32 s10, s3, {7*2304}
    s_add_u32 s10, s10, {TS}
    v_and_b32 v13, 15, v2
    v_mul_u32_u24 v14, 144, v13
    v_lshl_add_u32 v14, v6, 4, v14
    v_add_u32 v14, s10, v14
    v_lshrrev_b32 v15, 3, v2
    v_lshl_add_u32 v15, v15, 4, v1
    v_add_u32 v15, s10, v15
    v_mul_u32_u24 v16, 896, v13
    v_lshl_add_u32 v16, v6, 4, v16
    v_add_u32 v16, s7, v16
    v_lshlrev_b32 v17, 4, v6
    v_cmp_gt_u32 vcc, 16, v2
    v_lshlrev_b32 v18, 2, v2
    v_cndmask_b32 v18, v4, v18, vcc
    s_add_u32 s11, s8, {WS_UT}
    s_lshl2_add_u32 s13, s2, s3
    s_lshl_b32 s13, s13, 6
    s_add_u32 s13, s13, {WS_G}
    """)
    s.wait_vm("x"); s("s_barrier")
    for cg in range(7):
        for t in range(2):
            for h in range(2):
                s(f"ds_read_b64_tr_b16 {vr(128+8*cg+4*t+2*h,2)}, v12 offset:{(32*t+4*h)*896+32*cg}")
    for cg in range(7):
        for t in range(2): s(f"ds_write_b128 v14, {vr(128+8*cg+4*t,4)} offset:{2304*cg+64*t}")
        for t in range(2): s(f"ds_read_b128 {vr(192+8*cg+4*t,4)}, v15 offset:{2304*cg+8*144*t}")
    for cg in range(7):
        for t in range(2): s(f"buffer_store_dwordx4 {vr(192+8*cg+4*t,4)}, v1, {sr(rWS,4)}, s11 offen offset:{1024*t} sc1")
        s(f"s_add_u32 s11, s11, 2048")
    if OPT['hpf'] & 2: s(f"global_load_dword v29, v24, {sr(sWdn,2)}\nglobal_load_dword v30, v26, {sr(sWdn,2)}")
    for ks in range(14):
        r = 64 + 8*(ks % 4)
        s(f"""ds_read_b128 {vr(r,4)}, v17 offset:{GWL+64*ks}
        ds_read_b128 {vr(r+4,4)}, v16 offset:{64*ks}
        v_mfma_f32_16x16x32_bf16 v[20:23], {vr(r,4)}, {vr(r+4,4)}, {'v[20:23]' if ks else 0}""")
    s(f"""v_cvt_pk_bf16_f32 v20, 0, v20
    v_mul_f32 v20, {hx(fbits(-LOG2E))}, v20
    v_exp_f32 v20, v20
    v_add_f32 v20, 1.0, v20
    v_rcp_f32 v20, v20
    v_cvt_pk_bf16_f32 v21, 0, v20
    v_sub_f32 v22, 1.0, v21
    v_cvt_pk_bf16_f32 v20, v21, v22
    buffer_store_dword v20, v18, {sr(rWS,4)}, s13 offen sc1""")
    s.wait_vm('*'); s("s_barrier")
    s(f"buffer_atomic_add v9, v31, {sr(rO,4)}, 0 offen sc1")
    if OPT['snt']:
        s("v_mov_b32 v32, -1\nv_mov_b32 v33, -1\nv_mov_b32 v34, -1\nv_mov_b32 v35, -1")
        for k in range(14):
            if k % 4 == 0: s(f"s_add_u32 s9, s8, {WS_AT+1024*k}")
            s(f"buffer_store_dwordx4 v[32:35], v1, {sr(rWS,4)}, s9 offen offset:{1024*(k%4)} sc1")
        s.wait_vm('*'); s("s_barrier")
        s(f"buffer_atomic_add v9, v31, {sr(rO,4)}, 0 offen offset:128 sc1")
    if OPT['stamp']:
        s(f"""s_mov_b32 s6, s100
        s_memtime s[100:101]
        s_waitcnt lgkmcnt(0)
        s_sub_u32 s6, s100, s6
        v_mov_b32 v8, s6
        s_add_u32 s15, s15, {WS_ST+224*512}
        buffer_store_dword v8, v31, {sr(rWS,4)}, s15 offen""")
    s("s_endpgm")
    fin, _ = finalize(schedule(s))
    return f"""L_helper:
    s_waitcnt lgkmcnt(0)
""" + text(fin) + "\nL_last:\n    s_endpgm"

def build():
    s = S()
    if OPT['x_sync']:
        s("""s_memrealtime s[100:101]
        s_waitcnt lgkmcnt(0)
        s_or_b32 s4, s100, 0x3ff
        L_sync:
        s_memrealtime s[100:101]
        s_waitcnt lgkmcnt(0)
        s_cmp_lt_u32 s100, s4
        s_cbranch_scc1 L_sync""")
    if OPT['stamp']:
        s(f"v_mov_b32 v47, 0\ns_memrealtime s[100:101]\ns_waitcnt lgkmcnt(0)\nv_writelane_b32 v47, s100, 30")
    stamp(s, "start")
    hot = S()
    hot(f"""s_load_dwordx16 s[16:31], s[0:1], 0
    s_load_dwordx16 s[32:47], s[0:1], 64
    s_load_dwordx2 s[48:49], s[0:1], 128
    s_cmpk_ge_u32 s2, {NHELP+NMAIN}
    s_cbranch_scc1 L_end
    s_cmp_ge_u32 s2, {NHELP}
    s_cbranch_scc1 L_main
    s_getpc_b64 s[4:5]
    v_lshlrev_b32 v1, 7, v0
    v_min_u32 v1, CODE_BYTES, v1
    global_load_dword v19, v1, s[4:5]
    s_branch L_helper
    L_main:""")
    hot[10].kind = 'branch'
    e0, e1, e2 = setup_early(); f0, f1 = first_loads()
    hot.add(e0).add(e1)
    hot("L_karg:\ns_waitcnt lgkmcnt(0)\nL_karg2:")
    stamp(hot, "karg")
    hot.add(f0)
    g0 = []
    for n in range(OPT['npre']): g0 += split_vm(item(n))
    if not OPT['x_pre']:
        it0, it1 = item(0), item(1)
        hot.add(it0[:5]).add(it1[:5])
        hot("L_hotend:")
        s.add(hot).add(f1).add(e2).add(it0[5:]).add(it1[5:])
        for k in range(8): g0[k] = S()
    else:
        s.add(hot).add(f1).add(e2)
    s(f"s_mul_i32 s{sScr}, s{sW}, {SCRW}")
    if OPT['x_pre'] or OPT['mpf'] or OPT['tlb']: s.add(setup_scalar())
    if OPT['x_pre']:
        s(srd(rD, sWdn, 1792*896)); s(srd(rWS, sWs, WS_END))
        L = OPT['x_pre']
        if OPT['mpf'] and OPT['tp'] == 0: s.add(touches())
        for n in range(L):
            s.add(item(n))
            if OPT['mpf'] and OPT['tp'] == 4*(n+1): s.add(touches())
        if not OPT['pafter']:
            for k in range(6): s.wait_vm(f'par{k}'); stamp(s, f'p{k}')
        for n in range(18):
            s.wait_vm(f'it{n}'); stamp(s, f'i{n}')
            if n + L < 21: s.add(item(n+L))
    else:
        n0, n1, tp = OPT['n0'], OPT['n1'], OPT['tp']
        if OPT['mpf'] and tp: g0[tp-1].add(touches())
        elif OPT['mpf']: g0[0] = touches().add(g0[0])
        pre = S(); pre(srd(rD, sWdn, 1792*896))
        s.add(pre).add(sprinkle(setup_AB(), g0[8:n0], 0.3, 1.0))
        if OPT['hop']:
            s(f"""s_mov_b64 exec, 0
            s_cmp_eq_u32 s{sW}, 0
            s_cbranch_scc1 L_st1
            s_cmp_eq_u32 s{sW}, 1
            s_cbranch_scc1 L_st2
            s_cmp_eq_u32 s{sW}, 2
            s_cbranch_scc1 L_st3
            s_branch L_st4
            L_hopret:
            s_mov_b64 exec, -1""")
        stamp(s, "setup")
        ka, kw, kb, mv = krows()
        s.add(sprinkle(ka, g0[n0:n1], OPT['kalo']/100, OPT['kahi']/100))
        s.add(kw)
        stamp(s, "ka")
        s.add(sprinkle(kb, g0[n1:], 0.0, 1.0))
        stamp(s, "kb")
        s.add(stageB(mv))
        stamp(s, "B2")
        s.add(stageTail())
        stamp(s, "tail")
        if OPT['x_ack']: s("s_waitcnt vmcnt(0)"); stamp(s, "ack")
        ssm, fin = stageSSM()
        s.add(ssm)
        s.add(stageD(fin))
        stamp(s, "E")
    if OPT['stamp']:
        s(f"""s_waitcnt vmcnt(0)
        {'s_memtime' if OPT['stamp'] == 1 else 's_memrealtime'} s[100:101]
        s_waitcnt lgkmcnt(0)
        v_writelane_b32 v47, s100, {len(stamps)}
        {chr(10).join(f'v_writelane_b32 v47, s{18+2*j}, {k}' for j, k in enumerate(asyncst))}
        s_memrealtime s[100:101]
        s_waitcnt lgkmcnt(0)
        v_writelane_b32 v47, s100, 31
        s_lshl2_add_u32 s{sT0}, s{sC}, s{sW}
        s_lshl_b32 s{sT0}, s{sT0}, 7
        s_add_u32 s{sT0}, s{sT0}, {WS_ST}
        v_and_b32 v3, 31, v{vLane}
        v_lshlrev_b32 v3, 2, v3
        s_mov_b64 exec, 0xffffffff
        buffer_store_dword v47, v3, {sr(rWS,4)}, s{sT0} offen""")
        stamps.append("end")
    if PROBE:
        s('s_waitcnt vmcnt(0)'); stamp(s, 'fin')
        s(f"""s_waitcnt lgkmcnt(0)
        s_sub_u32 s12, s20, s100
        s_max_i32 s12, s12, 0
        s_mul_i32 s12, s12, 10
        s_memrealtime s[100:101]
        s_waitcnt lgkmcnt(0)
        s_mov_b32 s8, s100
        L_probe:
        s_memrealtime s[100:101]
        s_waitcnt lgkmcnt(0)
        s_sub_u32 s100, s100, s8
        s_cmp_lt_u32 s100, s12
        s_cbranch_scc1 L_probe""")
    if OPT['x_strip'] == 1:
        s = S(x for x in s if not (x.kind in ('mfma', 'ds', 'trans') or (x.kind == 'valu' and ('f32' in x.op or 'accvgpr' in x.op or x.dpp)) or (x.kind == 'mark' and x.lg is not None)))
        t = S()
        for x in s:
            t.append(x)
            if x.kind == 'vload' and 'x4' in x.op: t("s_waitcnt vmcnt(24)")
        s = t
    if OPT['x_strip'] == 2:
        s = S(x for x in s if not ((x.kind in VM_KINDS and 'v47' not in x.text) or (x.kind == 'mark' and x.vm is not None) or 'L_slow' in x.text))
    if OPT['sched']: s = schedule(s)
    fin, nn = finalize(s)
    info = ''
    fin, nw, na, nb = align_pass(fin, OPT['eoff'], OPT['hop'], OPT['align']); info = f"widened {nw} alignnops {na} bytes {nb} stubs {align_pass.nst}"
    body = text(fin).replace('CODE_BYTES', 'L_last-L_main')
    for k in range(align_pass.nst, 0, -1):
        body = body.replace(f"L_stn{k}", f"L_st{k+4}" if k + 4 <= align_pass.nst else "L_hopret")
    open(sys.argv[1]+'.names', 'w').write(','.join(stamps))
    sys.stderr.write(f"NB {NB} slots {USLOT} moves {MOVES} instrs {len(fin)} nops {nn} est {estimate(fin)} {info}\n")
    hdr = open('ref_hdr.txt').read().split('; Override launch')[0]
    return hdr + f"""; One fused launch. Workgroups 0..{NHELP-1}: transpose of u, gate, flag init. Workgroups {NHELP}..{NHELP+NMAIN-1}: S4 kernel
; generation, gate/up GEMM + GELU, causal convolution, down GEMM and the final mix.
; @launch grid=({NHELP+NMAIN},1,1) block=(256,1,1) lds={LDS_SIZE}
.amdgcn_target "amdgcn-amd-amdhsa--gfx950"
.text
.p2align 12
.globl {NAME}_kernel
.p2align 8
.type {NAME}_kernel,@function
{NAME}_kernel:
{body}
L_end:
    s_endpgm
""" + "\n".join(slow) + "\n" + helper() + f"""
.section .rodata,"a"
.p2align 6
.amdhsa_kernel {NAME}_kernel
  .amdhsa_next_free_vgpr 512
  .amdhsa_next_free_sgpr 102
  .amdhsa_accum_offset 256
  .amdhsa_group_segment_fixed_size 0
  .amdhsa_kernarg_size 136
  .amdhsa_user_sgpr_count 2
  .amdhsa_user_sgpr_kernarg_segment_ptr 1
  .amdhsa_system_sgpr_workgroup_id_x 1
.end_amdhsa_kernel
"""

if __name__ == "__main__":
    open(sys.argv[1], 'w').write(build())
```

```python
import sys, math, struct
from asmlib import *
import asmlib

NAME = "gated_mix__ssm_conv_s4__geglu_ffn__prompt"
OPT = dict(x_sync=0, x_strip=0, stamp=0, cl2=1, nst=6, sched=1, align=1, outsc=1, kbw=32, n0=8, n1=16, tp=16, kalo=0, kahi=60, tm=3, ap=1, margin=4, npre=6, fstr=128, rx=2, hpf=37, mpf=0, cl1=0, tlb=0, stlb=1, x_ack=0, x_pre=0, pafter=0, ra=0, rb=0, rc=0, wat=0, nc=8, ord=1, xlo=70, mvd=3, mvl=14, mvt=1, snt=0, f1l=1, f1p=30, al=150, ast=222, dk=1, f3e=8, pour=1, hop=1, eoff=768, xo=0, dblk=3,
           slp=2, agw=1, f1=13, ntail=3, f2a=1, p2a=40, c2a=90, nha=1, nhx=1, wh2=60, c0=20, p2b=45, f3=7, p3=12, c3=0)
PROBE = None
DPOS = [0, 1, 2, 3, 5, 6, 7, 8]
CNT = [int(c, 16) for c in '68888884444666']
STSEL = 'start,karg,setup,ka,kb,B0,B1,B2,tail,A2,exp,C,D1,D2,E'.split(',')
for a in sys.argv[2:]:
    k, v = a.split('=')
    if k == 'probe': PROBE = v.split(',')
    elif k == 'st': STSEL = v.split(',')
    elif k == 'dpos': DPOS = [int(c, 16) for c in v]
    elif k == 'cnt': CNT = [int(c, 16) for c in v]
    else:
        assert k in OPT, k
        OPT[k] = int(v)
asmlib.MARGIN = OPT['margin']

def fbits(x): return struct.unpack('<I', struct.pack('<f', x))[0]
def hx(x): return hex(x & 0xffffffff)
vr = lambda a, n: f"v[{a}:{a+n-1}]" if n > 1 else f"v{a}"
ar = lambda a, n: f"a[{a}:{a+n-1}]" if n > 1 else f"a{a}"
sr = lambda a, n: f"s[{a}:{a+n-1}]" if n > 1 else f"s{a}"
LOG2E = math.log2(math.e)

ROT = OPT['ra'] or OPT['rb'] or OPT['rc']
NHELP = 32; NMAIN = 224
FS = OPT['fstr']; WS_F2 = 0xB00000; WS_F3 = WS_F2 + 256*FS
WS_G = 0x4000; WS_ST = 0x18000; WS_UT = 0x40000; WS_AT = 0x200000; WS_H = 0x400000; WS_END = 0xD00000
SLOT = 16384; NSLOT = 7
RING = 49152
SCR = 0; SCRW = 4352; SCRH = 4*SCRW
YA = 0; YAS = 8704
KFS = 4224; KF = SCRH
UTS = KF + 2*KFS; UTSW = 2048
UA = 2*SCRH; UAS = 4288
LDS_SIZE = 163840
assert UTS + 4*UTSW <= UA and UA + 2*UAS <= RING and RING + NSLOT*SLOT <= LDS_SIZE

sU, sAre, sAim, sBre, sBim, sCre, sCim, sLdt = 16, 18, 20, 22, 24, 26, 28, 30
sDsk, sBx, sWg, sWu, sWdn, sGw, sOut, sDbg, sWs = 32, 34, 36, 38, 40, 42, 44, 46, 48
rX, rW, rD, rWS, rO = 52, 56, 60, 64, 68
sW, sC, sXo, sWo, sDo = 3, 4, 5, 6, 7
sM0x, sM0w = 9, 10
sW1, sW2 = 11, 13
sT0, sT1 = 14, 15
sTmp = 16
sHst, sHld = 72, 73
sF2w, sF3w, sF2r, sF3r = 74, 75, 76, 77
sUTld, sATld, sGld, sOst = 78, 79, 80, 81
sLDv, sDSv = 82, 83
sScr = 84
sX_, sJ_, sMI, sII, sMB, sFC, sRB = 85, 86, 87, 88, 89, 90, 91
sK0, sK1 = 92, 94
sSpin = 96
sXe, sWe, sDe, sHe = 97, 98, 99, 51
sKb = 50
sOne, sPoll = 51, 99

vL16, vLane, vPoll, vZero, vG = 1, 2, 4, 5, 6
vWd, vWr, vXd, vXr = 8, 12, 16, 20
vDd = 16
vDr, vUo, vUw, vH1, vH2 = 24, 32, 33, 34, 35
vTr, vK, vK1 = 42, 43, 82
VI = [20, 21, 22, 23, 8, 9, 10, 11]; vKw, vKp = 84, 85
vFr, vGr, vYk, vYr, vYc = 36, 37, 38, 39, 40
AW, AR, AO, RW, RR, OW, OR_, OO = 42, 43, 44, 20, 21, 45, 46, 36
vWf = 48
vGt = 72; vC1 = 80
PARK = list(range(86, 128))
ACC1 = 128; ACC2 = 192
aU = 208
vS = 240
vPar = 83
vDk = 7
DACC = 64; E0 = 48
sYw = 8

stamps = []; asyncst = []
def stamp(s, name):
    if PROBE and name in PROBE:
        if name == 'karg': s(f"s_memrealtime {sr(100,2)}\ns_waitcnt lgkmcnt(0)")
        else: s(f"s_memrealtime {sr(20 if name == PROBE[1] else 100,2)}", "async")
    if OPT['stamp'] and name in STSEL:
        k = len(stamps); stamps.append(name)
        op = 's_memtime' if OPT['stamp'] == 1 else 's_memrealtime'
        if name in ('start', 'karg', 'setup'): s(f"{op} {sr(100,2)}\ns_waitcnt lgkmcnt(0)\nv_writelane_b32 v47, s100, {k}")
        else:
            asyncst.append(k); assert len(asyncst) <= 14
            s(f"{op} {sr(16+2*len(asyncst),2)}", "async")

slow = []
def poll(thr, base, off, sPoll=sPoll):
    k = len(slow)
    iss = S(); iss(f"s_mov_b32 s{sPoll}, 0"); iss(f"s_load_dword s{sPoll}, {sr(base,2)}, {off}", "async")
    chk = S(); chk(f"s_cmp_lt_u32 s{sPoll}, {thr}\ns_cbranch_scc1 L_slow{k}\nL_back{k}:"); chk[0].kind = 'branch'
    if OPT['ap'] and base == sWs:
        rd = f"s_mov_b32 s{sPoll}, 0\n    s_atomic_add s{sPoll}, {sr(base,2)}, {off} glc\n    s_waitcnt lgkmcnt(0)"
    else:
        rd = f"global_load_dword v{vPoll}, v{vZero}, {sr(base,2)} sc1\n    s_waitcnt vmcnt(0)\n    v_readfirstlane_b32 s{sPoll}, v{vPoll}\n    s_nop 0"
    back = f"L_out{k}" if OPT['stamp'] else f"L_back{k}"
    slow.append(f"""L_slow{k}:
    {'s_memtime s[100:101]' if OPT['stamp'] else ''}
    s_mov_b32 s{sKb}, 0
    s_waitcnt lgkmcnt(0)
    s_cmp_ge_u32 s{sPoll}, {thr}
    s_cbranch_scc1 {back}
    v_mov_b32 v{vZero}, {off}
L_spin{k}:
    s_add_u32 s{sKb}, s{sKb}, 1
    s_cmp_gt_u32 s{sKb}, 0x40000
    s_cbranch_scc1 {back}
    {rd}
    s_cmp_ge_u32 s{sPoll}, {thr}
    s_cbranch_scc1 {back}
    s_sleep {OPT['slp'] if base == sWs else 8}
    s_branch L_spin{k}""" + (f"""
L_out{k}:
    s_mov_b32 s12, s100
    s_memtime s[100:101]
    s_waitcnt lgkmcnt(0)
    s_sub_u32 s12, s100, s12
    v_writelane_b32 v47, s12, {20+k}
    v_writelane_b32 v47, s{sKb}, {25+k}
    s_branch L_back{k}""" if OPT['stamp'] else ""))
    return iss, chk
def flag(soff): return f"s_atomic_add s{sOne}, {sr(sWs,2)}, s{soff}"
def srd(r, p, n): return f"s_mov_b32 s{r}, s{p}\ns_mov_b32 s{r+1}, s{p+1}\ns_mov_b32 s{r+2}, {n}\ns_mov_b32 s{r+3}, 0x20000"

def setup_early():
    s = S(); a, b, c, d, e, f = range(vS, vS+6)
    s(f"""
    v_lshrrev_b32 v{a}, 6, v0
    s_sub_u32 s{sC}, s2, {NHELP}
    v_bfe_u32 v{e}, v0, 3, 3
    v_readfirstlane_b32 s{sW}, v{a}
    s_lshl_b32 s{sT0}, s{sC}, 10
    v_lshl_add_u32 v{vPar}, v0, 2, s{sT0}
    v_and_b32 v{b}, 7, v0
    v_lshrrev_b32 v{c}, 1, v{e}
    v_mul_u32_u24 v{e}, 896, v{e}
    s_bfe_u32 s{sMI}, s{sC}, 0x20003
    s_and_b32 s{sKb}, s{sC}, 6
    s_lshl1_add_u32 s{sMB}, s{sKb}, s{sMI}
    v_xor_b32 v{d}, v{b}, v{c}
    s_lshl2_add_u32 s{sT0}, s{sMB}, s{sW}
    s_mulk_i32 s{sT0}, {32*896}
    v_lshl_add_u32 v{vXd}, v{d}, 4, v{e}
    s_lshl_b32 s{sT1}, s{sKb}, 7
    s_add_u32 s{sXo}, s{sT0}, s{sT1}
    s_movk_i32 s{sT1}, {8*896-1024}
    v_xad_u32 v{vXd+1}, v{vXd}, 64, s{sT1}
    s_add_u32 s{sM0x}, s{sW}, {RING//4096}
    s_lshl_b32 s{sM0x}, s{sM0x}, 12
    s_lshl_b32 s{sT1}, s{sT1}, 1
    v_add_u32 v{vXd+2}, s{sT1}, v{vXd}
    v_add_u32 v{vXd+3}, s{sT1}, v{vXd+1}
    s_mov_b32 s{rX+2}, {2048*896}
    s_mov_b32 s{rX+3}, 0x20000
    """)
    t = S()
    t(f"""
    s_and_b32 s{sW1}, s{sW}, 1
    s_lshr_b32 s{sW2}, s{sW}, 1
    s_lshr_b32 s{sII}, s{sC}, 5
    s_and_b32 s{sFC}, s{sC}, 1
    s_mulk_i32 s{sFC}, 7
    s_add_u32 s{sFC}, s{sFC}, s{sII}
    s_lshl1_add_u32 s{sWo}, s{sKb}, s{sW2}
    s_mulk_i32 s{sWo}, 896
    s_add_u32 s{sWo}, s{sWo}, s{sFC}
    s_lshl_b32 s{sWo}, s{sWo}, 7
    s_lshl1_add_u32 s{sM0w}, s{sW1}, s{sW2}
    s_add_u32 s{sM0w}, s{sM0w}, {RING//4096}
    s_lshl_b32 s{sM0w}, s{sM0w}, 12
    v_and_b32 v{c}, 1, v{c}
    v_lshlrev_b32 v{c}, 1, v{c}
    v_xor_b32 v{f}, v{b}, v{c}
    v_lshl_add_u32 v{f}, v{f}, 2, v{e}
    v_lshlrev_b32 v{vWd}, 2, v{f}
    s_movk_i32 s{sT1}, {8*3584-1024}
    v_xad_u32 v{vWd+1}, v{vWd}, 64, s{sT1}
    s_lshl_b32 s{sT1}, s{sT1}, 1
    v_add_u32 v{vWd+2}, s{sT1}, v{vWd}
    v_add_u32 v{vWd+3}, s{sT1}, v{vWd+1}
    s_mov_b32 s{rW+2}, {448*3584}
    s_mov_b32 s{rW+3}, s{rX+3}
    """)
    u = S()
    u(f"""
    s_add_u32 s{sXe}, s{sT0}, 896
    s_sub_u32 s{sT1}, 7, s{sKb}
    s_mul_i32 s{sT1}, s{sT1}, {64*3584}
    s_add_u32 s{sWe}, s{sWo}, s{sT1}
    v_and_b32 v{vLane}, 63, v0
    v_lshlrev_b32 v{vL16}, 4, v{vLane}
    s_and_b32 s{sX_}, s{sC}, 7
    s_lshl2_add_u32 s{sRB}, s{sX_}, s{sMI}
    """)
    return s, t, u

def setup_scalar():
    s = S(); sT0, sT1, sSpin = 0, 1, 2
    s(f"""
    ; h store / F2 write
    s_lshl1_add_u32 s{sT0}, s{sMB}, s{sW2}
    s_lshl1_add_u32 s{sT1}, s{sFC}, s{sW1}
    s_mul_i32 s{sHst}, s{sT0}, 56
    s_add_u32 s{sHst}, s{sHst}, s{sT1}
    s_lshl_b32 s{sHst}, s{sHst}, 12
    s_add_u32 s{sHst}, s{sHst}, {WS_H}
    s_mul_i32 s{sSpin}, s{sT1}, 37
    s_lshr_b32 s{sSpin}, s{sSpin}, 8
    s_lshl2_add_u32 s{sT0}, s{sT0}, s{sSpin}
    s_mul_i32 s{sT0}, s{sT0}, {FS}
    s_add_u32 s{sF2w}, s{sT0}, {WS_F2}
    s_mov_b32 s{sOne}, 1
    s_mul_i32 s{sT0}, s{sW}, 7
    s_mul_i32 s{sHld}, s{sRB}, 56
    s_add_u32 s{sHld}, s{sHld}, s{sT0}
    s_lshl_b32 s{sHld}, s{sHld}, 12
    s_add_u32 s{sHld}, s{sHld}, {WS_H}
    s_lshl2_add_u32 s{sT1}, s{sRB}, s{sW}
    s_mul_i32 s{sF2r}, s{sT1}, {FS}
    s_add_u32 s{sF2r}, s{sF2r}, {WS_F2}
    s_mul_i32 s{sDo}, s{sW}, {224*896}
    s_lshl_b32 s{sT1}, s{sII}, 7
    s_add_u32 s{sDo}, s{sDo}, s{sT1}
    ; uT load / aT store
    s_mul_i32 s{sUTld}, s{sW}, {8*57344}
    s_lshl_b32 s{sT1}, s{sC}, 8
    s_add_u32 s{sUTld}, s{sUTld}, s{sT1}
    s_add_u32 s{sUTld}, s{sUTld}, {WS_UT}
    """)
    if not OPT['snt']: s(f"""
    s_lshr_b32 s{sT0}, s{sC}, 5
    s_lshl2_add_u32 s{sT0}, s{sT0}, s{sW}
    s_bfe_u32 s{sT1}, s{sC}, 0x10004
    s_lshl1_add_u32 s{sT0}, s{sT0}, s{sT1}
    s_mul_i32 s{sT0}, s{sT0}, {FS}
    s_add_u32 s{sF3w}, s{sT0}, {WS_F3}
    s_lshr_b32 s{sT0}, s{sRB}, 3
    s_lshl2_add_u32 s{sT0}, s{sII}, s{sT0}
    s_lshl1_add_u32 s{sT0}, s{sT0}, s{sW1}
    s_mul_i32 s{sF3r}, s{sT0}, {FS}
    s_add_u32 s{sF3r}, s{sF3r}, {WS_F3}
    """)
    s(f"""
    ; aT load, out store, g load
    s_lshl1_add_u32 s{sT0}, s{sII}, s{sW1}
    s_mul_i32 s{sT1}, s{sRB}, 57344
    s_lshl_b32 s{sATld}, s{sT0}, 6
    s_add_u32 s{sOst}, s{sATld}, s{sT1}
    s_add_u32 s{sATld}, s{sATld}, s{sW2}
    s_lshl_b32 s{sATld}, s{sATld}, 6
    s_add_u32 s{sATld}, s{sATld}, s{sT1}
    s_add_u32 s{sATld}, s{sATld}, {WS_AT}
    s_mul_i32 s{sT0}, s{sW2}, {32*896}
    s_add_u32 s{sOst}, s{sOst}, s{sT0}
    s_lshl1_add_u32 s{sT0}, s{sRB}, s{sW2}
    s_lshl_b32 s{sGld}, s{sT0}, 7
    s_add_u32 s{sGld}, s{sGld}, {WS_G}
    """)
    return s

P_RAW = 232
def first_loads():
    s = S()
    for k, p in enumerate((sAre, sAim, sBre, sBim, sCre, sCim)):
        s(f"global_load_dword v{P_RAW+k}, v{vPar}, {sr(p,2)}", f"par{k}")
        if k == 0: s("L_par0:")
    s(f"""s_mov_b64 {sr(rX,2)}, {sr(sU,2)}
    s_cmp_eq_u32 s{sW1}, 1
    s_cselect_b64 {sr(rW,2)}, {sr(sWu,2)}, {sr(sWg,2)}""")
    t = S()
    t(f"""s_lshl_b32 s{sLDv}, s{sC}, 2
    s_load_dword s{sDSv}, {sr(sDsk,2)}, s{sLDv}
    s_load_dword s{sLDv}, {sr(sLdt,2)}, s{sLDv}""")
    return s, t

def setup_AB():
    s = S(); a, b, c, d, e, f, g, h = range(vS, vS+8)
    s(f"""
    {srd(rWS, sWs, WS_END)}
    {srd(rO, sOut, 2048*896)}
    v_mov_b32 v{c}, 0
    v_min_u32 v{f}, 39, v{vLane}
    v_lshlrev_b32 v{f}, 2, v{f}
    ds_write_b32 v{f}, v{c} offset:{UA}
    ds_write_b32 v{f}, v{c} offset:{UA+UAS}
    v_and_b32 v{a}, 15, v{vLane}
    s_lshl_b32 s{sT0}, s{sW2}, 13
    s_add_u32 s{sT0}, s{sT0}, {RING}
    v_lshl_add_u32 v{a}, v{a}, 7, s{sT0}
    v_bfe_u32 v{g}, v{vLane}, 1, 3
    v_lshrrev_b32 v{h}, 4, v{vLane}
    v_xor_b32 v{g}, v{g}, v{h}
    v_lshl_add_u32 v{vXr}, v{g}, 4, v{a}
    v_xor_b32 v{vXr+1}, 64, v{vXr}
    v_add_u32 v{vXr+2}, 0x10000, v{vXr}
    v_add_u32 v{vXr+3}, 0x10000, v{vXr+1}
    v_bfe_u32 v{a}, v{vLane}, 2, 2
    v_and_b32 v{b}, 3, v{vLane}
    v_bfe_u32 v{e}, v{vLane}, 3, 2
    s_lshl_b32 s{sT0}, s{sW1}, 1
    v_xor_b32 v{e}, s{sT0}, v{e}
    s_mov_b32 s{sT1}, {RING}
    v_lshl_add_u32 v{b}, v{b}, 3, s{sT1}
    v_lshl_add_u32 v{a}, v{h}, 3, v{a}
    v_lshl_add_u32 v{e}, v{e}, 5, v{b}
    v_lshl_add_u32 v{vWr}, v{a}, 7, v{e}
    v_xor_b32 v{vWr+1}, 32, v{vWr}
    v_add_u32 v{vWr+2}, 0x10000, v{vWr}
    v_add_u32 v{vWr+3}, 0x10000, v{vWr+1}
    """)
    return s

def setup_start2():
    s = S(); a, b, c, d, e, f, g, h = range(vS, vS+8)
    c0 = -2*math.sqrt(2/math.pi)*LOG2E
    s(f"""
    v_and_b32 v{a}, 15, v{vLane}
    v_lshrrev_b32 v{b}, 4, v{vLane}
    v_bfe_u32 v{e}, v{vLane}, 3, 1
    v_mul_u32_u24 v{c}, 544, v{a}
    v_lshl_add_u32 v{d}, v{b}, 4, s{sScr}
    v_mul_u32_u24 v{e}, {SCRH-8*544}, v{e}
    v_add3_u32 v{vTr}, v{c}, v{d}, v{e}
    v_lshl_add_u32 v{c}, v{b}, 7, v{a}
    s_add_u32 s{sT0}, s{sScr}, 2048
    v_lshl_add_u32 v{vK1}, v{c}, 2, s{sT0}
    v_max_u32 v{c}, 1, v{b}
    v_sub_u32 v{c}, 6, v{c}
    v_lshlrev_b32 v{e}, v{c}, v{a}
    v_cmp_gt_u32 vcc, 2, v{b}
    v_lshl_add_u32 v{f}, v{b}, 9, s{sScr}
    v_cndmask_b32 v{f}, v{f}, v{d}, vcc
    v_add_u32 v{vK}, v{f}, v{e}
    v_cmp_eq_u32 vcc, 3, v{b}
    v_mov_b32 v{e}, 256
    v_lshlrev_b32 v{c}, v{c}, 16
    v_cndmask_b32 v{e}, 8, v{e}, vcc
    v_add_u32 v{vK+2}, v{vK}, v{c}
    v_add_u32 v{vK+1}, v{vK}, v{e}
    v_add_u32 v{vK+3}, v{vK+2}, v{e}
    s_mov_b32 s{sK0}, {hx(fbits(c0))}
    s_mov_b32 s{sK0+1}, {hx(fbits(c0))}
    s_mov_b32 s{sK1}, 1.0
    s_mov_b32 s{sK1+1}, 1.0
    v_mov_b32 v{vC1}, {hx(fbits(c0*0.044715))}
    v_mov_b32 v{vC1+1}, {hx(fbits(c0*0.044715))}
    v_lshrrev_b32 v{a}, 3, v{vLane}
    v_and_b32 v{b}, 7, v{vLane}
    v_mul_u32_u24 v{a}, 57344, v{a}
    v_lshlrev_b32 v{vUw}, 4, v0
    v_lshl_add_u32 v{vUo}, v{b}, 4, v{a}
    v_and_b32 v{b}, 3, v{vLane}
    v_bfe_u32 v{e}, v{vLane}, 3, 2
    s_lshl_b32 s{sT0}, s{sW1}, 1
    v_lshrrev_b32 v{f}, 2, v{vLane}
    v_xor_b32 v{e}, s{sT0}, v{e}
    v_lshl_add_u32 v{g}, v{b}, 3, s{sM0x}
    v_lshl_add_u32 v{g}, v{f}, 7, v{g}
    v_lshl_add_u32 v{vDr}, v{e}, 5, v{g}
    v_xor_b32 v{vDr+1}, 32, v{vDr}
    v_xor_b32 v{vDr+2}, 64, v{vDr}
    v_xor_b32 v{vDr+3}, 96, v{vDr}
    v_add_u32 v{vDr+4}, 0x10000, v{vDr}
    v_add_u32 v{vDr+5}, 0x10000, v{vDr+1}
    v_add_u32 v{vDr+6}, 0x10000, v{vDr+2}
    v_add_u32 v{vDr+7}, 0x10000, v{vDr+3}
    s_lshl_b32 s{sT0}, s{sW2}, 11
    v_add_u32 v{vH1}, s{sT0}, v{vL16}
    v_xor_b32 v{vH2}, 0x800, v{vH1}
    v_and_b32 v{vG}, 15, v{vLane}
    v_lshlrev_b32 v{vG}, 2, v{vG}
    """)
    return s

def touches():
    s = S()
    sT0, sT1 = sMI, sX_
    s(f"""s_lshl2_add_u32 s{sT0}, s{sC}, s{sW}
    s_lshr_b32 s{sT1}, s{sT0}, 1
    s_mul_i32 s{sT0}, s{sT0}, {14*128}
    s_mul_i32 s{sT1}, s{sT1}, 3584
    v_min_u32 v{vPoll}, 13, v{vLane}
    v_lshlrev_b32 v{vPoll}, 7, v{vPoll}""")
    if OPT['tlb']:
        s(f"""v_mov_b32 v{vS}, 0
        buffer_load_dword v{vS+1}, v{vS}, {sr(rWS,4)}, s{sHst} offen sc1
        buffer_load_dword v{vS+2}, v{vS}, {sr(rO,4)}, s{sOst} offen sc1
        v_min_u32 v{vS+3}, 6, v{vLane}
        v_lshlrev_b32 v{vS+3}, 21, v{vS+3}
        buffer_load_dword v{vS+4}, v{vS+3}, {sr(rWS,4)}, 0 offen offset:0 sc1""")
    if OPT['mpf'] & 4: s(f"buffer_load_dword v{vS+5}, v{vPoll}, {sr(rW,4)}, s{sT1} offen")
    if OPT['mpf'] & 2: s(f"buffer_load_dword v3, v{vPoll}, {sr(rW,4)}, s{sT1} offen offset:1792")
    if OPT['mpf'] & 1: s(f"buffer_load_dword v{vZero}, v{vPoll}, {sr(rD,4)}, s{sT0} offen")
    return s

def setup_dd():
    s = S(); a, b, c = range(vS, vS+3)
    s(f"""
    v_lshrrev_b32 v{a}, 3, v{vLane}
    v_and_b32 v{b}, 7, v{vLane}
    v_lshrrev_b32 v{c}, 4, v{vLane}
    v_mul_u32_u24 v{a}, 896, v{a}
    v_lshlrev_b32 v{c}, 1, v{c}
    v_xor_b32 v{b}, v{b}, v{c}
    v_lshl_add_u32 v{vDd}, v{b}, 4, v{a}
    v_add_u32 v{vDd+1}, {1*(8*896-1024)}, v{vDd}
    v_add_u32 v{vDd+2}, {2*(8*896-1024)}, v{vDd}
    v_add_u32 v{vDd+3}, {3*(8*896-1024)}, v{vDd}""")
    return s

def setup_exp():
    s = S(); a, b, c, d, e, f, g, h = range(vS, vS+8); vI = vGt
    s(f"""v_lshlrev_b32 v{vKw}, 2, v0
    v_cvt_f32_u32 v{a}, v0
    s_mov_b32 s{sT0}, {hx(17024*0x10001)}
    v_add_f32 v{a}, v{a}, v{a}""")
    for e_ in range(4):
        p, q = (b, c) if e_ % 2 == 0 else (d, e)
        s(f"""v_add_f32 v{p}, {hx(fbits(512.0*e_))}, v{a}
        v_add_f32 v{q}, {hx(fbits(512.0*e_+1))}, v{a}
        v_cvt_pk_bf16_f32 v{p}, v{p}, v{q}
        v_subrev_u32 v{p}, s{sT0}, v{p}
        v_lshlrev_b32 v{vI+e_}, 2, v{p}""")
    s(f"""v_cmp_gt_u32 vcc, 64, v0
    v_mul_u32_u24 v{f}, 0x80008, v0
    v_add_u32 v{f}, 0x40000, v{f}
    v_cndmask_b32 v{vI}, v{vI}, v{f}, vcc
    v_mov_b32 v{vPar}, 0
    v_cmp_eq_u32 vcc, 0, v0
    v_mov_b32 v{g}, s{sDSv}
    v_cndmask_b32 v{vDk}, 0, v{g}, vcc
    v_min_u32 v{vKp}, 23, v{vLane}
    v_lshlrev_b32 v{vKp}, 2, v{vKp}""")
    return s

def setup_conv():
    s = S(); a, b, c, d, e, f, g, h = range(vS, vS+8)
    s(f"""
    v_lshrrev_b32 v{a}, 3, v0
    v_and_b32 v{b}, 7, v0
    v_mul_u32_u24 v{e}, 272, v{a}
    v_cmp_eq_u32 vcc, 0, v{b}
    v_cmp_ne_u32 {sr(sTmp,2)}, 0, v{a}
    v_lshl_add_u32 v{vYr}, v{b}, 5, v{e}
    s_and_b64 vcc, vcc, {sr(sTmp,2)}
    v_mov_b32 v{f}, {UA}
    v_add_u32 v{g}, {YAS-16}, v{e}
    v_add_u32 v{e}, -16, v{e}
    v_cndmask_b32 v{vYc+1}, v{f}, v{g}, vcc
    v_cndmask_b32 v{vYc}, v{f}, v{e}, vcc
    v_bfe_u32 v{a}, v{vLane}, 2, 2
    v_and_b32 v{b}, 3, v{vLane}
    v_lshrrev_b32 v{c}, 4, v{vLane}
    v_lshl_add_u32 v{c}, v{c}, 3, v{a}
    v_lshlrev_b32 v{c}, 3, v{c}
    s_mul_i32 s{sT0}, s{sW2}, {KFS}
    s_add_u32 s{sT0}, s{sT0}, {KF}
    v_lshl_add_u32 v{d}, v{b}, 5, s{sT0}
    v_add_u32 v{vFr}, v{d}, v{c}
    s_mul_i32 s{sT0}, s{sW2}, {UAS}
    s_lshl_b32 s{sT1}, s{sW1}, 7
    s_add_u32 s{sT0}, s{sT0}, s{sT1}
    s_add_u32 s{sT0}, s{sT0}, {UA+160+96-32}
    v_lshl_add_u32 v{h}, v{b}, 3, s{sT0}
    v_sub_u32 v{vGr}, v{h}, v{c}
    s_mul_i32 s{sT0}, s{sW2}, {YAS}
    s_mul_i32 s{sT1}, s{sW1}, 272
    s_add_u32 s{sYw}, s{sT0}, s{sT1}
    s_add_u32 s{sT0}, s{sYw}, {hx(256-48*544)}
    v_mov_b32 v{e}, 544
    v_add_u32 v{g}, {UTS}, v{vL16}
    v_cmp_lt_u32 vcc, 47, v{vLane}
    v_mad_u32_u24 v{e}, v{e}, v{vLane}, s{sT0}
    v_cndmask_b32 v{vYk}, v{g}, v{e}, vcc
    """)
    return s

def setup_E():
    t = S(); a, b, c, d = 56, 57, 58, 59
    t(f"""
    v_lshrrev_b32 v{a}, 2, v{vLane}
    v_and_b32 v{b}, 3, v{vLane}
    s_lshl_b32 s{sT1}, s{sW}, 11
    s_add_u32 s{sT1}, s{sT1}, {UTS}
    v_lshl_add_u32 v{c}, v{b}, 3, s{sT1}
    v_add_u32 v{AW}, s{sT1}, v{vL16}
    v_lshlrev_b32 v{b}, 4, v{b}
    v_mul_u32_u24 v{OO}, 896, v{a}
    v_mul_u32_u24 v{OR_}, 80, v{a}
    v_lshl_add_u32 v{AO}, v{a}, 7, v{b}
    v_lshl_add_u32 v{AR}, v{a}, 6, v{c}
    v_add_u32 v{OO}, v{OO}, v{b}
    v_add3_u32 v{OR_}, v{OR_}, v{b}, s{sM0x}
    v_add_u32 v{RW}, s{sM0x}, v{vL16}
    v_and_b32 v{a}, 15, v{vLane}
    v_lshrrev_b32 v{d}, 4, v{vLane}
    v_xor_b32 v{RR}, 0x1000, v{RW}
    v_xor_b32 v{RR+1}, 0x2000, v{RW}
    v_xor_b32 v{RR+2}, 0x3000, v{RW}
    v_mul_u32_u24 v{a}, 80, v{a}
    v_lshl_add_u32 v{d}, v{d}, 3, s{sM0x}
    v_add_u32 v{OW}, v{a}, v{d}
    """)
    for ml in range(2):
        t(f"""v_and_b32 v{8+4*ml}, 0xffff, v{vG+ml}
        v_lshlrev_b32 v{9+4*ml}, 16, v{vG+ml}
        v_and_b32 v{10+4*ml}, 0xffff0000, v{vG+ml}
        v_and_b32 v{11+4*ml}, 0xffff0000, v{vG+ml}""")
    return t

SLOTS = {0: [], 2: [13, 30], 4: [5, 13, 21, 30], 5: [2, 8, 14, 21, 30], 6: [2, 8, 13, 17, 24, 30], 7: [2, 5, 11, 14, 17, 24, 30],
         8: [2, 6, 10, 14, 17, 22, 26, 31]}
def plan_b():
    pos = [32*k + p for k in range(14) for p in SLOTS[CNT[k]]]
    nw = 4*(21 - OPT['npre'])
    assert (len(pos) - nw) % 4 == 0 and len(pos) >= nw
    for j in range(nw):
        n = OPT['npre'] + j//4
        if n >= 7: assert pos[j] >= 32*((n-7)//2) + 20, ('slot busy', n)
        need = n//2 if n < 14 else n - 7
        assert pos[j] < 32*(need-1) + 19, ('late', n)
    plan_b.lastw = pos[nw-1]
    nb = (len(pos) - nw)//4
    free = [(32*(7+q) + 20, q) for q in range(7)]
    slot = []; moves = {}; half = -1
    for u in range(14):
        first = pos[nw+4*u] if u < nb else 10**6
        free.sort()
        assert free[0][0] <= first, ('no slot for Wd unit', u)
        t, q = free.pop(0); slot.append(q)
        if u < 7:
            h = max(half + 1, (pos[nw+4*u+3] + 2*OPT['mvl'] + 15)//16, 14+u+1) if u < nb else 99
            if h < 28: moves[u] = h; half = h; free.append((16*h + 22, q))
            else: free.append((10000 + u, q))
    return nb, slot, moves
NB, USLOT, MOVES = plan_b()

def adv(s, so, step, en, span, extra):
    s(f"""s_add_u32 s{so}, s{so}, {step}
    s_cmp_eq_u32 s{so}, s{en}
    s_cselect_b32 s{sSpin}, {span}, 0
    s_sub_u32 s{so}, s{so}, s{sSpin}""")
    if extra: s(f"s_add_u32 s{so}, s{so}, {extra}\ns_add_u32 s{en}, s{en}, {extra}")

def item(n):
    if n < 14 and n % 2 == 0: m0, va, rs, so, step, en, ex = sM0x, vXd, rX, sXo, 128, sXe, 0
    elif n < 21: m0, va, rs, so, step, en, ex = sM0w, vWd, rW, sWo, 64*3584, sWe, (1792 if n == 13 else 0)
    else: m0, va, rs, so, step, en, ex = sM0x, vDd, rD, sDo, 32*896, sDe, (896*896 if n == 27 else 0)
    s = S()
    s(f"s_add_u32 m0, s{m0}, {(n % NSLOT if n < 21 else USLOT[n-21])*SLOT}")
    for q in range(4):
        s(f"buffer_load_dwordx4 v{va+q}, {sr(rs,4)}, s{so} offen offset:{1024*q} lds", f"it{n}")
    if n >= 21:
        if n != 34: s(f"s_add_u32 s{so}, s{so}, {step if n != 27 else (896-6*32)*896}")
    elif n not in (12, 20): adv(s, so, step, en, 7*step, ex)
    return s

def split_vm(st):
    grp = []
    for x in st:
        if not grp or (x.kind in VM_KINDS and any(y.kind in VM_KINDS for y in grp[-1])): grp.append(S())
        grp[-1].append(x)
    return grp

def sprinkle(main, groups, lo=0.0, hi=1.0):
    out = S(); n = len(main); g = 0
    pos = [int(n*(lo + (hi-lo)*k/max(1, len(groups)))) for k in range(len(groups))]
    for i, x in enumerate(main):
        while g < len(groups) and pos[g] <= i and not glued(x):
            out.add(groups[g]); g += 1
        out.append(x)
    while g < len(groups): out.add(groups[g]); g += 1
    return out

NEG = "neg_lo:[1,0,0] neg_hi:[1,0,0]"
def cmul(s, d, x, z, pk):
    assert d != x and d != z
    if pk:
        s(f"""v_pk_mul_f32 {vr(d,2)}, {vr(x,2)}, {vr(z,2)}
        v_pk_mul_f32 {vr(d+2,2)}, {vr(x,2)}, {vr(z+2,2)}
        v_pk_fma_f32 {vr(d,2)}, {vr(x+2,2)}, {vr(z+2,2)}, {vr(d,2)} {NEG}
        v_pk_fma_f32 {vr(d+2,2)}, {vr(x+2,2)}, {vr(z,2)}, {vr(d+2,2)}""")
    else:
        for k in range(2): s(f"v_mul_f32 v{d+k}, v{x+k}, v{z+k}")
        for k in range(2): s(f"v_mul_f32 v{d+2+k}, v{x+k}, v{z+2+k}")
        for k in range(2): s(f"v_fma_f32 v{d+k}, -v{x+2+k}, v{z+2+k}, v{d+k}")
        for k in range(2): s(f"v_fmac_f32 v{d+2+k}, v{x+2+k}, v{z+k}")

def tile_w(t, regs, n):
    for r in range(n):
        for h in range(2):
            t(f"ds_write_addtid_b32 {regs(2*r+h)} offset:{(r&7)*544+(r>>3)*SCRH+256*h}")

FR = {0: ACC2, 1: ACC1, 2: ACC1+32, 3: ACC2+32}
def tile_r(t, k):
    for ks in range(8): t(f"ds_read_b128 {vr(FR[k]+4*ks,4)}, v{vTr} offset:{64*ks}")

def krows():
    s = S()
    R = ACC1
    A_, B_, C_, Dt, T = R, R+4, R+8, R+12, R+16
    Z8, Z16 = vGt, vGt+4
    Z1, Z256, W, Z2, Z512 = [R+28+4*k for k in range(5)]
    E = [R, R+4, R+8, R+12]; V = [R+16, R+20, R+24, R+56, R+60]
    for k in range(6):
        s(f"v_lshlrev_b32 v{R+2*k}, 16, v{P_RAW+k}\nv_and_b32 v{R+2*k+1}, 0xffff0000, v{P_RAW+k}")
    s(f"""
    s_lshl_b32 s{sT1}, s{sW2}, 4
    s_lshr_b32 s{sT1}, s{sLDv}, s{sT1}
    s_lshl_b32 s{sT1}, s{sT1}, 16
    v_mov_b32 v{Dt}, {hx(fbits(LOG2E))}
    v_mul_f32 v{Dt}, s{sT1}, v{Dt}
    v_exp_f32 v{Dt}, v{Dt}
    v_cvt_pk_bf16_f32 v{Dt}, 0, v{Dt}
    v_mov_b32 v{Dt+1}, v{Dt}
    """)
    for k in (A_, A_+2, B_, B_+2): s(f"v_pk_mul_f32 {vr(k,2)}, {vr(k,2)}, {vr(Dt,2)}")
    def prim(p, z, t):
        c1 = hx(fbits(p*LOG2E)); c2 = hx(fbits(p/(2*math.pi)))
        for k in range(2): s(f"v_mul_f32 v{t+k}, {c1}, v{A_+k}\nv_mul_f32 v{t+2+k}, {c2}, v{A_+2+k}")
        for k in range(2): s(f"v_exp_f32 v{t+k}, v{t+k}\nv_fract_f32 v{t+2+k}, v{t+2+k}")
        for k in range(2): s(f"v_cos_f32 v{z+k}, v{t+2+k}\nv_sin_f32 v{z+2+k}, v{t+2+k}")
        s(f"v_pk_mul_f32 {vr(z,2)}, {vr(z,2)}, {vr(t,2)}\nv_pk_mul_f32 {vr(z+2,2)}, {vr(z+2,2)}, {vr(t,2)}")
    prim(1, Z1, T); prim(256, Z256, T+4); prim(8, Z8, T+8)
    cmul(s, W, C_, B_, 1)
    def row(t, o0, o1, x, neg):
        m = '-' if neg else ''
        t(f"v_cvt_pk_bf16_f32 v{o0}, v{x}, v{x+1}\nv_cvt_pk_bf16_f32 v{o1}, {m}v{x+2}, {m}v{x+3}")
    cmul(s, Z2, Z1, Z1, 1); cmul(s, Z512, Z256, Z256, 1); cmul(s, Z16, Z8, Z8, 1)
    S0, S1 = V[3], V[4]
    ops = [(None, W, None, 0), (V[0], W, Z1, 1),
           (V[1], W, Z2, 2), (Z1, V[0], Z2, 3),
           (V[2], W, Z256, 8), (V[0], V[1], Z256, 9),
           (S0, W, Z512, 12), (S1, V[2], Z512, 14),
           (W, V[1], Z2, 4), (V[0], Z1, Z2, 5),
           (V[1], W, Z2, 6), (Z1, V[0], Z2, 7),
           (V[2], W, Z256, 10), (V[0], V[1], Z256, 11),
           (Z1, W, Z512, 13), (V[1], V[2], Z512, 15),
           (V[0], S0, Z512, 16), (V[2], S1, Z512, 17), (S0, V[0], Z512, 18), (S1, V[2], Z512, 19), (V[0], S0, Z512, 20)]
    for d, x, z, r in ops:
        if d is not None: cmul(s, d, x, z, 1)
        o = (ACC2+2*r, ACC2+2*r+1) if r < 16 else (PARK[2*r], PARK[2*r+1])
        row(s, o[0], o[1], x if d is None else d, 1)
    w = S()
    w(f"s_mov_b32 m0, s{sScr}")
    tile_w(w, lambda k: f"v{ACC2+k}", 16)
    b = S(); mv = S()
    b(f"v_mov_b32 v{PARK[0]}, 0x3f803f80\nv_mov_b32 v{PARK[1]}, 0")
    row(b, PARK[2], PARK[3], Z8, 0); row(b, PARK[4], PARK[5], Z16, 0)
    cur = {0: Z16, 1: Z8}
    E = [ACC2+4*k for k in range(4)]
    for i in range(3, 32):
        nx = E[i % 4]; t = b if i < OPT['kbw'] else mv
        cmul(t, nx, cur[i % 2], Z16, i < OPT['kbw'])
        if i < 16: row(t, PARK[2*i], PARK[2*i+1], nx, 0)
        else:
            o = ACC2 + 16 + 2*(i % 4)
            row(t, o, o+1, nx, 0)
            t(f"v_accvgpr_write_b32 a{192+2*i}, v{o}\nv_accvgpr_write_b32 a{193+2*i}, v{o+1}")
        cur[i % 2] = nx
    return s, w, b, mv

def stageA():
    p = S()
    rd = tile_r; fr = FR
    D = [48, 52, 56, 60]
    def mm(at, bt):
        t = S()
        for ks in range(8):
            d = vr(D[2*at+bt], 4)
            t(f"v_mfma_f32_16x16x32_bf16 {d}, {vr(fr[2+at]+4*ks,4)}, {vr(fr[bt]+4*ks,4)}, {d if ks else 0}")
        return t
    p(f"s_mov_b32 m0, s{sScr}")
    uw = f"ds_write_b128 v{vUw}, {ar(aU,4)} offset:{UA+160}\nds_write_b128 v{vUw}, {ar(aU+4,4)} offset:{UA+160+UAS}"
    if not OPT['f1l']: p(uw)
    tile_w(p, lambda k: f"v{PARK[32+k]}", 5); rd(p, 3)
    tile_w(p, lambda k: f"v{PARK[k]}", 16); rd(p, 0)
    t = S(); tile_w(t, lambda k: f"v{ACC1+k}", 16); rd(t, 1)
    p.add(t[:8]).add(weave(mm(0, 0).add(mm(1, 0)), S(t[8:])))
    def pl0(bt): return f"ds_write_b64 v{vK+2*bt}, {vr(D[bt],2)}\nds_write_b64 v{vK+2*bt+1}, {vr(D[bt]+2,2)}"
    def pl1(bt): return "\n".join(f"ds_write2_b32 v{vK1}, v{D[2+bt]+jj}, v{D[2+bt]+jj+1} offset0:{16*bt+32*jj} offset1:{16*bt+32*jj+32}" for jj in (0, 2))
    p(pl0(0))
    p.add(weave(mm(0, 1), S()(pl1(0)), start=2)).add(weave(mm(1, 1), S()(pl0(1)), start=4))
    if OPT['f1l']: p(uw)
    p(pl1(1))
    x = S()
    X = 92
    x.wait_lg(); x("s_barrier")
    for k in range(8):
        x(f"ds_read2st64_b32 {vr(X+4*k,2)}, v{VI[k//2+4*(k&1)]} offset0:0 offset1:34\nds_read2st64_b32 {vr(X+4*k+2,2)}, v{VI[k//2+4*(k&1)]} offset0:17 offset1:51")
    x(f"ds_write_b32 v{vKp}, v{vPar} offset:{KF}\nds_write_b32 v{vKp}, v{vPar} offset:{KF+KFS}")
    for e in range(0, 4): x(g_read(e))
    for e_ in range(4):
        k0, k1 = X+8*e_, X+8*e_+4
        if e_ == 0 and OPT['dk']: x(f"v_pk_add_f32 {vr(k0+2,2)}, {vr(k0+2,2)}, v[12:13]")
        x(f"""v_pk_add_f32 {vr(k0,2)}, {vr(k0,2)}, {vr(k0+2,2)}
        v_pk_add_f32 {vr(k1,2)}, {vr(k1,2)}, {vr(k1+2,2)}
        v_cvt_pk_bf16_f32 v{k0+2}, v{k0}, v{k1}
        v_cvt_pk_bf16_f32 v{k0+3}, v{k0+1}, v{k1+1}""")
    for e_ in range(4):
        k0 = X+8*e_
        x(f"ds_write_b32 v{vKw}, v{k0+2} offset:{KF+96+1024*e_}\nds_write_b32 v{vKw}, v{k0+3} offset:{KF+96+KFS+1024*e_}")
    x[-1].tok = "kf"
    for e in range(4, 8): x(g_read(e))
    x.wait_lg("kf"); x("s_barrier")
    return p, x

def lds_addr(base_lo, nset, k, slot, off):
    hi = slot >= 4
    return f"v{base_lo + k + (nset if hi else 0)}", (slot - (4 if hi else 0))*SLOT + off

def b_reads(i):
    s_, ks = divmod(i, 2)
    wslot = (2*s_+1) % NSLOT if s_ < 7 else (7+s_) % NSLOT
    wr = []
    for t in range(4):
        n = 4*i + t
        for h in range(2):
            a, o = lds_addr(vWr, 2, t & 1, wslot, (t >> 1)*8192 + ks*4096 + h*512)
            wr.append((f"ds_read_b64_tr_b16 {vr(vWf+4*(n%6)+2*h,2)}, {a} offset:{o}", f"br{n}"))
    if s_ < 7:
        xr = []
        for mt in range(4):
            a, o = lds_addr(vXr, 2, ks, (2*s_) % NSLOT, mt*2048)
            xr.append((f"ds_read_b128 {ar(16*i+4*mt,4)}, {a} offset:{o}", f"br{4*i}"))
        return wr[:2] + xr + wr[2:] if not OPT['xo'] else [xr[0], wr[0], xr[1], wr[1], xr[2], wr[2], xr[3]] + wr[3:]
    return wr

def b_mfma(n, mt):
    i, t = divmod(n, 4)
    d = vr((ACC1 if i < 14 else ACC2) + 16*mt + 4*t, 4)
    return f"v_mfma_f32_16x16x32_bf16 {d}, {vr(vWf+4*(n%6),4)}, {ar(16*(i%14)+4*mt,4)}, {0 if i % 14 == 0 else d}"

def gelu(acc, half, pk, cluster=0):
    s = S(); st = S()
    for T in range(2):
        for mt in range(2):
            b = acc + 32*T + 16*mt
            o = b
            for jp in range(0, 8, 2):
                t = vGt + jp
                g0, u0 = b+jp, b+8+jp
                if pk:
                    s(f"""v_pk_mul_f32 {vr(t,2)}, {vr(g0,2)}, {vr(g0,2)}
                    v_pk_mul_f32 {vr(u0,2)}, {vr(u0,2)}, {vr(g0,2)}
                    v_pk_fma_f32 {vr(t,2)}, {vr(t,2)}, {vr(vC1,2)}, {sr(sK0,2)}
                    v_pk_mul_f32 {vr(t,2)}, {vr(t,2)}, {vr(g0,2)}
                    v_exp_f32 v{t}, v{t}
                    v_exp_f32 v{t+1}, v{t+1}
                    v_pk_add_f32 {vr(t,2)}, {vr(t,2)}, {sr(sK1,2)}
                    v_rcp_f32 v{t}, v{t}
                    v_rcp_f32 v{t+1}, v{t+1}
                    v_pk_mul_f32 {vr(t,2)}, {vr(t,2)}, {vr(u0,2)}
                    v_cvt_pk_bf16_f32 v{o+jp//2}, v{t}, v{t+1}""")
                else:
                    s(f"""v_mul_f32 v{t}, v{g0}, v{g0}
                    v_mul_f32 v{t+1}, v{g0+1}, v{g0+1}
                    v_mul_f32 v{u0}, v{u0}, v{g0}
                    v_fma_f32 v{t}, v{t}, v{vC1}, s{sK0}
                    v_fma_f32 v{t+1}, v{t+1}, v{vC1}, s{sK0}
                    v_mul_f32 v{u0+1}, v{u0+1}, v{g0+1}
                    v_mul_f32 v{t}, v{t}, v{g0}
                    v_mul_f32 v{t+1}, v{t+1}, v{g0+1}
                    v_exp_f32 v{t}, v{t}
                    v_exp_f32 v{t+1}, v{t+1}
                    v_add_f32 v{t}, 1.0, v{t}
                    v_add_f32 v{t+1}, 1.0, v{t+1}
                    v_rcp_f32 v{t}, v{t}
                    v_rcp_f32 v{t+1}, v{t+1}
                    v_mul_f32 v{t}, v{t}, v{u0}
                    v_mul_f32 v{t+1}, v{t+1}, v{u0+1}
                    v_cvt_pk_bf16_f32 v{o+jp//2}, v{t}, v{t+1}""")
            (st if cluster else s)(f"buffer_store_dwordx4 {vr(o,4)}, v{vL16}, {sr(rWS,4)}, s{sHst} offen offset:{1024*(2*T+mt)} sc1", f"h{half}")
    return s.add(st)

def chunks(st, n):
    m = len(st); c = [m*k//n for k in range(n+1)]
    for k in range(1, n):
        while c[k] < m and glued(st[c[k]]): c[k] += 1
    return [S(st[c[k]:c[k+1]]) for k in range(n)]

def wd_move(q):
    t = S(); t.wait_vm(f"it{21+q}"); t.add(wd_reads(q)); return t
def wd_item(u):
    t = S()
    prev = [p for p in range(u) if USLOT[p] == USLOT[u]]
    if prev: t.wait_lg(f"wd{prev[-1]}")
    return split_vm(t.add(item(21+u)))

def stageB(mv):
    side = {k: [] for k in range(14)}
    assert not len(mv)
    late = S() if (OPT['mpf'] or OPT['tlb']) else setup_scalar()
    for k, c in enumerate(chunks(late, 6)): side[k].append((c, 0, 32))
    for k, c in enumerate(chunks(setup_start2().add(setup_conv()).add(setup_exp()), 6)): side[k].append((c, 4 if k == 0 else 0, 32))
    side[6].append((setup_dd(), 0, 24))
    t = S()
    for k in range(4): t(f"v_mov_b32 v{VI[k]}, v{vGt+k}")
    side[6].append((t, 14, 32))
    assert plan_b.lastw < 32*13
    t = S()
    for k in range(4): t(f"v_lshrrev_b32 v{VI[4+k]}, 16, v{VI[k]}\nv_and_b32 v{VI[k]}, 0xffff, v{VI[k]}")
    if OPT['dk']: t(f"v_lshlrev_b32 v12, 16, v{vDk}\nv_and_b32 v13, 0xffff0000, v{vDk}")
    t2 = S(t[8:]); t = S(t[:8]); side[13].append((t2, 14, 32))
    for k in range(32): t(f"v_accvgpr_read_b32 v{ACC1+k}, a{224+k}")
    side[13].append((t, 0, 32))
    t = S(); tile_r(t, 2); side[13].append((t, 20, 32))
    allg = []
    for n in range(OPT['npre'], 21): allg += split_vm(item(n))
    for u in range(NB): allg += wd_item(u)
    vm = {}; p = 0
    for k in range(14): vm[k] = allg[p:p+CNT[k]]; p += CNT[k]
    for q, h in MOVES.items(): side[h//2].append((wd_move(q), 16*(h % 2), 16*(h % 2)+16))
    iss, chk = poll(NHELP, sDbg, 0)
    f1 = OPT['f1']
    if OPT['f1l']:
        i0, c0 = poll(NHELP, sDbg, 128, sJ_)
        side[10].append((i0, 0, 1)); side[13].append((c0, 12, 13))
        stageB.late = (iss, chk)
    else: side[f1].append((iss, 0, 1))
    chk(f"""buffer_load_dwordx4 {ar(aU,4)}, v{vUo}, {sr(rWS,4)}, s{sUTld} offen sc1
    buffer_load_dwordx4 {ar(aU+4,4)}, v{vUo}, {sr(rWS,4)}, s{sUTld} offen offset:128 sc1
    buffer_load_dword v{vG+1}, v{vG}, {sr(rWS,4)}, s{sGld} offen offset:64 sc1
    buffer_load_dword v{vG}, v{vG}, {sr(rWS,4)}, s{sGld} offen sc1""")
    stageB.ut = [] if OPT['f1l'] else [chk]
    for k, c in enumerate(chunks(gelu(ACC1, 1, False, OPT['cl1']), OPT['nst'])): side[7+k].insert(0, (c, 2 if k == 0 else 0, 32))
    out = S()
    out.wait_vm(("it0", "it1")); out.wait_lg(); out("s_barrier")
    stamp(out, "B0")
    for r, tk in b_reads(0): out(r, tk)
    for s_ in range(14):
        base = S()
        at = {}
        for hf in range(2):
            i = 2*s_ + hf + 1
            rd = b_reads(i) if i < 28 else []
            gaps = list(range(12)) if len(rd) == 12 else [0, 1, 3, 4, 6, 7, 9, 10]
            for r, p in zip(rd, gaps): at[p + 19*hf] = r
        for idx in range(32):
            n = 8*s_ + idx//4
            base(b_mfma(n, idx % 4 if n % 2 == 0 else 3 - idx % 4))
            if idx == 19:
                nxt = s_ + 1
                toks = (f"it{2*nxt}", f"it{2*nxt+1}") if nxt < 7 else (f"it{7+nxt}",) if nxt < 14 else None
                if toks: base.wait_vm(toks)
                base.wait_lg(f"br{8*s_+7}"); base("s_barrier")
            elif idx % 4 == 3 and idx not in (23, 27) and n < 111: base.wait_lg(f"br{n+1}")
            if idx in at: base(*at[idx])
        grp = vm[s_]
        sl = SLOTS[len(grp)]
        st = place(base, grp, sl)
        for sd, a, b in sorted(side[s_], key=lambda e: -sum(x.kind == 'ds' for x in e[0])):
            if len(sd): st = (pour if OPT['pour'] else weave)(st, sd, start=a, end=b)
        out.add(st)
        stamp(out, f's{s_}')
        if s_ == 6: stamp(out, "B1")
    return out

def wd_reads(u):
    s = S()
    for dt in range(4):
        for h in range(2):
            a, o = lds_addr(vDr, 4, dt, USLOT[u], h*2048)
            s(f"ds_read_b64_tr_b16 {ar(16*(u%7)+4*dt+2*h, 2)}, {a} offset:{o}", f"wd{u}")
    return s

def hreg(u, o): return ar(112+16*u+o, 4) if u < 9 else vr(240-16*(u-9)+o, 4)
def h_loads(u):
    s = S()
    for mt in range(4):
        s(f"buffer_load_dwordx4 {hreg(u, 4*mt)}, v{vH1 if mt < 2 else vH2}, {sr(rWS,4)}, s{sHld} offen offset:{1024*(mt&1)} sc1")
    if u != 13: s(f"s_add_u32 s{sHld}, s{sHld}, {4096 if u != 6 else (28-6)*4096}")
    return s

def f_read(t):
    b = vWf + 4*(t % 4)
    return f"ds_read_b64_tr_b16 {vr(b,2)}, v{vFr} offset:{256*t}\nds_read_b64_tr_b16 {vr(b+2,2)}, v{vFr} offset:{256*t+32}"
def g_read(e):
    return f"ds_read_b64_tr_b16 {vr(ACC2+4*e,2)}, v{vGr} offset:{256*e+32}\nds_read_b64_tr_b16 {vr(ACC2+4*e+2,2)}, v{vGr} offset:{256*e}"

def pairup(g):
    return [S(g[k]).add(g[k+1] if k+1 < len(g) else []) for k in range(0, len(g), 2)]

def stageTail():
    s = S()
    s(f"s_add_u32 s{sHst}, s{sHst}, {28*4096}")
    g = list(stageB.ut)
    todo = [q for q in range(7) if q not in MOVES]
    for u in range(NB, NB+OPT['ntail']):
        prev = [p for p in range(u) if USLOT[p] == USLOT[u]]
        while prev and prev[-1] in todo: g.append(wd_move(todo.pop(0)))
        g += pairup(wd_item(u))
        if todo and todo[0] < NB and OPT['mvt']: g.append(wd_move(todo.pop(0)))
    stageTail.todo = todo
    t = S(); t.wait_vm("h1"); t(flag(sF2w)); t(f"s_add_u32 s{sF2w}, s{sF2w}, {128*FS}")
    g.insert(min(len(g), len(stageB.ut) + OPT['f2a']), t)
    gl = sprinkle(gelu(ACC2, 2, True, OPT['cl2']), g, 0.0, 0.95)
    if OPT['f1l']:
        gl = sprinkle(gl, [stageB.late[0]], OPT['f1p']/100, 1.0)
        if OPT['f1l'] == 1: gl.add(stageB.late[1])
        else:
            k = min(i for i, x in enumerate(gl) if x.tok == 'h2')
            gl = S(gl[:k]).add(stageB.late[1]).add(gl[k:])
    s.add(gl)
    return s

def post_list():
    nt = NB + OPT['ntail']
    assert nt >= 7
    W = [('w', u) for u in range(nt, 14)]
    L = [('h', u) for u in range(7)]
    if OPT['ord'] == 0: L += W + [('h', u) for u in range(7, 14)]
    else:
        L += [('h', 7), ('h', 8)]
        for u in range(9, 14):
            L += [x for x in W if x[1] <= u + 1 and x not in L] + [('h', u)]
    return L
def unit_groups(x): return split_vm(h_loads(x[1])) if x[0] == 'h' else wd_item(x[1])

def stageSSM():
    a2, ex = stageA()
    s = S()
    iss, chk = poll(7, sWs, f"s{sF2r}")
    a2 = sprinkle(a2, [iss], OPT['p2a']/100, 1.0)
    hl = S().add(chk)
    for u in range(OPT['nha']): hl.add(h_loads(u))
    s.add(sprinkle(a2, split_vm(hl), OPT['c2a']/100, 1.0))
    stamp(s, "A2")
    t = S(); t.wait_vm("h2"); t(flag(sF2w)); t(f"s_add_u32 s{sF2r}, s{sF2r}, {128*FS}")
    hq = OPT['nha']; hl = S()
    for u in range(hq, hq+OPT['nhx']): hl.add(h_loads(u))
    hq += OPT['nhx']
    if OPT['wh2'] <= 100: s.add(sprinkle(ex, [t] + pairup(split_vm(hl)), OPT['wh2']/100, 1.0)); th2 = []
    else: s.add(sprinkle(ex, pairup(split_vm(hl)), OPT['xlo']/100, 1.0)); th2 = [t]
    stamp(s, "exp")
    main = S()
    for t in range(3): main(f_read(t))
    def flush(c):
        d = ACC1 + 4*c; t = S()
        for j in (2, 1, 0):
            t(f"v_add_f32_dpp v{d+j}, v{d+j+1}, v{d+j} wave_shr:1 row_mask:0xf bank_mask:0xf")
        if c:
            for j in (3, 2, 1):
                t(f"v_mov_b32_dpp v{d+j}, v{d-4+j} wave_shl:1 row_mask:0xf bank_mask:0xf")
        return t
    for t in range(16):
        blk = S()
        for c in range(t, 16):
            d = vr(ACC1 + 4*c, 4)
            blk(f"v_mfma_f32_16x16x32_bf16 {d}, {vr(vWf+4*(t%4),4)}, {vr(ACC2+4*(c-t),4)}, {d if t else 0}")
        e = S()
        if t == 0:
            g4 = S()
            for q in range(8, 16): g4(g_read(q))
            blk = weave(blk, g4, start=0, end=8)
        if t + 3 < 16: e(f_read(t+3))
        if 1 <= t <= 12: e.add(flush(t-1))
        main.add(weave(blk, e, start=(8 if t == 0 else 0)))
    mvs = S()
    for q in stageTail.todo: mvs.add(wd_move(q))
    if len(mvs): main = weave(main, mvs, start=16, end=16+10*len(stageTail.todo))
    L = post_list()[hq:]
    iss, chk = poll(7, sWs, f"s{sF2r}")
    c0 = OPT['c0']; nc = OPT['nc']
    g = []; sl = []; n1 = None
    for k, x in enumerate(L[:nc]):
        q = unit_groups(x)
        if x == ('h', 7): q[0] = S(chk).add(q[0]); n1 = len(g)
        for j, y in enumerate(q):
            p = c0 + ((132-c0)*(4*k+j))//(4*nc)
            if x[0] == 'h' and x[1] >= 9: p = max(p, {9: 60, 10: 102}[x[1]])
            g.append(y); sl.append(max(p, sl[-1] if sl else 0))
    main = place(main, g, sl)
    main = place(main, th2, [OPT['wh2']-100])
    chk0 = S()
    if OPT['snt']:
        iss0, chk0 = poll(NHELP, sDbg, 128, sJ_)
        main = place(main, [iss0], [110])
    s.add(place(main, [iss], [(sl[n1] if n1 is not None else 140) - OPT['p2b']]))
    stageSSM.rest = (L[nc:], chk, chk0)
    stamp(s, "C")
    f = S()
    for c in range(12, 16): f.add(flush(c))
    f(f"s_mov_b32 m0, s{sYw}")
    for c in range(16): f(f"ds_write_addtid_b32 v{ACC1+4*c} offset:{544*c}")
    f(f"ds_write_b128 v{vYk}, {vr(ACC1+60,4)}", "yw")
    f2 = S()
    f2.wait_lg("yw"); f2("s_barrier")
    Y = ACC1; UU = ACC1+24; O = ACC1+32
    for ch in range(2):
        f2(f"""ds_read_b128 {vr(Y+12*ch,4)}, v{vYr} offset:{YAS*ch}
        ds_read_b128 {vr(Y+12*ch+8,4)}, v{vYc+ch}
        {'' if OPT['dk'] else f'ds_read_b128 {vr(UU+4*ch,4)}, v{vUw} offset:{UA+160+UAS*ch}'}
        ds_read_b128 {vr(Y+12*ch+4,4)}, v{vYr} offset:{YAS*ch+16}""")
    if not OPT['dk']: f2(f"""s_and_b32 s{sK0}, s{sDSv}, 0xffff
    s_lshl_b32 s{sK0+1}, s{sDSv}, 16
    s_lshr_b32 s{sK1}, s{sDSv}, 16
    s_and_b32 s{sK1+1}, s{sDSv}, 0xffff0000""")
    f2(f"s_add_u32 s{sUTld}, s{sUTld}, {WS_AT-WS_UT}")
    f3 = S()
    for ch in range(2):
        b = Y+12*ch
        for k in range(3): f3(f"v_add_f32 v{b+k}, v{b+k}, v{b+9+k}")
        for k in range(0 if OPT['dk'] else 8):
            f3(f"v_dot2_f32_bf16 v{b+k}, v{UU+4*ch+k//2}, s{(sK0 if ch == 0 else sK1)+(k&1)}, v{b+k}")
        for k in range(4):
            f3(f"v_cvt_pk_bf16_f32 v{O+4*ch+k}, v{b+2*k}, v{b+2*k+1}")
        f3(f"buffer_store_dwordx4 {vr(O+4*ch,4)}, v{vUo}, {sr(rWS,4)}, s{sUTld} offen offset:{128*ch} sc1", "at")
    return s, (f, f2, f3)

def stageD(fin):
    def mf(u):
        r = S()
        for mt in range(4):
            for dt in (range(4) if mt % 2 == 0 else range(3, -1, -1)):
                d = vr(DACC + 16*((dt >> 1) + 2*(mt >> 1)) + 4*(2*(dt & 1) + (mt & 1)), 4)
                r(f"v_mfma_f32_16x16x32_bf16 {d}, {ar(16*(u%7)+4*dt, 4)}, {hreg(u, 4*mt)}, {0 if u == 0 else d}")
        return r
    s = S()
    H2 = ACC1
    rest, chk2, chk0 = stageSSM.rest
    if rest[0][0] == 'w' and DPOS[0] == 0:
        j = [x[0] for x in rest].index('h'); rest.insert(0, rest.pop(j))
    assert len(rest) <= len(DPOS), rest
    hsched = dict(zip(DPOS, rest))
    TM = OPT['tm']; SN = OPT['snt']
    def redw(t):
        r = S()
        for k in range(4): r(f"ds_write_b128 v{RW}, {vr(DACC+16*t+4*k,4)} offset:{(t-1)*SLOT+1024*k}")
        return r
    ald = "\n".join(f"buffer_load_dwordx4 {vr(E0+4*q,4)}, v{AO}, {sr(rWS,4)}, s{sATld} offen offset:{2048*q} sc1" for q in range(2))
    al = S(); ast = S()
    if SN:
        k = len(slow)
        tst = f"""v_max3_u32 v{vPoll}, v{E0}, v{E0+1}, v{E0+2}
    v_max3_u32 v{vZero}, v{E0+3}, v{E0+4}, v{E0+5}
    v_max3_u32 v{vPoll}, v{vPoll}, v{E0+6}, v{E0+7}
    v_max_u32 v{vPoll}, v{vPoll}, v{vZero}
    v_cmp_eq_u32 vcc, -1, v{vPoll}"""
        ast(tst); ast(f"s_cbranch_vccnz L_slow{k}\nL_back{k}:")
        back = f"L_out{k}" if OPT['stamp'] else f"L_back{k}"
        slow.append(f"""L_slow{k}:
    {'s_memtime s[100:101]' if OPT['stamp'] else ''}
    s_mov_b32 s{sKb}, 0
L_spin{k}:
    s_add_u32 s{sKb}, s{sKb}, 1
    s_cmp_gt_u32 s{sKb}, 0x8000
    s_cbranch_scc1 {back}
    {ald}
    s_waitcnt vmcnt(0)
    {tst}
    s_nop 1
    s_cbranch_vccnz L_spin{k}
    s_branch {back}""" + (f"""
L_out{k}:
    s_waitcnt lgkmcnt(0)
    s_mov_b32 s12, s100
    s_memtime s[100:101]
    s_waitcnt lgkmcnt(0)
    s_sub_u32 s12, s100, s12
    v_writelane_b32 v47, s12, 23
    v_writelane_b32 v47, s{sKb}, 28
    s_branch L_back{k}""" if OPT['stamp'] else ""))
    else:
        iss, chk = poll(16, sWs, f"s{sF3r}")
        al.add(chk)
    al(ald)
    for q in range(2):
        ast(f"ds_write_b128 v{AW}, {vr(E0+4*q,4)} offset:{1024*q}")
    for k in range(4):
        ast(f"ds_read_b64_tr_b16 {vr(E0+8+2*k,2)}, v{AR} offset:{1024*(k>>1)+32*(k&1)}")
    for u in range(14 - TM):
        blk = mf(u)
        if 7 <= u + OPT['mvd'] < 14:
            r = wd_move(u+OPT['mvd'])
            blk = place(blk, chunks(r, 8), [0, 1, 4, 5, 8, 9, 12, 13])
        ex = S()
        if u == OPT['f3'] and not SN: ex.wait_vm("at"); ex(flag(sF3w))
        if u in hsched:
            if hsched[u] == ('h', 7): ex.add(chk2)
            for y in unit_groups(hsched[u]): ex.add(y)
        if len(ex):
            gq = split_vm(ex); blk = place(blk, gq, [2, 6, 10, 14, 15][:len(gq)])
        if u == 0: blk = weave(blk, fin[0])
        if u == 1: blk = weave(blk, fin[1], start=4, end=12)
        if u == 2:
            e_ = OPT['f3e']
            blk = weave(blk, S(x for x in fin[2] if x.kind != 'vstore'), start=0, end=e_)
            blk = place(blk, split_vm(S(chk0).add(x for x in fin[2] if x.kind == 'vstore')), [e_, e_+2])
        if u == 4: blk = weave(blk, setup_E())
        s.add(blk)
        stamp(s, f'd{u}')
        if u == 6: stamp(s, "D1")
    last = S()
    for u in range(14 - TM, 14): last.add(mf(u))
    tl = S(); n = 4*TM
    for t in (1, 2, 3, 0): tl.add(x for x in last if min(x.wr)[1]//16 == DACC//16 + t)
    if TM:
        wr = []; sl = []
        for j, t in enumerate((1, 2, 3)):
            for k, x in enumerate(redw(t)): wr.append(S([x])); sl.append(n*(j+1) + 2 + (k*n)//4)
        tl = place(tl, wr, sl)
    s.add(tl)
    if SN:
        s = place(s, split_vm(al), [OPT['al'], OPT['al']+3])
        if OPT['ast'] <= 224: s = place(s, [ast], [OPT['ast']])
    else: s = place(s, [iss], [16*OPT['p3']]).add(al)
    stamp(s, "D2")
    G, GH, OMG = 8, 9, 10
    if not TM:
        for t in range(1, 4): s.add(redw(t))
    s.wait_lg(); s("s_barrier")
    stamp(s, 'e1')
    for k in range(4):
        for t in range(1, 4):
            s(f"ds_read_b128 {vr(H2+16*(t-1)+4*k,4)}, v{RR+t-1} offset:{(t-1)*SLOT+1024*k}")
    for k in range(4):
        for p in range(2):
            o = 4*k + 2*p
            s(f"""v_pk_add_f32 {vr(DACC+o,2)}, {vr(DACC+o,2)}, {vr(H2+o,2)}
            v_pk_add_f32 {vr(H2+16+o,2)}, {vr(H2+16+o,2)}, {vr(H2+32+o,2)}""")
        for p in range(2):
            o = 4*k + 2*p
            s(f"v_pk_add_f32 {vr(DACC+o,2)}, {vr(DACC+o,2)}, {vr(H2+16+o,2)}")
        for p in range(2):
            o = 4*k + 2*p
            s(f"v_pk_mul_f32 {vr(DACC+o,2)}, {vr(DACC+o,2)}, {vr(OMG+4*(k&1),2)}")
    stamp(s, 'e2')
    if not SN or OPT['ast'] > 224: s.add(ast)
    for k in range(4):
        for j in range(4):
            s(f"v_dot2_f32_bf16 v{DACC+4*k+j}, v{E0+8+2*k+j//2}, v{(G if j % 2 == 0 else GH)+4*(k&1)}, v{DACC+4*k+j}")
        s(f"""v_cvt_pk_bf16_f32 v{E0+2*k}, v{DACC+4*k}, v{DACC+4*k+1}
        v_cvt_pk_bf16_f32 v{E0+2*k+1}, v{DACC+4*k+2}, v{DACC+4*k+3}""")
    for k in range(4):
        s(f"ds_write_b64 v{OW}, {vr(E0+2*k,2)} offset:{3*SLOT+32*(k>>1)+16*80*(k&1)}")
    for q in range(2):
        s(f"ds_read_b128 {vr(H2+4*q,4)}, v{OR_} offset:{3*SLOT+16*80*q}")
    sc = " sc1" if OPT['outsc'] else ""
    s(f"s_add_u32 s{sT0}, s{sOst}, {16*896}")
    s(f"buffer_store_dwordx4 {vr(H2,4)}, v{OO}, {sr(rO,4)}, s{sOst} offen{sc}")
    s(f"buffer_store_dwordx4 {vr(H2+4,4)}, v{OO}, {sr(rO,4)}, s{sT0} offen{sc}")
    return s

def helper():
    s = S()
    GWL = 57344; TS = 59392
    s(f"""
    v_lshrrev_b32 v3, 6, v0
    v_and_b32 v2, 63, v0
    v_readfirstlane_b32 s3, v3
    v_lshlrev_b32 v1, 4, v2
    s_mul_i32 s6, s2, 57344
    s_mul_i32 s7, s3, 14336
    s_add_u32 s8, s6, s7
    {srd(rX, sU, 2048*896)}
    {srd(rW, sGw, 896)}
    {srd(rWS, sWs, WS_END)}
    {srd(rO, sDbg, 256)}
    v_mov_b32 v8, 0
    v_mov_b32 v9, 0
    v_mov_b32 v10, 0
    v_mov_b32 v11, 0
    v_cmp_gt_u32 vcc, 40, v0
    v_mov_b32 v4, 0x80000000
    v_lshrrev_b32 v5, 2, v0
    v_mul_u32_u24 v5, {FS-64}, v5
    v_add_u32 v5, v5, v1
    v_cndmask_b32 v5, v4, v5, vcc
    s_mul_i32 s9, s2, {10*FS}
    s_add_u32 s9, s9, {WS_F2}
    buffer_store_dwordx4 v[8:11], v5, {sr(rWS,4)}, s9 offen sc1
    """)
    for k in range(14):
        if k % 4 == 0: s(f"s_add_u32 m0, s7, {1024*k}\ns_add_u32 s9, s8, {1024*k}")
        s(f"buffer_load_dwordx4 v1, {sr(rX,4)}, s9 offen offset:{1024*(k%4)} lds", "x")
    s(f"s_mov_b32 m0, {GWL}\nbuffer_load_dwordx4 v1, {sr(rW,4)}, 0 offen lds", "x")
    s(f"""
    v_min_u32 v24, 195, v0
    v_mul_u32_u24 v25, 4682, v24
    v_lshrrev_b32 v25, 16, v25
    v_mul_u32_u24 v25, {3584-14*128}, v25
    v_lshlrev_b32 v24, 7, v24
    s_mul_i32 s14, s2, {14*3584}
    v_add3_u32 v25, v25, v24, s14
    s_lshr_b32 s14, s14, 1
    v_add_u32 v24, s14, v24
    v_add_u32 v26, {896*896}, v24
    v_min_u32 v31, 1, v0
    v_lshlrev_b32 v31, 31, v31
    v_mov_b32 v9, 1
    s_lshl_b32 s15, s2, 2""")
    if OPT['hpf'] & 1: s(f"global_load_dword v27, v25, {sr(sWg,2)} offset:1792\nglobal_load_dword v28, v25, {sr(sWu,2)} offset:1792")
    if OPT['hpf'] & 4: s(f"global_load_dword v29, v24, {sr(sWdn,2)}")
    if OPT['hpf'] & 8: s(f"global_load_dword v30, v26, {sr(sWdn,2)}")
    s(f"""
    v_lshrrev_b32 v6, 4, v2
    v_bfe_u32 v7, v2, 2, 2
    v_lshl_add_u32 v7, v6, 3, v7
    v_mul_u32_u24 v7, 896, v7
    v_and_b32 v12, 3, v2
    s_mul_i32 s9, s3, 224
    v_lshl_add_u32 v12, v12, 3, s9
    v_add_u32 v12, v12, v7
    s_mul_i32 s10, s3, {7*2304}
    s_add_u32 s10, s10, {TS}
    v_and_b32 v13, 15, v2
    v_mul_u32_u24 v14, 144, v13
    v_lshl_add_u32 v14, v6, 4, v14
    v_add_u32 v14, s10, v14
    v_lshrrev_b32 v15, 3, v2
    v_lshl_add_u32 v15, v15, 4, v1
    v_add_u32 v15, s10, v15
    v_mul_u32_u24 v16, 896, v13
    v_lshl_add_u32 v16, v6, 4, v16
    v_add_u32 v16, s7, v16
    v_lshlrev_b32 v17, 4, v6
    v_cmp_gt_u32 vcc, 16, v2
    v_lshlrev_b32 v18, 2, v2
    v_cndmask_b32 v18, v4, v18, vcc
    s_add_u32 s11, s8, {WS_UT}
    s_lshl2_add_u32 s13, s2, s3
    s_lshl_b32 s13, s13, 6
    s_add_u32 s13, s13, {WS_G}
    """)
    s.wait_vm("x"); s("s_barrier")
    if OPT['f1l']: s(f"buffer_atomic_add v9, v31, {sr(rO,4)}, 0 offen offset:128 sc1")
    for cg in range(7):
        for t in range(2):
            for h in range(2):
                s(f"ds_read_b64_tr_b16 {vr(128+8*cg+4*t+2*h,2)}, v12 offset:{(32*t+4*h)*896+32*cg}")
    for cg in range(7):
        for t in range(2): s(f"ds_write_b128 v14, {vr(128+8*cg+4*t,4)} offset:{2304*cg+64*t}")
        for t in range(2): s(f"ds_read_b128 {vr(192+8*cg+4*t,4)}, v15 offset:{2304*cg+8*144*t}")
    for cg in range(7):
        for t in range(2): s(f"buffer_store_dwordx4 {vr(192+8*cg+4*t,4)}, v1, {sr(rWS,4)}, s11 offen offset:{1024*t} sc1")
        s(f"s_add_u32 s11, s11, 2048")
    for ks in range(14):
        r = 64 + 8*(ks % 4)
        s(f"""ds_read_b128 {vr(r,4)}, v17 offset:{GWL+64*ks}
        ds_read_b128 {vr(r+4,4)}, v16 offset:{64*ks}
        v_mfma_f32_16x16x32_bf16 v[20:23], {vr(r,4)}, {vr(r+4,4)}, {'v[20:23]' if ks else 0}""")
    s(f"""v_cvt_pk_bf16_f32 v20, 0, v20
    v_mul_f32 v20, {hx(fbits(-LOG2E))}, v20
    v_exp_f32 v20, v20
    v_add_f32 v20, 1.0, v20
    v_rcp_f32 v20, v20
    v_cvt_pk_bf16_f32 v21, 0, v20
    v_sub_f32 v22, 1.0, v21
    v_cvt_pk_bf16_f32 v20, v21, v22
    buffer_store_dword v20, v18, {sr(rWS,4)}, s13 offen sc1""")
    s.wait_vm('*'); s("s_barrier")
    s(f"buffer_atomic_add v9, v31, {sr(rO,4)}, 0 offen sc1")
    if OPT['hpf'] & 16: s(f"global_load_dword v29, v24, {sr(sWdn,2)}")
    if OPT['hpf'] & 32: s(f"global_load_dword v30, v26, {sr(sWdn,2)}")
    assert not (OPT['snt'] and OPT['f1l'])
    if OPT['snt']:
        s("v_mov_b32 v32, -1\nv_mov_b32 v33, -1\nv_mov_b32 v34, -1\nv_mov_b32 v35, -1")
        for k in range(14):
            if k % 4 == 0: s(f"s_add_u32 s9, s8, {WS_AT+1024*k}")
            s(f"buffer_store_dwordx4 v[32:35], v1, {sr(rWS,4)}, s9 offen offset:{1024*(k%4)} sc1")
        s.wait_vm('*'); s("s_barrier")
        s(f"buffer_atomic_add v9, v31, {sr(rO,4)}, 0 offen offset:128 sc1")
    if OPT['stamp']:
        s(f"""s_mov_b32 s6, s100
        s_memtime s[100:101]
        s_waitcnt lgkmcnt(0)
        s_sub_u32 s6, s100, s6
        v_mov_b32 v8, s6
        s_add_u32 s15, s15, {WS_ST+224*512}
        buffer_store_dword v8, v31, {sr(rWS,4)}, s15 offen""")
    s("s_endpgm")
    fin, _ = finalize(schedule(s))
    return f"""L_helper:
    s_waitcnt lgkmcnt(0)
""" + text(fin) + "\nL_last:\n    s_endpgm"

def build():
    s = S()
    if OPT['x_sync']:
        s("""s_memrealtime s[100:101]
        s_waitcnt lgkmcnt(0)
        s_or_b32 s4, s100, 0x3ff
        L_sync:
        s_memrealtime s[100:101]
        s_waitcnt lgkmcnt(0)
        s_cmp_lt_u32 s100, s4
        s_cbranch_scc1 L_sync""")
    if OPT['stamp']:
        s(f"v_mov_b32 v47, 0\ns_memrealtime s[100:101]\ns_waitcnt lgkmcnt(0)\nv_writelane_b32 v47, s100, 30")
    stamp(s, "start")
    hot = S()
    hot(f"""s_load_dwordx16 s[16:31], s[0:1], 0
    s_load_dwordx16 s[32:47], s[0:1], 64
    s_load_dwordx2 s[48:49], s[0:1], 128
    s_cmpk_ge_u32 s2, {NHELP+NMAIN}
    s_cbranch_scc1 L_end
    s_cmp_ge_u32 s2, {NHELP}
    s_cbranch_scc1 L_main
    s_getpc_b64 s[4:5]
    v_lshlrev_b32 v1, 7, v0
    v_min_u32 v1, CODE_BYTES, v1
    global_load_dword v19, v1, s[4:5]
    s_branch L_helper
    L_main:""")
    hot[10].kind = 'branch'
    e0, e1, e2 = setup_early(); f0, f1 = first_loads()
    hot.add(e0).add(e1)
    hot("L_karg:\ns_waitcnt lgkmcnt(0)\nL_karg2:")
    stamp(hot, "karg")
    hot.add(f0)
    g0 = []
    for n in range(OPT['npre']): g0 += split_vm(item(n))
    if not OPT['x_pre']:
        it0, it1 = item(0), item(1)
        hot.add(it0[:5]).add(it1[:5])
        hot("L_hotend:")
        s.add(hot).add(f1).add(e2).add(it0[5:]).add(it1[5:])
        for k in range(8): g0[k] = S()
    else:
        s.add(hot).add(f1).add(e2)
    s(f"s_mul_i32 s{sScr}, s{sW}, {SCRW}")
    if OPT['x_pre'] or OPT['mpf'] or OPT['tlb']: s.add(setup_scalar())
    if OPT['x_pre']:
        s(srd(rD, sWdn, 1792*896)); s(srd(rWS, sWs, WS_END))
        L = OPT['x_pre']
        if OPT['mpf'] and OPT['tp'] == 0: s.add(touches())
        for n in range(L):
            s.add(item(n))
            if OPT['mpf'] and OPT['tp'] == 4*(n+1): s.add(touches())
        if not OPT['pafter']:
            for k in range(6): s.wait_vm(f'par{k}'); stamp(s, f'p{k}')
        for n in range(18):
            s.wait_vm(f'it{n}'); stamp(s, f'i{n}')
            if n + L < 21: s.add(item(n+L))
    else:
        n0, n1, tp = OPT['n0'], OPT['n1'], OPT['tp']
        if OPT['mpf'] and tp: g0[tp-1].add(touches())
        elif OPT['mpf']: g0[0] = touches().add(g0[0])
        pre = S(); pre(srd(rD, sWdn, 1792*896))
        s.add(pre).add(sprinkle(setup_AB(), g0[8:n0], 0.3, 1.0))
        if OPT['hop']:
            s(f"""s_mov_b64 exec, 0
            s_cmp_eq_u32 s{sW}, 0
            s_cbranch_scc1 L_st1
            s_cmp_eq_u32 s{sW}, 1
            s_cbranch_scc1 L_st2
            s_cmp_eq_u32 s{sW}, 2
            s_cbranch_scc1 L_st3
            s_branch L_st4
            L_hopret:
            s_mov_b64 exec, -1""")
        stamp(s, "setup")
        ka, kw, kb, mv = krows()
        s.add(sprinkle(ka, g0[n0:n1], OPT['kalo']/100, OPT['kahi']/100))
        s.add(kw)
        stamp(s, "ka")
        s.add(sprinkle(kb, g0[n1:], 0.0, 1.0))
        stamp(s, "kb")
        s.add(stageB(mv))
        stamp(s, "B2")
        s.add(stageTail())
        stamp(s, "tail")
        if OPT['x_ack']: s("s_waitcnt vmcnt(0)"); stamp(s, "ack")
        ssm, fin = stageSSM()
        s.add(ssm)
        s.add(stageD(fin))
        stamp(s, "E")
    if OPT['stamp']:
        s(f"""s_waitcnt vmcnt(0)
        {'s_memtime' if OPT['stamp'] == 1 else 's_memrealtime'} s[100:101]
        s_waitcnt lgkmcnt(0)
        v_writelane_b32 v47, s100, {len(stamps)}
        {chr(10).join(f'v_writelane_b32 v47, s{18+2*j}, {k}' for j, k in enumerate(asyncst))}
        s_memrealtime s[100:101]
        s_waitcnt lgkmcnt(0)
        v_writelane_b32 v47, s100, 31
        s_lshl2_add_u32 s{sT0}, s{sC}, s{sW}
        s_lshl_b32 s{sT0}, s{sT0}, 7
        s_add_u32 s{sT0}, s{sT0}, {WS_ST}
        v_and_b32 v3, 31, v{vLane}
        v_lshlrev_b32 v3, 2, v3
        s_mov_b64 exec, 0xffffffff
        buffer_store_dword v47, v3, {sr(rWS,4)}, s{sT0} offen""")
        stamps.append("end")
    if PROBE:
        s('s_waitcnt vmcnt(0)'); stamp(s, 'fin')
        s(f"""s_waitcnt lgkmcnt(0)
        s_sub_u32 s12, s20, s100
        s_max_i32 s12, s12, 0
        s_mul_i32 s12, s12, 10
        s_memrealtime s[100:101]
        s_waitcnt lgkmcnt(0)
        s_mov_b32 s8, s100
        L_probe:
        s_memrealtime s[100:101]
        s_waitcnt lgkmcnt(0)
        s_sub_u32 s100, s100, s8
        s_cmp_lt_u32 s100, s12
        s_cbranch_scc1 L_probe""")
    if OPT['x_strip'] == 1:
        s = S(x for x in s if not (x.kind in ('mfma', 'ds', 'trans') or (x.kind == 'valu' and ('f32' in x.op or 'accvgpr' in x.op or x.dpp)) or (x.kind == 'mark' and x.lg is not None)))
        t = S()
        for x in s:
            t.append(x)
            if x.kind == 'vload' and 'x4' in x.op: t("s_waitcnt vmcnt(24)")
        s = t
    if OPT['x_strip'] == 2:
        s = S(x for x in s if not ((x.kind in VM_KINDS and 'v47' not in x.text) or (x.kind == 'mark' and x.vm is not None) or 'L_slow' in x.text))
    if OPT['sched']: s = schedule(s)
    fin, nn = finalize(s)
    info = ''
    fin, nw, na, nb = align_pass(fin, OPT['eoff'], OPT['hop'], OPT['align']); info = f"widened {nw} alignnops {na} bytes {nb} stubs {align_pass.nst}"
    body = text(fin).replace('CODE_BYTES', 'L_last-L_main')
    for k in range(align_pass.nst, 0, -1):
        body = body.replace(f"L_stn{k}", f"L_st{k+4}" if k + 4 <= align_pass.nst else "L_hopret")
    open(sys.argv[1]+'.names', 'w').write(','.join(stamps))
    sys.stderr.write(f"NB {NB} slots {USLOT} moves {MOVES} instrs {len(fin)} nops {nn} est {estimate(fin)} {info}\n")
    hdr = open('ref_hdr.txt').read().split('; Override launch')[0]
    return hdr + f"""; One fused launch. Workgroups 0..{NHELP-1}: transpose of u, gate, flag init. Workgroups {NHELP}..{NHELP+NMAIN-1}: S4 kernel
; generation, gate/up GEMM + GELU, causal convolution, down GEMM and the final mix.
; @launch grid=({NHELP+NMAIN},1,1) block=(256,1,1) lds={LDS_SIZE}
.amdgcn_target "amdgcn-amd-amdhsa--gfx950"
.text
.p2align 12
.globl {NAME}_kernel
.p2align 8
.type {NAME}_kernel,@function
{NAME}_kernel:
{body}
L_end:
    s_endpgm
""" + "\n".join(slow) + "\n" + helper() + f"""
.section .rodata,"a"
.p2align 6
.amdhsa_kernel {NAME}_kernel
  .amdhsa_next_free_vgpr 512
  .amdhsa_next_free_sgpr 102
  .amdhsa_accum_offset 256
  .amdhsa_group_segment_fixed_size 0
  .amdhsa_kernarg_size 136
  .amdhsa_user_sgpr_count 2
  .amdhsa_user_sgpr_kernarg_segment_ptr 1
  .amdhsa_system_sgpr_workgroup_id_x 1
.end_amdhsa_kernel
"""

if __name__ == "__main__":
    open(sys.argv[1], 'w').write(build())
```

```python
import re

REG_RE = re.compile(r'^(-|\|)?(abs\()?([vas])(\d+|\[(\d+):(\d+)\])\)?\|?$')

def parse_reg(op):
    op = op.strip()
    if op == 'vcc': return [('s', 106), ('s', 107)]
    if op == 'vcc_lo': return [('s', 106)]
    if op == 'vcc_hi': return [('s', 107)]
    if op == 'exec': return [('s', 126), ('s', 127)]
    if op == 'm0': return [('s', 124)]
    m = REG_RE.match(op)
    if not m: return []
    t = m.group(3)
    if m.group(5) is not None:
        return [(t, i) for i in range(int(m.group(5)), int(m.group(6)) + 1)]
    return [(t, int(m.group(4)))]

TRANS = ('v_exp_f32', 'v_log_f32', 'v_rcp_f32', 'v_rsq_f32', 'v_sqrt_f32', 'v_sin_f32', 'v_cos_f32')
EXEC = [('s', 126), ('s', 127)]
VCC = [('s', 106), ('s', 107)]
M0 = [('s', 124)]

class I:
    __slots__ = ('text', 'op', 'kind', 'rd', 'wr', 'passes', 'srcA', 'srcB', 'srcC', 'tok', 'wide', 'data', 'dpp', 'note')
    def __init__(self, text, tok=None):
        self.text = text; self.tok = tok; self.note = None
        self.passes = 0; self.srcA = self.srcB = self.srcC = (); self.wide = False; self.data = (); self.dpp = False
        t = text.split(';')[0].strip()
        if t.endswith(':') or t.startswith('.') or not t:
            self.op = ''; self.kind = 'label' if t.endswith(':') else 'dir'; self.rd = set(); self.wr = set(); return
        parts = t.split(None, 1)
        op = parts[0]
        for suf in ('_e32', '_e64', '_dpp', '_sdwa'):
            if op.endswith(suf):
                if suf == '_dpp': self.dpp = True
                op = op[:-len(suf)]
        self.op = op
        rest = parts[1] if len(parts) > 1 else ''
        ops = []; depth = 0; cur = ''
        for ch in rest:
            if ch == '[': depth += 1
            if ch == ']': depth -= 1
            if ch == ',' and depth == 0: ops.append(cur.strip()); cur = ''
            else: cur += ch
        if cur.strip(): ops.append(cur.strip())
        mods = ''
        if ops:
            last = ops[-1].split(None, 1)
            ops[-1] = last[0]
            mods = last[1] if len(last) > 1 else ''
        R = [parse_reg(o) for o in ops]
        allr = lambda lst: set(x for l in lst for x in l)
        rd = set(); wr = set()
        if op.startswith('v_mfma'):
            self.kind = 'mfma'
            self.passes = 8 if '32x32x16' in op else 4 if '16x16x32' in op else None
            assert self.passes, op
            wr = set(R[0]); self.srcA = set(R[1]); self.srcB = set(R[2]); self.srcC = set(R[3]); rd = allr(R[1:])
        elif op.startswith('ds_'):
            self.kind = 'ds'
            if op.startswith('ds_read') or op.startswith('ds_bpermute') or op.startswith('ds_swizzle'):
                wr = set(R[0]); rd = allr(R[1:])
                if 'd16' in op: rd |= wr
            else:
                rd = allr(R)
            if 'addtid' in op: rd |= set(M0)
        elif op.startswith('buffer_load') or op.startswith('global_load'):
            if ' lds' in (' ' + mods) or '_lds_' in op:
                self.kind = 'dma'; rd = allr(R) | set(M0)
            else:
                self.kind = 'vload'; wr = set(R[0]); rd = allr(R[1:])
                if 'd16' in op: rd |= wr
        elif op.startswith('buffer_store') or op.startswith('global_store'):
            self.kind = 'vstore'; rd = allr(R)
            self.data = set(R[0] if op.startswith('buffer') else R[1])
            self.wide = 'x4' in op or 'x3' in op
        elif op.startswith('buffer_') or op.startswith('global_'):
            self.kind = 'vstore'; rd = allr(R)
        elif op.startswith('s_atomic') or tok == 'async':
            self.kind = 'asmem'; rd = allr(R); self.tok = None
            if not op.startswith('s_atomic'): wr = set(R[0]); rd = allr(R[1:])
        elif op.startswith('s_load') or op in ('s_memtime', 's_memrealtime'):
            self.kind = 'smem'; wr = set(R[0]); rd = allr(R[1:])
        elif op == 's_waitcnt': self.kind = 'wait'
        elif op == 's_barrier': self.kind = 'barrier'
        elif op == 's_nop': self.kind = 'nop'
        elif op in ('s_branch', 's_endpgm', 's_setprio', 's_sleep') or op.startswith('s_cbranch'):
            self.kind = 'branch'
            if 'vcc' in op: rd = set(VCC)
            if 'exec' in op: rd = set(EXEC)
        elif op.startswith('s_cmp') or op.startswith('s_bitcmp'):
            self.kind = 'salu'; rd = allr(R)
        elif op.startswith('s_'):
            self.kind = 'salu'; wr = set(R[0]); rd = allr(R[1:])
            if 'saveexec' in op: wr |= set(EXEC); rd |= set(EXEC)
            if op in ('s_addk_i32', 's_mulk_i32'): rd |= wr
        elif op.startswith('v_'):
            self.kind = 'trans' if op in TRANS else 'valu'
            if op.startswith('v_permlane'):
                wr = allr(R); rd = allr(R)
            else:
                wr = set(R[0]); rd = allr(R[1:])
                if op.startswith('v_fmac') or op.startswith('v_dot2c') or op.startswith('v_pk_fmac') or op.startswith('v_writelane') or 'mixlo' in op or 'mixhi' in op or self.dpp:
                    rd |= wr
                if op.startswith('v_add_co') or op.startswith('v_sub_co') or op.startswith('v_addc_co'):
                    wr |= set(R[1]); rd = allr(R[2:])
                if op.startswith('v_cmpx'): wr |= set(EXEC)
                if op.startswith('v_cndmask') and len(R) == 3: rd |= set(VCC)
        else:
            raise ValueError('unknown op: ' + text)
        self.rd = rd; self.wr = wr

    def cost(self):
        k = self.kind
        if k in ('label', 'dir', 'mark'): return 0
        if k == 'trans': return 8
        if k == 'nop': return 4 * (int(self.text.split()[1]) + 1)
        if k == 'ds': return 4 * max(1, sum(1 for r in self.rd if r[0] in 'va' and r not in self.wr))
        if k in ('vload', 'dma'): return 16
        if k == 'vstore': return 16 + 8 * len(self.data)
        return 4

class Mark(I):
    __slots__ = ('vm', 'lg')
    def __init__(self, vm=None, lg=None):
        self.text = ''; self.op = ''; self.kind = 'mark'; self.rd = set(); self.wr = set(); self.tok = None
        self.vm = vm; self.lg = lg; self.note = None
        self.passes = 0; self.srcA = self.srcB = self.srcC = (); self.wide = False; self.data = (); self.dpp = False

class S(list):
    cycles = 0
    def __call__(self, text, tok=None):
        for line in text.split('\n'):
            line = line.strip()
            if line and not line.startswith(';'):
                self.append(I(line, tok))
        return self
    def wait_vm(self, tok):
        self.append(Mark(vm=tok)); return self
    def wait_lg(self, tok='*'):
        self.append(Mark(lg=tok)); return self
    def add(self, other):
        self.extend(other); return self

VM_KINDS = ('vload', 'vstore', 'dma')
ASYNC_WINDOW = 200
DUMMY = 'ds_read_b32 v3, v1'

def insert_waits(ins):
    out = []; vq = []; lq = []; seen = set(); waited = set(); asy = []
    for x in ins:
        nv = None; nl = None
        if x.kind == 'mark':
            for t in (x.vm, x.lg):
                for q in (t if isinstance(t, (tuple, list, set)) else (t,)):
                    assert q in (None, '*', 'pub') or q in seen, f"wait on token {q} never issued"
                    waited.add(q)
        elif x.tok:
            assert x.tok == 'pub' or x.tok not in waited, f"token {x.tok} issued after its wait"
            seen.add(x.tok)
        if x.kind == 'wait':
            m = re.search(r'vmcnt\((\d+)\)', x.text)
            if m: vq = vq[len(vq) - min(len(vq), int(m.group(1))):]
            m = re.search(r'lgkmcnt\((\d+)\)', x.text)
            if m:
                n = int(m.group(1)); assert n == 0 or not any(e.kind == 'smem' for e in lq)
                lq = lq[len(lq) - min(len(lq), n):]
            out.append(x); continue
        touched = x.rd | x.wr
        vm_t = x.vm if x.kind == 'mark' else None
        lg_t = x.lg if x.kind == 'mark' else None
        def match(e, t):
            if t is None: return False
            if t == '*': return True
            return e.tok in t if isinstance(t, (tuple, list, set)) else e.tok == t
        for idx in range(len(vq) - 1, -1, -1):
            e = vq[idx]
            if (e.wr & touched) or match(e, vm_t):
                nv = len(vq) - 1 - idx; break
        for idx in range(len(lq) - 1, -1, -1):
            e = lq[idx]
            same_q = x.kind == 'ds' and e.kind == 'ds' and not (e.wr & x.rd)
            if ((e.wr & touched) and not same_q) or match(e, lg_t):
                nl = len(lq) - 1 - idx; break
        if nl is not None and any(e.kind == 'smem' for e in lq): nl = 0
        elif nl is not None:
            k = sum(1 for p in asy if len(out) - p < ASYNC_WINDOW)
            while nl < k:
                d = I(DUMMY); d.note = 'dummy'; out.append(d); lq.append(I('ds_nop')); nl += 1
        if nv is not None or nl is not None:
            t = 's_waitcnt'
            if nv is not None:
                nv = min(nv, 62); t += f' vmcnt({nv})'; vq = vq[len(vq) - nv:] if nv else []
            if nl is not None:
                nl = min(nl, 14); t += f' lgkmcnt({nl})'; lq = lq[len(lq) - nl:] if nl else []
            if out and out[-1].kind == 'wait' and out[-1].note == 'auto':
                p = out.pop().text
                mv = re.search(r'vmcnt\((\d+)\)', p); ml = re.search(r'lgkmcnt\((\d+)\)', p)
                if mv: nv = int(mv.group(1)) if nv is None else min(nv, int(mv.group(1)))
                if ml: nl = int(ml.group(1)) if nl is None else min(nl, int(ml.group(1)))
                t = 's_waitcnt' + (f' vmcnt({nv})' if nv is not None else '') + (f' lgkmcnt({nl})' if nl is not None else '')
            w = I(t); w.note = 'auto'; out.append(w)
        if x.kind == 'mark': continue
        if x.kind == 'asmem' and 'time' not in x.op: asy.append(len(out))
        if x.kind in VM_KINDS: vq.append(x)
        if x.kind in ('ds', 'smem'): lq.append(x)
        out.append(x)
    return out

def need_states(p, c):
    n = 0
    pk, ck = p.kind, c.kind
    vwr = {r for r in p.wr if r[0] in 'va'}
    swr = {r for r in p.wr if r[0] == 's'}
    isvalu = lambda k: k in ('valu', 'trans')
    if pk == 'mfma':
        big = 12 if p.passes == 8 else 8
        if ck == 'mfma':
            if p.wr & (c.srcA | c.srcB): n = max(n, big)
            if p.wr & c.srcC and not (p.wr == c.srcC and p.passes == c.passes): n = max(n, 10 if p.passes == 8 else 6)
            if p.wr & c.wr and not (p.wr == c.wr and p.wr == c.srcC and p.passes == c.passes) and not (p.wr & c.srcC):
                n = max(n, big)
        elif isvalu(ck) or ck in ('ds', 'vload', 'vstore', 'dma'):
            if p.wr & (c.rd | c.wr): n = max(n, big)
            if p.srcC & c.wr: n = max(n, 7 if p.passes == 8 else 3)
    if isvalu(pk):
        if ck == 'mfma' and vwr & c.rd: n = max(n, 2)
        if ck == 'mfma' and swr & set(EXEC): n = max(n, 4)
        if ck in VM_KINDS and swr & c.rd: n = max(n, 5)
        if isvalu(ck):
            if c.dpp and vwr & c.rd: n = max(n, 2)
            if c.dpp and swr & set(EXEC): n = max(n, 5)
            if c.op.startswith('v_permlane') and vwr & c.rd: n = max(n, 2)
            if c.op in ('v_readfirstlane_b32', 'v_readlane_b32') and vwr & c.rd: n = max(n, 1)
            if c.op in ('v_readlane_b32', 'v_writelane_b32') and swr & c.rd: n = max(n, 4)
            if swr & c.rd: n = max(n, 2)
            if pk == 'trans' and vwr & c.rd: n = max(n, 1)
            if p.op.startswith('v_dot2') and vwr & (c.rd | c.wr) and c.op != p.op: n = max(n, 3)
            if p.op.startswith('v_dot2') and vwr & c.rd and c.op == p.op: n = max(n, 3)
            if ('sdwa' in p.text or 'op_sel' in p.text and not p.op.startswith('v_pk')) and vwr & (c.rd | c.wr): n = max(n, 1)
        if p.op.startswith('v_dot2') and ck in ('ds', 'vstore', 'vload', 'mfma') and vwr & c.rd: n = max(n, 3)
        if pk == 'trans' and ck in ('ds', 'vstore', 'vload') and vwr & c.rd: n = max(n, 1)
        if ck in ('salu', 'branch', 'smem', 'asmem') and swr & c.rd: n = max(n, 1)
    if pk == 'vstore' and p.wide and p.data & c.wr: n = max(n, 2)
    if pk == 'salu' and set(M0) & p.wr and set(M0) & c.rd and ck in ('dma', 'ds'): n = max(n, 1)
    return n

def states_of(x):
    if x.kind in ('label', 'dir', 'mark'): return 0
    if x.kind == 'nop': return int(x.text.split()[1]) + 1
    return 1

def insert_nops(ins, verbose=False):
    out = []; added = 0
    for c in ins:
        if c.kind not in ('label', 'dir', 'nop', 'wait', 'barrier'):
            dist = 0; need = 0
            for p in reversed(out):
                if dist >= 12: break
                r = need_states(p, c) - dist
                if r > need: need = r
                dist += states_of(p)
            if need > 0:
                added += need
                if verbose: print('nop', need, 'before', c.text)
                x = I(f's_nop {need-1}'); x.note = 'auto'; out.append(x)
        out.append(c)
    return out, added

class Pipe:
    def __init__(s): s.t = 0; s.mf = 0; s.tv = -99; s.tm = -99
    def earliest(s, x):
        k = x.kind
        if k in ('valu', 'trans'):
            e = max(s.t, s.tm + 8)
            if x.op.startswith('v_pk_') and x.op.endswith('f32'): e = max(e, s.mf)
            return e
        if k == 'mfma': return max(s.t, s.mf)
        if k == 'ds' or k in VM_KINDS: return max(s.t, s.tv + 8, s.tm + 8)
        return s.t
    def issue(s, x, at):
        at = max(at, s.earliest(x))
        s.t = at + x.cost()
        if x.kind == 'mfma': s.mf = at + 4 * x.passes; s.tm = at
        if x.kind in ('valu', 'trans'): s.tv = s.t
        return at

def estimate(ins):
    p = Pipe(); lastw = {}
    for x in ins:
        r = 0
        for q in x.rd:
            if q in lastw and lastw[q][1].kind in ('valu', 'trans', 'ds'): r = max(r, lastw[q][0] + lat(lastw[q][1], x))
        at = p.issue(x, r)
        for q in x.wr: lastw[q] = (at, x)
    return max(p.t, p.mf)

def glued(x):
    return x.kind == 'label' or x.op.startswith('s_cselect') or x.op.startswith('s_cbranch') or x.op in ('s_addc_u32', 's_subb_u32')

def weave(main, side, budget=None, start=0, end=None):
    mf = [i for i, x in enumerate(main) if x.kind == 'mfma']
    end = len(mf) if end is None else end
    slots = mf[start:end]
    total = sum(x.cost() for x in side)
    out = S(); si = 0; acc = 0.0; done = 0
    per = total / max(1, len(slots))
    slotset = {p: k for k, p in enumerate(slots)}
    for i, x in enumerate(main):
        out.append(x)
        if i in slotset:
            acc += per
            last = slotset[i] == len(slots) - 1
            while si < len(side) and (last or glued(side[si]) or done + side[si].cost() / 2 <= acc):
                out.append(side[si]); done += side[si].cost(); si += 1
    assert si == len(side)
    return out

def shadow_waits(ins, age=3):
    out = []; lastw = {}; nm = 0
    idx = [i for i, x in enumerate(ins) if x.kind == 'mfma']
    nxt = {a: b for a, b in zip(idx, idx[1:])}
    for i, x in enumerate(ins):
        out.append(x)
        if x.kind in ('ds', 'vload'):
            for r in x.wr: lastw[r] = nm
        if x.kind == 'mfma':
            nm += 1
            j = nxt.get(i)
            if j is None or j - i > 8 or j == i + 1: continue
            if any(y.kind in ('branch', 'label') for y in ins[i+1:j]): continue
            need = ins[j].srcA | ins[j].srcB
            if any(y.wr & need for y in ins[i+1:j]): continue
            if all(nm - lastw.get(r, -99) >= age * (2 if x.passes == 4 else 1) for r in need):
                m = Mark(); m.rd = set(need); out.append(m)
    return out

SHADOW = 1
def finalize(ins, verbose=False):
    a = insert_waits(shadow_waits(ins) if SHADOW else ins)
    b, n = insert_nops(a, verbose)
    return b, n

def text(ins):
    return '\n'.join(('' if x.kind == 'label' else '    ') + x.text for x in ins if x.kind != 'mark')


def lat(p, c):
    k = p.kind
    if k == 'valu': return 10
    if k == 'trans': return 14
    if k == 'salu': return 4
    if k == 'ds': return 110
    if k == 'vload': return 400
    if k == 'smem': return 200
    if k == 'mfma':
        if c.kind == 'mfma' and p.wr == c.srcC and not (p.wr & (c.srcA | c.srcB)): return 0
        return 4 * p.passes + 20
    return 4

MARGIN = 6
LIM = {'mark': 1, 'barrier': 1, 'wait': 1, 'dma': 8, 'vload': 8, 'vstore': 8, 'mfma': 14, 'ds': 16, 'asmem': 4}
def schedule(ins, window=32):
    n = len(ins)
    cls = []
    for x in ins:
        k = x.kind
        if k in ('branch', 'label', 'dir', 'nop'): c = ('fence',)
        elif k in ('mark', 'barrier', 'wait'): c = ('ds', 'vm', 'smem')
        elif k in VM_KINDS: c = ('vm',)
        elif k == 'asmem': c = ('smem', 'salu', 'vm')
        elif k == 'smem': c = ('smem', 'salu') if x.op.startswith('s_load') else ('fence',)
        elif k in ('ds', 'salu', 'mfma'): c = (k,)
        else: c = ()
        if set(EXEC) & x.wr: c = ('fence',)
        cls.append(c)
    preds = [[] for _ in range(n)]
    lastw = {}; readers = {}; lastc = {}; fence = -1; since = []
    for i, x in enumerate(ins):
        P = {}
        def add(j, l):
            if j is not None and j >= 0: P[j] = max(P.get(j, 0), l)
        for r in x.rd:
            j = lastw.get(r)
            if j is not None: add(j, lat(ins[j], x))
        for r in x.wr:
            j = lastw.get(r)
            if j is not None: add(j, lat(ins[j], x) if ins[j].kind in ('mfma',) and x.kind != 'mfma' else 0)
            for j in readers.get(r, ()): add(j, 4 * ins[j].passes if ins[j].kind == 'mfma' and x.kind in ('ds', 'vload') else 0)
        if 'fence' in cls[i]:
            for j in since: add(j, 0)
            add(fence, 0); fence = i; since = []
        else:
            add(fence, 0); since.append(i)
            if x.kind in ('ds', 'mark', 'barrier', 'wait', 'asmem') or x.kind in VM_KINDS: add(lastc.get('mfma'), 0)
            for c in cls[i]:
                j = lastc.get(c)
                add(j, 100 if (x.kind == 'mark' and x.lg == '*' and j is not None and ins[j].kind == 'ds') else 0); lastc[c] = i
        for r in x.rd: readers.setdefault(r, []).append(i)
        for r in x.wr: lastw[r] = i; readers[r] = []
        P.pop(i, None)
        preds[i] = list(P.items())
    issued = [None] * n
    out = S(); p = Pipe(); head = 0
    while head < n:
        cand = []; seen = 0; i = head; nextm = None
        while i < n and seen < window:
            if issued[i] is None:
                seen += 1
                x = ins[i]
                ok = True; rdy = 0
                for j, l in preds[i]:
                    if issued[j] is None: ok = False; break
                    rdy = max(rdy, issued[j] + l)
                lim = LIM.get(x.kind, window)
                if x.kind in ('mark', 'barrier'): lim = 10
                if ok and seen > lim: ok = False
                if x.kind == 'mfma' and nextm is None: nextm = (i, max(rdy, p.earliest(x)) if ok else None)
                if ok: cand.append((i, max(rdy, p.earliest(x))))
            i += 1
        t = p.t; best = None; bestkey = None
        for i, e in cand:
            x = ins[i]; k = x.kind
            fits = nextm is None or nextm[1] is None or i <= nextm[0] or e + x.cost() <= nextm[1] - MARGIN
            if k == 'mfma': key = (0, i) if e <= t + 3 else (6, e, i)
            elif not fits: key = (7, e, i)
            elif k in ('mark', 'label', 'dir'): key = (1, i) if e <= t else (6, e, i)
            elif k in ('salu', 'wait', 'barrier', 'branch', 'smem', 'asmem', 'nop'):
                key = ((2, i) if t < p.tm + 8 else (4, i)) if e <= t else (6, e, i)
            elif k == 'ds' or k in VM_KINDS:
                key = (3, i) if e <= max(t, p.tm + 8) else (6, e, i)
            else:
                key = (4, i) if e <= max(t, p.tm + 8) else (6, e, i)
            if bestkey is None or key < bestkey: best, bestkey, be = i, key, e
        x = ins[best]
        issued[best] = p.issue(x, be)
        out.append(x)
        while head < n and issued[head] is not None: head += 1
    out.cycles = max(p.t, p.mf)
    return out

import subprocess
def sizes(ins):
    real = [x for x in ins if x.kind not in ('label', 'dir', 'mark')]
    src = '\n'.join(re.sub(r'L_\w+', '0', x.text) if x.kind == 'branch' else x.text.replace('CODE_BYTES', '0x12345') for x in real)
    r = subprocess.run(['llvm-mc', '-triple=amdgcn-amd-amdhsa', '-mcpu=gfx950', '-show-encoding'], input=src, capture_output=True, text=True)
    enc = re.findall(r'encoding: \[([^\]]*)\]', r.stdout)
    assert len(enc) == len(real), (len(enc), len(real), r.stderr[:2000])
    return {id(x): len(e.split(',')) for x, e in zip(real, enc)}

NOWIDE = ('v_readfirstlane_b32', 'v_fmaak_f32', 'v_fmamk_f32', 'v_nop')
def align_pass(ins, start=0, stubs=False, align=True):
    sz = sizes(ins)
    out = []; off = start; nw = nn = 0; nst = 0
    cand = None
    for x in ins:
        if x.kind in ('label', 'dir', 'mark'):
            out.append(x)
            if x.kind == 'dir' and isinstance(x.note, int): off += x.note; cand = None
            continue
        s = sz[id(x)]
        if stubs and off // 4096 > nst and (off % 4096 >= 40 or (out[-1].kind == 'mfma' and x.kind not in SCAL)) and not glued(x):
            nst += 1
            z = I(f's_cbranch_execz L_stn{nst}'); sz[id(z)] = 4
            out.append(I(f'L_st{nst}:')); out.append(z); off += 4
            if off % 32 == 0: cand = None
        if align and s == 8 and off % 32 == 28:
            if cand is not None:
                y = out[cand]; parts = y.text.split(None, 1)
                z = I(parts[0].replace('_e32', '') + '_e64 ' + parts[1], y.tok); out[cand] = z; nw += 1
            elif any(y.kind == 'mfma' for y in out[-12:]):
                off -= 4
            else:
                z = I('s_nop 0'); z.note = 'align'
                k = len(out); o2 = off; pos = None
                while k > 0 and o2 % 32 != 0:
                    k -= 1
                    if out[k].kind in ('label', 'dir', 'mark'): continue
                    if out[k].kind == 'mfma' and (k + 1 == len(out) or out[k+1].kind not in ('salu', 'wait', 'nop', 'barrier')): pos = k + 1; break
                    o2 -= sz.get(id(out[k]), 4 if out[k].kind == 'nop' else 8)
                out.insert(len(out) if pos is None else pos, z); nn += 1
            off += 4; cand = None
        if off % 32 == 0: cand = None
        if s == 4 and x.kind in ('valu', 'trans') and x.op not in NOWIDE: cand = len(out)
        out.append(x); off += s
    align_pass.nst = nst
    return out, nw, nn, off

def place(main, groups, slots):
    out = S(); k = 0; m = -1
    for x in main:
        if x.kind == 'mfma':
            while k < len(groups) and slots[k] <= m: out.add(groups[k]); k += 1
            m += 1
        out.append(x)
    while k < len(groups): out.add(groups[k]); k += 1
    return out

SCAL = ('salu', 'wait', 'barrier', 'asmem', 'branch')
def pour(main, side, start=0, end=None):
    mf = [i for i, x in enumerate(main) if x.kind == 'mfma']
    end = len(mf) if end is None else min(end, len(mf))
    bounds = mf + [len(main)]
    def used(items):
        u = 0; sh = False
        for x in items:
            if (x.kind in SCAL or x.kind == 'mark') and not sh: sh = True; continue
            u += x.cost()
        return u, sh
    base = [used(main[bounds[g]+1:bounds[g+1]]) for g in range(start, end)]
    nsc = sum(1 for x in side if x.kind in SCAL)
    def attempt(L, pace):
        res = [[] for _ in base]; k = 0; n = len(side)
        cap = [max(0, L - u) for u, _ in base]; tot = sum(cap) or 1; acc = 0
        need = sum(x.cost() for x in side if x.kind not in SCAL); done = 0
        for g, (u, sh) in enumerate(base):
            acc += cap[g]
            while k < n:
                x = side[k]
                if glued(x) or x.kind == 'mark': pass
                elif x.kind in SCAL and not sh:
                    if pace and k > n * (g + 1) / len(base) + 2: break
                    sh = True; res[g].append(x); k += 1; continue
                elif u + x.cost() > L: break
                elif pace and x.kind not in SCAL and done > need * acc / tot: break
                u += x.cost()
                if x.kind not in SCAL: done += x.cost()
                res[g].append(x); k += 1
        return res if k == n else None
    L = 0; res = None
    while res is None:
        L += 4
        res = attempt(L, True) or attempt(L, False)
    out = S(); g = -1
    for i, x in enumerate(main):
        if x.kind == 'mfma':
            if start <= g < end: out.add(res[g-start])
            g += 1
        out.append(x)
    if start <= g < end: out.add(res[g-start])
    return out
```

```python
import sys, math, struct
from asmlib import *
import asmlib

NAME = "gated_mix__ssm_conv_s4__geglu_ffn__prompt"
OPT = dict(x_sync=0, x_strip=0, stamp=0, cl2=1, nst=6, sched=1, align=1, outsc=1, kbw=32, n0=8, n1=16, tp=16, kalo=0, kahi=60, tm=3, ap=1, margin=4, npre=6, fstr=128, rx=2, hpf=13, mpf=0, cl1=0, tlb=0, stlb=1, x_ack=0, x_pre=0, pafter=0, ra=0, rb=0, rc=0, wat=0, nc=8, ord=1, xlo=70, mvd=3, mvl=14, mvt=1, snt=0, f1l=0, f1p=30, al=224, ast=225, xs=1, rd=0, hin=0, eb=75, dp=1, wsb=0, f2s=4, nfl=12, x_nokw=0, x_npar=6, x_nokb=0, x_noka=0, thi=60, slo=55, dk=1, f3e=6, pour=1, hop=1, eoff=768, xo=0, dblk=3,
           slp=2, agw=1, f1=13, ntail=3, f2a=1, p2a=40, c2a=90, nha=1, nhx=1, wh2=60, c0=20, p2b=45, f3=7, p3=192, c3=0)
PROBE = None
DPOS = [0, 1, 2, 3, 5, 6, 7, 8]
CNT = [int(c, 16) for c in '68888884444666']
STSEL = 'start,karg,setup,ka,kb,B0,B1,B2,tail,A2,exp,C,D1,D2,E'.split(',')
for a in sys.argv[2:]:
    k, v = a.split('=')
    if k == 'probe': PROBE = v.split(',')
    elif k == 'st': STSEL = v.split(',')
    elif k == 'dpos': DPOS = [int(c, 16) for c in v]
    elif k == 'cnt': CNT = [int(c, 16) for c in v]
    else:
        assert k in OPT, k
        OPT[k] = int(v)
asmlib.MARGIN = OPT['margin']

def fbits(x): return struct.unpack('<I', struct.pack('<f', x))[0]
def hx(x): return hex(x & 0xffffffff)
vr = lambda a, n: f"v[{a}:{a+n-1}]" if n > 1 else f"v{a}"
ar = lambda a, n: f"a[{a}:{a+n-1}]" if n > 1 else f"a{a}"
sr = lambda a, n: f"s[{a}:{a+n-1}]" if n > 1 else f"s{a}"
LOG2E = math.log2(math.e)

ROT = OPT['ra'] or OPT['rb'] or OPT['rc']
NHELP = 32; NMAIN = 224
FS = OPT['fstr']; WS_F2 = 0xB00000; WS_F3 = WS_F2 + 256*FS
WS_G = 0x4000; WS_ST = 0x18000; WS_UT = 0x40000; WS_AT = 0x200000; WS_H = 0x400000; WS_END = 0xD00000
SLOT = 16384; NSLOT = 7
RING = 49152
SCR = 0; SCRW = 4352; SCRH = 4*SCRW
YA = 0; YAS = 8704
KFS = 4224; KF = SCRH
UTS = KF + 2*KFS; UTSW = 2048
UA = 2*SCRH; UAS = 4288
LDS_SIZE = 163840
assert UTS + 4*UTSW <= UA and UA + 2*UAS <= RING and RING + NSLOT*SLOT <= LDS_SIZE

sU, sAre, sAim, sBre, sBim, sCre, sCim, sLdt = 16, 18, 20, 22, 24, 26, 28, 30
sDsk, sBx, sWg, sWu, sWdn, sGw, sOut, sDbg, sWs = 32, 34, 36, 38, 40, 42, 44, 46, 48
rX, rW, rD, rWS, rO = 52, 56, 60, 64, 68
sW, sC, sXo, sWo, sDo = 3, 4, 5, 6, 7
sM0x, sM0w = 9, 10
sW1, sW2 = 11, 13
sT0, sT1 = 14, 15
sTmp = 16
sHst, sHld = 72, 73
sF2w, sF3w, sF2r, sF3r = 74, 75, 76, 77
sUTld, sATld, sGld, sOst = 78, 79, 80, 81
sLDv, sDSv = 82, 83
sScr = 84
sX_, sJ_, sMI, sII, sMB, sFC, sRB = 85, 86, 87, 88, 89, 90, 91
sK0, sK1 = 92, 94
sSpin = 96
sXe, sWe, sDe, sHe = 97, 98, 99, 51
sKb = 50
sOne, sPoll = 51, 99

vL16, vLane, vPoll, vZero, vG = 1, 2, 4, 5, 6
vWd, vWr, vXd, vXr = 8, 12, 16, 20
vDd = 16
vDr, vUo, vUw, vH1, vH2 = 24, 32, 33, 34, 35
vTr, vK, vK1 = 42, 43, 82
VI = [20, 21, 22, 23, 8, 9, 10, 11]; vKw, vKp = 84, 85
vFr, vGr, vYk, vYr, vYc = 36, 37, 38, 39, 40
AW, AR, AO, RW, RR, OW, OR_, OO = 42, 43, 44, 20, 21, 45, 46, 36
vWf = 48
vGt = 72; vC1 = 80
PARK = list(range(86, 128))
ACC1 = 128; ACC2 = 192
aU = 208
vS = 240
vPar = 83
vDk = 7
DACC = 64; E0 = 48
sYw = 8

stamps = []; asyncst = []
def stamp(s, name):
    if PROBE and name in PROBE:
        if name == 'karg': s(f"s_memrealtime {sr(100,2)}\ns_waitcnt lgkmcnt(0)")
        else: s(f"s_memrealtime {sr(20 if name == PROBE[1] else 100,2)}", "async")
    if OPT['stamp'] and name in STSEL:
        k = len(stamps); stamps.append(name)
        op = 's_memtime' if OPT['stamp'] == 1 else 's_memrealtime'
        if name in ('start', 'karg', 'setup'): s(f"{op} {sr(100,2)}\ns_waitcnt lgkmcnt(0)\nv_writelane_b32 v47, s100, {k}")
        else:
            asyncst.append(k); assert len(asyncst) <= 14
            s(f"{op} {sr(16+2*len(asyncst),2)}", "async")

slow = []
def poll(thr, base, off, sPoll=sPoll):
    k = len(slow)
    iss = S(); iss(f"s_mov_b32 s{sPoll}, 0"); iss(f"s_load_dword s{sPoll}, {sr(base,2)}, {off}", "async")
    chk = S(); chk(f"s_cmp_lt_u32 s{sPoll}, {thr}\ns_cbranch_scc1 L_slow{k}\nL_back{k}:"); chk[0].kind = 'branch'
    if OPT['ap'] and base == sWs:
        rd = f"s_mov_b32 s{sPoll}, 0\n    s_atomic_add s{sPoll}, {sr(base,2)}, {off} glc\n    s_waitcnt lgkmcnt(0)"
    else:
        rd = f"global_load_dword v{vPoll}, v{vZero}, {sr(base,2)} sc1\n    s_waitcnt vmcnt(0)\n    v_readfirstlane_b32 s{sPoll}, v{vPoll}\n    s_nop 0"
    back = f"L_out{k}" if OPT['stamp'] else f"L_back{k}"
    slow.append(f"""L_slow{k}:
    {'s_memtime s[100:101]' if OPT['stamp'] else ''}
    s_mov_b32 s{sKb}, 0
    s_waitcnt lgkmcnt(0)
    s_cmp_ge_u32 s{sPoll}, {thr}
    s_cbranch_scc1 {back}
    v_mov_b32 v{vZero}, {off}
L_spin{k}:
    s_add_u32 s{sKb}, s{sKb}, 1
    s_cmp_gt_u32 s{sKb}, 0x40000
    s_cbranch_scc1 {back}
    {rd}
    s_cmp_ge_u32 s{sPoll}, {thr}
    s_cbranch_scc1 {back}
    s_sleep {OPT['slp'] if base == sWs else 8}
    s_branch L_spin{k}""" + (f"""
L_out{k}:
    s_mov_b32 s12, s100
    s_memtime s[100:101]
    s_waitcnt lgkmcnt(0)
    s_sub_u32 s12, s100, s12
    v_writelane_b32 v47, s12, {20+k}
    v_writelane_b32 v47, s{sKb}, {25+k}
    s_branch L_back{k}""" if OPT['stamp'] else ""))
    return iss, chk
def flag(soff): return f"s_atomic_add s{sOne}, {sr(sWs,2)}, s{soff}"
def srd(r, p, n): return f"s_mov_b32 s{r}, s{p}\ns_mov_b32 s{r+1}, s{p+1}\ns_mov_b32 s{r+2}, {n}\ns_mov_b32 s{r+3}, 0x20000"

def setup_early():
    s = S(); a, b, c, d, e, f = range(vS, vS+6)
    s(f"""
    v_lshrrev_b32 v{a}, 6, v0
    s_sub_u32 s{sC}, s2, {NHELP}
    v_bfe_u32 v{e}, v0, 3, 3
    v_readfirstlane_b32 s{sW}, v{a}
    s_lshl_b32 s{sT0}, s{sC}, 10
    v_lshl_add_u32 v{vPar}, v0, 2, s{sT0}
    v_and_b32 v{b}, 7, v0
    v_lshrrev_b32 v{c}, 1, v{e}
    v_mul_u32_u24 v{e}, 896, v{e}
    s_bfe_u32 s{sMI}, s{sC}, 0x20003
    s_and_b32 s{sKb}, s{sC}, 6
    s_lshl1_add_u32 s{sMB}, s{sKb}, s{sMI}
    v_xor_b32 v{d}, v{b}, v{c}
    s_lshl2_add_u32 s{sT0}, s{sMB}, s{sW}
    s_mulk_i32 s{sT0}, {32*896}
    v_lshl_add_u32 v{vXd}, v{d}, 4, v{e}
    s_lshl_b32 s{sT1}, s{sKb}, 7
    s_add_u32 s{sXo}, s{sT0}, s{sT1}
    s_movk_i32 s{sT1}, {8*896-1024}
    v_xad_u32 v{vXd+1}, v{vXd}, 64, s{sT1}
    s_add_u32 s{sM0x}, s{sW}, {RING//4096}
    s_lshl_b32 s{sM0x}, s{sM0x}, 12
    s_lshl_b32 s{sT1}, s{sT1}, 1
    v_add_u32 v{vXd+2}, s{sT1}, v{vXd}
    v_add_u32 v{vXd+3}, s{sT1}, v{vXd+1}
    s_mov_b32 s{rX+2}, {2048*896}
    s_mov_b32 s{rX+3}, 0x20000
    """)
    t = S()
    t(f"""
    s_and_b32 s{sW1}, s{sW}, 1
    s_lshr_b32 s{sW2}, s{sW}, 1
    s_lshr_b32 s{sII}, s{sC}, 5
    s_and_b32 s{sFC}, s{sC}, 1
    s_mulk_i32 s{sFC}, 7
    s_add_u32 s{sFC}, s{sFC}, s{sII}
    s_lshl1_add_u32 s{sWo}, s{sKb}, s{sW2}
    s_mulk_i32 s{sWo}, 896
    s_add_u32 s{sWo}, s{sWo}, s{sFC}
    s_lshl_b32 s{sWo}, s{sWo}, 7
    s_lshl1_add_u32 s{sM0w}, s{sW1}, s{sW2}
    s_add_u32 s{sM0w}, s{sM0w}, {RING//4096}
    s_lshl_b32 s{sM0w}, s{sM0w}, 12
    v_and_b32 v{c}, 1, v{c}
    v_lshlrev_b32 v{c}, 1, v{c}
    v_xor_b32 v{f}, v{b}, v{c}
    v_lshl_add_u32 v{f}, v{f}, 2, v{e}
    v_lshlrev_b32 v{vWd}, 2, v{f}
    s_movk_i32 s{sT1}, {8*3584-1024}
    v_xad_u32 v{vWd+1}, v{vWd}, 64, s{sT1}
    s_lshl_b32 s{sT1}, s{sT1}, 1
    v_add_u32 v{vWd+2}, s{sT1}, v{vWd}
    v_add_u32 v{vWd+3}, s{sT1}, v{vWd+1}
    s_mov_b32 s{rW+2}, {448*3584}
    s_mov_b32 s{rW+3}, s{rX+3}
    """)
    u = S()
    u(f"""
    s_add_u32 s{sXe}, s{sT0}, 896
    s_sub_u32 s{sT1}, 7, s{sKb}
    s_mul_i32 s{sT1}, s{sT1}, {64*3584}
    s_add_u32 s{sWe}, s{sWo}, s{sT1}
    v_and_b32 v{vLane}, 63, v0
    v_lshlrev_b32 v{vL16}, 4, v{vLane}
    s_and_b32 s{sX_}, s{sC}, 7
    s_lshl2_add_u32 s{sRB}, s{sX_}, s{sMI}
    """)
    return s, t, u

def setup_scalar():
    s = S(); sT0, sT1, sSpin = 0, 1, 2
    s(f"""
    ; h store / F2 write
    s_lshl1_add_u32 s{sT0}, s{sMB}, s{sW2}
    s_lshl1_add_u32 s{sT1}, s{sFC}, s{sW1}
    s_mul_i32 s{sHst}, s{sT0}, 56
    s_add_u32 s{sHst}, s{sHst}, s{sT1}
    s_lshl_b32 s{sHst}, s{sHst}, 12
    s_add_u32 s{sHst}, s{sHst}, {WS_H}
    s_mul_i32 s{sSpin}, s{sT1}, 37
    s_lshr_b32 s{sSpin}, s{sSpin}, 8
    s_lshl2_add_u32 s{sT0}, s{sT0}, s{sSpin}
    s_mul_i32 s{sT0}, s{sT0}, {FS}
    s_add_u32 s{sF2w}, s{sT0}, {WS_F2}
    s_mov_b32 s{sOne}, 1
    s_mul_i32 s{sT0}, s{sW}, 7
    s_mul_i32 s{sHld}, s{sRB}, 56
    s_add_u32 s{sHld}, s{sHld}, s{sT0}
    s_lshl_b32 s{sHld}, s{sHld}, 12
    s_add_u32 s{sHld}, s{sHld}, {WS_H}
    s_lshl2_add_u32 s{sT1}, s{sRB}, s{sW}
    s_mul_i32 s{sF2r}, s{sT1}, {FS}
    s_add_u32 s{sF2r}, s{sF2r}, {WS_F2}
    s_mul_i32 s{sDo}, s{sW}, {224*896}
    s_lshl_b32 s{sT1}, s{sII}, 7
    s_add_u32 s{sDo}, s{sDo}, s{sT1}
    ; uT load / aT store
    s_mul_i32 s{sUTld}, s{sW}, {8*57344}
    s_lshl_b32 s{sT1}, s{sC}, 8
    s_add_u32 s{sUTld}, s{sUTld}, s{sT1}
    s_add_u32 s{sUTld}, s{sUTld}, {WS_UT}
    """)
    if not OPT['snt']: s(f"""
    s_lshr_b32 s{sT0}, s{sC}, 5
    s_lshl2_add_u32 s{sT0}, s{sT0}, s{sW}
    s_bfe_u32 s{sT1}, s{sC}, 0x10004
    s_lshl1_add_u32 s{sT0}, s{sT0}, s{sT1}
    s_mul_i32 s{sT0}, s{sT0}, {FS}
    s_add_u32 s{sF3w}, s{sT0}, {WS_F3}
    s_lshr_b32 s{sT0}, s{sRB}, 3
    s_lshl2_add_u32 s{sT0}, s{sII}, s{sT0}
    s_lshl1_add_u32 s{sT0}, s{sT0}, s{sW1}
    s_mul_i32 s{sF3r}, s{sT0}, {FS}
    s_add_u32 s{sF3r}, s{sF3r}, {WS_F3}
    """)
    s(f"""
    ; aT load, out store, g load
    s_lshl1_add_u32 s{sT0}, s{sII}, s{sW1}
    s_mul_i32 s{sT1}, s{sRB}, 57344
    s_lshl_b32 s{sATld}, s{sT0}, 6
    s_add_u32 s{sOst}, s{sATld}, s{sT1}
    s_add_u32 s{sATld}, s{sATld}, s{sW2}
    s_lshl_b32 s{sATld}, s{sATld}, 6
    s_add_u32 s{sATld}, s{sATld}, s{sT1}
    s_add_u32 s{sATld}, s{sATld}, {WS_AT}
    s_mul_i32 s{sT0}, s{sW2}, {32*896}
    s_add_u32 s{sOst}, s{sOst}, s{sT0}
    s_lshl1_add_u32 s{sT0}, s{sRB}, s{sW2}
    s_lshl_b32 s{sGld}, s{sT0}, 7
    s_add_u32 s{sGld}, s{sGld}, {WS_G}
    """)
    if OPT['rd']:
        s(f"""s_add_u32 s{sMB}, s{sDo}, {224*896}
        s_add_u32 s{sFC}, s{sHld}, {7*4096}
        s_mul_i32 s{sT0}, s{sII}, {32*896}
        s_add_u32 s{sDo}, s{sDo}, s{sT0}
        s_lshl_b32 s{sT0}, s{sII}, 12
        s_add_u32 s{sHld}, s{sHld}, s{sT0}""")
    return s

P_RAW = 232
def first_loads():
    s = S()
    for k, p in enumerate((sAre, sAim, sBre, sBim, sCre, sCim)[:OPT['x_npar']]):
        s(f"global_load_dword v{P_RAW+k}, v{vPar}, {sr(p,2)}", f"par{k}")
        if k == 0: s("L_par0:")
    s(f"""s_mov_b64 {sr(rX,2)}, {sr(sU,2)}
    s_cmp_eq_u32 s{sW1}, 1
    s_cselect_b64 {sr(rW,2)}, {sr(sWu,2)}, {sr(sWg,2)}""")
    t = S()
    t(f"""s_lshl_b32 s{sLDv}, s{sC}, 2
    s_load_dword s{sDSv}, {sr(sDsk,2)}, s{sLDv}
    s_load_dword s{sLDv}, {sr(sLdt,2)}, s{sLDv}""")
    if OPT['wsb']: t(f"s_add_u32 s{sWs}, s{sWs}, {OPT['wsb']<<20}\ns_addc_u32 s{sWs+1}, s{sWs+1}, 0")
    return s, t

def setup_AB():
    s = S(); a, b, c, d, e, f, g, h = range(vS, vS+8)
    s(f"""
    {srd(rWS, sWs, WS_END)}
    {srd(rO, sOut, 2048*896)}
    v_mov_b32 v{c}, 0
    v_min_u32 v{f}, 39, v{vLane}
    v_lshlrev_b32 v{f}, 2, v{f}
    ds_write_b32 v{f}, v{c} offset:{UA}
    ds_write_b32 v{f}, v{c} offset:{UA+UAS}
    v_and_b32 v{a}, 15, v{vLane}
    s_lshl_b32 s{sT0}, s{sW2}, 13
    s_add_u32 s{sT0}, s{sT0}, {RING}
    v_lshl_add_u32 v{a}, v{a}, 7, s{sT0}
    v_bfe_u32 v{g}, v{vLane}, 1, 3
    v_lshrrev_b32 v{h}, 4, v{vLane}
    v_xor_b32 v{g}, v{g}, v{h}
    v_lshl_add_u32 v{vXr}, v{g}, 4, v{a}
    v_xor_b32 v{vXr+1}, 64, v{vXr}
    v_add_u32 v{vXr+2}, 0x10000, v{vXr}
    v_add_u32 v{vXr+3}, 0x10000, v{vXr+1}
    v_bfe_u32 v{a}, v{vLane}, 2, 2
    v_and_b32 v{b}, 3, v{vLane}
    v_bfe_u32 v{e}, v{vLane}, 3, 2
    s_lshl_b32 s{sT0}, s{sW1}, 1
    v_xor_b32 v{e}, s{sT0}, v{e}
    s_mov_b32 s{sT1}, {RING}
    v_lshl_add_u32 v{b}, v{b}, 3, s{sT1}
    v_lshl_add_u32 v{a}, v{h}, 3, v{a}
    v_lshl_add_u32 v{e}, v{e}, 5, v{b}
    v_lshl_add_u32 v{vWr}, v{a}, 7, v{e}
    v_xor_b32 v{vWr+1}, 32, v{vWr}
    v_add_u32 v{vWr+2}, 0x10000, v{vWr}
    v_add_u32 v{vWr+3}, 0x10000, v{vWr+1}
    """)
    return s

def setup_start2():
    s = S(); a, b, c, d, e, f, g, h = range(vS, vS+8)
    c0 = -2*math.sqrt(2/math.pi)*LOG2E
    s(f"""
    v_and_b32 v{a}, 15, v{vLane}
    v_lshrrev_b32 v{b}, 4, v{vLane}
    v_bfe_u32 v{e}, v{vLane}, 3, 1
    v_mul_u32_u24 v{c}, 544, v{a}
    v_lshl_add_u32 v{d}, v{b}, 4, s{sScr}
    v_mul_u32_u24 v{e}, {SCRH-8*544}, v{e}
    v_add3_u32 v{vTr}, v{c}, v{d}, v{e}
    v_lshl_add_u32 v{c}, v{b}, 7, v{a}
    s_add_u32 s{sT0}, s{sScr}, 2048
    v_lshl_add_u32 v{vK1}, v{c}, 2, s{sT0}
    v_max_u32 v{c}, 1, v{b}
    v_sub_u32 v{c}, 6, v{c}
    v_lshlrev_b32 v{e}, v{c}, v{a}
    v_cmp_gt_u32 vcc, 2, v{b}
    v_lshl_add_u32 v{f}, v{b}, 9, s{sScr}
    v_cndmask_b32 v{f}, v{f}, v{d}, vcc
    v_add_u32 v{vK}, v{f}, v{e}
    v_cmp_eq_u32 vcc, 3, v{b}
    v_mov_b32 v{e}, 256
    v_lshlrev_b32 v{c}, v{c}, 16
    v_cndmask_b32 v{e}, 8, v{e}, vcc
    v_add_u32 v{vK+2}, v{vK}, v{c}
    v_add_u32 v{vK+1}, v{vK}, v{e}
    v_add_u32 v{vK+3}, v{vK+2}, v{e}
    s_mov_b32 s{sK0}, {hx(fbits(c0))}
    s_mov_b32 s{sK0+1}, {hx(fbits(c0))}
    s_mov_b32 s{sK1}, 1.0
    s_mov_b32 s{sK1+1}, 1.0
    v_mov_b32 v{vC1}, {hx(fbits(c0*0.044715))}
    v_mov_b32 v{vC1+1}, {hx(fbits(c0*0.044715))}
    v_lshrrev_b32 v{a}, 3, v{vLane}
    v_and_b32 v{b}, 7, v{vLane}
    v_mul_u32_u24 v{a}, 57344, v{a}
    v_lshlrev_b32 v{vUw}, 4, v0
    v_lshl_add_u32 v{vUo}, v{b}, 4, v{a}
    v_and_b32 v{b}, 3, v{vLane}
    v_bfe_u32 v{e}, v{vLane}, 3, 2
    s_lshl_b32 s{sT0}, s{sW1}, 1
    v_lshrrev_b32 v{f}, 2, v{vLane}
    v_xor_b32 v{e}, s{sT0}, v{e}
    v_lshl_add_u32 v{g}, v{b}, 3, s{sM0x}
    v_lshl_add_u32 v{g}, v{f}, 7, v{g}
    v_lshl_add_u32 v{vDr}, v{e}, 5, v{g}
    v_xor_b32 v{vDr+1}, 32, v{vDr}
    v_xor_b32 v{vDr+2}, 64, v{vDr}
    v_xor_b32 v{vDr+3}, 96, v{vDr}
    v_add_u32 v{vDr+4}, 0x10000, v{vDr}
    v_add_u32 v{vDr+5}, 0x10000, v{vDr+1}
    v_add_u32 v{vDr+6}, 0x10000, v{vDr+2}
    v_add_u32 v{vDr+7}, 0x10000, v{vDr+3}
    s_lshl_b32 s{sT0}, s{sW2}, 11
    v_add_u32 v{vH1}, s{sT0}, v{vL16}
    v_xor_b32 v{vH2}, 0x800, v{vH1}
    v_and_b32 v{vG}, 15, v{vLane}
    v_lshlrev_b32 v{vG}, 2, v{vG}
    """)
    return s

def touches():
    s = S()
    sT0, sT1 = sMI, sX_
    s(f"""s_lshl2_add_u32 s{sT0}, s{sC}, s{sW}
    s_lshr_b32 s{sT1}, s{sT0}, 1
    s_mul_i32 s{sT0}, s{sT0}, {14*128}
    s_mul_i32 s{sT1}, s{sT1}, 3584
    v_min_u32 v{vPoll}, 13, v{vLane}
    v_lshlrev_b32 v{vPoll}, 7, v{vPoll}""")
    if OPT['tlb']:
        s(f"""v_mov_b32 v{vS}, 0
        buffer_load_dword v{vS+1}, v{vS}, {sr(rWS,4)}, s{sHst} offen sc1
        buffer_load_dword v{vS+2}, v{vS}, {sr(rO,4)}, s{sOst} offen sc1
        v_min_u32 v{vS+3}, 6, v{vLane}
        v_lshlrev_b32 v{vS+3}, 21, v{vS+3}
        buffer_load_dword v{vS+4}, v{vS+3}, {sr(rWS,4)}, 0 offen offset:0 sc1""")
    if OPT['mpf'] & 4: s(f"buffer_load_dword v{vS+5}, v{vPoll}, {sr(rW,4)}, s{sT1} offen")
    if OPT['mpf'] & 2: s(f"buffer_load_dword v3, v{vPoll}, {sr(rW,4)}, s{sT1} offen offset:1792")
    if OPT['mpf'] & 1: s(f"buffer_load_dword v{vZero}, v{vPoll}, {sr(rD,4)}, s{sT0} offen")
    return s

def setup_dd():
    s = S(); a, b, c = range(vS, vS+3)
    s(f"""
    v_lshrrev_b32 v{a}, 3, v{vLane}
    v_and_b32 v{b}, 7, v{vLane}
    v_lshrrev_b32 v{c}, 4, v{vLane}
    v_mul_u32_u24 v{a}, 896, v{a}
    v_lshlrev_b32 v{c}, 1, v{c}
    v_xor_b32 v{b}, v{b}, v{c}
    v_lshl_add_u32 v{vDd}, v{b}, 4, v{a}
    v_add_u32 v{vDd+1}, {1*(8*896-1024)}, v{vDd}
    v_add_u32 v{vDd+2}, {2*(8*896-1024)}, v{vDd}
    v_add_u32 v{vDd+3}, {3*(8*896-1024)}, v{vDd}""")
    return s

def setup_exp():
    s = S(); a, b, c, d, e, f, g, h = range(vS, vS+8); vI = vGt
    s(f"""v_lshlrev_b32 v{vKw}, 2, v0
    v_cvt_f32_u32 v{a}, v0
    s_mov_b32 s{sT0}, {hx(17024*0x10001)}
    v_add_f32 v{a}, v{a}, v{a}""")
    for e_ in range(4):
        p, q = (b, c) if e_ % 2 == 0 else (d, e)
        s(f"""v_add_f32 v{p}, {hx(fbits(512.0*e_))}, v{a}
        v_add_f32 v{q}, {hx(fbits(512.0*e_+1))}, v{a}
        v_cvt_pk_bf16_f32 v{p}, v{p}, v{q}
        v_subrev_u32 v{p}, s{sT0}, v{p}
        v_lshlrev_b32 v{vI+e_}, 2, v{p}""")
    s(f"""v_cmp_gt_u32 vcc, 64, v0
    v_mul_u32_u24 v{f}, 0x80008, v0
    v_add_u32 v{f}, 0x40000, v{f}
    v_cndmask_b32 v{vI}, v{vI}, v{f}, vcc
    v_mov_b32 v{vPar}, 0
    v_cmp_eq_u32 vcc, 0, v0
    v_mov_b32 v{g}, s{sDSv}
    v_cndmask_b32 v{vDk}, 0, v{g}, vcc
    v_min_u32 v{vKp}, 23, v{vLane}
    v_lshlrev_b32 v{vKp}, 2, v{vKp}""")
    return s

def setup_conv():
    s = S(); a, b, c, d, e, f, g, h = range(vS, vS+8)
    s(f"""
    v_lshrrev_b32 v{a}, 3, v0
    v_and_b32 v{b}, 7, v0
    v_mul_u32_u24 v{e}, 272, v{a}
    v_cmp_eq_u32 vcc, 0, v{b}
    v_cmp_ne_u32 {sr(sTmp,2)}, 0, v{a}
    v_lshl_add_u32 v{vYr}, v{b}, 5, v{e}
    s_and_b64 vcc, vcc, {sr(sTmp,2)}
    v_mov_b32 v{f}, {UA}
    v_add_u32 v{g}, {YAS-16}, v{e}
    v_add_u32 v{e}, -16, v{e}
    v_cndmask_b32 v{vYc+1}, v{f}, v{g}, vcc
    v_cndmask_b32 v{vYc}, v{f}, v{e}, vcc
    v_bfe_u32 v{a}, v{vLane}, 2, 2
    v_and_b32 v{b}, 3, v{vLane}
    v_lshrrev_b32 v{c}, 4, v{vLane}
    v_lshl_add_u32 v{c}, v{c}, 3, v{a}
    v_lshlrev_b32 v{c}, 3, v{c}
    s_mul_i32 s{sT0}, s{sW2}, {KFS}
    s_add_u32 s{sT0}, s{sT0}, {KF}
    v_lshl_add_u32 v{d}, v{b}, 5, s{sT0}
    v_add_u32 v{vFr}, v{d}, v{c}
    s_mul_i32 s{sT0}, s{sW2}, {UAS}
    s_lshl_b32 s{sT1}, s{sW1}, 7
    s_add_u32 s{sT0}, s{sT0}, s{sT1}
    s_add_u32 s{sT0}, s{sT0}, {UA+160+96-32}
    v_lshl_add_u32 v{h}, v{b}, 3, s{sT0}
    v_sub_u32 v{vGr}, v{h}, v{c}
    s_mul_i32 s{sT0}, s{sW2}, {YAS}
    s_mul_i32 s{sT1}, s{sW1}, 272
    s_add_u32 s{sYw}, s{sT0}, s{sT1}
    s_add_u32 s{sT0}, s{sYw}, {hx(256-48*544)}
    v_mov_b32 v{e}, 544
    v_add_u32 v{g}, {UTS}, v{vL16}
    v_cmp_lt_u32 vcc, 47, v{vLane}
    v_mad_u32_u24 v{e}, v{e}, v{vLane}, s{sT0}
    v_cndmask_b32 v{vYk}, v{g}, v{e}, vcc
    """)
    return s

def setup_E():
    t = S(); a, b, c, d = 56, 57, 58, 59
    t(f"""
    v_lshrrev_b32 v{a}, 2, v{vLane}
    v_and_b32 v{b}, 3, v{vLane}
    s_lshl_b32 s{sT1}, s{sW}, 11
    s_add_u32 s{sT1}, s{sT1}, {UTS}
    v_lshl_add_u32 v{c}, v{b}, 3, s{sT1}
    v_add_u32 v{AW}, s{sT1}, v{vL16}
    v_lshlrev_b32 v{b}, 4, v{b}
    v_mul_u32_u24 v{OO}, 896, v{a}
    v_mul_u32_u24 v{OR_}, 80, v{a}
    v_lshl_add_u32 v{AO}, v{a}, 7, v{b}
    v_lshl_add_u32 v{AR}, v{a}, 6, v{c}
    v_add_u32 v{OO}, v{OO}, v{b}
    v_add3_u32 v{OR_}, v{OR_}, v{b}, s{sM0x}
    v_add_u32 v{RW}, s{sM0x}, v{vL16}
    v_and_b32 v{a}, 15, v{vLane}
    v_lshrrev_b32 v{d}, 4, v{vLane}
    v_xor_b32 v{RR}, 0x1000, v{RW}
    v_xor_b32 v{RR+1}, 0x2000, v{RW}
    v_xor_b32 v{RR+2}, 0x3000, v{RW}
    v_mul_u32_u24 v{a}, 80, v{a}
    v_lshl_add_u32 v{d}, v{d}, 3, s{sM0x}
    v_add_u32 v{OW}, v{a}, v{d}
    """)
    for ml in range(2):
        t(f"""v_and_b32 v{8+4*ml}, 0xffff, v{vG+ml}
        v_lshlrev_b32 v{9+4*ml}, 16, v{vG+ml}
        v_and_b32 v{10+4*ml}, 0xffff0000, v{vG+ml}
        v_and_b32 v{11+4*ml}, 0xffff0000, v{vG+ml}""")
    return t

SLOTS = {0: [], 2: [13, 30], 4: [5, 13, 21, 30], 5: [2, 8, 14, 21, 30], 6: [2, 8, 13, 17, 24, 30], 7: [2, 5, 11, 14, 17, 24, 30],
         8: [2, 6, 10, 14, 17, 22, 26, 31]}
def plan_b():
    pos = [32*k + p for k in range(14) for p in SLOTS[CNT[k]]]
    nw = 4*(21 - OPT['npre'])
    assert (len(pos) - nw) % 4 == 0 and len(pos) >= nw
    for j in range(nw):
        n = OPT['npre'] + j//4
        if n >= 7: assert pos[j] >= 32*((n-7)//2) + 20, ('slot busy', n)
        need = n//2 if n < 14 else n - 7
        assert pos[j] < 32*(need-1) + 19, ('late', n)
    plan_b.lastw = pos[nw-1]
    nb = (len(pos) - nw)//4
    free = [(32*(7+q) + 20, q) for q in range(7)]
    slot = []; moves = {}; half = -1
    for u in range(14):
        first = pos[nw+4*u] if u < nb else 10**6
        free.sort()
        assert free[0][0] <= first, ('no slot for Wd unit', u)
        t, q = free.pop(0); slot.append(q)
        if u < 7:
            h = max(half + 1, (pos[nw+4*u+3] + 2*OPT['mvl'] + 15)//16, 14+u+1) if u < nb else 99
            if h < 28: moves[u] = h; half = h; free.append((16*h + 22, q))
            else: free.append((10000 + u, q))
    return nb, slot, moves
NB, USLOT, MOVES = plan_b()

def adv(s, so, step, en, span, extra):
    s(f"""s_add_u32 s{so}, s{so}, {step}
    s_cmp_eq_u32 s{so}, s{en}
    s_cselect_b32 s{sSpin}, {span}, 0
    s_sub_u32 s{so}, s{so}, s{sSpin}""")
    if extra: s(f"s_add_u32 s{so}, s{so}, {extra}\ns_add_u32 s{en}, s{en}, {extra}")

def item(n):
    if n < 14 and n % 2 == 0: m0, va, rs, so, step, en, ex = sM0x, vXd, rX, sXo, 128, sXe, 0
    elif n < 21: m0, va, rs, so, step, en, ex = sM0w, vWd, rW, sWo, 64*3584, sWe, (1792 if n == 13 else 0)
    else: m0, va, rs, so, step, en, ex = sM0x, vDd, rD, sDo, 32*896, sDe, (896*896 if n == 27 else 0)
    s = S()
    s(f"s_add_u32 m0, s{m0}, {(n % NSLOT if n < 21 else USLOT[n-21])*SLOT}")
    for q in range(4):
        s(f"buffer_load_dwordx4 v{va+q}, {sr(rs,4)}, s{so} offen offset:{1024*q} lds", f"it{n}")
    if n >= 21:
        if n != 34 and OPT['rd']: adv(s, so, step, sMB, 7*step, ex)
        elif n != 34: s(f"s_add_u32 s{so}, s{so}, {step if n != 27 else (896-6*32)*896}")
    elif n not in (12, 20): adv(s, so, step, en, 7*step, ex)
    return s

def split_vm(st):
    grp = []
    for x in st:
        if not grp or (x.kind in VM_KINDS and any(y.kind in VM_KINDS for y in grp[-1])): grp.append(S())
        grp[-1].append(x)
    return grp

def sprinkle(main, groups, lo=0.0, hi=1.0):
    out = S(); n = len(main); g = 0
    pos = [int(n*(lo + (hi-lo)*k/max(1, len(groups)))) for k in range(len(groups))]
    for i, x in enumerate(main):
        while g < len(groups) and pos[g] <= i and not glued(x):
            out.add(groups[g]); g += 1
        out.append(x)
    while g < len(groups): out.add(groups[g]); g += 1
    return out

NEG = "neg_lo:[1,0,0] neg_hi:[1,0,0]"
def cmul(s, d, x, z, pk):
    assert d != x and d != z
    if pk:
        s(f"""v_pk_mul_f32 {vr(d,2)}, {vr(x,2)}, {vr(z,2)}
        v_pk_mul_f32 {vr(d+2,2)}, {vr(x,2)}, {vr(z+2,2)}
        v_pk_fma_f32 {vr(d,2)}, {vr(x+2,2)}, {vr(z+2,2)}, {vr(d,2)} {NEG}
        v_pk_fma_f32 {vr(d+2,2)}, {vr(x+2,2)}, {vr(z,2)}, {vr(d+2,2)}""")
    else:
        for k in range(2): s(f"v_mul_f32 v{d+k}, v{x+k}, v{z+k}")
        for k in range(2): s(f"v_mul_f32 v{d+2+k}, v{x+k}, v{z+2+k}")
        for k in range(2): s(f"v_fma_f32 v{d+k}, -v{x+2+k}, v{z+2+k}, v{d+k}")
        for k in range(2): s(f"v_fmac_f32 v{d+2+k}, v{x+2+k}, v{z+k}")

def tile_w(t, regs, n):
    for r in range(n):
        for h in range(2):
            t(f"ds_write_addtid_b32 {regs(2*r+h)} offset:{(r&7)*544+(r>>3)*SCRH+256*h}")

FR = {0: ACC2, 1: ACC1, 2: ACC1+32, 3: ACC2+32}
def tile_r(t, k):
    for ks in range(8): t(f"ds_read_b128 {vr(FR[k]+4*ks,4)}, v{vTr} offset:{64*ks}")

def krows():
    s = S()
    R = ACC1
    A_, B_, C_, Dt, T = R, R+4, R+8, R+12, R+16
    Z8, Z16 = vGt, vGt+4
    Z1, Z256, W, Z2, Z512 = [R+28+4*k for k in range(5)]
    E = [R, R+4, R+8, R+12]; V = [R+16, R+20, R+24, R+56, R+60]
    for k in range(6):
        s(f"v_lshlrev_b32 v{R+2*k}, 16, v{P_RAW+k}\nv_and_b32 v{R+2*k+1}, 0xffff0000, v{P_RAW+k}")
    s(f"""
    s_lshl_b32 s{sT1}, s{sW2}, 4
    s_lshr_b32 s{sT1}, s{sLDv}, s{sT1}
    s_lshl_b32 s{sT1}, s{sT1}, 16
    v_mov_b32 v{Dt}, {hx(fbits(LOG2E))}
    v_mul_f32 v{Dt}, s{sT1}, v{Dt}
    v_exp_f32 v{Dt}, v{Dt}
    v_cvt_pk_bf16_f32 v{Dt}, 0, v{Dt}
    v_mov_b32 v{Dt+1}, v{Dt}
    """)
    for k in (A_, A_+2, B_, B_+2): s(f"v_pk_mul_f32 {vr(k,2)}, {vr(k,2)}, {vr(Dt,2)}")
    def prim(p, z, t):
        c1 = hx(fbits(p*LOG2E)); c2 = hx(fbits(p/(2*math.pi)))
        for k in range(2): s(f"v_mul_f32 v{t+k}, {c1}, v{A_+k}\nv_mul_f32 v{t+2+k}, {c2}, v{A_+2+k}")
        for k in range(2): s(f"v_exp_f32 v{t+k}, v{t+k}\nv_fract_f32 v{t+2+k}, v{t+2+k}")
        for k in range(2): s(f"v_cos_f32 v{z+k}, v{t+2+k}\nv_sin_f32 v{z+2+k}, v{t+2+k}")
        s(f"v_pk_mul_f32 {vr(z,2)}, {vr(z,2)}, {vr(t,2)}\nv_pk_mul_f32 {vr(z+2,2)}, {vr(z+2,2)}, {vr(t,2)}")
    prim(1, Z1, T); prim(256, Z256, T+4); prim(8, Z8, T+8)
    cmul(s, W, C_, B_, 1)
    def row(t, o0, o1, x, neg):
        m = '-' if neg else ''
        t(f"v_cvt_pk_bf16_f32 v{o0}, v{x}, v{x+1}\nv_cvt_pk_bf16_f32 v{o1}, {m}v{x+2}, {m}v{x+3}")
    cmul(s, Z2, Z1, Z1, 1); cmul(s, Z512, Z256, Z256, 1); cmul(s, Z16, Z8, Z8, 1)
    S0, S1 = V[3], V[4]
    ops = [(None, W, None, 0), (V[0], W, Z1, 1),
           (V[1], W, Z2, 2), (Z1, V[0], Z2, 3),
           (V[2], W, Z256, 8), (V[0], V[1], Z256, 9),
           (S0, W, Z512, 12), (S1, V[2], Z512, 14),
           (W, V[1], Z2, 4), (V[0], Z1, Z2, 5),
           (V[1], W, Z2, 6), (Z1, V[0], Z2, 7),
           (V[2], W, Z256, 10), (V[0], V[1], Z256, 11),
           (Z1, W, Z512, 13), (V[1], V[2], Z512, 15),
           (V[0], S0, Z512, 16), (V[2], S1, Z512, 17), (S0, V[0], Z512, 18), (S1, V[2], Z512, 19), (V[0], S0, Z512, 20)]
    for d, x, z, r in ops:
        if d is not None: cmul(s, d, x, z, 1)
        o = (ACC2+2*r, ACC2+2*r+1) if r < 16 else (PARK[2*r], PARK[2*r+1])
        row(s, o[0], o[1], x if d is None else d, 1)
    w = S()
    w(f"s_mov_b32 m0, s{sScr}")
    tile_w(w, lambda k: f"v{ACC2+k}", 16)
    b = S(); mv = S()
    b(f"v_mov_b32 v{PARK[0]}, 0x3f803f80\nv_mov_b32 v{PARK[1]}, 0")
    row(b, PARK[2], PARK[3], Z8, 0); row(b, PARK[4], PARK[5], Z16, 0)
    cur = {0: Z16, 1: Z8}
    E = [ACC2+4*k for k in range(4)]
    for i in range(3, 32):
        nx = E[i % 4]; t = b if i < OPT['kbw'] else mv
        cmul(t, nx, cur[i % 2], Z16, i < OPT['kbw'])
        if i < 16: row(t, PARK[2*i], PARK[2*i+1], nx, 0)
        else:
            o = ACC2 + 16 + 2*(i % 4)
            row(t, o, o+1, nx, 0)
            t(f"v_accvgpr_write_b32 a{192+2*i}, v{o}\nv_accvgpr_write_b32 a{193+2*i}, v{o+1}")
        cur[i % 2] = nx
    return s, w, b, mv

def stageA():
    p = S()
    rd = tile_r; fr = FR
    D = [48, 52, 56, 60]
    def mm(at, bt):
        t = S()
        for ks in range(8):
            d = vr(D[2*at+bt], 4)
            t(f"v_mfma_f32_16x16x32_bf16 {d}, {vr(fr[2+at]+4*ks,4)}, {vr(fr[bt]+4*ks,4)}, {d if ks else 0}")
        return t
    p(f"s_mov_b32 m0, s{sScr}")
    uw = f"ds_write_b128 v{vUw}, {ar(aU,4)} offset:{UA+160}\nds_write_b128 v{vUw}, {ar(aU+4,4)} offset:{UA+160+UAS}"
    if not OPT['f1l']: p(uw)
    tile_w(p, lambda k: f"v{PARK[32+k]}", 5); rd(p, 3)
    tile_w(p, lambda k: f"v{PARK[k]}", 16); rd(p, 0)
    t = S(); tile_w(t, lambda k: f"v{ACC1+k}", 16); rd(t, 1)
    p.add(t[:8]).add(weave(mm(0, 0).add(mm(1, 0)), S(t[8:])))
    def pl0(bt): return f"ds_write_b64 v{vK+2*bt}, {vr(D[bt],2)}\nds_write_b64 v{vK+2*bt+1}, {vr(D[bt]+2,2)}"
    def pl1(bt): return "\n".join(f"ds_write2_b32 v{vK1}, v{D[2+bt]+jj}, v{D[2+bt]+jj+1} offset0:{16*bt+32*jj} offset1:{16*bt+32*jj+32}" for jj in (0, 2))
    p(pl0(0))
    p.add(weave(mm(0, 1), S()(pl1(0)), start=2)).add(weave(mm(1, 1), S()(pl0(1)), start=4))
    if OPT['f1l']: p(uw)
    p(pl1(1))
    x = S(); x2 = S()
    X = 92
    XS = OPT['xs']
    x.wait_lg(); x("s_barrier")
    for k in range(8):
        (x2 if XS and k >= 2 else x)(f"ds_read2st64_b32 {vr(X+4*k,2)}, v{VI[k//2+4*(k&1)]} offset0:0 offset1:34\nds_read2st64_b32 {vr(X+4*k+2,2)}, v{VI[k//2+4*(k&1)]} offset0:17 offset1:51")
    x(f"ds_write_b32 v{vKp}, v{vPar} offset:{KF}\nds_write_b32 v{vKp}, v{vPar} offset:{KF+KFS}")
    for e in range(0, 4): x(g_read(e))
    for e_ in range(4):
        k0, k1 = X+8*e_, X+8*e_+4
        if e_ == 0 and OPT['dk']: x(f"v_pk_add_f32 {vr(k0+2,2)}, {vr(k0+2,2)}, v[12:13]")
        if XS and e_:
            x2(f"v_add_f32 v{k0}, v{k0}, v{k0+2}\nv_add_f32 v{k1}, v{k1}, v{k1+2}\nv_add_f32 v{k0+1}, v{k0+1}, v{k0+3}\nv_add_f32 v{k1+1}, v{k1+1}, v{k1+3}")
        else: x(f"v_pk_add_f32 {vr(k0,2)}, {vr(k0,2)}, {vr(k0+2,2)}\nv_pk_add_f32 {vr(k1,2)}, {vr(k1,2)}, {vr(k1+2,2)}")
        (x2 if XS and e_ else x)(f"v_cvt_pk_bf16_f32 v{k0+2}, v{k0}, v{k1}\nv_cvt_pk_bf16_f32 v{k0+3}, v{k0+1}, v{k1+1}")
    for e_ in range(4):
        k0 = X+8*e_
        (x2 if XS and e_ else x)(f"ds_write_b32 v{vKw}, v{k0+2} offset:{KF+96+1024*e_}\nds_write_b32 v{vKw}, v{k0+3} offset:{KF+96+KFS+1024*e_}")
    x[-1].tok = "kf"
    if XS: x2[-1].tok = "kf2"
    for e in range(4, 8): x(g_read(e))
    x.wait_lg("kf"); x("s_barrier")
    stageA.x2 = x2
    return p, x

def lds_addr(base_lo, nset, k, slot, off):
    hi = slot >= 4
    return f"v{base_lo + k + (nset if hi else 0)}", (slot - (4 if hi else 0))*SLOT + off

def b_reads(i):
    s_, ks = divmod(i, 2)
    wslot = (2*s_+1) % NSLOT if s_ < 7 else (7+s_) % NSLOT
    wr = []
    for t in range(4):
        n = 4*i + t
        for h in range(2):
            a, o = lds_addr(vWr, 2, t & 1, wslot, (t >> 1)*8192 + ks*4096 + h*512)
            wr.append((f"ds_read_b64_tr_b16 {vr(vWf+4*(n%6)+2*h,2)}, {a} offset:{o}", f"br{n}"))
    if s_ < 7:
        xr = []
        for mt in range(4):
            a, o = lds_addr(vXr, 2, ks, (2*s_) % NSLOT, mt*2048)
            xr.append((f"ds_read_b128 {ar(16*i+4*mt,4)}, {a} offset:{o}", f"br{4*i}"))
        return wr[:2] + xr + wr[2:] if not OPT['xo'] else [xr[0], wr[0], xr[1], wr[1], xr[2], wr[2], xr[3]] + wr[3:]
    return wr

def b_mfma(n, mt):
    i, t = divmod(n, 4)
    d = vr((ACC1 if i < 14 else ACC2) + 16*mt + 4*t, 4)
    return f"v_mfma_f32_16x16x32_bf16 {d}, {vr(vWf+4*(n%6),4)}, {ar(16*(i%14)+4*mt,4)}, {0 if i % 14 == 0 else d}"

def gelu(acc, half, pk, cluster=0):
    s = S(); st = S()
    for T in range(2):
        for mt in range(2):
            b = acc + 32*T + 16*mt
            o = b
            for jp in range(0, 8, 2):
                t = vGt + jp
                g0, u0 = b+jp, b+8+jp
                if pk:
                    s(f"""v_pk_mul_f32 {vr(t,2)}, {vr(g0,2)}, {vr(g0,2)}
                    v_pk_mul_f32 {vr(u0,2)}, {vr(u0,2)}, {vr(g0,2)}
                    v_pk_fma_f32 {vr(t,2)}, {vr(t,2)}, {vr(vC1,2)}, {sr(sK0,2)}
                    v_pk_mul_f32 {vr(t,2)}, {vr(t,2)}, {vr(g0,2)}
                    v_exp_f32 v{t}, v{t}
                    v_exp_f32 v{t+1}, v{t+1}
                    v_pk_add_f32 {vr(t,2)}, {vr(t,2)}, {sr(sK1,2)}
                    v_rcp_f32 v{t}, v{t}
                    v_rcp_f32 v{t+1}, v{t+1}
                    v_pk_mul_f32 {vr(t,2)}, {vr(t,2)}, {vr(u0,2)}
                    v_cvt_pk_bf16_f32 v{o+jp//2}, v{t}, v{t+1}""")
                else:
                    s(f"""v_mul_f32 v{t}, v{g0}, v{g0}
                    v_mul_f32 v{t+1}, v{g0+1}, v{g0+1}
                    v_mul_f32 v{u0}, v{u0}, v{g0}
                    v_fma_f32 v{t}, v{t}, v{vC1}, s{sK0}
                    v_fma_f32 v{t+1}, v{t+1}, v{vC1}, s{sK0}
                    v_mul_f32 v{u0+1}, v{u0+1}, v{g0+1}
                    v_mul_f32 v{t}, v{t}, v{g0}
                    v_mul_f32 v{t+1}, v{t+1}, v{g0+1}
                    v_exp_f32 v{t}, v{t}
                    v_exp_f32 v{t+1}, v{t+1}
                    v_add_f32 v{t}, 1.0, v{t}
                    v_add_f32 v{t+1}, 1.0, v{t+1}
                    v_rcp_f32 v{t}, v{t}
                    v_rcp_f32 v{t+1}, v{t+1}
                    v_mul_f32 v{t}, v{t}, v{u0}
                    v_mul_f32 v{t+1}, v{t+1}, v{u0+1}
                    v_cvt_pk_bf16_f32 v{o+jp//2}, v{t}, v{t+1}""")
            (st if cluster else s)(f"buffer_store_dwordx4 {vr(o,4)}, v{vL16}, {sr(rWS,4)}, s{sHst} offen offset:{1024*(2*T+mt)} sc1", f"h{half}")
    return s.add(st)

def chunks(st, n):
    m = len(st); c = [m*k//n for k in range(n+1)]
    for k in range(1, n):
        while c[k] < m and glued(st[c[k]]): c[k] += 1
    return [S(st[c[k]:c[k+1]]) for k in range(n)]

def wd_move(q):
    t = S(); t.wait_vm(f"it{21+q}"); t.add(wd_reads(q)); return t
def wd_item(u):
    t = S()
    prev = [p for p in range(u) if USLOT[p] == USLOT[u]]
    if prev: t.wait_lg(f"wd{prev[-1]}")
    return split_vm(t.add(item(21+u)))

def beta0():
    t = S()
    t.wait_vm(("it0", "it1")); t("s_barrier")
    for r, tk in b_reads(0): t(r, tk)
    return t

def stageB(mv):
    side = {k: [] for k in range(14)}
    assert not len(mv)
    late = S() if (OPT['mpf'] or OPT['tlb']) else setup_scalar()
    for k, c in enumerate(chunks(late, 6)): side[k].append((c, 0, 32))
    for k, c in enumerate(chunks(setup_start2().add(setup_conv()).add(setup_exp()), 6)): side[k].append((c, 4 if k == 0 else 0, 32))
    side[6].append((setup_dd(), 0, 24))
    t = S()
    for k in range(4): t(f"v_mov_b32 v{VI[k]}, v{vGt+k}")
    side[6].append((t, 14, 32))
    assert plan_b.lastw < 32*13
    t = S()
    for k in range(4): t(f"v_lshrrev_b32 v{VI[4+k]}, 16, v{VI[k]}\nv_and_b32 v{VI[k]}, 0xffff, v{VI[k]}")
    if OPT['dk']: t(f"v_lshlrev_b32 v12, 16, v{vDk}\nv_and_b32 v13, 0xffff0000, v{vDk}")
    t2 = S(t[8:]); t = S(t[:8]); side[13].append((t2, 14, 32))
    for k in range(32): t(f"v_accvgpr_read_b32 v{ACC1+k}, a{224+k}")
    side[13].append((t, 0, 32))
    t = S(); tile_r(t, 2); side[13].append((t, 20, 32))
    allg = []
    for n in range(OPT['npre'], 21): allg += split_vm(item(n))
    for u in range(NB): allg += wd_item(u)
    vm = {}; p = 0
    for k in range(14): vm[k] = allg[p:p+CNT[k]]; p += CNT[k]
    for q, h in MOVES.items(): side[h//2].append((wd_move(q), 16*(h % 2), 16*(h % 2)+16))
    iss, chk = poll(NHELP, sDbg, 0)
    f1 = OPT['f1']
    if OPT['f1l']:
        stageB.ut = []
        if OPT['f1l'] < 3:
            i0, c0 = poll(NHELP, sDbg, 128, sJ_)
            side[f1].append((i0, 0, 1)); stageB.ut = [c0]
        stageB.late = (iss, chk)
    else: side[f1].append((iss, 0, 1))
    chk(f"""buffer_load_dwordx4 {ar(aU,4)}, v{vUo}, {sr(rWS,4)}, s{sUTld} offen sc1
    buffer_load_dwordx4 {ar(aU+4,4)}, v{vUo}, {sr(rWS,4)}, s{sUTld} offen offset:128 sc1
    buffer_load_dword v{vG+1}, v{vG}, {sr(rWS,4)}, s{sGld} offen offset:64 sc1
    buffer_load_dword v{vG}, v{vG}, {sr(rWS,4)}, s{sGld} offen sc1""")
    if not OPT['f1l']: stageB.ut = [chk]
    for k, c in enumerate(chunks(gelu(ACC1, 1, False, OPT['cl1']), OPT['nst'])): side[7+k].insert(0, (c, 2 if k == 0 else 0, 32))
    out = S()
    if not OPT['eb']: out.add(beta0())
    stamp(out, "B0")
    for s_ in range(14):
        base = S()
        at = {}
        for hf in range(2):
            i = 2*s_ + hf + 1
            rd = b_reads(i) if i < 28 else []
            gaps = list(range(12)) if len(rd) == 12 else [0, 1, 3, 4, 6, 7, 9, 10]
            for r, p in zip(rd, gaps): at[p + 19*hf] = r
        for idx in range(32):
            n = 8*s_ + idx//4
            base(b_mfma(n, idx % 4 if n % 2 == 0 else 3 - idx % 4))
            if idx == 19:
                nxt = s_ + 1
                toks = (f"it{2*nxt}", f"it{2*nxt+1}") if nxt < 7 else (f"it{7+nxt}",) if nxt < 14 else None
                if toks: base.wait_vm(toks)
                base.wait_lg(f"br{8*s_+7}"); base("s_barrier")
            elif idx % 4 == 3 and idx not in (23, 27) and n < 111: base.wait_lg(f"br{n+1}")
            if idx in at: base(*at[idx])
        grp = vm[s_]
        sl = SLOTS[len(grp)]
        st = place(base, grp, sl)
        for sd, a, b in sorted(side[s_], key=lambda e: -sum(x.kind == 'ds' for x in e[0])):
            if len(sd): st = (pour if OPT['pour'] else weave)(st, sd, start=a, end=b)
        out.add(st)
        stamp(out, f's{s_}')
        if s_ == 6: stamp(out, "B1")
    return out

def wd_reads(u):
    s = S()
    for dt in range(4):
        for h in range(2):
            a, o = lds_addr(vDr, 4, dt, USLOT[u], h*2048)
            s(f"ds_read_b64_tr_b16 {ar(16*(u%7)+4*dt+2*h, 2)}, {a} offset:{o}", f"wd{u}")
    return s

def hreg(u, o): return ar(112+16*u+o, 4) if u < 9 else vr(240-16*(u-9)+o, 4)
def h_loads(u):
    s = S()
    for mt in range(4):
        s(f"buffer_load_dwordx4 {hreg(u, 4*mt)}, v{vH1 if mt < 2 else vH2}, {sr(rWS,4)}, s{sHld} offen offset:{1024*(mt&1)} sc1")
    if u != 13 and OPT['rd']: adv(s, sHld, 4096, sFC, 7*4096, 28*4096 if u == 6 else 0)
    elif u != 13: s(f"s_add_u32 s{sHld}, s{sHld}, {4096 if u != 6 else (28-6)*4096}")
    return s

def f_read(t):
    b = vWf + 4*(t % 4)
    return f"ds_read_b64_tr_b16 {vr(b,2)}, v{vFr} offset:{256*t}\nds_read_b64_tr_b16 {vr(b+2,2)}, v{vFr} offset:{256*t+32}"
def g_read(e):
    return f"ds_read_b64_tr_b16 {vr(ACC2+4*e,2)}, v{vGr} offset:{256*e+32}\nds_read_b64_tr_b16 {vr(ACC2+4*e+2,2)}, v{vGr} offset:{256*e}"

def pairup(g):
    return [S(g[k]).add(g[k+1] if k+1 < len(g) else []) for k in range(0, len(g), 2)]

def stageTail():
    s = S()
    s(f"s_add_u32 s{sHst}, s{sHst}, {28*4096}")
    g = list(stageB.ut)
    todo = [q for q in range(7) if q not in MOVES]
    for u in range(NB, NB+OPT['ntail']):
        prev = [p for p in range(u) if USLOT[p] == USLOT[u]]
        while prev and prev[-1] in todo: g.append(wd_move(todo.pop(0)))
        g += pairup(wd_item(u))
        if todo and todo[0] < NB and OPT['mvt']: g.append(wd_move(todo.pop(0)))
    stageTail.todo = todo
    t = S(); t.wait_vm("h1"); t(flag(sF2w)); t(f"s_add_u32 s{sF2w}, s{sF2w}, {128*FS}")
    if OPT['f1l'] < 3: g.insert(min(len(g), len(stageB.ut) + OPT['f2a']), t)
    else: stageB.late[1].add(t); s('L_tail:')
    g2 = gelu(ACC2, 2, True, OPT['cl2'])
    if OPT['cl2'] and OPT['slo'] < 100:
        st = g2[-4:]; g2 = S(g2[:-4]); n = len(g2); lo = OPT['slo']/100
        for k in (2, 1, 0): g2.insert(max(int(n*(lo + (1-lo)*k/3)), n*(k+1)//4), st[k])
        g2.append(st[3])
    gl = sprinkle(g2, g, 0.0, OPT['thi']/100)
    if OPT['f1l']:
        gl = sprinkle(gl, [stageB.late[0]], OPT['f1p']/100, 1.0)
        if OPT['f1l'] == 1: gl.add(stageB.late[1])
        else:
            k = min(i for i, x in enumerate(gl) if x.tok == 'h2')
            gl = S(gl[:k]).add(stageB.late[1]).add(gl[k:])
    s.add(gl)
    return s

def post_list():
    nt = NB + OPT['ntail']
    assert nt >= 7
    W = [('w', u) for u in range(nt, 14)]
    L = [('h', u) for u in range(7)]
    if OPT['ord'] == 0: L += W + [('h', u) for u in range(7, 14)]
    else:
        L += [('h', 7), ('h', 8)]
        for u in range(9, 14):
            L += [x for x in W if x[1] <= u + 1 and x not in L] + [('h', u)]
    return L
def unit_groups(x): return split_vm(h_loads(x[1])) if x[0] == 'h' else wd_item(x[1])

def stageSSM():
    a2, ex = stageA()
    s = S()
    iss, chk = poll(7, sWs, f"s{sF2r}")
    a2 = sprinkle(a2, [iss], OPT['p2a']/100, 1.0)
    hl = S().add(chk)
    for u in range(OPT['nha']): hl.add(h_loads(u))
    s.add(sprinkle(a2, split_vm(hl), OPT['c2a']/100, 1.0))
    stamp(s, "A2")
    t = S(); t.wait_vm("h2"); t(flag(sF2w)); t(f"s_add_u32 s{sF2r}, s{sF2r}, {128*FS}")
    hq = OPT['nha']; hl = S()
    for u in range(hq, hq+OPT['nhx']): hl.add(h_loads(u))
    hq += OPT['nhx']
    if OPT['wh2'] <= 100: s.add(sprinkle(ex, [t] + pairup(split_vm(hl)), OPT['wh2']/100, 1.0)); th2 = []
    else: s.add(sprinkle(ex, pairup(split_vm(hl)), OPT['xlo']/100, 1.0)); th2 = [t]
    stamp(s, "exp")
    main = S()
    for t in range(3): main(f_read(t))
    def flush(c):
        d = ACC1 + 4*c; t = S()
        for j in (2, 1, 0):
            t(f"v_add_f32_dpp v{d+j}, v{d+j+1}, v{d+j} wave_shr:1 row_mask:0xf bank_mask:0xf")
        if c:
            for j in (3, 2, 1):
                t(f"v_mov_b32_dpp v{d+j}, v{d-4+j} wave_shl:1 row_mask:0xf bank_mask:0xf")
        return t
    for t in range(16):
        blk = S()
        for c in range(t, 16):
            d = vr(ACC1 + 4*c, 4)
            blk(f"v_mfma_f32_16x16x32_bf16 {d}, {vr(vWf+4*(t%4),4)}, {vr(ACC2+4*(c-t),4)}, {d if t else 0}")
        e = S()
        if t == 0:
            g4 = S()
            for q in range(8, 16): g4(g_read(q))
            blk = weave(blk, g4, start=0, end=8)
        if OPT['xs']:
            if t == 0: e(f_read(3))
            if t == 3:
                b = S(); b.wait_lg("kf2"); b("s_barrier"); b(f_read(4)); b(f_read(5)); b(f_read(6))
                blk = weave(blk, b, start=0, end=7)
            if 3 < t < 13: e(f_read(t+3))
        elif t + 3 < 16: e(f_read(t+3))
        if 1 <= t <= OPT['nfl']: e.add(flush(t-1))
        main.add(pour(blk, e, start=(8 if t == 0 else 0)))
        if OPT['xs'] and t == 2: main = pour(main, stageA.x2, start=9, end=40)
    mvs = S()
    for q in stageTail.todo: mvs.add(wd_move(q))
    if len(mvs): main = weave(main, mvs, start=16, end=16+10*len(stageTail.todo))
    L = post_list()[hq:]
    iss, chk = poll(7, sWs, f"s{sF2r}")
    c0 = OPT['c0']; nc = OPT['nc']
    g = []; sl = []; n1 = None
    for k, x in enumerate(L[:nc]):
        q = unit_groups(x)
        if x == ('h', 7): q[0] = S(chk).add(q[0]); n1 = len(g)
        for j, y in enumerate(q):
            p = c0 + ((132-c0)*(4*k+j))//(4*nc)
            if x[0] == 'h' and x[1] >= 9: p = max(p, {9: 60, 10: 102}[x[1]])
            g.append(y); sl.append(max(p, sl[-1] if sl else 0))
    main = place(main, g, sl)
    main = place(main, th2, [OPT['wh2']-100])
    chk0 = S()
    if OPT['snt']:
        iss0, chk0 = poll(NHELP, sDbg, 128, sJ_)
        main = place(main, [iss0], [110])
    s.add(place(main, [iss], [(sl[n1] if n1 is not None else 140) - OPT['p2b']]))
    stageSSM.rest = (L[nc:], chk, chk0)
    stamp(s, "C")
    f = S()
    for c in range(OPT['nfl'], 16): f.add(flush(c))
    f(f"s_mov_b32 m0, s{sYw}")
    for c in range(16): f(f"ds_write_addtid_b32 v{ACC1+4*c} offset:{544*c}")
    f(f"ds_write_b128 v{vYk}, {vr(ACC1+60,4)}", "yw")
    f2 = S()
    f2.wait_lg("yw"); f2("s_barrier")
    Y = ACC1; UU = ACC1+24; O = ACC1+32
    for ch in range(2):
        f2(f"""ds_read_b128 {vr(Y+12*ch,4)}, v{vYr} offset:{YAS*ch}
        ds_read_b128 {vr(Y+12*ch+8,4)}, v{vYc+ch}
        {'' if OPT['dk'] else f'ds_read_b128 {vr(UU+4*ch,4)}, v{vUw} offset:{UA+160+UAS*ch}'}
        ds_read_b128 {vr(Y+12*ch+4,4)}, v{vYr} offset:{YAS*ch+16}""")
    if not OPT['dk']: f2(f"""s_and_b32 s{sK0}, s{sDSv}, 0xffff
    s_lshl_b32 s{sK0+1}, s{sDSv}, 16
    s_lshr_b32 s{sK1}, s{sDSv}, 16
    s_and_b32 s{sK1+1}, s{sDSv}, 0xffff0000""")
    f2(f"s_add_u32 s{sUTld}, s{sUTld}, {WS_AT-WS_UT}")
    f3 = S()
    for ch in range(2):
        b = Y+12*ch
        for k in range(3): f3(f"v_add_f32 v{b+k}, v{b+k}, v{b+9+k}")
        for k in range(0 if OPT['dk'] else 8):
            f3(f"v_dot2_f32_bf16 v{b+k}, v{UU+4*ch+k//2}, s{(sK0 if ch == 0 else sK1)+(k&1)}, v{b+k}")
        for k in range(4):
            f3(f"v_cvt_pk_bf16_f32 v{O+4*ch+k}, v{b+2*k}, v{b+2*k+1}")
        f3(f"buffer_store_dwordx4 {vr(O+4*ch,4)}, v{vUo}, {sr(rWS,4)}, s{sUTld} offen offset:{128*ch} sc1", "at")
    return s, (f, f2, f3)

def stageD(fin):
    def mf(u):
        r = S()
        for mt in range(4):
            for dt in (range(4) if mt % 2 == 0 else range(3, -1, -1)):
                d = vr(DACC + 16*((dt >> 1) + 2*(mt >> 1)) + 4*(2*(dt & 1) + (mt & 1)), 4)
                r(f"v_mfma_f32_16x16x32_bf16 {d}, {ar(16*(u%7)+4*dt, 4)}, {hreg(u, 4*mt)}, {0 if u == 0 else d}")
        return r
    s = S()
    H2 = ACC1
    rest, chk2, chk0 = stageSSM.rest
    if rest[0][0] == 'w' and DPOS[0] == 0:
        j = [x[0] for x in rest].index('h'); rest.insert(0, rest.pop(j))
    assert len(rest) <= len(DPOS), rest
    hsched = dict(zip(DPOS, rest))
    TM = OPT['tm']; SN = OPT['snt']
    def redw(t):
        r = S()
        for k in range(4): r(f"ds_write_b128 v{RW}, {vr(DACC+16*t+4*k,4)} offset:{(t-1)*SLOT+1024*k}")
        return r
    ald = "\n".join(f"buffer_load_dwordx4 {vr(E0+4*q,4)}, v{AO}, {sr(rWS,4)}, s{sATld} offen offset:{2048*q} sc1" for q in range(2))
    al = S(); ast = S()
    if SN:
        k = len(slow)
        tst = f"""v_max3_u32 v{vPoll}, v{E0}, v{E0+1}, v{E0+2}
    v_max3_u32 v{vZero}, v{E0+3}, v{E0+4}, v{E0+5}
    v_max3_u32 v{vPoll}, v{vPoll}, v{E0+6}, v{E0+7}
    v_max_u32 v{vPoll}, v{vPoll}, v{vZero}
    v_cmp_eq_u32 vcc, -1, v{vPoll}"""
        ast(tst); ast(f"s_cbranch_vccnz L_slow{k}\nL_back{k}:")
        back = f"L_out{k}" if OPT['stamp'] else f"L_back{k}"
        slow.append(f"""L_slow{k}:
    {'s_memtime s[100:101]' if OPT['stamp'] else ''}
    s_mov_b32 s{sKb}, 0
L_spin{k}:
    s_add_u32 s{sKb}, s{sKb}, 1
    s_cmp_gt_u32 s{sKb}, 0x8000
    s_cbranch_scc1 {back}
    {ald}
    s_waitcnt vmcnt(0)
    {tst}
    s_nop 1
    s_cbranch_vccnz L_spin{k}
    s_branch {back}""" + (f"""
L_out{k}:
    s_waitcnt lgkmcnt(0)
    s_mov_b32 s12, s100
    s_memtime s[100:101]
    s_waitcnt lgkmcnt(0)
    s_sub_u32 s12, s100, s12
    v_writelane_b32 v47, s12, 23
    v_writelane_b32 v47, s{sKb}, 28
    s_branch L_back{k}""" if OPT['stamp'] else ""))
    else:
        iss, chk = poll(16, sWs, f"s{sF3r}")
        al.add(chk)
    al(ald)
    for q in range(2):
        ast(f"ds_write_b128 v{AW}, {vr(E0+4*q,4)} offset:{1024*q}")
    for k in range(4):
        ast(f"ds_read_b64_tr_b16 {vr(E0+8+2*k,2)}, v{AR} offset:{1024*(k>>1)+32*(k&1)}")
    for u in range(14 - TM):
        blk = mf(u)
        if 7 <= u + OPT['mvd'] < 14:
            r = wd_move(u+OPT['mvd'])
            blk = place(blk, chunks(r, 8), [0, 1, 4, 5, 8, 9, 12, 13])
        ex = S()
        if u == OPT['f3'] and not SN: ex.wait_vm("at"); ex(flag(sF3w))
        if u in hsched:
            if hsched[u] == ('h', 7): ex.add(chk2)
            for y in unit_groups(hsched[u]): ex.add(y)
        if len(ex):
            gq = split_vm(ex); blk = place(blk, gq, [2, 6, 10, 14, 15][:len(gq)])
        W_ = pour if OPT['dp'] else weave
        if u == 0: blk = W_(blk, fin[0])
        if u == 1: blk = W_(blk, fin[1], start=OPT['f2s'], end=OPT['f2s']+8)
        if u == 2:
            e_ = OPT['f3e']
            blk = W_(blk, S(x for x in fin[2] if x.kind != 'vstore'), start=0, end=e_)
            blk = place(blk, split_vm(S(chk0).add(x for x in fin[2] if x.kind == 'vstore')), [e_, e_+2])
        if u in (3, 4): blk = W_(blk, chunks(setup_E(), 2)[u-3])
        s.add(blk)
        stamp(s, f'd{u}')
        if u == 6: stamp(s, "D1")
    last = S()
    for u in range(14 - TM, 14): last.add(mf(u))
    tl = S(); n = 4*TM
    for t in (1, 2, 3, 0): tl.add(x for x in last if min(x.wr)[1]//16 == DACC//16 + t)
    if TM:
        wr = []; sl = []
        for j, t in enumerate((1, 2, 3)):
            for k, x in enumerate(redw(t)): wr.append(S([x])); sl.append(n*(j+1) + 2 + (k*n)//4)
        tl = place(tl, wr, sl)
    s.add(tl)
    if not SN: s = place(s, [iss], [OPT['p3']])
    s = place(s, split_vm(al), [OPT['al'], OPT['al']+3])
    if OPT['ast'] <= 224: s = place(s, [ast], [OPT['ast']])
    stamp(s, "D2")
    G, GH, OMG = 8, 9, 10
    if not TM:
        for t in range(1, 4): s.add(redw(t))
    s.wait_lg(); s("s_barrier")
    stamp(s, 'e1')
    for k in range(4):
        for t in range(1, 4):
            s(f"ds_read_b128 {vr(H2+16*(t-1)+4*k,4)}, v{RR+t-1} offset:{(t-1)*SLOT+1024*k}")
    if OPT['ast'] == 226: s.add(ast)
    for k in range(4):
        for p in range(2):
            o = 4*k + 2*p
            s(f"""v_pk_add_f32 {vr(DACC+o,2)}, {vr(DACC+o,2)}, {vr(H2+o,2)}
            v_pk_add_f32 {vr(H2+16+o,2)}, {vr(H2+16+o,2)}, {vr(H2+32+o,2)}""")
        for p in range(2):
            o = 4*k + 2*p
            s(f"v_pk_add_f32 {vr(DACC+o,2)}, {vr(DACC+o,2)}, {vr(H2+16+o,2)}")
        for p in range(2):
            o = 4*k + 2*p
            s(f"v_pk_mul_f32 {vr(DACC+o,2)}, {vr(DACC+o,2)}, {vr(OMG+4*(k&1),2)}")
    stamp(s, 'e2')
    if OPT['ast'] == 225: s.add(ast)
    for k in range(4):
        for j in range(4):
            s(f"v_dot2_f32_bf16 v{DACC+4*k+j}, v{E0+8+2*k+j//2}, v{(G if j % 2 == 0 else GH)+4*(k&1)}, v{DACC+4*k+j}")
        s(f"""v_cvt_pk_bf16_f32 v{E0+2*k}, v{DACC+4*k}, v{DACC+4*k+1}
        v_cvt_pk_bf16_f32 v{E0+2*k+1}, v{DACC+4*k+2}, v{DACC+4*k+3}""")
    for k in range(4):
        s(f"ds_write_b64 v{OW}, {vr(E0+2*k,2)} offset:{3*SLOT+32*(k>>1)+16*80*(k&1)}")
    for q in range(2):
        s(f"ds_read_b128 {vr(H2+4*q,4)}, v{OR_} offset:{3*SLOT+16*80*q}")
    sc = " sc1" if OPT['outsc'] else ""
    s(f"s_add_u32 s{sT0}, s{sOst}, {16*896}")
    s(f"buffer_store_dwordx4 {vr(H2,4)}, v{OO}, {sr(rO,4)}, s{sOst} offen{sc}")
    s(f"buffer_store_dwordx4 {vr(H2+4,4)}, v{OO}, {sr(rO,4)}, s{sT0} offen{sc}")
    return s

def helper():
    s = S()
    GWL = 57344; TS = 59392
    if OPT['wsb']: s(f"s_add_u32 s{sWs}, s{sWs}, {OPT['wsb']<<20}\ns_addc_u32 s{sWs+1}, s{sWs+1}, 0")
    s(f"""
    v_lshrrev_b32 v3, 6, v0
    v_and_b32 v2, 63, v0
    v_readfirstlane_b32 s3, v3
    v_lshlrev_b32 v1, 4, v2
    s_mul_i32 s6, s2, 57344
    s_mul_i32 s7, s3, 14336
    s_add_u32 s8, s6, s7
    {srd(rX, sU, 2048*896)}
    {srd(rW, sGw, 896)}
    {srd(rWS, sWs, WS_END)}
    {srd(rO, sDbg, 256)}
    v_mov_b32 v8, 0
    v_mov_b32 v9, 0
    v_mov_b32 v10, 0
    v_mov_b32 v11, 0
    v_cmp_gt_u32 vcc, 40, v0
    v_mov_b32 v4, 0x80000000
    v_lshrrev_b32 v5, 2, v0
    v_mul_u32_u24 v5, {FS-64}, v5
    v_add_u32 v5, v5, v1
    v_cndmask_b32 v5, v4, v5, vcc
    s_mul_i32 s9, s2, {10*FS}
    s_add_u32 s9, s9, {WS_F2}
    buffer_store_dwordx4 v[8:11], v5, {sr(rWS,4)}, s9 offen sc1
    """)
    for k in range(14):
        if k % 4 == 0: s(f"s_add_u32 m0, s7, {1024*k}\ns_add_u32 s9, s8, {1024*k}")
        s(f"buffer_load_dwordx4 v1, {sr(rX,4)}, s9 offen offset:{1024*(k%4)} lds", "x")
    s(f"s_mov_b32 m0, {GWL}\nbuffer_load_dwordx4 v1, {sr(rW,4)}, 0 offen lds", "x")
    s(f"""
    v_min_u32 v24, 195, v0
    v_mul_u32_u24 v25, 4682, v24
    v_lshrrev_b32 v25, 16, v25
    v_mul_u32_u24 v25, {3584-14*128}, v25
    v_lshlrev_b32 v24, 7, v24
    s_mul_i32 s14, s2, {14*3584}
    v_add3_u32 v25, v25, v24, s14
    s_lshr_b32 s14, s14, 1
    v_add_u32 v24, s14, v24
    v_add_u32 v26, {896*896}, v24
    v_min_u32 v31, 1, v0
    v_lshlrev_b32 v31, 31, v31
    v_mov_b32 v9, 1
    s_lshl_b32 s15, s2, 2""")
    if OPT['hpf'] & 1: s(f"global_load_dword v27, v25, {sr(sWg,2)} offset:1792\nglobal_load_dword v28, v25, {sr(sWu,2)} offset:1792")
    if OPT['hpf'] & 4: s(f"global_load_dword v29, v24, {sr(sWdn,2)}")
    if OPT['hpf'] & 8: s(f"global_load_dword v30, v26, {sr(sWdn,2)}")
    s(f"""
    v_lshrrev_b32 v6, 4, v2
    v_bfe_u32 v7, v2, 2, 2
    v_lshl_add_u32 v7, v6, 3, v7
    v_mul_u32_u24 v7, 896, v7
    v_and_b32 v12, 3, v2
    s_mul_i32 s9, s3, 224
    v_lshl_add_u32 v12, v12, 3, s9
    v_add_u32 v12, v12, v7
    s_mul_i32 s10, s3, {7*2304}
    s_add_u32 s10, s10, {TS}
    v_and_b32 v13, 15, v2
    v_mul_u32_u24 v14, 144, v13
    v_lshl_add_u32 v14, v6, 4, v14
    v_add_u32 v14, s10, v14
    v_lshrrev_b32 v15, 3, v2
    v_lshl_add_u32 v15, v15, 4, v1
    v_add_u32 v15, s10, v15
    v_mul_u32_u24 v16, 896, v13
    v_lshl_add_u32 v16, v6, 4, v16
    v_add_u32 v16, s7, v16
    v_lshlrev_b32 v17, 4, v6
    v_cmp_gt_u32 vcc, 16, v2
    v_lshlrev_b32 v18, 2, v2
    v_cndmask_b32 v18, v4, v18, vcc
    s_add_u32 s11, s8, {WS_UT}
    s_lshl2_add_u32 s13, s2, s3
    s_lshl_b32 s13, s13, 6
    s_add_u32 s13, s13, {WS_G}
    """)
    s.wait_vm("x"); s("s_barrier")
    if OPT['f1l'] in (1, 2): s(f"buffer_atomic_add v9, v31, {sr(rO,4)}, 0 offen offset:128 sc1")
    for cg in range(7):
        for t in range(2):
            for h in range(2):
                s(f"ds_read_b64_tr_b16 {vr(128+8*cg+4*t+2*h,2)}, v12 offset:{(32*t+4*h)*896+32*cg}")
    for cg in range(7):
        for t in range(2): s(f"ds_write_b128 v14, {vr(128+8*cg+4*t,4)} offset:{2304*cg+64*t}")
        for t in range(2): s(f"ds_read_b128 {vr(192+8*cg+4*t,4)}, v15 offset:{2304*cg+8*144*t}")
    for cg in range(7):
        for t in range(2): s(f"buffer_store_dwordx4 {vr(192+8*cg+4*t,4)}, v1, {sr(rWS,4)}, s11 offen offset:{1024*t} sc1")
        s(f"s_add_u32 s11, s11, 2048")
    for ks in range(14):
        r = 64 + 8*(ks % 4)
        s(f"""ds_read_b128 {vr(r,4)}, v17 offset:{GWL+64*ks}
        ds_read_b128 {vr(r+4,4)}, v16 offset:{64*ks}
        v_mfma_f32_16x16x32_bf16 v[20:23], {vr(r,4)}, {vr(r+4,4)}, {'v[20:23]' if ks else 0}""")
    s(f"""v_cvt_pk_bf16_f32 v20, 0, v20
    v_mul_f32 v20, {hx(fbits(-LOG2E))}, v20
    v_exp_f32 v20, v20
    v_add_f32 v20, 1.0, v20
    v_rcp_f32 v20, v20
    v_cvt_pk_bf16_f32 v21, 0, v20
    v_sub_f32 v22, 1.0, v21
    v_cvt_pk_bf16_f32 v20, v21, v22
    buffer_store_dword v20, v18, {sr(rWS,4)}, s13 offen sc1""")
    s.wait_vm('*'); s("s_barrier")
    s(f"buffer_atomic_add v9, v31, {sr(rO,4)}, 0 offen sc1")
    if OPT['hpf'] & 16: s(f"global_load_dword v29, v24, {sr(sWdn,2)}")
    if OPT['hpf'] & 32: s(f"global_load_dword v30, v26, {sr(sWdn,2)}")
    assert not (OPT['snt'] and OPT['f1l'] in (1, 2))
    if OPT['snt']:
        s("v_mov_b32 v32, -1\nv_mov_b32 v33, -1\nv_mov_b32 v34, -1\nv_mov_b32 v35, -1")
        for k in range(14):
            if k % 4 == 0: s(f"s_add_u32 s9, s8, {WS_AT+1024*k}")
            s(f"buffer_store_dwordx4 v[32:35], v1, {sr(rWS,4)}, s9 offen offset:{1024*(k%4)} sc1")
        s.wait_vm('*'); s("s_barrier")
        s(f"buffer_atomic_add v9, v31, {sr(rO,4)}, 0 offen offset:128 sc1")
    if OPT['stamp']:
        s(f"""s_mov_b32 s6, s100
        s_memtime s[100:101]
        s_waitcnt lgkmcnt(0)
        s_sub_u32 s6, s100, s6
        v_mov_b32 v8, s6
        s_add_u32 s15, s15, {WS_ST+224*512}
        buffer_store_dword v8, v31, {sr(rWS,4)}, s15 offen""")
    s("s_endpgm")
    fin, _ = finalize(schedule(s))
    helper.size = 4 + sum(sizes(fin).values())
    return "L_helper:\n    s_waitcnt lgkmcnt(0)\n" + text(fin)

def build():
    s = S()
    htxt = helper()
    if OPT['x_sync']:
        s("""s_memrealtime s[100:101]
        s_waitcnt lgkmcnt(0)
        s_or_b32 s4, s100, 0x3ff
        L_sync:
        s_memrealtime s[100:101]
        s_waitcnt lgkmcnt(0)
        s_cmp_lt_u32 s100, s4
        s_cbranch_scc1 L_sync""")
    if OPT['stamp']:
        s(f"v_mov_b32 v47, 0\ns_memrealtime s[100:101]\ns_waitcnt lgkmcnt(0)\nv_writelane_b32 v47, s100, 30")
    stamp(s, "start")
    hot = S()
    hot(f"""s_load_dwordx16 s[16:31], s[0:1], 0
    s_load_dwordx16 s[32:47], s[0:1], 64
    s_load_dwordx2 s[48:49], s[0:1], 128
    s_cmpk_ge_u32 s2, {NHELP+NMAIN}
    s_cbranch_scc1 L_end
    s_cmp_ge_u32 s2, {NHELP}
    s_cbranch_scc1 L_main
    s_getpc_b64 s[4:5]
    v_lshlrev_b32 v1, 7, v0
    v_min_u32 v1, CODE_BYTES, v1
    global_load_dword v19, v1, s[4:5]
    s_branch L_helper
    L_main:""")
    hot[10].kind = 'branch'
    e0, e1, e2 = setup_early(); f0, f1 = first_loads()
    hot.add(e0).add(e1)
    hot("L_karg:\ns_waitcnt lgkmcnt(0)\nL_karg2:")
    stamp(hot, "karg")
    hot.add(f0)
    g0 = []
    for n in range(OPT['npre']): g0 += split_vm(item(n))
    if not OPT['x_pre']:
        it0, it1 = item(0), item(1)
        hot.add(it0[:5]).add(it1[:5])
        hot("L_hotend:")
        s.add(hot).add(f1)
        if OPT['hin']:
            s("s_branch L_main2\n.HELPER"); s[-1].note = helper.size; s("L_main2:")
        s.add(e2).add(it0[5:]).add(it1[5:])
        for k in range(8): g0[k] = S()
    else:
        s.add(hot).add(f1).add(e2)
    s(f"s_mul_i32 s{sScr}, s{sW}, {SCRW}")
    if OPT['x_pre'] or OPT['mpf'] or OPT['tlb']: s.add(setup_scalar())
    if OPT['x_pre']:
        s(srd(rD, sWdn, 1792*896)); s(srd(rWS, sWs, WS_END))
        L = OPT['x_pre']
        if OPT['mpf'] and OPT['tp'] == 0: s.add(touches())
        for n in range(L):
            s.add(item(n))
            if OPT['mpf'] and OPT['tp'] == 4*(n+1): s.add(touches())
        if not OPT['pafter']:
            for k in range(6): s.wait_vm(f'par{k}'); stamp(s, f'p{k}')
        for n in range(18):
            s.wait_vm(f'it{n}'); stamp(s, f'i{n}')
            if n + L < 21: s.add(item(n+L))
    else:
        n0, n1, tp = OPT['n0'], OPT['n1'], OPT['tp']
        if OPT['mpf'] and tp: g0[tp-1].add(touches())
        elif OPT['mpf']: g0[0] = touches().add(g0[0])
        pre = S(); pre(srd(rD, sWdn, 1792*896))
        s.add(pre).add(sprinkle(setup_AB(), g0[8:n0], 0.3, 1.0))
        if OPT['hop']:
            s(f"""s_mov_b64 exec, 0
            s_cmp_eq_u32 s{sW}, 0
            s_cbranch_scc1 L_st1
            s_cmp_eq_u32 s{sW}, 1
            s_cbranch_scc1 L_st2
            s_cmp_eq_u32 s{sW}, 2
            s_cbranch_scc1 L_st3
            s_branch L_st4
            L_hopret:
            s_mov_b64 exec, -1""")
        stamp(s, "setup")
        ka, kw, kb, mv = krows()
        if OPT['x_nokb']: kb = S(kb[:20])
        if OPT['x_noka']: ka = S(ka[:100])
        s.add(sprinkle(ka, g0[n0:n1], OPT['kalo']/100, OPT['kahi']/100))
        if not OPT['x_nokw']: s.add(kw)
        stamp(s, "ka")
        kb = sprinkle(kb, g0[n1:], 0.0, 1.0)
        if OPT['eb']: kb = sprinkle(kb, chunks(beta0(), 2), OPT['eb']/100, OPT['eb']/100 + 0.15)
        s.add(kb)
        stamp(s, "kb")
        s.add(stageB(mv))
        stamp(s, "B2")
        s.add(stageTail())
        stamp(s, "tail")
        if OPT['x_ack']: s("s_waitcnt vmcnt(0)"); stamp(s, "ack")
        ssm, fin = stageSSM()
        s.add(ssm)
        s.add(stageD(fin))
        stamp(s, "E")
    if OPT['stamp']:
        s(f"""s_waitcnt vmcnt(0)
        {'s_memtime' if OPT['stamp'] == 1 else 's_memrealtime'} s[100:101]
        s_waitcnt lgkmcnt(0)
        v_writelane_b32 v47, s100, {len(stamps)}
        {chr(10).join(f'v_writelane_b32 v47, s{18+2*j}, {k}' for j, k in enumerate(asyncst))}
        s_memrealtime s[100:101]
        s_waitcnt lgkmcnt(0)
        v_writelane_b32 v47, s100, 31
        s_lshl2_add_u32 s{sT0}, s{sC}, s{sW}
        s_lshl_b32 s{sT0}, s{sT0}, 7
        s_add_u32 s{sT0}, s{sT0}, {WS_ST}
        v_and_b32 v3, 31, v{vLane}
        v_lshlrev_b32 v3, 2, v3
        s_mov_b64 exec, 0xffffffff
        buffer_store_dword v47, v3, {sr(rWS,4)}, s{sT0} offen""")
        stamps.append("end")
    if PROBE:
        s('s_waitcnt vmcnt(0)'); stamp(s, 'fin')
        s(f"""s_waitcnt lgkmcnt(0)
        s_sub_u32 s12, s20, s100
        s_max_i32 s12, s12, 0
        s_mul_i32 s12, s12, 10
        s_memrealtime s[100:101]
        s_waitcnt lgkmcnt(0)
        s_mov_b32 s8, s100
        L_probe:
        s_memrealtime s[100:101]
        s_waitcnt lgkmcnt(0)
        s_sub_u32 s100, s100, s8
        s_cmp_lt_u32 s100, s12
        s_cbranch_scc1 L_probe""")
    if OPT['x_strip'] == 1:
        s = S(x for x in s if not (x.kind in ('mfma', 'ds', 'trans') or (x.kind == 'valu' and ('f32' in x.op or 'accvgpr' in x.op or x.dpp)) or (x.kind == 'mark' and x.lg is not None)))
        t = S()
        for x in s:
            t.append(x)
            if x.kind == 'vload' and 'x4' in x.op: t("s_waitcnt vmcnt(24)")
        s = t
    if OPT['x_strip'] == 2:
        s = S(x for x in s if not ((x.kind in VM_KINDS and 'v47' not in x.text) or (x.kind == 'mark' and x.vm is not None) or 'L_slow' in x.text))
    if OPT['sched']: s = schedule(s)
    fin, nn = finalize(s)
    info = ''
    fin, nw, na, nb = align_pass(fin, OPT['eoff'], OPT['hop'], OPT['align']); info = f"widened {nw} alignnops {na} bytes {nb} stubs {align_pass.nst}"
    body = text(fin).replace('CODE_BYTES', 'L_last-L_main').replace('    .HELPER', htxt)
    for k in range(align_pass.nst, 0, -1):
        body = body.replace(f"L_stn{k}", f"L_st{k+4}" if k + 4 <= align_pass.nst else "L_hopret")
    open(sys.argv[1]+'.names', 'w').write(','.join(stamps))
    sys.stderr.write(f"NB {NB} slots {USLOT} moves {MOVES} instrs {len(fin)} nops {nn} est {estimate(fin)} {info}\n")
    hdr = open('ref_hdr.txt').read().split('; Override launch')[0]
    return hdr + f"""; One fused launch. Workgroups 0..{NHELP-1}: transpose of u, gate, flag init. Workgroups {NHELP}..{NHELP+NMAIN-1}: S4 kernel
; generation, gate/up GEMM + GELU, causal convolution, down GEMM and the final mix.
; @launch grid=({NHELP+NMAIN},1,1) block=(256,1,1) lds={LDS_SIZE}
.amdgcn_target "amdgcn-amd-amdhsa--gfx950"
.text
.p2align 12
.globl {NAME}_kernel
.p2align 8
.type {NAME}_kernel,@function
{NAME}_kernel:
{body}
L_end:
    s_endpgm
""" + "\n".join(slow) + "\n" + ('' if OPT['hin'] and not OPT['x_pre'] else htxt) + f"""
L_last:
    s_endpgm
.section .rodata,"a"
.p2align 6
.amdhsa_kernel {NAME}_kernel
  .amdhsa_next_free_vgpr 512
  .amdhsa_next_free_sgpr 102
  .amdhsa_accum_offset 256
  .amdhsa_group_segment_fixed_size 0
  .amdhsa_kernarg_size 136
  .amdhsa_user_sgpr_count 2
  .amdhsa_user_sgpr_kernarg_segment_ptr 1
  .amdhsa_system_sgpr_workgroup_id_x 1
.end_amdhsa_kernel
"""

if __name__ == "__main__":
    open(sys.argv[1], 'w').write(build())
```
